```python
import torch

def _softmax(x, axis=-1):
    return torch.softmax(x, dim=axis)
def _gelu(x):
    return torch.nn.functional.gelu(x, approximate="tanh")
def _silu(x):
    return torch.nn.functional.silu(x)
def _sigmoid(x):
    return torch.sigmoid(x)
def _layernorm(x, axis=-1, eps=1e-5):
    m = x.mean(dim=axis, keepdim=True)
    v = x.var(dim=axis, keepdim=True, unbiased=False)
    return (x - m) / torch.sqrt(v + eps)
def _scatter_add(tgt, idx, src, axis=0):
    return tgt.clone().index_add_(axis, idx, src)
def _segment_sum(src, seg, n):
    out = torch.zeros((n,) + src.shape[1:], dtype=src.dtype)
    return out.index_add_(0, seg, src)
def _pad(x, pw):
    flat = tuple(v for pair in reversed(pw) for v in pair)
    return torch.nn.functional.pad(x, flat)

kernel_name = 'gather_scatter__edge_featured_mpnn_egc__graph'

def setup_inputs():

    _w = (lambda a: (lambda t: t.to(torch.bfloat16) if t.is_floating_point() else t)(torch.as_tensor(a)))
    N, deg, D, De = 12500, 64, 64, max(16, 1)
    E = N * deg
    return {
        "x": _w((lambda *s: torch.randn(*s, dtype=torch.bfloat16) * 0.2)(N, D)),
        "e_attr": _w((lambda *s: torch.randn(*s, dtype=torch.bfloat16) * 0.2)(E, De)),
        "src": _w((lambda lo, hi, *s: torch.randint(lo, hi, s))(0, N, E).to(torch.int64)),
        "dst": _w((lambda lo, hi, *s: torch.randint(lo, hi, s))(0, N, E).to(torch.int64)),
        "u_w": _w((lambda *s: torch.randn(*s, dtype=torch.bfloat16) * 0.05)(D, D)),
        "v_w": _w((lambda *s: torch.randn(*s, dtype=torch.bfloat16) * 0.05)(D, D)),
        "g_w": _w((lambda *s: torch.randn(*s, dtype=torch.bfloat16) * 0.2)(2 * D + De, D)),
    }

def reference(x, e_attr, src, dst, u_w, v_w, g_w):
    N, D = x.shape
    g_in = torch.concatenate([x[dst], x[src], e_attr], axis=-1)
    eta = _sigmoid(g_in @ g_w)
    hv = x @ v_w
    msg = eta * hv[src]
    agg = _segment_sum(msg, dst, N)
    return _silu(x @ u_w + agg)
```

```python
import sys, struct

OPT = dict(MOVE=0, E_AUX='', K1_LD_AUX='', K1_ST_AUX='', PAY_ST_AUX='', STAMP=0, PRIO=0, NOX=0, NOE=0, CYC=0, PKA=1, PKF=1, NOEV=0, NODMA=0, NODS=0, NOVM=0, TRACE=0, XPF=1)
for a in sys.argv[2:]:
    k, v = a.split('=')
    OPT[k] = int(v) if v.lstrip('-').isdigit() else v.replace('_', ' ')
MOVE = OPT['MOVE']

N, E = 12500, 800000
NB, BN = 256, 49
NCH, CH = 250, 3200
REC, OFFS, WF, PAY = 0, 0x400000, 0x480000, 0x800000
WS_BYTES = PAY + E * 32
NFRAG = 34
NLOG2E = struct.unpack('<I', struct.pack('<f', -1.4426950408889634))[0]
MAIN = 'gather_scatter__edge_featured_mpnn_egc__graph_kernel'

L = []
def I(s):
    for ln in s.strip('\n').split('\n'):
        ln = ln.strip()
        if ln:
            L.append(ln if ln.endswith(':') else '    ' + ln)
def r(a, n): return f'v[{a}:{a+n-1}]'
def sr(a, n): return f's[{a}:{a+n-1}]'
def srd(d, base, nbytes):
    I(f'''s_mov_b32 s{d}, s{base}
    s_mov_b32 s{d+1}, s{base+1}
    s_mov_b32 s{d+2}, {nbytes}
    s_mov_b32 s{d+3}, 0x20000''')
def dpp_scan(v):
    for ctl in ('row_shr:1', 'row_shr:2', 'row_shr:4', 'row_shr:8'):
        I(f's_nop 1\nv_add_u32_dpp v{v}, v{v}, v{v} {ctl} row_mask:0xf bank_mask:0xf bound_ctrl:1')
    I(f's_nop 1\nv_add_u32_dpp v{v}, v{v}, v{v} row_bcast:15 row_mask:0xa bank_mask:0xf')
    I(f's_nop 1\nv_add_u32_dpp v{v}, v{v}, v{v} row_bcast:31 row_mask:0xc bank_mask:0xf')
def header(name):
    I(f'.globl {name}\n.p2align 8\n.type {name},@function\n{name}:')

K1_HIST, K1_BASE, K1_SORT, K1_SORTE, K1_EIMG = 0, 1024, 2048, 14848, 27648
K1_LDS = (K1_EIMG + CH * 32) if MOVE else K1_SORTE

def gen_part():
    header('part_kernel')
    D, S, B4, RK, RC, EL = 8, 16, 24, 32, 40, 48
    I(f'''
    s_cmp_ge_u32 s2, {NCH+5}
    s_cbranch_scc1 P_END
    s_load_dwordx4 s[4:7], s[0:1], 16
    s_load_dwordx2 s[24:25], s[0:1], 72
    s_load_dwordx2 s[26:27], s[0:1], 8
    v_lshrrev_b32 v3, 6, v0
    v_lshlrev_b32 v1, 2, v0
    v_readfirstlane_b32 s28, v3
    s_cmp_ge_u32 s2, {NCH}
    s_cbranch_scc1 P_PREP
    v_mov_b32 v2, 0
    ds_write_b32 v1, v2
    v_lshlrev_b32 v4, 4, v0
    v_lshlrev_b32 v5, 3, v0
    v_add_u32 v5, 8192, v5
    v_add_u32 v6, 12288, v1
    s_mul_i32 s29, s2, {CH*4}
    s_waitcnt lgkmcnt(0)
    ''')
    srd(8, 4, E * 4); srd(12, 6, E * 4); srd(16, 24, WS_BYTES)
    ax = OPT['K1_LD_AUX']
    I(f'''
    s_cmp_ge_u32 s28, 2
    s_cbranch_scc1 P_NO6A
    buffer_load_dword v{D+6}, v6, s[12:15], s29 offen {ax}
    buffer_load_dword v{S+6}, v6, s[8:11], s29 offen {ax}
P_NO6A:
    buffer_load_dwordx4 {r(D,4)}, v4, s[12:15], s29 offen {ax}
    buffer_load_dwordx2 {r(D+4,2)}, v5, s[12:15], s29 offen {ax}
    buffer_load_dwordx4 {r(S,4)}, v4, s[8:11], s29 offen {ax}
    buffer_load_dwordx2 {r(S+4,2)}, v5, s[8:11], s29 offen {ax}
    ''')
    if MOVE:
        srd(20, 26, E * 32)
        I(f'''
        v_and_b32 v7, 63, v0
        v_lshlrev_b32 v7, 4, v7
        s_mul_i32 s30, s2, {CH*32}
        s_lshl_b32 s31, s28, 10
        s_add_u32 s30, s30, s31
        s_add_u32 s31, s31, {K1_EIMG}
        ''')
        for n in range(13):
            if n == 12:
                I('s_cmp_ge_u32 s28, 4\ns_cbranch_scc1 P_NO13')
            I(f'''s_mov_b32 m0, s31
            s_add_u32 s31, s31, 8192
            buffer_load_dwordx4 v7, s[20:23], s30 offen {ax} lds
            s_add_u32 s30, s30, 8192''')
        I('P_NO13:')
    sh = 5 if MOVE else 20
    I(f'''
    v_lshlrev_b32 v56, {2+sh}, v0
    v_lshlrev_b32 v57, {1+sh}, v0
    v_add_u32 v57, {2048 << sh}, v57
    v_lshlrev_b32 v58, {sh}, v0
    v_add_u32 v58, {3072 << sh}, v58
    v_mov_b32 v59, 1
    s_mov_b32 s32, {-BN & 0xffffffff}
    s_mov_b32 s33, {1 << sh}
    s_mov_b32 s34, {2 << sh}
    s_mov_b32 s35, {3 << sh}
    s_barrier
    s_waitcnt vmcnt({12 if MOVE else 0})
    ''')
    def slot(k):
        eb = 56 if k < 4 else (57 if k < 6 else 58)
        kk = k if k < 4 else (k - 4 if k < 6 else 0)
        ks = '0' if kk == 0 else f's{32+kk}'
        I(f'''v_mul_u32_u24 v{B4+k}, 21400, v{D+k}
        v_lshrrev_b32 v{B4+k}, 20, v{B4+k}
        v_mad_i32_i24 v{D+k}, v{B4+k}, s32, v{D+k}
        v_lshlrev_b32 v{B4+k}, 2, v{B4+k}
        ds_add_rtn_u32 v{RK+k}, v{B4+k}, v59''')
        if MOVE:
            I(f'''v_lshlrev_b32 v{RC+k}, 7, v{S+k}
            v_lshl_or_b32 v{RC+k}, v{D+k}, 1, v{RC+k}
            v_lshl_or_b32 v{RC+k}, v{D+k}, 26, v{RC+k}
            v_add_u32 v{EL+k}, {ks}, v{eb}''')
        else:
            I(f'''v_lshl_or_b32 v{RC+k}, v{S+k}, 6, v{D+k}
            v_add3_u32 v{RC+k}, v{RC+k}, v{eb}, {ks}''')
    for k in range(6): slot(k)
    I('s_cmp_ge_u32 s28, 2\ns_cbranch_scc1 P_NO6B')
    slot(6)
    I(f'''
P_NO6B:
    v_and_b32 v60, 63, v0
    v_lshlrev_b32 v60, 4, v60
    s_waitcnt lgkmcnt(0)
    s_barrier
    ds_read_b128 v[64:67], v60
    s_waitcnt lgkmcnt(0)
    v_add_u32 v69, v64, v65
    v_add_u32 v70, v69, v66
    v_add_u32 v71, v70, v67
    v_mov_b32 v72, v71
    ''')
    dpp_scan(72)
    I(f'''
    v_sub_u32 v68, v72, v71
    v_add_u32 v71, v68, v70
    v_add_u32 v70, v68, v69
    v_add_u32 v69, v68, v64
    ds_write_b128 v60, v[68:71] offset:{K1_BASE}
    s_waitcnt lgkmcnt(0)
    ''')
    for k in range(6):
        I(f'ds_read_b32 v{D+k}, v{B4+k} offset:{K1_BASE}')
    I(f'''
    s_cmp_lt_u32 s28, 4
    s_cbranch_scc1 P_NOOFF
    v_add_u32 v61, -1024, v1
    ds_read_b32 v62, v61
    ds_read_b32 v63, v61 offset:{K1_BASE}
    v_lshlrev_b32 v61, 8, v61
    s_lshl_b32 s36, s2, 2
    s_add_u32 s36, s36, {OFFS}
    s_waitcnt lgkmcnt(0)
    v_lshl_or_b32 v62, v62, 16, v63
    buffer_store_dword v62, v61, s[16:19], s36 offen {OPT['K1_ST_AUX']}
P_NOOFF:
    s_cmp_ge_u32 s28, 2
    s_cbranch_scc1 P_NO6C
    ds_read_b32 v{D+6}, v{B4+6} offset:{K1_BASE}
    s_waitcnt lgkmcnt(0)
    v_add_lshl_u32 v{RK+6}, v{RK+6}, v{D+6}, 2
    ds_write_b32 v{RK+6}, v{RC+6} offset:{K1_SORT}
    ''')
    if MOVE: I(f'ds_write_b32 v{RK+6}, v{EL+6} offset:{K1_SORTE}')
    I('P_NO6C:\ns_waitcnt lgkmcnt(0)')
    for k in range(6):
        I(f'''v_add_lshl_u32 v{RK+k}, v{RK+k}, v{D+k}, 2
        ds_write_b32 v{RK+k}, v{RC+k} offset:{K1_SORT}''')
        if MOVE: I(f'ds_write_b32 v{RK+k}, v{EL+k} offset:{K1_SORTE}')
    I(f'''
    s_waitcnt lgkmcnt(0){" vmcnt(0)" if MOVE else ""}
    s_barrier
    ds_read_b128 v[8:11], v4 offset:{K1_SORT}
    v_cmp_gt_u32 vcc, 288, v0
    s_and_saveexec_b64 s[38:39], vcc
    ds_read_b128 v[12:15], v4 offset:{K1_SORT+8192}
    s_mov_b64 exec, s[38:39]
    ''')
    if MOVE:
        I(f'''v_lshrrev_b32 v84, 1, v0
        v_lshlrev_b32 v84, 2, v84
        v_and_b32 v85, 1, v0
        v_lshlrev_b32 v85, 4, v85
        v_add_u32 v85, {K1_EIMG}, v85''')
        for n in range(13):
            I(f'ds_read_b32 v{16+n}, v84 offset:{K1_SORTE + n*1024}')
    I(f'''
    s_waitcnt lgkmcnt({13 if MOVE else 0})
    buffer_store_dwordx4 v[8:11], v4, s[16:19], s29 offen {OPT['K1_ST_AUX']}
    s_add_u32 s36, s29, 8192
    s_and_saveexec_b64 s[38:39], vcc
    s_cbranch_execz P_NOST2
    buffer_store_dwordx4 v[12:15], v4, s[16:19], s36 offen {OPT['K1_ST_AUX']}
P_NOST2:
    s_mov_b64 exec, s[38:39]
    ''')
    if MOVE:
        I(f'''s_mul_i32 s30, s2, {CH*32}
        s_add_u32 s30, s30, {PAY}
        s_waitcnt lgkmcnt(0)''')
        for n in range(12):
            I(f'v_add_u32 v{16+n}, v{16+n}, v85\nds_read_b128 {r(32+4*n,4)}, v{16+n}')
        for n in range(12):
            I(f'''s_waitcnt lgkmcnt({min(15, 11-n)})
            buffer_store_dwordx4 {r(32+4*n,4)}, v4, s[16:19], s30 offen {OPT['PAY_ST_AUX']}
            s_add_u32 s30, s30, 8192''')
        I(f'''s_cmp_ge_u32 s28, 4
        s_cbranch_scc1 P_END
        v_add_u32 v28, v28, v85
        ds_read_b128 v[8:11], v28
        s_waitcnt lgkmcnt(0)
        buffer_store_dwordx4 v[8:11], v4, s[16:19], s30 offen {OPT['PAY_ST_AUX']}''')
    I('s_endpgm')
    I(f'''
P_PREP:
    s_load_dwordx4 s[8:11], s[0:1], 32
    s_load_dwordx2 s[12:13], s[0:1], 48
    s_sub_u32 s30, s2, {NCH}
    s_lshl_b32 s30, s30, 3
    s_add_u32 s30, s30, s28
    s_cmp_ge_u32 s30, {NFRAG}
    s_cbranch_scc1 P_END
    s_waitcnt lgkmcnt(0)
    s_mov_b32 s20, s12
    s_mov_b32 s21, s13
    s_mov_b32 s22, {144*128}
    s_mov_b32 s23, 0x20000
    s_mov_b32 s33, {NLOG2E}
    s_mov_b32 s31, s30
    s_mov_b32 s32, 64
    s_cmp_lt_u32 s30, 8
    s_cbranch_scc1 P_GO
    s_cmp_lt_u32 s30, 16
    s_cbranch_scc0 P_C1
    s_sub_u32 s31, s30, 8
    s_mov_b32 s32, 0
    s_mov_b32 s33, 1.0
    s_mov_b32 s20, s10
    s_mov_b32 s21, s11
    s_mov_b32 s22, {64*128}
    s_branch P_GO
P_C1:
    s_cmp_lt_u32 s30, 18
    s_cbranch_scc0 P_C2
    s_sub_u32 s31, s30, 16
    s_lshl_b32 s31, s31, 2
    s_mov_b32 s32, 128
    s_branch P_GO
P_C2:
    s_mov_b32 s33, 1.0
    s_mov_b32 s32, 0
    s_sub_u32 s31, s30, 18
    s_cmp_lt_u32 s30, 26
    s_cbranch_scc1 P_GO
    s_sub_u32 s31, s30, 26
    s_mov_b32 s20, s8
    s_mov_b32 s21, s9
    s_mov_b32 s22, {64*128}
P_GO:
    s_and_b32 s34, s31, 3
    s_lshl_b32 s34, s34, 4
    s_add_u32 s34, s34, s32
    s_lshl_b32 s34, s34, 7
    s_lshr_b32 s35, s31, 2
    s_lshl_b32 s35, s35, 6
    s_add_u32 s34, s34, s35
    v_and_b32 v1, 31, v0
    v_lshlrev_b32 v1, 1, v1
    v_bfe_u32 v2, v0, 5, 1
    v_lshl_or_b32 v1, v2, 10, v1
    ''')
    for t in range(8):
        I(f'buffer_load_ushort v{8+t}, v1, s[20:23], s34 offen offset:{t*128}')
    srd(16, 24, WS_BYTES)
    I(f'''
    v_and_b32 v3, 63, v0
    v_lshlrev_b32 v3, 4, v3
    s_lshl_b32 s36, s30, 10
    s_add_u32 s36, s36, {WF}
    s_waitcnt vmcnt(0)
    ''')
    for t in range(8):
        I(f'v_lshlrev_b32 v{8+t}, 16, v{8+t}\nv_mul_f32 v{8+t}, s33, v{8+t}')
    for t in range(4):
        I(f'v_cvt_pk_bf16_f32 v{16+t}, v{8+2*t}, v{9+2*t}')
    I('''buffer_store_dwordx4 v[16:19], v3, s[16:19], s36 offen
P_END:
    s_endpgm''')

CNT, FLAG, BASE = 0, 256, 512
XS = 1024
ES = XS + 65536
LX = ES + 16384
LE = LX + 16384
XAT = LE + 16384
AGG = XAT + 14336
M_LDS = AGG + 2*14336
ROWS = XS + 36864
XSENT, ESENT = 0x1FFF80, 0x7FFFFF00
CAP = 4096
NSLOT = 20

WB, WV, WC = 4, 36, 68
XA = 76
Z = 108
H = 140
AF = 156
ACC = 176
IDX = 192
vLX, vLE, vKX0, vKX1, vKE = 197, 198, 199, 200, 201
vRA, vRE = 202, 206
vSCH, vLT = 207, 208
T0, T1, T2 = 209, 210, 211
vC, vEB = 212, 213
vONE = 214
vLA = 215
T4 = 216
NV = 218
pREC, pRK, pAD = 76, 96, 116
pD, pA, pW = 136, 152, 168
sX, sE, sWS, sOUT = 8, 12, 16, 20
sW, sT, sTW, sNP, sNC, sNN, sD, sM0X, sM0E, sMASK, sTMP, sTMP2, sMODE, sSEG, sG0 = range(28, 43)
sONE = 44
sSAVE = 46
sOFP = 48
sB = 50

def thr(s): return 8 * (s // 4) + s % 4

def mf(d, a, b, c): return f'v_mfma_f32_32x32x16_bf16 {r(d,16)}, {r(a,4)}, {r(b,4)}, {c}'
def zm(ft):
    out = [mf(Z+16*ft, AF+16, WC+4*ft, r(XA+16*ft, 16))]
    for k in range(4): out.append(mf(Z+16*ft, AF+4*k, WB+16*ft+4*k, r(Z+16*ft, 16)))
    return out
def hm(ft):
    out = [mf(H, AF, WV+16*ft, '0')]
    for k in range(1, 4): out.append(mf(H, AF+4*k, WV+16*ft+4*k, r(H, 16)))
    return out
def exps(ft): return [f'v_exp_f32 v{Z+16*ft+i}, v{Z+16*ft+i}' for i in range(16)]
def rcps(ft): return [f'v_rcp_f32 v{Z+16*ft+i}, v{Z+16*ft+i}' for i in range(16)]
def pkadd(ft):
    if not OPT['PKA']: return [f'v_add_f32 v{Z+16*ft+i}, 1.0, v{Z+16*ft+i}' for i in range(16)]
    return [f'v_pk_add_f32 {r(Z+16*ft+2*i,2)}, {r(Z+16*ft+2*i,2)}, {sr(sONE,2)}' for i in range(8)]
def pkf(ft):
    if not OPT['PKF']: return [f'v_fmac_f32 v{ACC+8*ft+2*(i//4)+i%2}, v{Z+16*ft+i}, v{H+i}' for i in range(16)]
    return [f'v_pk_fma_f32 {r(ACC+8*ft+2*(i//2),2)}, {r(Z+16*ft+2*i,2)}, {r(H+2*i,2)}, {r(ACC+8*ft+2*(i//2),2)}' for i in range(8)]
def weave(main, ins):
    out = []
    for i, m in enumerate(main):
        out += ins.get(i, [])
        out.append(m)
    out += ins.get(len(main), [])
    return out

def lds_init():
    I(f'''v_lshlrev_b32 v{T0}, 4, v0
    v_add_u32 v{T0}, {LX}, v{T0}
    v_mov_b32 v{pD}, {XSENT}
    v_mov_b32 v{pD+1}, {XSENT}
    v_mov_b32 v{pD+2}, {XSENT}
    v_mov_b32 v{pD+3}, {XSENT}
    v_mov_b32 v{pD+4}, {ESENT}
    v_mov_b32 v{pD+5}, {ESENT}
    v_mov_b32 v{pD+6}, {ESENT}
    v_mov_b32 v{pD+7}, {ESENT}
    v_and_b32 v{T1}, 127, v0
    v_lshlrev_b32 v{T1}, 2, v{T1}
    v_mov_b32 v{T2}, 0
    ds_write_b128 v{T0}, {r(pD,4)}
    ds_write_b128 v{T0}, {r(pD,4)} offset:8192
    ds_write_b128 v{T0}, {r(pD+4,4)} offset:16384
    ds_write_b128 v{T0}, {r(pD+4,4)} offset:24576
    ds_write_b32 v{T1}, v{T2}''')

def pass_a(tag, nslot):
    for s in range(nslot):
        I(f'v_cmpx_lt_i32 vcc, {thr(s)}, v{vC}\ns_cbranch_execz PA_DONE{tag}')
        if MOVE:
            I(f'v_lshrrev_b32 v{pAD+s}, 24, v{pREC+s}')
        else:
            I(f'v_and_b32 v{pAD+s}, 63, v{pREC+s}\nv_lshlrev_b32 v{pAD+s}, 2, v{pAD+s}')
        I(f'ds_add_rtn_u32 v{pRK+s}, v{pAD+s}, v{vONE}')
    I(f'PA_DONE{tag}:\ns_mov_b64 exec, -1')

def scan(tag):
    I(f'''v_and_b32 v{T0}, 63, v0
    v_lshlrev_b32 v{T0}, 2, v{T0}
    ds_read_b32 v{T1}, v{T0}
    v_mov_b32 v{T2}, {FLAG}
    ds_read_b32 v{IDX}, v{T2}
    s_waitcnt lgkmcnt(0)
    v_add_u32 v{T1}, 7, v{T1}
    v_and_b32 v{T1}, -8, v{T1}
    v_mov_b32 v{T2}, v{T1}''')
    dpp_scan(T2)
    I(f'''v_sub_u32 v{T1}, v{T2}, v{T1}
    v_add_u32 v{T1}, {LX//4}, v{T1}
    ds_write_b32 v{T0}, v{T1} offset:{BASE}
    v_readlane_b32 s{sTMP}, v{T2}, 63
    v_readfirstlane_b32 s{sTMP2}, v{IDX}
    s_waitcnt lgkmcnt(0)''')

def pass_b(tag, nslot, estride):
    for s in range(nslot):
        I(f'v_cmpx_lt_i32 vcc, {thr(s)}, v{vC}\ns_cbranch_execz PB1_DONE{tag}')
        I(f'ds_read_b32 v{pAD+s}, v{pAD+s} offset:{BASE}')
    I(f'PB1_DONE{tag}:\ns_mov_b64 exec, -1\ns_waitcnt lgkmcnt(0)')
    for s in range(nslot):
        I(f'v_cmpx_lt_i32 vcc, {thr(s)}, v{vC}\ns_cbranch_execz PB2_DONE{tag}')
        I(f'v_add_lshl_u32 v{pRK+s}, v{pRK+s}, v{pAD+s}, 2')
        if MOVE:
            I(f'v_add_u32 v{pAD+s}, {estride(s)}, v{vEB}')
        else:
            I(f'''v_lshrrev_b32 v{pAD+s}, 20, v{pREC+s}
            v_lshl_add_u32 v{pAD+s}, v{pAD+s}, 5, v{vEB}
            v_lshlrev_b32 v{pREC+s}, 1, v{pREC+s}''')
        I(f'''ds_write_b32 v{pRK+s}, v{pREC+s}
        ds_write_b32 v{pRK+s}, v{pAD+s} offset:16384''')
    I(f'PB2_DONE{tag}:\ns_mov_b64 exec, -1')

def dma_tile(ix, xm0, em0, xoff, eoff):
    g = []
    for q in range(4):
        g.append([f's_add_u32 m0, s{xm0}, {xoff + q*1024}',
                  f'v_and_or_b32 v{ix+q}, v{ix+q}, s{sMASK}, v{vKX0 if q % 2 == 0 else vKX1}',
                  f'buffer_load_dwordx4 v{ix+q}, {sr(sX,4)}, 0 offen lds'])
    g.append([f's_add_u32 m0, s{em0}, {eoff}',
              f'v_add_u32 v{ix+4}, v{ix+4}, v{vKE}',
              f'buffer_load_dwordx4 v{ix+4}, {sr(sE,4)}, 0 offen {OPT["E_AUX"]} lds'])
    return g

def flush_j(j, sn):
    I(f'''v_add_f32 v{T1}, v{ACC+2*j}, v{ACC+2*j+1}
    v_add_f32 v{T2}, v{ACC+8+2*j}, v{ACC+8+2*j+1}
    s_bfe_u32 s{sTMP}, s{sn}, {(6 << 16) | (8*j)}
    s_lshl_b32 s{sTMP}, s{sTMP}, 9
    v_permlane32_swap_b32 v{T1}, v{T2}
    v_add_u32 v{T0}, s{sTMP}, v{vLA}
    v_mov_b64 {r(ACC+2*j,2)}, 0
    v_add_f32 v{T1}, v{T1}, v{T2}
    v_mov_b64 {r(ACC+8+2*j,2)}, 0
    v_cvt_f64_f32 {r(T4,2)}, v{T1}
    ds_add_f64 v{T0}, {r(T4,2)}''')
def xa_j(j, sn):
    I(f'''s_bfe_u32 s{sTMP}, s{sn}, {(6 << 16) | (8*j)}
    s_lshl_b32 s{sTMP}, s{sTMP}, 8
    v_add_u32 v{T0}, s{sTMP}, v{vLT}
    ds_read2_b32 {r(XA+4*j,2)}, v{T0}
    ds_read2_b32 {r(XA+4*j+2,2)}, v{T0}
    ds_read2_b32 {r(XA+16+4*j,2)}, v{T0} offset0:32 offset1:32
    ds_read2_b32 {r(XA+16+4*j+2,2)}, v{T0} offset0:32 offset1:32''')

def TR(k):
    if not OPT['TRACE']: return ''
    return f'''s_memtime s[76:77]
    s_waitcnt lgkmcnt(0)
    s_mov_b32 m0, s{sT}
    s_nop 0
    v_writelane_b32 v{220+k}, s76, m0'''
def stamp(i):
    if OPT['STAMP']:
        I(f'{"s_memtime" if OPT["CYC"] and i in (4,5) else "s_memrealtime"} s[{60+2*i}:{61+2*i}]\ns_waitcnt lgkmcnt(0)')

def gen_main():
    header(MAIN)
    stamp(0)
    I(f"""
    s_cmp_ge_u32 s2, {NB}
    s_cbranch_scc1 M_END
    s_load_dwordx4 s[4:7], s[0:1], 0
    s_load_dwordx2 s[24:25], s[0:1], 56
    s_load_dwordx2 s[26:27], s[0:1], 72
    v_lshrrev_b32 v1, 6, v0
    v_and_b32 v2, 63, v0
    v_readfirstlane_b32 s{sW}, v1
    s_and_b32 s{sB}, s2, 7
    s_lshl_b32 s{sB}, s{sB}, 5
    s_lshr_b32 s{sTMP}, s2, 3
    s_add_u32 s{sB}, s{sB}, s{sTMP}
    v_lshlrev_b32 v{IDX+1}, 4, v2
    v_lshrrev_b32 v3, 1, v0
    v_lshlrev_b32 v{IDX}, 2, v3
    v_lshrrev_b32 v{IDX+2}, 4, v2
    s_lshl_b32 s{sTMP}, s{sW}, 2
    v_add_u32 v{IDX+2}, s{sTMP}, v{IDX+2}
    v_xor_b32 v{IDX+2}, v{IDX+2}, v2
    v_and_b32 v{IDX+2}, 7, v{IDX+2}
    v_lshlrev_b32 v{IDX+2}, 4, v{IDX+2}
    v_lshrrev_b32 v{IDX+3}, 3, v2
    v_lshl_or_b32 v{IDX+2}, v{IDX+3}, 7, v{IDX+2}
    s_lshl_b32 s{sTMP}, s{sW}, 10
    s_add_u32 s{sTMP2}, s{sTMP}, {WF}
    s_add_u32 s{sTMP}, s{sTMP}, {XS}
    s_waitcnt lgkmcnt(0)
    """)
    srd(sWS, 26, WS_BYTES)
    for n in range(5):
        if n == 4: I(f's_cmp_ge_u32 s{sW}, 2\ns_cbranch_scc1 M_NOW4')
        I(f"""s_mov_b32 m0, s{sTMP}
        s_add_u32 s{sTMP}, s{sTMP}, 8192
        buffer_load_dwordx4 v{IDX+1}, {sr(sWS,4)}, s{sTMP2} offen lds
        s_add_u32 s{sTMP2}, s{sTMP2}, 8192""")
    I('M_NOW4:')
    srd(sX, 4, N * 128)
    I(f"""
    s_cmp_ge_u32 s{sW}, 7
    s_cbranch_scc1 M_NOROW
    s_lshl_b32 s{sTMP}, s{sW}, 10
    s_mul_i32 s{sTMP2}, s{sB}, {BN*128}
    s_add_u32 m0, s{sTMP}, {ROWS}
    s_add_u32 s{sTMP2}, s{sTMP2}, s{sTMP}
    buffer_load_dwordx4 v{IDX+2}, {sr(sX,4)}, s{sTMP2} offen lds
M_NOROW:
    s_lshl_b32 s{sTMP}, s{sB}, 10
    s_add_u32 s{sTMP}, s{sTMP}, {OFFS}
    buffer_load_dword v{vC}, v{IDX}, {sr(sWS,4)}, s{sTMP} offen
    s_add_u32 s{sOFP}, s26, s{sTMP}
    s_addc_u32 s{sOFP+1}, s27, 0
    """)
    lds_init()
    if MOVE:
        I(f"""s_add_u32 s{sE}, s26, {PAY}
        s_addc_u32 s{sE+1}, s27, 0
        s_mov_b32 s{sE+2}, {E*32}
        s_mov_b32 s{sE+3}, 0x20000""")
    else:
        srd(sE, 6, E * 32)
    srd(sOUT, 24, N * 128)
    I(f"""
    v_mov_b32 v{vONE}, 1
    s_mov_b32 s{sMASK}, {XSENT}
    s_mov_b32 s{sONE}, 1.0
    s_mov_b32 s{sONE+1}, 1.0
    s_mov_b32 s{sMODE}, 0
    s_lshl_b32 s{sM0X}, s{sW}, 13
    s_add_u32 s{sM0X}, s{sM0X}, {XS}
    s_lshl_b32 s{sM0E}, s{sW}, 11
    s_add_u32 s{sM0E}, s{sM0E}, {ES}
    v_lshrrev_b32 v{T0}, 4, v2
    v_xor_b32 v{T0}, v{T0}, v2
    v_and_b32 v{T1}, 7, v{T0}
    v_lshlrev_b32 v{vKX0}, 4, v{T1}
    v_xor_b32 v{vKX1}, 64, v{vKX0}
    v_and_b32 v{T0}, 1, v{T0}
    v_lshlrev_b32 v{vKE}, 4, v{T0}
    v_and_b32 v{T0}, 31, v2
    v_lshlrev_b32 v{vLT}, 2, v{T0}
    v_add_u32 v{vLT}, {XAT}, v{vLT}
    v_lshlrev_b32 v{vLA}, 3, v2
    v_add_u32 v{vLA}, {AGG}, v{vLA}
    """)
    j_, i_, h_, g_, t_, u_ = pA, pA+1, pA+2, pA+3, pA+4, pA+5
    I(f"""
    v_bfe_u32 v{j_}, v2, 3, 2
    v_and_b32 v{i_}, 3, v2
    v_lshrrev_b32 v{h_}, 5, v2
    v_lshrrev_b32 v{t_}, 1, v{j_}
    v_xor_b32 v{g_}, v{t_}, v{j_}
    v_lshrrev_b32 v{u_}, 2, v2
    v_xor_b32 v{g_}, v{g_}, v{u_}
    v_and_b32 v{g_}, 1, v{g_}
    v_xor_b32 v{t_}, v{t_}, v{h_}
    v_lshlrev_b32 v{t_}, 4, v{t_}
    v_lshl_or_b32 v{u_}, v{j_}, 2, v{i_}
    v_lshl_or_b32 v{u_}, v{g_}, 4, v{u_}
    v_lshl_or_b32 v{t_}, v{u_}, 5, v{t_}
    v_add_u32 v{vRE}, s{sM0E}, v{t_}
    v_and_b32 v{t_}, 1, v{i_}
    v_lshl_or_b32 v{u_}, v{g_}, 1, v{t_}
    v_lshlrev_b32 v{u_}, 3, v{u_}
    v_lshl_or_b32 v{u_}, v{j_}, 1, v{u_}
    v_lshrrev_b32 v{i_}, 1, v{i_}
    v_or_b32 v{u_}, v{u_}, v{i_}
    v_lshlrev_b32 v{u_}, 7, v{u_}
    v_add_u32 v{u_}, s{sM0X}, v{u_}
    v_lshl_or_b32 v{t_}, v{t_}, 2, v{j_}
    v_xor_b32 v{t_}, v{t_}, v{h_}
    """)
    for s in range(4):
        I(f"""v_xor_b32 v{g_}, {2*s}, v{t_}
        v_lshl_add_u32 v{vRA+s}, v{g_}, 4, v{u_}""")
    I(f"""
    v_cmp_gt_u32 vcc, {NCH}, v3
    v_mul_u32_u24 v{T1}, {CH}, v3
    v_and_b32 v{T2}, 1, v0
    v_lshlrev_b32 v{T2}, 2, v{T2}
    s_lshr_b32 s{sTMP}, s2, 3
    s_mul_i32 s{sTMP}, s{sTMP}, {391*128}
    v_min_u32 v1, 390, v0
    v_lshlrev_b32 v1, 7, v1
    s_waitcnt vmcnt(0)
    v_cndmask_b32 v{vC}, 0, v{vC}, vcc
    v_and_b32 v{T0}, 0xffff, v{vC}
    v_lshrrev_b32 v{vC}, 16, v{vC}
    v_add3_u32 v{T0}, v{T0}, v{T1}, v{T2}
    v_cmp_lt_u32 {sr(sSAVE,2)}, {2*NSLOT}, v{vC}
    v_sub_u32 v{vC}, v{vC}, v{T2}
    v_lshlrev_b32 v{vEB}, 5, v{T0 if MOVE else T1}
    v_lshlrev_b32 v{T0}, 2, v{T0}
    """)
    for m in range(NSLOT // 4):
        I(f"""v_cmpx_lt_i32 vcc, {8*m}, v{vC}
        s_cbranch_execz M_RL_DONE
        buffer_load_dwordx4 {r(pREC+4*m,4)}, v{T0}, {sr(sWS,4)}, 0 offen offset:{32*m}""")
    I('M_RL_DONE:\ns_mov_b64 exec, -1')
    if OPT['XPF']:
        I(f'buffer_load_dword v1, v1, {sr(sX,4)}, s{sTMP} offen')
    stamp(1)
    I(f"""
    s_waitcnt lgkmcnt(0)
    s_barrier
    s_cmp_eq_u64 {sr(sSAVE,2)}, 0
    s_cbranch_scc1 M_NOFLAG
    v_mov_b32 v{T1}, {FLAG}
    ds_write_b32 v{T1}, v{vONE}
M_NOFLAG:
    """)
    I(f"""
    v_lshlrev_b32 v{T0}, 4, v2
    v_add_u32 v{T0}, {XS}, v{T0}
    s_lshr_b32 s{sTMP}, s{sW}, 2
    s_lshl_b32 s{sTMP}, s{sTMP}, 1
    s_and_b32 s{sTMP2}, s{sW}, 1
    s_add_u32 s{sTMP}, s{sTMP}, s{sTMP2}
    s_lshl_b32 s{sTMP}, s{sTMP}, 12
    v_add_u32 v{T1}, s{sTMP}, v{T0}
    """)
    for s in range(4):
        I(f'ds_read_b128 {r(pW+4*s,4)}, v{T1} offset:{(18+s)*1024}')
    I(f"""
    v_and_b32 v{T1}, 31, v2
    v_lshrrev_b32 v{T2}, 5, v2
    v_bfe_u32 v{IDX}, v2, 1, 3
    v_xor_b32 v{IDX}, v{IDX}, v{T2}
    s_bfe_u32 s{sG0}, s{sW}, 0x10001
    s_lshl_b32 s{sTMP2}, s{sG0}, 12
    s_add_u32 s{sTMP2}, s{sTMP2}, {ROWS}
    v_lshlrev_b32 v{T1}, 7, v{T1}
    v_add_u32 v{T1}, s{sTMP2}, v{T1}
    """)
    for s in range(4):
        I(f"""v_xor_b32 v{IDX+1}, {2*s}, v{IDX}
        v_lshl_add_u32 v{IDX+1}, v{IDX+1}, 4, v{T1}
        ds_read_b128 {r(pA+4*s,4)}, v{IDX+1}""")
    I(f"""
    s_lshl_b32 s{sTMP2}, s{sG0}, 13
    s_and_b32 s{sD}, s{sW}, 1
    s_lshl_b32 s{sD}, s{sD}, 7
    s_add_u32 s{sTMP2}, s{sTMP2}, s{sD}
    v_lshlrev_b32 v{T2}, 10, v{T2}
    v_add3_u32 v{T2}, v{T2}, v{vLT}, s{sTMP2}
    s_mov_b32 s{sD}, {NLOG2E}
    s_waitcnt lgkmcnt(0)
    """)
    I(mf(pD, pA, pW, '0'))
    for s in range(1, 4): I(mf(pD, pA+4*s, pW+4*s, r(pD, 16)))
    for f in range(18):
        I(f'ds_read_b128 {r(WB+4*f,4)}, v{T0} offset:{f*1024}')
    I(f's_cmp_ge_u32 s{sW}, 4\ns_cbranch_scc1 M_XU')
    for k in range(16):
        if k == 12: I(f's_cmp_lg_u32 s{sG0}, 0\ns_cbranch_scc1 M_TDONE')
        I(f'v_mul_f32 v{pD+k}, s{sD}, v{pD+k}\nds_write_b32 v{T2}, v{pD+k} offset:{(8*(k//4)+k%4)*256}')
    I(f"""s_branch M_TDONE
M_XU:
    v_subrev_u32 v{T2}, {XAT}, v{T2}
    v_lshlrev_b32 v{T2}, 1, v{T2}
    v_add_u32 v{T2}, {AGG}, v{T2}
    """)
    for k in range(16):
        if k == 12: I(f's_cmp_lg_u32 s{sG0}, 0\ns_cbranch_scc1 M_TDONE')
        I(f'v_cvt_f64_f32 {r(pA+2*(k%8),2)}, v{pD+k}\nds_write_b64 v{T2}, {r(pA+2*(k%8),2)} offset:{(8*(k//4)+k%4)*512}')
    I('M_TDONE:')
    I(f's_waitcnt vmcnt({1 if OPT["XPF"] else 0})')
    stamp(2)
    pass_a('F', NSLOT)
    I('s_waitcnt lgkmcnt(0)\ns_barrier')
    scan('F')
    I(f"""
    s_cmp_gt_u32 s{sTMP}, {CAP}
    s_cbranch_scc1 M_SLOW
    s_cmp_lg_u32 s{sTMP2}, 0
    s_cbranch_scc1 M_SLOW
    """)
    pass_b('F', NSLOT, lambda s: thr(s) * 32)
    I(f'''
M_BATCH:
    s_add_u32 s{sTMP}, s{sTMP}, 31
    s_lshr_b32 s{sTMP}, s{sTMP}, 5
    s_add_u32 s{sTW}, s{sTMP}, 7
    s_sub_u32 s{sTW}, s{sTW}, s{sW}
    s_lshr_b32 s{sTW}, s{sTW}, 3
    s_lshr_b32 s{sG0}, s{sTMP}, 3
    s_mul_i32 s{sG0}, s{sG0}, s{sW}
    s_and_b32 s{sTMP}, s{sTMP}, 7
    s_min_u32 s{sTMP}, s{sTMP}, s{sW}
    s_add_u32 s{sG0}, s{sG0}, s{sTMP}
    s_lshl_b32 s{sG0}, s{sG0}, 7
    s_add_u32 s{sG0}, s{sG0}, {LX}
    s_lshl_b32 s{sTMP2}, s{sTW}, 5
    v_lshrrev_b32 v{T0}, 4, v2
    v_mul_u32_u24 v{T0}, s{sTMP2}, v{T0}
    v_bfe_u32 v{T1}, v2, 3, 1
    v_lshl_add_u32 v{T0}, v{T1}, 4, v{T0}
    v_add_u32 v{vLX}, s{sG0}, v{T0}
    v_bfe_u32 v{T0}, v2, 3, 2
    v_mul_u32_u24 v{T0}, s{sTMP2}, v{T0}
    v_bfe_u32 v{T1}, v2, 2, 1
    v_lshl_add_u32 v{T0}, v{T1}, 4, v{T0}
    v_lshrrev_b32 v{T1}, 5, v2
    v_lshl_add_u32 v{T0}, v{T1}, 3, v{T0}
    v_bfe_u32 v{T1}, v2, 1, 1
    v_lshl_add_u32 v{T0}, v{T1}, 2, v{T0}
    v_add_u32 v{vLE}, s{sG0}, v{T0}
    s_sub_u32 s{sTMP}, s{sTW}, 1
    v_min_u32 v{T0}, s{sTMP}, v2
    v_lshlrev_b32 v{T0}, 5, v{T0}
    v_add_u32 v{T0}, s{sG0}, v{T0}
    v_add_u32 v{T1}, s{sTMP2}, v{T0}
    v_add_u32 v{T2}, s{sTMP2}, v{T1}
    v_add_u32 v{vSCH}, s{sTMP2}, v{T2}
    ''')
    for k in range(8): I(f'v_mov_b64 {r(ACC+2*k,2)}, 0')
    I(f'''
    s_waitcnt lgkmcnt(0)
    s_barrier
    ''')
    stamp(3)
    if OPT['NOX']: I(f's_mov_b32 s{sX+2}, 0')
    if OPT['NOE']: I(f's_mov_b32 s{sE+2}, 0')
    I(f'''
    s_cmp_eq_u32 s{sTW}, 0
    s_cbranch_scc1 M_BDONE
    ds_read_b128 {r(Z,4)}, v{vLX}
    ds_read_b32 v{Z+4}, v{vLE} offset:16384
    ds_read_b128 {r(Z+8,4)}, v{vLX} offset:32
    ds_read_b32 v{Z+12}, v{vLE} offset:{16384+32}
    ds_read_b32 v{T0}, v{T0}
    ds_read_b32 v{T1}, v{T1}
    ds_read_b32 v{T2}, v{T2}
    ds_read_b32 v{vSCH}, v{vSCH}
    ds_read_b128 {r(IDX,4)}, v{vLX} offset:64
    ds_read_b32 v{IDX+4}, v{vLE} offset:{16384+64}
    s_waitcnt lgkmcnt(8)
    ''')
    for g in dma_tile(Z, sM0X, sM0E, 0, 0): I('\n'.join(g))
    I(f'''
    s_waitcnt lgkmcnt(0)
    s_cmp_lt_u32 s{sTW}, 2
    s_cbranch_scc1 M_NOT1
    ''')
    for g in dma_tile(Z+8, sM0X, sM0E, 4096, 1024): I('\n'.join(g))
    I(f'''
M_NOT1:
    v_bfe_u32 v{T0}, v{T0}, 1, 6
    v_bfe_u32 v{T1}, v{T1}, 1, 6
    v_bfe_u32 v{T2}, v{T2}, 1, 6
    v_bfe_u32 v{vSCH}, v{vSCH}, 1, 6
    v_lshl_or_b32 v{T0}, v{T1}, 8, v{T0}
    v_lshl_or_b32 v{T0}, v{T2}, 16, v{T0}
    v_lshl_or_b32 v{vSCH}, v{vSCH}, 24, v{T0}
    v_add_u32 v{vLX}, 96, v{vLX}
    v_add_u32 v{vLE}, {16384+96}, v{vLE}
    v_readfirstlane_b32 s{sNC}, v{vSCH}
    s_mov_b32 s{sT}, 1
    s_nop 2
    s_mov_b32 s{sNP}, s{sNC}
    ''')
    for j in range(4): xa_j(j, sNC)
    I(f'''
    s_cmp_lt_u32 s{sTW}, 2
    s_cbranch_scc1 M_W0
    s_waitcnt vmcnt(5)
    s_branch M_W1
M_W0:
    s_waitcnt vmcnt(0)
M_W1:
    ''')
    for s in range(4): I(f'ds_read_b128 {r(AF+4*s,4)}, v{vRA+s}')
    I(f'''ds_read_b128 {r(AF+16,4)}, v{vRE}
    s_waitcnt lgkmcnt(0)''')
    z0 = zm(0)
    I(z0[0])
    I(f's_cmp_lt_u32 s{sTW}, 3\ns_cbranch_scc1 M_NOT2')
    for g in dma_tile(IDX, sM0X, sM0E, 0, 0): I('\n'.join(g))
    I('M_NOT2:')
    for m in z0[1:]: I(m)
    I('s_nop 7\ns_nop 3')
    stamp(4)
    I('.p2align 6')
    for p in range(2):
        nb = 1 - p
        I(f'''
M_LOOP{p}:
    {TR(0)}
    s_xor_b32 s{sD}, s{sNP}, s{sNC}
    {';' if OPT['NOEV'] else ''}s_cbranch_scc1 M_FL{p}
M_FLR{p}:
        ''')
        hv = hm(0)
        I('\n'.join(weave(exps(0), {0: [hv[0]], 3: [hv[1]], 6: [hv[2]], 9: [hv[3]],
                                    11: [f'v_readlane_b32 s{sNN}, v{vSCH}, s{sT}']})))
        I('\n'.join(pkadd(0)))
        zz = zm(1)
        I('\n'.join(weave(rcps(0), {0: [zz[0]], 3: [zz[1]], 6: [zz[2]], 9: [zz[3]], 12: [zz[4]]})))
        I('\n'.join(pkf(0)))
        I(f'''
    s_xor_b32 s{sD}, s{sNC}, s{sNN}
    {';' if OPT['NOEV'] else ''}s_cbranch_scc1 M_XA{p}
M_XAR{p}:
    s_add_u32 s{sTMP}, s{sT}, 1
    s_cmp_lt_u32 s{sTMP}, s{sTW}
    s_cbranch_scc0 M_WZ{p}
    s_waitcnt vmcnt(5)
M_WZR{p}:
        ''')
        hv = hm(1)
        rd = [f'ds_read_b128 {r(AF+4*s,4)}, v{vRA+s} offset:{nb*4096}' for s in range(4)]
        if OPT['NODS']:
            I('\n'.join(weave(exps(1), {0: [hv[0]], 3: [hv[1]], 6: [hv[2]], 9: [hv[3]]})))
        else: I('\n'.join(weave(exps(1), {
            0: [hv[0], rd[0]],
            1: [f'ds_read_b128 {r(AF+16,4)}, v{vRE} offset:{nb*1024}'],
            3: [hv[1], rd[1]],
            4: [f'ds_read_b128 {r(IDX,4)}, v{vLX}'],
            6: [hv[2], rd[2]],
            7: [f'ds_read_b32 v{IDX+4}, v{vLE}'],
            9: [hv[3], rd[3]],
        })))
        I('\n'.join(pkadd(1)))
        zz = zm(0)
        I(f'''
    s_add_u32 s{sTMP}, s{sT}, 2
    s_cmp_lt_u32 s{sTMP}, s{sTW}
    s_waitcnt lgkmcnt(0)
    s_cbranch_scc0 M_ND{p}
        ''')
        g = dma_tile(IDX, sM0X, sM0E, nb*4096, nb*1024)
        if OPT['NODMA']: g = [x[:2] for x in g]
        I('\n'.join(weave(rcps(1), {
            0: [zz[0]], 1: g[0], 3: [zz[1]], 4: g[1], 6: [zz[2]], 7: g[2], 9: [zz[3]], 10: g[3], 12: [zz[4]], 13: g[4],
            14: [f'v_add_u32 v{vLX}, 32, v{vLX}'], 15: [f'v_add_u32 v{vLE}, 32, v{vLE}']})))
        I(f'M_NDR{p}:')
        I('\n'.join(pkf(1)))
        I(f'''
    s_mov_b32 s{sNP}, s{sNC}
    s_mov_b32 s{sNC}, s{sNN}
    s_add_u32 s{sT}, s{sT}, 1
    s_cmp_le_u32 s{sT}, s{sTW}''')
        if p == 0:
            I('s_cbranch_scc0 M_LEND')
        else:
            I('s_cbranch_scc1 M_LOOP0')
    I('M_LEND:')
    I(TR(0))
    for j in range(4): flush_j(j, sNP)
    I(f'''
M_BDONE:
    s_cmp_lg_u32 s{sMODE}, 0
    s_cbranch_scc1 M_SNEXT
M_EPI:
    ''')
    stamp(5)
    I(f'''
    s_waitcnt lgkmcnt(0)
    s_barrier
    v_cmp_gt_u32 vcc, {BN*8}, v0
    s_and_saveexec_b64 {sr(sSAVE,2)}, vcc
    s_cbranch_execz M_FIN
    v_lshlrev_b32 v{T0}, 6, v0
    v_add_u32 v{T0}, {AGG}, v{T0}
    ds_read_b128 {r(Z+16,4)}, v{T0}
    ds_read_b128 {r(Z+20,4)}, v{T0} offset:16
    ds_read_b128 {r(Z+24,4)}, v{T0} offset:32
    ds_read_b128 {r(Z+28,4)}, v{T0} offset:48
    s_mov_b32 s{sTMP}, {NLOG2E}
    s_mul_i32 s{sTMP2}, s{sB}, {BN*128}
    v_lshlrev_b32 v{T1}, 4, v0
    s_waitcnt lgkmcnt(0)
    ''')
    for k in range(8): I(f'v_cvt_f32_f64 v{Z+k}, {r(Z+16+2*k,2)}')
    for k in range(8): I(f'v_mul_f32 v{Z+8+k}, s{sTMP}, v{Z+k}')
    for k in range(8): I(f'v_exp_f32 v{Z+8+k}, v{Z+8+k}')
    for k in range(8): I(f'v_add_f32 v{Z+8+k}, 1.0, v{Z+8+k}')
    for k in range(8): I(f'v_rcp_f32 v{Z+8+k}, v{Z+8+k}')
    for k in range(8): I(f'v_mul_f32 v{Z+k}, v{Z+k}, v{Z+8+k}')
    for k in range(4): I(f'v_cvt_pk_bf16_f32 v{Z+16+k}, v{Z+2*k}, v{Z+2*k+1}')
    I(f'buffer_store_dwordx4 {r(Z+16,4)}, v{T1}, {sr(sOUT,4)}, s{sTMP2} offen')
    I('M_FIN:')
    if OPT['STAMP']:
        I(f'''s_mov_b64 exec, 1
        s_memrealtime s[72:73]
        s_load_dwordx2 s[4:5], s[0:1], 72
        s_waitcnt lgkmcnt(0) vmcnt(0)
        s_add_u32 s52, s4, 0x8000000
        s_addc_u32 s53, s5, 0
        s_mov_b32 s54, 0x100000
        s_mov_b32 s55, 0x20000
        s_lshl_b32 s56, s2, 3
        s_add_u32 s56, s56, s{sW}
        s_lshl_b32 s56, s56, 5
        v_mov_b32 v1, 0''')
        for i in range(7): I(f'v_mov_b32 v{8+i}, s{60+2*i}')
        I(f'''v_mov_b32 v15, s{sTW}
        buffer_store_dwordx4 v[8:11], v1, s[52:55], s56 offen
        buffer_store_dwordx4 v[12:15], v1, s[52:55], s56 offen offset:16''')
        if OPT['TRACE']:
            I(f'''s_mov_b64 exec, -1
            s_lshl_b32 s56, s56, 3
            s_add_u32 s56, s56, 0x20000
            v_lshlrev_b32 v1, 2, v2
            buffer_store_dword v220, v1, s[52:55], s56 offen''')
    I('M_END:\ns_endpgm')
    for p in range(2):
        I(f'M_FL{p}:')
        for j in range(4):
            I(f's_and_b32 s{sTMP}, s{sD}, {0xff << (8*j)}\ns_cbranch_scc0 M_FL{p}_{j}')
            flush_j(j, sNP)
            I(f'M_FL{p}_{j}:')
        I(f's_branch M_FLR{p}')
        I(f'M_XA{p}:')
        for j in range(4):
            I(f's_and_b32 s{sTMP}, s{sD}, {0xff << (8*j)}\ns_cbranch_scc0 M_XA{p}_{j}')
            xa_j(j, sNN)
            I(f'M_XA{p}_{j}:')
        I(f's_branch M_XAR{p}')
        I(f'M_WZ{p}:\ns_waitcnt vmcnt(0)\ns_branch M_WZR{p}')
        I(f'M_ND{p}:')
        zz = zm(0)
        I('\n'.join(weave(rcps(1), {0: [zz[0]], 3: [zz[1]], 6: [zz[2]], 9: [zz[3]], 12: [zz[4]]})))
        I(f's_branch M_NDR{p}')
    I(f'''
M_SLOW:
    s_mov_b32 s{sMODE}, 1
    s_mov_b32 s{sSEG}, -1
M_SNEXT:
    s_add_u32 s{sSEG}, s{sSEG}, 1
    s_cmp_ge_u32 s{sSEG}, {NCH}
    s_cbranch_scc1 M_EPI
    s_lshl_b32 s{sTMP}, s{sSEG}, 2
    s_load_dword s{sD}, {sr(sOFP,2)}, s{sTMP}
    s_waitcnt lgkmcnt(0)
    s_lshr_b32 s{sTMP2}, s{sD}, 16
    s_cmp_eq_u32 s{sTMP2}, 0
    s_cbranch_scc1 M_SNEXT
    s_barrier
    ''')
    lds_init()
    I(f'''
    s_and_b32 s{sD}, s{sD}, 0xffff
    s_mul_i32 s{sTMP}, s{sSEG}, {CH}
    s_add_u32 s{sD}, s{sD}, s{sTMP}
    v_add_u32 v{T0}, s{sD}, v0
    v_mov_b32 v{T1}, s{sTMP}
    v_lshlrev_b32 v{vEB}, 5, v{T0 if MOVE else T1}
    v_lshlrev_b32 v{T0}, 2, v{T0}
    v_sub_u32 v{vC}, s{sTMP2}, v0
    v_add_u32 v{vC}, 511, v{vC}
    v_ashrrev_i32 v{vC}, 9, v{vC}
    v_cmp_lt_i32 vcc, 4, v{vC}
    v_add_u32 v{T1}, 4, v{vC}
    s_nop 0
    v_cndmask_b32 v{vC}, v{vC}, v{T1}, vcc
    ''')
    for s in range(7):
        I(f'buffer_load_dword v{pREC+s}, v{T0}, {sr(sWS,4)}, 0 offen')
        if s < 6: I(f'v_add_u32 v{T0}, 2048, v{T0}')
    I('s_waitcnt vmcnt(0) lgkmcnt(0)\ns_barrier')
    pass_a('S', 7)
    I('s_waitcnt lgkmcnt(0)\ns_barrier')
    scan('S')
    pass_b('S', 7, lambda s: s * 16384)
    I('s_branch M_BATCH')

def kd(name, vgpr, sgpr):
    return f'''.amdhsa_kernel {name}
  .amdhsa_next_free_vgpr {vgpr}
  .amdhsa_next_free_sgpr {sgpr}
  .amdhsa_accum_offset {(vgpr+3)//4*4}
  .amdhsa_group_segment_fixed_size 0
  .amdhsa_kernarg_size 80
  .amdhsa_user_sgpr_count 2
  .amdhsa_user_sgpr_kernarg_segment_ptr 1
  .amdhsa_system_sgpr_workgroup_id_x 1
.end_amdhsa_kernel
'''

HEAD = open('gather_scatter__edge_featured_mpnn_egc__graph.s.ref').read().split('; Override')[0]
gen_part()
gen_main()
out = HEAD + f'''; Two launches: part_kernel bins the edges by destination bucket, the main kernel does the rest.
; @launch kernel=part_kernel grid=({NCH+5},1,1) block=(512,1,1) lds={K1_LDS}
; @launch kernel={MAIN} grid=({NB},1,1) block=(512,1,1) lds={M_LDS}
.amdgcn_target "amdgcn-amd-amdhsa--gfx950"
.text
''' + '\n'.join(L) + '''
.section .rodata,"a"
.p2align 6
''' + kd('part_kernel', 88, 48) + '.p2align 6\n' + kd(MAIN, NV+(8 if OPT['TRACE'] else 0), 80)
open(sys.argv[1], 'w').write(out)
```

```python
import sys, struct

OPT = dict(MOVE=0, E_AUX='', K1_LD_AUX='', K1_ST_AUX='', PAY_ST_AUX='', STAMP=0, PRIO=0, NOX=0, NOE=0, CYC=0, PKA=1, PKF=1, NOEV=0, NODMA=0, NODS=0, NOVM=0, TRACE=0, XPF=1, K1SLEEP=0, EXTRA=0)
for a in sys.argv[2:]:
    k, v = a.split('=')
    OPT[k] = int(v) if v.lstrip('-').isdigit() else v.replace('_', ' ')
MOVE = OPT['MOVE']

N, E = 12500, 800000
NB, BN = 256, 49
NCH, CH = 250, 3200
REC, OFFS, WF, PAY = 0, 0x400000, 0x480000, 0x800000
WS_BYTES = PAY + E * 32
NFRAG = 34
NLOG2E = struct.unpack('<I', struct.pack('<f', -1.4426950408889634))[0]
MAIN = 'gather_scatter__edge_featured_mpnn_egc__graph_kernel'

L = []
def I(s):
    for ln in s.strip('\n').split('\n'):
        ln = ln.strip()
        if ln:
            L.append(ln if ln.endswith(':') else '    ' + ln)
def r(a, n): return f'v[{a}:{a+n-1}]'
def sr(a, n): return f's[{a}:{a+n-1}]'
def srd(d, base, nbytes):
    I(f'''s_mov_b32 s{d}, s{base}
    s_mov_b32 s{d+1}, s{base+1}
    s_mov_b32 s{d+2}, {nbytes}
    s_mov_b32 s{d+3}, 0x20000''')
def dpp_scan(v):
    for ctl in ('row_shr:1', 'row_shr:2', 'row_shr:4', 'row_shr:8'):
        I(f's_nop 1\nv_add_u32_dpp v{v}, v{v}, v{v} {ctl} row_mask:0xf bank_mask:0xf bound_ctrl:1')
    I(f's_nop 1\nv_add_u32_dpp v{v}, v{v}, v{v} row_bcast:15 row_mask:0xa bank_mask:0xf')
    I(f's_nop 1\nv_add_u32_dpp v{v}, v{v}, v{v} row_bcast:31 row_mask:0xc bank_mask:0xf')
def header(name):
    I(f'.globl {name}\n.p2align 8\n.type {name},@function\n{name}:')

K1_HIST, K1_BASE, K1_SORT, K1_SORTE, K1_EIMG = 0, 1024, 2048, 14848, 27648
K1_LDS = (K1_EIMG + CH * 32) if MOVE else K1_SORTE

def kstamp(i):
    if OPT['STAMP']: I(f's_memrealtime s[{60+2*i}:{61+2*i}]\ns_waitcnt lgkmcnt(0)')
def kdump():
    if OPT['STAMP']:
        I(f'''; K1STAMP
        s_waitcnt vmcnt(0)
        s_memrealtime s[70:71]
        s_mov_b64 exec, 1
        s_waitcnt lgkmcnt(0)
        s_add_u32 s52, s24, 0x8100000
        s_addc_u32 s53, s25, 0
        s_mov_b32 s54, 0x100000
        s_mov_b32 s55, 0x20000
        s_lshl_b32 s56, s2, 3
        s_add_u32 s56, s56, s28
        s_lshl_b32 s56, s56, 5
        v_mov_b32 v1, 0''')
        for i in range(8): I(f'v_mov_b32 v{8+i}, s{60+2*min(i,5)}')
        I('''buffer_store_dwordx4 v[8:11], v1, s[52:55], s56 offen
        buffer_store_dwordx4 v[12:15], v1, s[52:55], s56 offen offset:16''')
def gen_part():
    header('part_kernel')
    kstamp(0)
    D, S, B4, RK, RC, EL = 8, 16, 24, 32, 40, 48
    I(f'''
    s_cmp_ge_u32 s2, {NCH+5}
    s_cbranch_scc1 P_END
    s_load_dwordx4 s[4:7], s[0:1], 16
    s_load_dwordx2 s[24:25], s[0:1], 72
    s_load_dwordx2 s[26:27], s[0:1], 8
    v_lshrrev_b32 v3, 6, v0
    v_lshlrev_b32 v1, 2, v0
    v_readfirstlane_b32 s28, v3
    s_cmp_ge_u32 s2, {NCH}
    s_cbranch_scc1 P_PREP
    v_mov_b32 v2, 0
    ds_write_b32 v1, v2
    v_lshlrev_b32 v4, 4, v0
    v_lshlrev_b32 v5, 3, v0
    v_add_u32 v5, 8192, v5
    v_add_u32 v6, 12288, v1
    s_mul_i32 s29, s2, {CH*4}
    s_waitcnt lgkmcnt(0)
    ''')
    srd(8, 4, E * 4); srd(12, 6, E * 4); srd(16, 24, WS_BYTES)
    ax = OPT['K1_LD_AUX']
    I(f'''
    s_cmp_ge_u32 s28, 2
    s_cbranch_scc1 P_NO6A
    buffer_load_dword v{D+6}, v6, s[12:15], s29 offen {ax}
    buffer_load_dword v{S+6}, v6, s[8:11], s29 offen {ax}
P_NO6A:
    buffer_load_dwordx4 {r(D,4)}, v4, s[12:15], s29 offen {ax}
    buffer_load_dwordx2 {r(D+4,2)}, v5, s[12:15], s29 offen {ax}
    buffer_load_dwordx4 {r(S,4)}, v4, s[8:11], s29 offen {ax}
    buffer_load_dwordx2 {r(S+4,2)}, v5, s[8:11], s29 offen {ax}
    ''')
    if MOVE:
        srd(20, 26, E * 32)
        I(f'''
        v_and_b32 v7, 63, v0
        v_lshlrev_b32 v7, 4, v7
        s_mul_i32 s30, s2, {CH*32}
        s_lshl_b32 s31, s28, 10
        s_add_u32 s30, s30, s31
        s_add_u32 s31, s31, {K1_EIMG}
        ''')
        for n in range(13):
            if n == 12:
                I('s_cmp_ge_u32 s28, 4\ns_cbranch_scc1 P_NO13')
            I(f'''s_mov_b32 m0, s31
            s_add_u32 s31, s31, 8192
            buffer_load_dwordx4 v7, s[20:23], s30 offen {ax} lds
            s_add_u32 s30, s30, 8192''')
        I('P_NO13:')
    sh = 5 if MOVE else 20
    I(f'''
    v_lshlrev_b32 v56, {2+sh}, v0
    v_lshlrev_b32 v57, {1+sh}, v0
    v_add_u32 v57, {2048 << sh}, v57
    v_lshlrev_b32 v58, {sh}, v0
    v_add_u32 v58, {3072 << sh}, v58
    v_mov_b32 v59, 1
    s_mov_b32 s32, {-BN & 0xffffffff}
    s_mov_b32 s33, {1 << sh}
    s_mov_b32 s34, {2 << sh}
    s_mov_b32 s35, {3 << sh}
    s_barrier
    ''')
    kstamp(1)
    I(f's_waitcnt vmcnt({12 if MOVE else 0})')
    kstamp(2)
    def slot(k):
        eb = 56 if k < 4 else (57 if k < 6 else 58)
        kk = k if k < 4 else (k - 4 if k < 6 else 0)
        ks = '0' if kk == 0 else f's{32+kk}'
        I(f'''v_mul_u32_u24 v{B4+k}, 21400, v{D+k}
        v_lshrrev_b32 v{B4+k}, 20, v{B4+k}
        v_mad_i32_i24 v{D+k}, v{B4+k}, s32, v{D+k}
        v_lshlrev_b32 v{B4+k}, 2, v{B4+k}
        ds_add_rtn_u32 v{RK+k}, v{B4+k}, v59''')
        if MOVE:
            I(f'''v_lshlrev_b32 v{RC+k}, 7, v{S+k}
            v_lshl_or_b32 v{RC+k}, v{D+k}, 1, v{RC+k}
            v_lshl_or_b32 v{RC+k}, v{D+k}, 26, v{RC+k}
            v_add_u32 v{EL+k}, {ks}, v{eb}''')
        else:
            I(f'''v_lshl_or_b32 v{RC+k}, v{S+k}, 6, v{D+k}
            v_add3_u32 v{RC+k}, v{RC+k}, v{eb}, {ks}''')
    for k in range(6): slot(k)
    I('s_cmp_ge_u32 s28, 2\ns_cbranch_scc1 P_NO6B')
    slot(6)
    I(f'''
P_NO6B:
    v_and_b32 v60, 63, v0
    v_lshlrev_b32 v60, 4, v60
    s_waitcnt lgkmcnt(0)
    s_barrier
    ds_read_b128 v[64:67], v60
    s_waitcnt lgkmcnt(0)
    v_add_u32 v69, v64, v65
    v_add_u32 v70, v69, v66
    v_add_u32 v71, v70, v67
    v_mov_b32 v72, v71
    ''')
    dpp_scan(72)
    I(f'''
    v_sub_u32 v68, v72, v71
    v_add_u32 v71, v68, v70
    v_add_u32 v70, v68, v69
    v_add_u32 v69, v68, v64
    ds_write_b128 v60, v[68:71] offset:{K1_BASE}
    s_waitcnt lgkmcnt(0)
    ''')
    for k in range(6):
        I(f'ds_read_b32 v{D+k}, v{B4+k} offset:{K1_BASE}')
    I(f'''
    s_cmp_lt_u32 s28, 4
    s_cbranch_scc1 P_NOOFF
    v_add_u32 v61, -1024, v1
    ds_read_b32 v62, v61
    ds_read_b32 v63, v61 offset:{K1_BASE}
    v_lshlrev_b32 v61, 8, v61
    s_lshl_b32 s36, s2, 2
    s_add_u32 s36, s36, {OFFS}
    s_waitcnt lgkmcnt(0)
    v_lshl_or_b32 v62, v62, 16, v63
    buffer_store_dword v62, v61, s[16:19], s36 offen {OPT['K1_ST_AUX']}
P_NOOFF:
    s_cmp_ge_u32 s28, 2
    s_cbranch_scc1 P_NO6C
    ds_read_b32 v{D+6}, v{B4+6} offset:{K1_BASE}
    s_waitcnt lgkmcnt(0)
    v_add_lshl_u32 v{RK+6}, v{RK+6}, v{D+6}, 2
    ds_write_b32 v{RK+6}, v{RC+6} offset:{K1_SORT}
    ''')
    if MOVE: I(f'ds_write_b32 v{RK+6}, v{EL+6} offset:{K1_SORTE}')
    I('P_NO6C:\ns_waitcnt lgkmcnt(0)')
    for k in range(6):
        I(f'''v_add_lshl_u32 v{RK+k}, v{RK+k}, v{D+k}, 2
        ds_write_b32 v{RK+k}, v{RC+k} offset:{K1_SORT}''')
        if MOVE: I(f'ds_write_b32 v{RK+k}, v{EL+k} offset:{K1_SORTE}')
    I(f'''
    s_waitcnt lgkmcnt(0)
    ''')
    kstamp(3)
    I(f'''
    {"s_waitcnt vmcnt(0)" if MOVE else ""}
    s_barrier
    ''')
    kstamp(4)
    I(f'''
    ds_read_b128 v[8:11], v4 offset:{K1_SORT}
    v_cmp_gt_u32 vcc, 288, v0
    s_and_saveexec_b64 s[38:39], vcc
    ds_read_b128 v[12:15], v4 offset:{K1_SORT+8192}
    s_mov_b64 exec, s[38:39]
    ''')
    if MOVE:
        I(f'''v_lshrrev_b32 v84, 1, v0
        v_lshlrev_b32 v84, 2, v84
        v_and_b32 v85, 1, v0
        v_lshlrev_b32 v85, 4, v85
        v_add_u32 v85, {K1_EIMG}, v85''')
        for n in range(13):
            I(f'ds_read_b32 v{16+n}, v84 offset:{K1_SORTE + n*1024}')
    I(f'''
    s_waitcnt lgkmcnt({13 if MOVE else 0})
    buffer_store_dwordx4 v[8:11], v4, s[16:19], s29 offen {OPT['K1_ST_AUX']}
    s_add_u32 s36, s29, 8192
    s_and_saveexec_b64 s[38:39], vcc
    s_cbranch_execz P_NOST2
    buffer_store_dwordx4 v[12:15], v4, s[16:19], s36 offen {OPT['K1_ST_AUX']}
P_NOST2:
    s_mov_b64 exec, s[38:39]
    ''')
    if MOVE:
        I(f'''s_mul_i32 s30, s2, {CH*32}
        s_add_u32 s30, s30, {PAY}
        s_waitcnt lgkmcnt(0)''')
        for n in range(12):
            I(f'v_add_u32 v{16+n}, v{16+n}, v85\nds_read_b128 {r(32+4*n,4)}, v{16+n}')
        for n in range(12):
            I(f'''s_waitcnt lgkmcnt({min(15, 11-n)})
            buffer_store_dwordx4 {r(32+4*n,4)}, v4, s[16:19], s30 offen {OPT['PAY_ST_AUX']}
            s_add_u32 s30, s30, 8192''')
        I(f'''s_cmp_ge_u32 s28, 4
        s_cbranch_scc1 P_FIN
        v_add_u32 v28, v28, v85
        ds_read_b128 v[8:11], v28
        s_waitcnt lgkmcnt(0)
        buffer_store_dwordx4 v[8:11], v4, s[16:19], s30 offen {OPT['PAY_ST_AUX']}''')
    I('P_FIN:')
    for _ in range(OPT['K1SLEEP']): I('s_sleep 64')
    kdump()
    I('s_endpgm')
    I(f'''
P_PREP:
    s_load_dwordx4 s[8:11], s[0:1], 32
    s_load_dwordx2 s[12:13], s[0:1], 48
    s_sub_u32 s30, s2, {NCH}
    s_lshl_b32 s30, s30, 3
    s_add_u32 s30, s30, s28
    s_cmp_ge_u32 s30, {NFRAG}
    s_cbranch_scc1 P_END
    s_waitcnt lgkmcnt(0)
    s_mov_b32 s20, s12
    s_mov_b32 s21, s13
    s_mov_b32 s22, {144*128}
    s_mov_b32 s23, 0x20000
    s_mov_b32 s33, {NLOG2E}
    s_mov_b32 s31, s30
    s_mov_b32 s32, 64
    s_cmp_lt_u32 s30, 8
    s_cbranch_scc1 P_GO
    s_cmp_lt_u32 s30, 16
    s_cbranch_scc0 P_C1
    s_sub_u32 s31, s30, 8
    s_mov_b32 s32, 0
    s_mov_b32 s33, 1.0
    s_mov_b32 s20, s10
    s_mov_b32 s21, s11
    s_mov_b32 s22, {64*128}
    s_branch P_GO
P_C1:
    s_cmp_lt_u32 s30, 18
    s_cbranch_scc0 P_C2
    s_sub_u32 s31, s30, 16
    s_lshl_b32 s31, s31, 2
    s_mov_b32 s32, 128
    s_branch P_GO
P_C2:
    s_mov_b32 s33, 1.0
    s_mov_b32 s32, 0
    s_sub_u32 s31, s30, 18
    s_cmp_lt_u32 s30, 26
    s_cbranch_scc1 P_GO
    s_sub_u32 s31, s30, 26
    s_mov_b32 s20, s8
    s_mov_b32 s21, s9
    s_mov_b32 s22, {64*128}
P_GO:
    s_and_b32 s34, s31, 3
    s_lshl_b32 s34, s34, 4
    s_add_u32 s34, s34, s32
    s_lshl_b32 s34, s34, 7
    s_lshr_b32 s35, s31, 2
    s_lshl_b32 s35, s35, 6
    s_add_u32 s34, s34, s35
    v_and_b32 v1, 31, v0
    v_lshlrev_b32 v1, 1, v1
    v_bfe_u32 v2, v0, 5, 1
    v_lshl_or_b32 v1, v2, 10, v1
    ''')
    for t in range(8):
        I(f'buffer_load_ushort v{8+t}, v1, s[20:23], s34 offen offset:{t*128}')
    srd(16, 24, WS_BYTES)
    I(f'''
    v_and_b32 v3, 63, v0
    v_lshlrev_b32 v3, 4, v3
    s_lshl_b32 s36, s30, 10
    s_add_u32 s36, s36, {WF}
    s_waitcnt vmcnt(0)
    ''')
    for t in range(8):
        I(f'v_lshlrev_b32 v{8+t}, 16, v{8+t}\nv_mul_f32 v{8+t}, s33, v{8+t}')
    for t in range(4):
        I(f'v_cvt_pk_bf16_f32 v{16+t}, v{8+2*t}, v{9+2*t}')
    I('''buffer_store_dwordx4 v[16:19], v3, s[16:19], s36 offen
P_END:
    s_endpgm''')

CNT, FLAG, BASE = 0, 256, 512
XS = 1024
ES = XS + 65536
LX = ES + 16384
LE = LX + 16384
XAT = LE + 16384
AGG = XAT + 14336
M_LDS = AGG + 2*14336
ROWS = XS + 36864
XSENT, ESENT = 0x1FFF80, 0x7FFFFF00
CAP = 4096
NSLOT = 20

WB, WV, WC = 4, 36, 68
XA = 76
Z = 108
H = 140
AF = 156
ACC = 176
IDX = 192
vLX, vLE, vKX0, vKX1, vKE = 197, 198, 199, 200, 201
vRA, vRE = 202, 206
vSCH, vLT = 207, 208
T0, T1, T2 = 209, 210, 211
vC, vEB = 212, 213
vONE = 214
vLA = 215
T4 = 216
NV = 218
pREC, pRK, pAD = 76, 96, 116
pD, pA, pW = 136, 152, 168
sX, sE, sWS, sOUT = 8, 12, 16, 20
sW, sT, sTW, sNP, sNC, sNN, sD, sM0X, sM0E, sMASK, sTMP, sTMP2, sMODE, sSEG, sG0 = range(28, 43)
sONE = 44
sSAVE = 46
sOFP = 48
sB = 50

def thr(s): return 8 * (s // 4) + s % 4

def mf(d, a, b, c): return f'v_mfma_f32_32x32x16_bf16 {r(d,16)}, {r(a,4)}, {r(b,4)}, {c}'
def zm(ft):
    out = [mf(Z+16*ft, AF+16, WC+4*ft, r(XA+16*ft, 16))]
    for k in range(4): out.append(mf(Z+16*ft, AF+4*k, WB+16*ft+4*k, r(Z+16*ft, 16)))
    return out
def hm(ft):
    out = [mf(H, AF, WV+16*ft, '0')]
    for k in range(1, 4): out.append(mf(H, AF+4*k, WV+16*ft+4*k, r(H, 16)))
    return out
def exps(ft): return [f'v_exp_f32 v{Z+16*ft+i}, v{Z+16*ft+i}' for i in range(16)]
def rcps(ft): return [f'v_rcp_f32 v{Z+16*ft+i}, v{Z+16*ft+i}' for i in range(16)]
def pkadd(ft):
    if not OPT['PKA']: return [f'v_add_f32 v{Z+16*ft+i}, 1.0, v{Z+16*ft+i}' for i in range(16)]
    return [f'v_pk_add_f32 {r(Z+16*ft+2*i,2)}, {r(Z+16*ft+2*i,2)}, {sr(sONE,2)}' for i in range(8)]
def pkf(ft):
    if not OPT['PKF']: return [f'v_fmac_f32 v{ACC+8*ft+2*(i//4)+i%2}, v{Z+16*ft+i}, v{H+i}' for i in range(16)]
    return [f'v_pk_fma_f32 {r(ACC+8*ft+2*(i//2),2)}, {r(Z+16*ft+2*i,2)}, {r(H+2*i,2)}, {r(ACC+8*ft+2*(i//2),2)}' for i in range(8)]
def weave(main, ins):
    out = []
    for i, m in enumerate(main):
        out += ins.get(i, [])
        out.append(m)
    out += ins.get(len(main), [])
    return out

def lds_init():
    I(f'''v_lshlrev_b32 v{T0}, 4, v0
    v_add_u32 v{T0}, {LX}, v{T0}
    v_mov_b32 v{pD}, {XSENT}
    v_mov_b32 v{pD+1}, {XSENT}
    v_mov_b32 v{pD+2}, {XSENT}
    v_mov_b32 v{pD+3}, {XSENT}
    v_mov_b32 v{pD+4}, {ESENT}
    v_mov_b32 v{pD+5}, {ESENT}
    v_mov_b32 v{pD+6}, {ESENT}
    v_mov_b32 v{pD+7}, {ESENT}
    v_and_b32 v{T1}, 127, v0
    v_lshlrev_b32 v{T1}, 2, v{T1}
    v_mov_b32 v{T2}, 0
    ds_write_b128 v{T0}, {r(pD,4)}
    ds_write_b128 v{T0}, {r(pD,4)} offset:8192
    ds_write_b128 v{T0}, {r(pD+4,4)} offset:16384
    ds_write_b128 v{T0}, {r(pD+4,4)} offset:24576
    ds_write_b32 v{T1}, v{T2}''')

def pass_a(tag, nslot):
    for s in range(nslot):
        I(f'v_cmpx_lt_i32 vcc, {thr(s)}, v{vC}\ns_cbranch_execz PA_DONE{tag}')
        if MOVE:
            I(f'v_lshrrev_b32 v{pAD+s}, 24, v{pREC+s}')
        else:
            I(f'v_and_b32 v{pAD+s}, 63, v{pREC+s}\nv_lshlrev_b32 v{pAD+s}, 2, v{pAD+s}')
        I(f'ds_add_rtn_u32 v{pRK+s}, v{pAD+s}, v{vONE}')
    I(f'PA_DONE{tag}:\ns_mov_b64 exec, -1')

def scan(tag):
    I(f'''v_and_b32 v{T0}, 63, v0
    v_lshlrev_b32 v{T0}, 2, v{T0}
    ds_read_b32 v{T1}, v{T0}
    v_mov_b32 v{T2}, {FLAG}
    ds_read_b32 v{IDX}, v{T2}
    s_waitcnt lgkmcnt(0)
    v_add_u32 v{T1}, 7, v{T1}
    v_and_b32 v{T1}, -8, v{T1}
    v_mov_b32 v{T2}, v{T1}''')
    dpp_scan(T2)
    I(f'''v_sub_u32 v{T1}, v{T2}, v{T1}
    v_add_u32 v{T1}, {LX//4}, v{T1}
    ds_write_b32 v{T0}, v{T1} offset:{BASE}
    v_readlane_b32 s{sTMP}, v{T2}, 63
    v_readfirstlane_b32 s{sTMP2}, v{IDX}
    s_waitcnt lgkmcnt(0)''')

def pass_b(tag, nslot, estride):
    for s in range(nslot):
        I(f'v_cmpx_lt_i32 vcc, {thr(s)}, v{vC}\ns_cbranch_execz PB1_DONE{tag}')
        I(f'ds_read_b32 v{pAD+s}, v{pAD+s} offset:{BASE}')
    I(f'PB1_DONE{tag}:\ns_mov_b64 exec, -1\ns_waitcnt lgkmcnt(0)')
    for s in range(nslot):
        I(f'v_cmpx_lt_i32 vcc, {thr(s)}, v{vC}\ns_cbranch_execz PB2_DONE{tag}')
        I(f'v_add_lshl_u32 v{pRK+s}, v{pRK+s}, v{pAD+s}, 2')
        if MOVE:
            I(f'v_add_u32 v{pAD+s}, {estride(s)}, v{vEB}')
        else:
            I(f'''v_lshrrev_b32 v{pAD+s}, 20, v{pREC+s}
            v_lshl_add_u32 v{pAD+s}, v{pAD+s}, 5, v{vEB}
            v_lshlrev_b32 v{pREC+s}, 1, v{pREC+s}''')
        I(f'''ds_write_b32 v{pRK+s}, v{pREC+s}
        ds_write_b32 v{pRK+s}, v{pAD+s} offset:16384''')
    I(f'PB2_DONE{tag}:\ns_mov_b64 exec, -1')

def dma_tile(ix, xm0, em0, xoff, eoff):
    g = []
    for q in range(4):
        g.append([f's_add_u32 m0, s{xm0}, {xoff + q*1024}',
                  f'v_and_or_b32 v{ix+q}, v{ix+q}, s{sMASK}, v{vKX0 if q % 2 == 0 else vKX1}',
                  f'buffer_load_dwordx4 v{ix+q}, {sr(sX,4)}, 0 offen lds'])
    g.append([f's_add_u32 m0, s{em0}, {eoff}',
              f'v_add_u32 v{ix+4}, v{ix+4}, v{vKE}',
              f'buffer_load_dwordx4 v{ix+4}, {sr(sE,4)}, 0 offen {OPT["E_AUX"]} lds'])
    return g

def flush_j(j, sn):
    I(f'''v_add_f32 v{T1}, v{ACC+2*j}, v{ACC+2*j+1}
    v_add_f32 v{T2}, v{ACC+8+2*j}, v{ACC+8+2*j+1}
    s_bfe_u32 s{sTMP}, s{sn}, {(6 << 16) | (8*j)}
    s_lshl_b32 s{sTMP}, s{sTMP}, 9
    v_permlane32_swap_b32 v{T1}, v{T2}
    v_add_u32 v{T0}, s{sTMP}, v{vLA}
    v_mov_b64 {r(ACC+2*j,2)}, 0
    v_add_f32 v{T1}, v{T1}, v{T2}
    v_mov_b64 {r(ACC+8+2*j,2)}, 0
    v_cvt_f64_f32 {r(T4,2)}, v{T1}
    ds_add_f64 v{T0}, {r(T4,2)}''')
def xa_j(j, sn):
    I(f'''s_bfe_u32 s{sTMP}, s{sn}, {(6 << 16) | (8*j)}
    s_lshl_b32 s{sTMP}, s{sTMP}, 8
    v_add_u32 v{T0}, s{sTMP}, v{vLT}
    ds_read2_b32 {r(XA+4*j,2)}, v{T0}
    ds_read2_b32 {r(XA+4*j+2,2)}, v{T0}
    ds_read2_b32 {r(XA+16+4*j,2)}, v{T0} offset0:32 offset1:32
    ds_read2_b32 {r(XA+16+4*j+2,2)}, v{T0} offset0:32 offset1:32''')

def TR(k):
    if not OPT['TRACE']: return ''
    return f'''s_memtime s[76:77]
    s_waitcnt lgkmcnt(0)
    s_mov_b32 m0, s{sT}
    s_nop 0
    v_writelane_b32 v{220+k}, s76, m0'''
def stamp(i):
    if OPT['STAMP']:
        I(f'{"s_memtime" if OPT["CYC"] and i in (4,5) else "s_memrealtime"} s[{60+2*i}:{61+2*i}]\ns_waitcnt lgkmcnt(0)')

def gen_main():
    header(MAIN)
    stamp(0)
    I(f"""
    s_cmp_ge_u32 s2, {NB}
    s_cbranch_scc1 M_END
    s_load_dwordx4 s[4:7], s[0:1], 0
    s_load_dwordx2 s[24:25], s[0:1], 56
    s_load_dwordx2 s[26:27], s[0:1], 72
    v_lshrrev_b32 v1, 6, v0
    v_and_b32 v2, 63, v0
    v_readfirstlane_b32 s{sW}, v1
    s_and_b32 s{sB}, s2, 7
    s_lshl_b32 s{sB}, s{sB}, 5
    s_lshr_b32 s{sTMP}, s2, 3
    s_add_u32 s{sB}, s{sB}, s{sTMP}
    v_lshlrev_b32 v{IDX+1}, 4, v2
    v_lshrrev_b32 v3, 1, v0
    v_lshlrev_b32 v{IDX}, 2, v3
    v_lshrrev_b32 v{IDX+2}, 4, v2
    s_lshl_b32 s{sTMP}, s{sW}, 2
    v_add_u32 v{IDX+2}, s{sTMP}, v{IDX+2}
    v_xor_b32 v{IDX+2}, v{IDX+2}, v2
    v_and_b32 v{IDX+2}, 7, v{IDX+2}
    v_lshlrev_b32 v{IDX+2}, 4, v{IDX+2}
    v_lshrrev_b32 v{IDX+3}, 3, v2
    v_lshl_or_b32 v{IDX+2}, v{IDX+3}, 7, v{IDX+2}
    s_lshl_b32 s{sTMP}, s{sW}, 10
    s_add_u32 s{sTMP2}, s{sTMP}, {WF}
    s_add_u32 s{sTMP}, s{sTMP}, {XS}
    s_waitcnt lgkmcnt(0)
    """)
    srd(sWS, 26, WS_BYTES)
    for n in range(5):
        if n == 4: I(f's_cmp_ge_u32 s{sW}, 2\ns_cbranch_scc1 M_NOW4')
        I(f"""s_mov_b32 m0, s{sTMP}
        s_add_u32 s{sTMP}, s{sTMP}, 8192
        buffer_load_dwordx4 v{IDX+1}, {sr(sWS,4)}, s{sTMP2} offen lds
        s_add_u32 s{sTMP2}, s{sTMP2}, 8192""")
    I('M_NOW4:')
    srd(sX, 4, N * 128)
    I(f"""
    s_cmp_ge_u32 s{sW}, 7
    s_cbranch_scc1 M_NOROW
    s_lshl_b32 s{sTMP}, s{sW}, 10
    s_mul_i32 s{sTMP2}, s{sB}, {BN*128}
    s_add_u32 m0, s{sTMP}, {ROWS}
    s_add_u32 s{sTMP2}, s{sTMP2}, s{sTMP}
    buffer_load_dwordx4 v{IDX+2}, {sr(sX,4)}, s{sTMP2} offen lds
M_NOROW:
    s_lshl_b32 s{sTMP}, s{sB}, 10
    s_add_u32 s{sTMP}, s{sTMP}, {OFFS}
    buffer_load_dword v{vC}, v{IDX}, {sr(sWS,4)}, s{sTMP} offen
    s_add_u32 s{sOFP}, s26, s{sTMP}
    s_addc_u32 s{sOFP+1}, s27, 0
    """)
    lds_init()
    if MOVE:
        I(f"""s_add_u32 s{sE}, s26, {PAY}
        s_addc_u32 s{sE+1}, s27, 0
        s_mov_b32 s{sE+2}, {E*32}
        s_mov_b32 s{sE+3}, 0x20000""")
    else:
        srd(sE, 6, E * 32)
    srd(sOUT, 24, N * 128)
    I(f"""
    v_mov_b32 v{vONE}, 1
    s_mov_b32 s{sMASK}, {XSENT}
    s_mov_b32 s{sONE}, 1.0
    s_mov_b32 s{sONE+1}, 1.0
    s_mov_b32 s{sMODE}, 0
    s_lshl_b32 s{sM0X}, s{sW}, 13
    s_add_u32 s{sM0X}, s{sM0X}, {XS}
    s_lshl_b32 s{sM0E}, s{sW}, 11
    s_add_u32 s{sM0E}, s{sM0E}, {ES}
    v_lshrrev_b32 v{T0}, 4, v2
    v_xor_b32 v{T0}, v{T0}, v2
    v_and_b32 v{T1}, 7, v{T0}
    v_lshlrev_b32 v{vKX0}, 4, v{T1}
    v_xor_b32 v{vKX1}, 64, v{vKX0}
    v_and_b32 v{T0}, 1, v{T0}
    v_lshlrev_b32 v{vKE}, 4, v{T0}
    v_and_b32 v{T0}, 31, v2
    v_lshlrev_b32 v{vLT}, 2, v{T0}
    v_add_u32 v{vLT}, {XAT}, v{vLT}
    v_lshlrev_b32 v{vLA}, 3, v2
    v_add_u32 v{vLA}, {AGG}, v{vLA}
    """)
    j_, i_, h_, g_, t_, u_ = pA, pA+1, pA+2, pA+3, pA+4, pA+5
    I(f"""
    v_bfe_u32 v{j_}, v2, 3, 2
    v_and_b32 v{i_}, 3, v2
    v_lshrrev_b32 v{h_}, 5, v2
    v_lshrrev_b32 v{t_}, 1, v{j_}
    v_xor_b32 v{g_}, v{t_}, v{j_}
    v_lshrrev_b32 v{u_}, 2, v2
    v_xor_b32 v{g_}, v{g_}, v{u_}
    v_and_b32 v{g_}, 1, v{g_}
    v_xor_b32 v{t_}, v{t_}, v{h_}
    v_lshlrev_b32 v{t_}, 4, v{t_}
    v_lshl_or_b32 v{u_}, v{j_}, 2, v{i_}
    v_lshl_or_b32 v{u_}, v{g_}, 4, v{u_}
    v_lshl_or_b32 v{t_}, v{u_}, 5, v{t_}
    v_add_u32 v{vRE}, s{sM0E}, v{t_}
    v_and_b32 v{t_}, 1, v{i_}
    v_lshl_or_b32 v{u_}, v{g_}, 1, v{t_}
    v_lshlrev_b32 v{u_}, 3, v{u_}
    v_lshl_or_b32 v{u_}, v{j_}, 1, v{u_}
    v_lshrrev_b32 v{i_}, 1, v{i_}
    v_or_b32 v{u_}, v{u_}, v{i_}
    v_lshlrev_b32 v{u_}, 7, v{u_}
    v_add_u32 v{u_}, s{sM0X}, v{u_}
    v_lshl_or_b32 v{t_}, v{t_}, 2, v{j_}
    v_xor_b32 v{t_}, v{t_}, v{h_}
    """)
    for s in range(4):
        I(f"""v_xor_b32 v{g_}, {2*s}, v{t_}
        v_lshl_add_u32 v{vRA+s}, v{g_}, 4, v{u_}""")
    I(f"""
    v_cmp_gt_u32 vcc, {NCH}, v3
    v_mul_u32_u24 v{T1}, {CH}, v3
    v_and_b32 v{T2}, 1, v0
    v_lshlrev_b32 v{T2}, 2, v{T2}
    s_lshr_b32 s{sTMP}, s2, 3
    s_mul_i32 s{sTMP}, s{sTMP}, {391*128}
    v_min_u32 v1, 390, v0
    v_lshlrev_b32 v1, 7, v1
    s_waitcnt vmcnt(0)
    v_cndmask_b32 v{vC}, 0, v{vC}, vcc
    v_and_b32 v{T0}, 0xffff, v{vC}
    v_lshrrev_b32 v{vC}, 16, v{vC}
    v_add3_u32 v{T0}, v{T0}, v{T1}, v{T2}
    v_cmp_lt_u32 {sr(sSAVE,2)}, {2*NSLOT}, v{vC}
    v_sub_u32 v{vC}, v{vC}, v{T2}
    v_lshlrev_b32 v{vEB}, 5, v{T0 if MOVE else T1}
    v_lshlrev_b32 v{T0}, 2, v{T0}
    """)
    for m in range(NSLOT // 4):
        I(f"""v_cmpx_lt_i32 vcc, {8*m}, v{vC}
        s_cbranch_execz M_RL_DONE
        buffer_load_dwordx4 {r(pREC+4*m,4)}, v{T0}, {sr(sWS,4)}, 0 offen offset:{32*m}""")
    I('M_RL_DONE:\ns_mov_b64 exec, -1')
    if OPT['XPF']:
        I(f'buffer_load_dword v1, v1, {sr(sX,4)}, s{sTMP} offen')
    stamp(1)
    I(f"""
    s_waitcnt lgkmcnt(0)
    s_barrier
    s_cmp_eq_u64 {sr(sSAVE,2)}, 0
    s_cbranch_scc1 M_NOFLAG
    v_mov_b32 v{T1}, {FLAG}
    ds_write_b32 v{T1}, v{vONE}
M_NOFLAG:
    """)
    I(f"""
    v_lshlrev_b32 v{T0}, 4, v2
    v_add_u32 v{T0}, {XS}, v{T0}
    s_lshr_b32 s{sTMP}, s{sW}, 2
    s_lshl_b32 s{sTMP}, s{sTMP}, 1
    s_and_b32 s{sTMP2}, s{sW}, 1
    s_add_u32 s{sTMP}, s{sTMP}, s{sTMP2}
    s_lshl_b32 s{sTMP}, s{sTMP}, 12
    v_add_u32 v{T1}, s{sTMP}, v{T0}
    """)
    for s in range(4):
        I(f'ds_read_b128 {r(pW+4*s,4)}, v{T1} offset:{(18+s)*1024}')
    I(f"""
    v_and_b32 v{T1}, 31, v2
    v_lshrrev_b32 v{T2}, 5, v2
    v_bfe_u32 v{IDX}, v2, 1, 3
    v_xor_b32 v{IDX}, v{IDX}, v{T2}
    s_bfe_u32 s{sG0}, s{sW}, 0x10001
    s_lshl_b32 s{sTMP2}, s{sG0}, 12
    s_add_u32 s{sTMP2}, s{sTMP2}, {ROWS}
    v_lshlrev_b32 v{T1}, 7, v{T1}
    v_add_u32 v{T1}, s{sTMP2}, v{T1}
    """)
    for s in range(4):
        I(f"""v_xor_b32 v{IDX+1}, {2*s}, v{IDX}
        v_lshl_add_u32 v{IDX+1}, v{IDX+1}, 4, v{T1}
        ds_read_b128 {r(pA+4*s,4)}, v{IDX+1}""")
    I(f"""
    s_lshl_b32 s{sTMP2}, s{sG0}, 13
    s_and_b32 s{sD}, s{sW}, 1
    s_lshl_b32 s{sD}, s{sD}, 7
    s_add_u32 s{sTMP2}, s{sTMP2}, s{sD}
    v_lshlrev_b32 v{T2}, 10, v{T2}
    v_add3_u32 v{T2}, v{T2}, v{vLT}, s{sTMP2}
    s_mov_b32 s{sD}, {NLOG2E}
    s_waitcnt lgkmcnt(0)
    """)
    I(mf(pD, pA, pW, '0'))
    for s in range(1, 4): I(mf(pD, pA+4*s, pW+4*s, r(pD, 16)))
    for f in range(18):
        I(f'ds_read_b128 {r(WB+4*f,4)}, v{T0} offset:{f*1024}')
    I(f's_cmp_ge_u32 s{sW}, 4\ns_cbranch_scc1 M_XU')
    for k in range(16):
        if k == 12: I(f's_cmp_lg_u32 s{sG0}, 0\ns_cbranch_scc1 M_TDONE')
        I(f'v_mul_f32 v{pD+k}, s{sD}, v{pD+k}\nds_write_b32 v{T2}, v{pD+k} offset:{(8*(k//4)+k%4)*256}')
    I(f"""s_branch M_TDONE
M_XU:
    v_subrev_u32 v{T2}, {XAT}, v{T2}
    v_lshlrev_b32 v{T2}, 1, v{T2}
    v_add_u32 v{T2}, {AGG}, v{T2}
    """)
    for k in range(16):
        if k == 12: I(f's_cmp_lg_u32 s{sG0}, 0\ns_cbranch_scc1 M_TDONE')
        I(f'v_cvt_f64_f32 {r(pA+2*(k%8),2)}, v{pD+k}\nds_write_b64 v{T2}, {r(pA+2*(k%8),2)} offset:{(8*(k//4)+k%4)*512}')
    I('M_TDONE:')
    I(f's_waitcnt vmcnt({1 if OPT["XPF"] else 0})')
    stamp(2)
    pass_a('F', NSLOT)
    I('s_waitcnt lgkmcnt(0)\ns_barrier')
    scan('F')
    I(f"""
    s_cmp_gt_u32 s{sTMP}, {CAP}
    s_cbranch_scc1 M_SLOW
    s_cmp_lg_u32 s{sTMP2}, 0
    s_cbranch_scc1 M_SLOW
    """)
    pass_b('F', NSLOT, lambda s: thr(s) * 32)
    I(f'''
M_BATCH:
    s_add_u32 s{sTMP}, s{sTMP}, 31
    s_lshr_b32 s{sTMP}, s{sTMP}, 5
    s_add_u32 s{sTW}, s{sTMP}, 7
    s_sub_u32 s{sTW}, s{sTW}, s{sW}
    s_lshr_b32 s{sTW}, s{sTW}, 3
    s_lshr_b32 s{sG0}, s{sTMP}, 3
    s_mul_i32 s{sG0}, s{sG0}, s{sW}
    s_and_b32 s{sTMP}, s{sTMP}, 7
    s_min_u32 s{sTMP}, s{sTMP}, s{sW}
    s_add_u32 s{sG0}, s{sG0}, s{sTMP}
    s_lshl_b32 s{sG0}, s{sG0}, 7
    s_add_u32 s{sG0}, s{sG0}, {LX}
    s_lshl_b32 s{sTMP2}, s{sTW}, 5
    v_lshrrev_b32 v{T0}, 4, v2
    v_mul_u32_u24 v{T0}, s{sTMP2}, v{T0}
    v_bfe_u32 v{T1}, v2, 3, 1
    v_lshl_add_u32 v{T0}, v{T1}, 4, v{T0}
    v_add_u32 v{vLX}, s{sG0}, v{T0}
    v_bfe_u32 v{T0}, v2, 3, 2
    v_mul_u32_u24 v{T0}, s{sTMP2}, v{T0}
    v_bfe_u32 v{T1}, v2, 2, 1
    v_lshl_add_u32 v{T0}, v{T1}, 4, v{T0}
    v_lshrrev_b32 v{T1}, 5, v2
    v_lshl_add_u32 v{T0}, v{T1}, 3, v{T0}
    v_bfe_u32 v{T1}, v2, 1, 1
    v_lshl_add_u32 v{T0}, v{T1}, 2, v{T0}
    v_add_u32 v{vLE}, s{sG0}, v{T0}
    s_sub_u32 s{sTMP}, s{sTW}, 1
    v_min_u32 v{T0}, s{sTMP}, v2
    v_lshlrev_b32 v{T0}, 5, v{T0}
    v_add_u32 v{T0}, s{sG0}, v{T0}
    v_add_u32 v{T1}, s{sTMP2}, v{T0}
    v_add_u32 v{T2}, s{sTMP2}, v{T1}
    v_add_u32 v{vSCH}, s{sTMP2}, v{T2}
    ''')
    for k in range(8): I(f'v_mov_b64 {r(ACC+2*k,2)}, 0')
    I(f'''
    s_waitcnt lgkmcnt(0)
    s_barrier
    ''')
    stamp(3)
    if OPT['NOX']: I(f's_mov_b32 s{sX+2}, 0')
    if OPT['NOE']: I(f's_mov_b32 s{sE+2}, 0')
    I(f'''
    s_cmp_eq_u32 s{sTW}, 0
    s_cbranch_scc1 M_BDONE
    ds_read_b128 {r(Z,4)}, v{vLX}
    ds_read_b32 v{Z+4}, v{vLE} offset:16384
    ds_read_b128 {r(Z+8,4)}, v{vLX} offset:32
    ds_read_b32 v{Z+12}, v{vLE} offset:{16384+32}
    ds_read_b32 v{T0}, v{T0}
    ds_read_b32 v{T1}, v{T1}
    ds_read_b32 v{T2}, v{T2}
    ds_read_b32 v{vSCH}, v{vSCH}
    ds_read_b128 {r(IDX,4)}, v{vLX} offset:64
    ds_read_b32 v{IDX+4}, v{vLE} offset:{16384+64}
    s_waitcnt lgkmcnt(8)
    ''')
    for g in dma_tile(Z, sM0X, sM0E, 0, 0): I('\n'.join(g))
    I(f'''
    s_waitcnt lgkmcnt(0)
    s_cmp_lt_u32 s{sTW}, 2
    s_cbranch_scc1 M_NOT1
    ''')
    for g in dma_tile(Z+8, sM0X, sM0E, 4096, 1024): I('\n'.join(g))
    I(f'''
M_NOT1:
    v_bfe_u32 v{T0}, v{T0}, 1, 6
    v_bfe_u32 v{T1}, v{T1}, 1, 6
    v_bfe_u32 v{T2}, v{T2}, 1, 6
    v_bfe_u32 v{vSCH}, v{vSCH}, 1, 6
    v_lshl_or_b32 v{T0}, v{T1}, 8, v{T0}
    v_lshl_or_b32 v{T0}, v{T2}, 16, v{T0}
    v_lshl_or_b32 v{vSCH}, v{vSCH}, 24, v{T0}
    v_add_u32 v{vLX}, 96, v{vLX}
    v_add_u32 v{vLE}, {16384+96}, v{vLE}
    v_readfirstlane_b32 s{sNC}, v{vSCH}
    s_mov_b32 s{sT}, 1
    s_nop 2
    s_mov_b32 s{sNP}, s{sNC}
    ''')
    for j in range(4): xa_j(j, sNC)
    I(f'''
    s_cmp_lt_u32 s{sTW}, 2
    s_cbranch_scc1 M_W0
    s_waitcnt vmcnt(5)
    s_branch M_W1
M_W0:
    s_waitcnt vmcnt(0)
M_W1:
    ''')
    for s in range(4): I(f'ds_read_b128 {r(AF+4*s,4)}, v{vRA+s}')
    I(f'''ds_read_b128 {r(AF+16,4)}, v{vRE}
    s_waitcnt lgkmcnt(0)''')
    z0 = zm(0)
    I(z0[0])
    I(f's_cmp_lt_u32 s{sTW}, 3\ns_cbranch_scc1 M_NOT2')
    for g in dma_tile(IDX, sM0X, sM0E, 0, 0): I('\n'.join(g))
    I('M_NOT2:')
    for m in z0[1:]: I(m)
    I('s_nop 7\ns_nop 3')
    stamp(4)
    I('.p2align 6')
    for p in range(2):
        nb = 1 - p
        I(f'''
M_LOOP{p}:
    {TR(0)}
    s_xor_b32 s{sD}, s{sNP}, s{sNC}
    {';' if OPT['NOEV'] else ''}s_cbranch_scc1 M_FL{p}
M_FLR{p}:
        ''')
        hv = hm(0)
        I('\n'.join(weave(exps(0), {0: [hv[0]], 3: [hv[1]], 6: [hv[2]], 9: [hv[3]],
                                    11: [f'v_readlane_b32 s{sNN}, v{vSCH}, s{sT}']})))
        I('\n'.join(pkadd(0)))
        zz = zm(1)
        I('\n'.join(weave(rcps(0), {0: [zz[0]], 3: [zz[1]], 6: [zz[2]], 9: [zz[3]], 12: [zz[4]]})))
        I('\n'.join(pkf(0)))
        I(f'''
    s_xor_b32 s{sD}, s{sNC}, s{sNN}
    {';' if OPT['NOEV'] else ''}s_cbranch_scc1 M_XA{p}
M_XAR{p}:
    s_add_u32 s{sTMP}, s{sT}, 1
    s_cmp_lt_u32 s{sTMP}, s{sTW}
    s_cbranch_scc0 M_WZ{p}
    s_waitcnt vmcnt(5)
M_WZR{p}:
        ''')
        hv = hm(1)
        rd = [f'ds_read_b128 {r(AF+4*s,4)}, v{vRA+s} offset:{nb*4096}' for s in range(4)]
        if OPT['NODS']:
            I('\n'.join(weave(exps(1), {0: [hv[0]], 3: [hv[1]], 6: [hv[2]], 9: [hv[3]]})))
        else: I('\n'.join(weave(exps(1), {
            0: [hv[0], rd[0]],
            1: [f'ds_read_b128 {r(AF+16,4)}, v{vRE} offset:{nb*1024}'],
            3: [hv[1], rd[1]],
            4: [f'ds_read_b128 {r(IDX,4)}, v{vLX}'],
            6: [hv[2], rd[2]],
            7: [f'ds_read_b32 v{IDX+4}, v{vLE}'],
            9: [hv[3], rd[3]],
        })))
        I('\n'.join(pkadd(1)))
        zz = zm(0)
        I(f'''
    s_add_u32 s{sTMP}, s{sT}, 2
    s_cmp_lt_u32 s{sTMP}, s{sTW}
    s_waitcnt lgkmcnt(0)
    s_cbranch_scc0 M_ND{p}
        ''')
        g = dma_tile(IDX, sM0X, sM0E, nb*4096, nb*1024)
        if OPT['NODMA']: g = [x[:2] for x in g]
        I('\n'.join(weave(rcps(1), {
            0: [zz[0]], 1: g[0], 3: [zz[1]], 4: g[1], 6: [zz[2]], 7: g[2], 9: [zz[3]], 10: g[3], 12: [zz[4]], 13: g[4],
            14: [f'v_add_u32 v{vLX}, 32, v{vLX}'], 15: [f'v_add_u32 v{vLE}, 32, v{vLE}']})))
        I(f'M_NDR{p}:')
        I('\n'.join(pkf(1)))
        I(f'''
    s_mov_b32 s{sNP}, s{sNC}
    s_mov_b32 s{sNC}, s{sNN}
    s_add_u32 s{sT}, s{sT}, 1
    s_cmp_le_u32 s{sT}, s{sTW}''')
        if p == 0:
            I('s_cbranch_scc0 M_LEND')
        else:
            I('s_cbranch_scc1 M_LOOP0')
    I('M_LEND:')
    I(TR(0))
    for j in range(4): flush_j(j, sNP)
    I(f'''
M_BDONE:
    s_cmp_lg_u32 s{sMODE}, 0
    s_cbranch_scc1 M_SNEXT
M_EPI:
    ''')
    stamp(5)
    I(f'''
    s_waitcnt lgkmcnt(0)
    s_barrier
    v_cmp_gt_u32 vcc, {BN*8}, v0
    s_and_saveexec_b64 {sr(sSAVE,2)}, vcc
    s_cbranch_execz M_FIN
    v_lshlrev_b32 v{T0}, 6, v0
    v_add_u32 v{T0}, {AGG}, v{T0}
    ds_read_b128 {r(Z+16,4)}, v{T0}
    ds_read_b128 {r(Z+20,4)}, v{T0} offset:16
    ds_read_b128 {r(Z+24,4)}, v{T0} offset:32
    ds_read_b128 {r(Z+28,4)}, v{T0} offset:48
    s_mov_b32 s{sTMP}, {NLOG2E}
    s_mul_i32 s{sTMP2}, s{sB}, {BN*128}
    v_lshlrev_b32 v{T1}, 4, v0
    s_waitcnt lgkmcnt(0)
    ''')
    for k in range(8): I(f'v_cvt_f32_f64 v{Z+k}, {r(Z+16+2*k,2)}')
    for k in range(8): I(f'v_mul_f32 v{Z+8+k}, s{sTMP}, v{Z+k}')
    for k in range(8): I(f'v_exp_f32 v{Z+8+k}, v{Z+8+k}')
    for k in range(8): I(f'v_add_f32 v{Z+8+k}, 1.0, v{Z+8+k}')
    for k in range(8): I(f'v_rcp_f32 v{Z+8+k}, v{Z+8+k}')
    for k in range(8): I(f'v_mul_f32 v{Z+k}, v{Z+k}, v{Z+8+k}')
    for k in range(4): I(f'v_cvt_pk_bf16_f32 v{Z+16+k}, v{Z+2*k}, v{Z+2*k+1}')
    I(f'buffer_store_dwordx4 {r(Z+16,4)}, v{T1}, {sr(sOUT,4)}, s{sTMP2} offen')
    I('M_FIN:')
    if OPT['STAMP']:
        I(f'''s_mov_b64 exec, 1
        s_memrealtime s[72:73]
        s_load_dwordx2 s[4:5], s[0:1], 72
        s_waitcnt lgkmcnt(0) vmcnt(0)
        s_add_u32 s52, s4, 0x8000000
        s_addc_u32 s53, s5, 0
        s_mov_b32 s54, 0x100000
        s_mov_b32 s55, 0x20000
        s_lshl_b32 s56, s2, 3
        s_add_u32 s56, s56, s{sW}
        s_lshl_b32 s56, s56, 5
        v_mov_b32 v1, 0''')
        for i in range(7): I(f'v_mov_b32 v{8+i}, s{60+2*i}')
        I(f'''v_mov_b32 v15, s{sTW}
        buffer_store_dwordx4 v[8:11], v1, s[52:55], s56 offen
        buffer_store_dwordx4 v[12:15], v1, s[52:55], s56 offen offset:16''')
        if OPT['TRACE']:
            I(f'''s_mov_b64 exec, -1
            s_lshl_b32 s56, s56, 3
            s_add_u32 s56, s56, 0x20000
            v_lshlrev_b32 v1, 2, v2
            buffer_store_dword v220, v1, s[52:55], s56 offen''')
    I('M_END:\ns_endpgm')
    for p in range(2):
        I(f'M_FL{p}:')
        for j in range(4):
            I(f's_and_b32 s{sTMP}, s{sD}, {0xff << (8*j)}\ns_cbranch_scc0 M_FL{p}_{j}')
            flush_j(j, sNP)
            I(f'M_FL{p}_{j}:')
        I(f's_branch M_FLR{p}')
        I(f'M_XA{p}:')
        for j in range(4):
            I(f's_and_b32 s{sTMP}, s{sD}, {0xff << (8*j)}\ns_cbranch_scc0 M_XA{p}_{j}')
            xa_j(j, sNN)
            I(f'M_XA{p}_{j}:')
        I(f's_branch M_XAR{p}')
        I(f'M_WZ{p}:\ns_waitcnt vmcnt(0)\ns_branch M_WZR{p}')
        I(f'M_ND{p}:')
        zz = zm(0)
        I('\n'.join(weave(rcps(1), {0: [zz[0]], 3: [zz[1]], 6: [zz[2]], 9: [zz[3]], 12: [zz[4]]})))
        I(f's_branch M_NDR{p}')
    I(f'''
M_SLOW:
    s_mov_b32 s{sMODE}, 1
    s_mov_b32 s{sSEG}, -1
M_SNEXT:
    s_add_u32 s{sSEG}, s{sSEG}, 1
    s_cmp_ge_u32 s{sSEG}, {NCH}
    s_cbranch_scc1 M_EPI
    s_lshl_b32 s{sTMP}, s{sSEG}, 2
    s_load_dword s{sD}, {sr(sOFP,2)}, s{sTMP}
    s_waitcnt lgkmcnt(0)
    s_lshr_b32 s{sTMP2}, s{sD}, 16
    s_cmp_eq_u32 s{sTMP2}, 0
    s_cbranch_scc1 M_SNEXT
    s_barrier
    ''')
    lds_init()
    I(f'''
    s_and_b32 s{sD}, s{sD}, 0xffff
    s_mul_i32 s{sTMP}, s{sSEG}, {CH}
    s_add_u32 s{sD}, s{sD}, s{sTMP}
    v_add_u32 v{T0}, s{sD}, v0
    v_mov_b32 v{T1}, s{sTMP}
    v_lshlrev_b32 v{vEB}, 5, v{T0 if MOVE else T1}
    v_lshlrev_b32 v{T0}, 2, v{T0}
    v_sub_u32 v{vC}, s{sTMP2}, v0
    v_add_u32 v{vC}, 511, v{vC}
    v_ashrrev_i32 v{vC}, 9, v{vC}
    v_cmp_lt_i32 vcc, 4, v{vC}
    v_add_u32 v{T1}, 4, v{vC}
    s_nop 0
    v_cndmask_b32 v{vC}, v{vC}, v{T1}, vcc
    ''')
    for s in range(7):
        I(f'buffer_load_dword v{pREC+s}, v{T0}, {sr(sWS,4)}, 0 offen')
        if s < 6: I(f'v_add_u32 v{T0}, 2048, v{T0}')
    I('s_waitcnt vmcnt(0) lgkmcnt(0)\ns_barrier')
    pass_a('S', 7)
    I('s_waitcnt lgkmcnt(0)\ns_barrier')
    scan('S')
    pass_b('S', 7, lambda s: s * 16384)
    I('s_branch M_BATCH')

def kd(name, vgpr, sgpr):
    return f'''.amdhsa_kernel {name}
  .amdhsa_next_free_vgpr {vgpr}
  .amdhsa_next_free_sgpr {sgpr}
  .amdhsa_accum_offset {(vgpr+3)//4*4}
  .amdhsa_group_segment_fixed_size 0
  .amdhsa_kernarg_size 80
  .amdhsa_user_sgpr_count 2
  .amdhsa_user_sgpr_kernarg_segment_ptr 1
  .amdhsa_system_sgpr_workgroup_id_x 1
.end_amdhsa_kernel
'''

HEAD = open('gather_scatter__edge_featured_mpnn_egc__graph.s.ref').read().split('; Override')[0]
gen_part()
gen_main()
if OPT['EXTRA']:
    header('nop_kernel'); I('s_endpgm')
out = HEAD + f'''; Two launches: part_kernel bins the edges by destination bucket, the main kernel does the rest.
{'; @launch kernel=nop_kernel grid=(1,1,1) block=(64,1,1) lds=0'+chr(10) if OPT['EXTRA']==1 else ''}; @launch kernel=part_kernel grid=({NCH+5},1,1) block=(512,1,1) lds={K1_LDS}
{'; @launch kernel=nop_kernel grid=(1,1,1) block=(64,1,1) lds=0'+chr(10) if OPT['EXTRA']==2 else ''}; @launch kernel={MAIN} grid=({NB},1,1) block=(512,1,1) lds={M_LDS}
{'; @launch kernel=nop_kernel grid=(1,1,1) block=(64,1,1) lds=0'+chr(10) if OPT['EXTRA']==3 else ''}.amdgcn_target "amdgcn-amd-amdhsa--gfx950"
.text
''' + '\n'.join(L) + '''
.section .rodata,"a"
.p2align 6
''' + kd('part_kernel', 88, 80) + '.p2align 6\n' + kd(MAIN, NV+(8 if OPT['TRACE'] else 0), 80) + ('.p2align 6\n' + kd('nop_kernel', 8, 8) if OPT['EXTRA'] else '')
open(sys.argv[1], 'w').write(out)
```

```python
import sys, struct

OPT = dict(MOVE=0, E_AUX='', K1_LD_AUX='', K1_ST_AUX='', PAY_ST_AUX='', STAMP=0, PRIO=0, NOX=0, NOE=0, CYC=0, PKA=1, PKF=1, NOEV=0, NODMA=0, NODS=0, NOVM=0, TRACE=0, XPF=1, K1SLEEP=0, EXTRA=0, DBG=0)
for a in sys.argv[2:]:
    k, v = a.split('=')
    OPT[k] = int(v) if v.lstrip('-').isdigit() else v.replace('_', ' ')
MOVE = OPT['MOVE']

N, E = 12500, 800000
NB, BN = 256, 49
NCH, CH = 250, 3200
REC, OFFS, WF, PAY = 0, 0x400000, 0x480000, 0x800000
WS_BYTES = PAY + E * 32
NFRAG = 34
NLOG2E = struct.unpack('<I', struct.pack('<f', -1.4426950408889634))[0]
MAIN = 'gather_scatter__edge_featured_mpnn_egc__graph_kernel'

L = []
def I(s):
    for ln in s.strip('\n').split('\n'):
        ln = ln.strip()
        if ln:
            L.append(ln if ln.endswith(':') else '    ' + ln)
def r(a, n): return f'v[{a}:{a+n-1}]'
def sr(a, n): return f's[{a}:{a+n-1}]'
def srd(d, base, nbytes):
    I(f'''s_mov_b32 s{d}, s{base}
    s_mov_b32 s{d+1}, s{base+1}
    s_mov_b32 s{d+2}, {nbytes}
    s_mov_b32 s{d+3}, 0x20000''')
def dpp_scan(v):
    for ctl in ('row_shr:1', 'row_shr:2', 'row_shr:4', 'row_shr:8'):
        I(f's_nop 1\nv_add_u32_dpp v{v}, v{v}, v{v} {ctl} row_mask:0xf bank_mask:0xf bound_ctrl:1')
    I(f's_nop 1\nv_add_u32_dpp v{v}, v{v}, v{v} row_bcast:15 row_mask:0xa bank_mask:0xf')
    I(f's_nop 1\nv_add_u32_dpp v{v}, v{v}, v{v} row_bcast:31 row_mask:0xc bank_mask:0xf')
def header(name):
    I(f'.globl {name}\n.p2align 8\n.type {name},@function\n{name}:')

K1_HIST, K1_BASE, K1_SORT, K1_SORTE, K1_EIMG = 0, 1024, 2048, 14848, 27648
K1_LDS = (K1_EIMG + CH * 32) if MOVE else K1_SORTE

def kstamp(i):
    if OPT['STAMP']: I(f's_memrealtime s[{60+2*i}:{61+2*i}]\ns_waitcnt lgkmcnt(0)')
def dbgdump(n, last):
    I(f'''s_waitcnt vmcnt(0)
    s_memrealtime s[{60+2*last}:{61+2*last}]
    s_load_dwordx2 s[52:53], s[0:1], 64
    s_mov_b64 exec, 1
    s_waitcnt lgkmcnt(0)
    s_mov_b32 s54, 256
    s_mov_b32 s55, 0x20000
    v_mov_b32 v1, 0''')
    for i in range(n):
        I(f'''v_mov_b32 v8, s{60+2*i}
        buffer_atomic_umax v8, v1, s[52:55], 0 offen offset:{4*i}
        v_not_b32 v9, s{60+2*i}
        buffer_atomic_umax v9, v1, s[52:55], 0 offen offset:{32+4*i}
        s_waitcnt vmcnt(0)''')
def kdump():
    if OPT['DBG']:
        dbgdump(6, 5); return
    if OPT['STAMP']:
        I(f'''; K1STAMP
        s_waitcnt vmcnt(0)
        s_memrealtime s[70:71]
        s_mov_b64 exec, 1
        s_waitcnt lgkmcnt(0)
        s_add_u32 s52, s24, 0x8100000
        s_addc_u32 s53, s25, 0
        s_mov_b32 s54, 0x100000
        s_mov_b32 s55, 0x20000
        s_lshl_b32 s56, s2, 3
        s_add_u32 s56, s56, s28
        s_lshl_b32 s56, s56, 5
        v_mov_b32 v1, 0''')
        for i in range(8): I(f'v_mov_b32 v{8+i}, s{60+2*min(i,5)}')
        I('''buffer_store_dwordx4 v[8:11], v1, s[52:55], s56 offen
        buffer_store_dwordx4 v[12:15], v1, s[52:55], s56 offen offset:16''')
def gen_part():
    header('part_kernel')
    kstamp(0)
    D, S, B4, RK, RC, EL = 8, 16, 24, 32, 40, 48
    I(f'''
    s_cmp_ge_u32 s2, {NCH+5}
    s_cbranch_scc1 P_END
    s_load_dwordx4 s[4:7], s[0:1], 16
    s_load_dwordx2 s[24:25], s[0:1], 72
    s_load_dwordx2 s[26:27], s[0:1], 8
    v_lshrrev_b32 v3, 6, v0
    v_lshlrev_b32 v1, 2, v0
    v_readfirstlane_b32 s28, v3
    s_cmp_ge_u32 s2, {NCH}
    s_cbranch_scc1 P_PREP
    v_mov_b32 v2, 0
    ds_write_b32 v1, v2
    v_lshlrev_b32 v4, 4, v0
    v_lshlrev_b32 v5, 3, v0
    v_add_u32 v5, 8192, v5
    v_add_u32 v6, 12288, v1
    s_mul_i32 s29, s2, {CH*4}
    s_waitcnt lgkmcnt(0)
    ''')
    srd(8, 4, E * 4); srd(12, 6, E * 4); srd(16, 24, WS_BYTES)
    ax = OPT['K1_LD_AUX']
    I(f'''
    s_cmp_ge_u32 s28, 2
    s_cbranch_scc1 P_NO6A
    buffer_load_dword v{D+6}, v6, s[12:15], s29 offen {ax}
    buffer_load_dword v{S+6}, v6, s[8:11], s29 offen {ax}
P_NO6A:
    buffer_load_dwordx4 {r(D,4)}, v4, s[12:15], s29 offen {ax}
    buffer_load_dwordx2 {r(D+4,2)}, v5, s[12:15], s29 offen {ax}
    buffer_load_dwordx4 {r(S,4)}, v4, s[8:11], s29 offen {ax}
    buffer_load_dwordx2 {r(S+4,2)}, v5, s[8:11], s29 offen {ax}
    ''')
    if MOVE:
        srd(20, 26, E * 32)
        I(f'''
        v_and_b32 v7, 63, v0
        v_lshlrev_b32 v7, 4, v7
        s_mul_i32 s30, s2, {CH*32}
        s_lshl_b32 s31, s28, 10
        s_add_u32 s30, s30, s31
        s_add_u32 s31, s31, {K1_EIMG}
        ''')
        for n in range(13):
            if n == 12:
                I('s_cmp_ge_u32 s28, 4\ns_cbranch_scc1 P_NO13')
            I(f'''s_mov_b32 m0, s31
            s_add_u32 s31, s31, 8192
            buffer_load_dwordx4 v7, s[20:23], s30 offen {ax} lds
            s_add_u32 s30, s30, 8192''')
        I('P_NO13:')
    sh = 5 if MOVE else 20
    I(f'''
    v_lshlrev_b32 v56, {2+sh}, v0
    v_lshlrev_b32 v57, {1+sh}, v0
    v_add_u32 v57, {2048 << sh}, v57
    v_lshlrev_b32 v58, {sh}, v0
    v_add_u32 v58, {3072 << sh}, v58
    v_mov_b32 v59, 1
    s_mov_b32 s32, {-BN & 0xffffffff}
    s_mov_b32 s33, {1 << sh}
    s_mov_b32 s34, {2 << sh}
    s_mov_b32 s35, {3 << sh}
    s_barrier
    ''')
    kstamp(1)
    I(f's_waitcnt vmcnt({12 if MOVE else 0})')
    kstamp(2)
    def slot(k):
        eb = 56 if k < 4 else (57 if k < 6 else 58)
        kk = k if k < 4 else (k - 4 if k < 6 else 0)
        ks = '0' if kk == 0 else f's{32+kk}'
        I(f'''v_mul_u32_u24 v{B4+k}, 21400, v{D+k}
        v_lshrrev_b32 v{B4+k}, 20, v{B4+k}
        v_mad_i32_i24 v{D+k}, v{B4+k}, s32, v{D+k}
        v_lshlrev_b32 v{B4+k}, 2, v{B4+k}
        ds_add_rtn_u32 v{RK+k}, v{B4+k}, v59''')
        if MOVE:
            I(f'''v_lshlrev_b32 v{RC+k}, 7, v{S+k}
            v_lshl_or_b32 v{RC+k}, v{D+k}, 1, v{RC+k}
            v_lshl_or_b32 v{RC+k}, v{D+k}, 26, v{RC+k}
            v_add_u32 v{EL+k}, {ks}, v{eb}''')
        else:
            I(f'''v_lshl_or_b32 v{RC+k}, v{S+k}, 6, v{D+k}
            v_add3_u32 v{RC+k}, v{RC+k}, v{eb}, {ks}''')
    for k in range(6): slot(k)
    I('s_cmp_ge_u32 s28, 2\ns_cbranch_scc1 P_NO6B')
    slot(6)
    I(f'''
P_NO6B:
    v_and_b32 v60, 63, v0
    v_lshlrev_b32 v60, 4, v60
    s_waitcnt lgkmcnt(0)
    s_barrier
    ds_read_b128 v[64:67], v60
    s_waitcnt lgkmcnt(0)
    v_add_u32 v69, v64, v65
    v_add_u32 v70, v69, v66
    v_add_u32 v71, v70, v67
    v_mov_b32 v72, v71
    ''')
    dpp_scan(72)
    I(f'''
    v_sub_u32 v68, v72, v71
    v_add_u32 v71, v68, v70
    v_add_u32 v70, v68, v69
    v_add_u32 v69, v68, v64
    ds_write_b128 v60, v[68:71] offset:{K1_BASE}
    s_waitcnt lgkmcnt(0)
    ''')
    for k in range(6):
        I(f'ds_read_b32 v{D+k}, v{B4+k} offset:{K1_BASE}')
    I(f'''
    s_cmp_lt_u32 s28, 4
    s_cbranch_scc1 P_NOOFF
    v_add_u32 v61, -1024, v1
    ds_read_b32 v62, v61
    ds_read_b32 v63, v61 offset:{K1_BASE}
    v_lshlrev_b32 v61, 8, v61
    s_lshl_b32 s36, s2, 2
    s_add_u32 s36, s36, {OFFS}
    s_waitcnt lgkmcnt(0)
    v_lshl_or_b32 v62, v62, 16, v63
    buffer_store_dword v62, v61, s[16:19], s36 offen {OPT['K1_ST_AUX']}
P_NOOFF:
    s_cmp_ge_u32 s28, 2
    s_cbranch_scc1 P_NO6C
    ds_read_b32 v{D+6}, v{B4+6} offset:{K1_BASE}
    s_waitcnt lgkmcnt(0)
    v_add_lshl_u32 v{RK+6}, v{RK+6}, v{D+6}, 2
    ds_write_b32 v{RK+6}, v{RC+6} offset:{K1_SORT}
    ''')
    if MOVE: I(f'ds_write_b32 v{RK+6}, v{EL+6} offset:{K1_SORTE}')
    I('P_NO6C:\ns_waitcnt lgkmcnt(0)')
    for k in range(6):
        I(f'''v_add_lshl_u32 v{RK+k}, v{RK+k}, v{D+k}, 2
        ds_write_b32 v{RK+k}, v{RC+k} offset:{K1_SORT}''')
        if MOVE: I(f'ds_write_b32 v{RK+k}, v{EL+k} offset:{K1_SORTE}')
    I(f'''
    s_waitcnt lgkmcnt(0)
    ''')
    kstamp(3)
    I(f'''
    {"s_waitcnt vmcnt(0)" if MOVE else ""}
    s_barrier
    ''')
    kstamp(4)
    I(f'''
    ds_read_b128 v[8:11], v4 offset:{K1_SORT}
    v_cmp_gt_u32 vcc, 288, v0
    s_and_saveexec_b64 s[38:39], vcc
    ds_read_b128 v[12:15], v4 offset:{K1_SORT+8192}
    s_mov_b64 exec, s[38:39]
    ''')
    if MOVE:
        I(f'''v_lshrrev_b32 v84, 1, v0
        v_lshlrev_b32 v84, 2, v84
        v_and_b32 v85, 1, v0
        v_lshlrev_b32 v85, 4, v85
        v_add_u32 v85, {K1_EIMG}, v85''')
        for n in range(13):
            I(f'ds_read_b32 v{16+n}, v84 offset:{K1_SORTE + n*1024}')
    I(f'''
    s_waitcnt lgkmcnt({13 if MOVE else 0})
    buffer_store_dwordx4 v[8:11], v4, s[16:19], s29 offen {OPT['K1_ST_AUX']}
    s_add_u32 s36, s29, 8192
    s_and_saveexec_b64 s[38:39], vcc
    s_cbranch_execz P_NOST2
    buffer_store_dwordx4 v[12:15], v4, s[16:19], s36 offen {OPT['K1_ST_AUX']}
P_NOST2:
    s_mov_b64 exec, s[38:39]
    ''')
    if MOVE:
        I(f'''s_mul_i32 s30, s2, {CH*32}
        s_add_u32 s30, s30, {PAY}
        s_waitcnt lgkmcnt(0)''')
        for n in range(12):
            I(f'v_add_u32 v{16+n}, v{16+n}, v85\nds_read_b128 {r(32+4*n,4)}, v{16+n}')
        for n in range(12):
            I(f'''s_waitcnt lgkmcnt({min(15, 11-n)})
            buffer_store_dwordx4 {r(32+4*n,4)}, v4, s[16:19], s30 offen {OPT['PAY_ST_AUX']}
            s_add_u32 s30, s30, 8192''')
        I(f'''s_cmp_ge_u32 s28, 4
        s_cbranch_scc1 P_FIN
        v_add_u32 v28, v28, v85
        ds_read_b128 v[8:11], v28
        s_waitcnt lgkmcnt(0)
        buffer_store_dwordx4 v[8:11], v4, s[16:19], s30 offen {OPT['PAY_ST_AUX']}''')
    I('P_FIN:')
    for _ in range(OPT['K1SLEEP']): I('s_sleep 64')
    kdump()
    I('s_endpgm')
    I(f'''
P_PREP:
    s_load_dwordx4 s[8:11], s[0:1], 32
    s_load_dwordx2 s[12:13], s[0:1], 48
    s_sub_u32 s30, s2, {NCH}
    s_lshl_b32 s30, s30, 3
    s_add_u32 s30, s30, s28
    s_cmp_ge_u32 s30, {NFRAG}
    s_cbranch_scc1 P_END
    s_waitcnt lgkmcnt(0)
    s_mov_b32 s20, s12
    s_mov_b32 s21, s13
    s_mov_b32 s22, {144*128}
    s_mov_b32 s23, 0x20000
    s_mov_b32 s33, {NLOG2E}
    s_mov_b32 s31, s30
    s_mov_b32 s32, 64
    s_cmp_lt_u32 s30, 8
    s_cbranch_scc1 P_GO
    s_cmp_lt_u32 s30, 16
    s_cbranch_scc0 P_C1
    s_sub_u32 s31, s30, 8
    s_mov_b32 s32, 0
    s_mov_b32 s33, 1.0
    s_mov_b32 s20, s10
    s_mov_b32 s21, s11
    s_mov_b32 s22, {64*128}
    s_branch P_GO
P_C1:
    s_cmp_lt_u32 s30, 18
    s_cbranch_scc0 P_C2
    s_sub_u32 s31, s30, 16
    s_lshl_b32 s31, s31, 2
    s_mov_b32 s32, 128
    s_branch P_GO
P_C2:
    s_mov_b32 s33, 1.0
    s_mov_b32 s32, 0
    s_sub_u32 s31, s30, 18
    s_cmp_lt_u32 s30, 26
    s_cbranch_scc1 P_GO
    s_sub_u32 s31, s30, 26
    s_mov_b32 s20, s8
    s_mov_b32 s21, s9
    s_mov_b32 s22, {64*128}
P_GO:
    s_and_b32 s34, s31, 3
    s_lshl_b32 s34, s34, 4
    s_add_u32 s34, s34, s32
    s_lshl_b32 s34, s34, 7
    s_lshr_b32 s35, s31, 2
    s_lshl_b32 s35, s35, 6
    s_add_u32 s34, s34, s35
    v_and_b32 v1, 31, v0
    v_lshlrev_b32 v1, 1, v1
    v_bfe_u32 v2, v0, 5, 1
    v_lshl_or_b32 v1, v2, 10, v1
    ''')
    for t in range(8):
        I(f'buffer_load_ushort v{8+t}, v1, s[20:23], s34 offen offset:{t*128}')
    srd(16, 24, WS_BYTES)
    I(f'''
    v_and_b32 v3, 63, v0
    v_lshlrev_b32 v3, 4, v3
    s_lshl_b32 s36, s30, 10
    s_add_u32 s36, s36, {WF}
    s_waitcnt vmcnt(0)
    ''')
    for t in range(8):
        I(f'v_lshlrev_b32 v{8+t}, 16, v{8+t}\nv_mul_f32 v{8+t}, s33, v{8+t}')
    for t in range(4):
        I(f'v_cvt_pk_bf16_f32 v{16+t}, v{8+2*t}, v{9+2*t}')
    I('''buffer_store_dwordx4 v[16:19], v3, s[16:19], s36 offen
P_END:
    s_endpgm''')

CNT, FLAG, BASE = 0, 256, 512
XS = 1024
ES = XS + 65536
LX = ES + 16384
LE = LX + 16384
XAT = LE + 16384
AGG = XAT + 14336
M_LDS = AGG + 2*14336
ROWS = XS + 36864
XSENT, ESENT = 0x1FFF80, 0x7FFFFF00
CAP = 4096
NSLOT = 20

WB, WV, WC = 4, 36, 68
XA = 76
Z = 108
H = 140
AF = 156
ACC = 176
IDX = 192
vLX, vLE, vKX0, vKX1, vKE = 197, 198, 199, 200, 201
vRA, vRE = 202, 206
vSCH, vLT = 207, 208
T0, T1, T2 = 209, 210, 211
vC, vEB = 212, 213
vONE = 214
vLA = 215
T4 = 216
NV = 218
pREC, pRK, pAD = 76, 96, 116
pD, pA, pW = 136, 152, 168
sX, sE, sWS, sOUT = 8, 12, 16, 20
sW, sT, sTW, sNP, sNC, sNN, sD, sM0X, sM0E, sMASK, sTMP, sTMP2, sMODE, sSEG, sG0 = range(28, 43)
sONE = 44
sSAVE = 46
sOFP = 48
sB = 50

def thr(s): return 8 * (s // 4) + s % 4

def mf(d, a, b, c): return f'v_mfma_f32_32x32x16_bf16 {r(d,16)}, {r(a,4)}, {r(b,4)}, {c}'
def zm(ft):
    out = [mf(Z+16*ft, AF+16, WC+4*ft, r(XA+16*ft, 16))]
    for k in range(4): out.append(mf(Z+16*ft, AF+4*k, WB+16*ft+4*k, r(Z+16*ft, 16)))
    return out
def hm(ft):
    out = [mf(H, AF, WV+16*ft, '0')]
    for k in range(1, 4): out.append(mf(H, AF+4*k, WV+16*ft+4*k, r(H, 16)))
    return out
def exps(ft): return [f'v_exp_f32 v{Z+16*ft+i}, v{Z+16*ft+i}' for i in range(16)]
def rcps(ft): return [f'v_rcp_f32 v{Z+16*ft+i}, v{Z+16*ft+i}' for i in range(16)]
def pkadd(ft):
    if not OPT['PKA']: return [f'v_add_f32 v{Z+16*ft+i}, 1.0, v{Z+16*ft+i}' for i in range(16)]
    return [f'v_pk_add_f32 {r(Z+16*ft+2*i,2)}, {r(Z+16*ft+2*i,2)}, {sr(sONE,2)}' for i in range(8)]
def pkf(ft):
    if not OPT['PKF']: return [f'v_fmac_f32 v{ACC+8*ft+2*(i//4)+i%2}, v{Z+16*ft+i}, v{H+i}' for i in range(16)]
    return [f'v_pk_fma_f32 {r(ACC+8*ft+2*(i//2),2)}, {r(Z+16*ft+2*i,2)}, {r(H+2*i,2)}, {r(ACC+8*ft+2*(i//2),2)}' for i in range(8)]
def weave(main, ins):
    out = []
    for i, m in enumerate(main):
        out += ins.get(i, [])
        out.append(m)
    out += ins.get(len(main), [])
    return out

def lds_init():
    I(f'''v_lshlrev_b32 v{T0}, 4, v0
    v_add_u32 v{T0}, {LX}, v{T0}
    v_mov_b32 v{pD}, {XSENT}
    v_mov_b32 v{pD+1}, {XSENT}
    v_mov_b32 v{pD+2}, {XSENT}
    v_mov_b32 v{pD+3}, {XSENT}
    v_mov_b32 v{pD+4}, {ESENT}
    v_mov_b32 v{pD+5}, {ESENT}
    v_mov_b32 v{pD+6}, {ESENT}
    v_mov_b32 v{pD+7}, {ESENT}
    v_and_b32 v{T1}, 127, v0
    v_lshlrev_b32 v{T1}, 2, v{T1}
    v_mov_b32 v{T2}, 0
    ds_write_b128 v{T0}, {r(pD,4)}
    ds_write_b128 v{T0}, {r(pD,4)} offset:8192
    ds_write_b128 v{T0}, {r(pD+4,4)} offset:16384
    ds_write_b128 v{T0}, {r(pD+4,4)} offset:24576
    ds_write_b32 v{T1}, v{T2}''')

def pass_a(tag, nslot):
    for s in range(nslot):
        I(f'v_cmpx_lt_i32 vcc, {thr(s)}, v{vC}\ns_cbranch_execz PA_DONE{tag}')
        if MOVE:
            I(f'v_lshrrev_b32 v{pAD+s}, 24, v{pREC+s}')
        else:
            I(f'v_and_b32 v{pAD+s}, 63, v{pREC+s}\nv_lshlrev_b32 v{pAD+s}, 2, v{pAD+s}')
        I(f'ds_add_rtn_u32 v{pRK+s}, v{pAD+s}, v{vONE}')
    I(f'PA_DONE{tag}:\ns_mov_b64 exec, -1')

def scan(tag):
    I(f'''v_and_b32 v{T0}, 63, v0
    v_lshlrev_b32 v{T0}, 2, v{T0}
    ds_read_b32 v{T1}, v{T0}
    v_mov_b32 v{T2}, {FLAG}
    ds_read_b32 v{IDX}, v{T2}
    s_waitcnt lgkmcnt(0)
    v_add_u32 v{T1}, 7, v{T1}
    v_and_b32 v{T1}, -8, v{T1}
    v_mov_b32 v{T2}, v{T1}''')
    dpp_scan(T2)
    I(f'''v_sub_u32 v{T1}, v{T2}, v{T1}
    v_add_u32 v{T1}, {LX//4}, v{T1}
    ds_write_b32 v{T0}, v{T1} offset:{BASE}
    v_readlane_b32 s{sTMP}, v{T2}, 63
    v_readfirstlane_b32 s{sTMP2}, v{IDX}
    s_waitcnt lgkmcnt(0)''')

def pass_b(tag, nslot, estride):
    for s in range(nslot):
        I(f'v_cmpx_lt_i32 vcc, {thr(s)}, v{vC}\ns_cbranch_execz PB1_DONE{tag}')
        I(f'ds_read_b32 v{pAD+s}, v{pAD+s} offset:{BASE}')
    I(f'PB1_DONE{tag}:\ns_mov_b64 exec, -1\ns_waitcnt lgkmcnt(0)')
    for s in range(nslot):
        I(f'v_cmpx_lt_i32 vcc, {thr(s)}, v{vC}\ns_cbranch_execz PB2_DONE{tag}')
        I(f'v_add_lshl_u32 v{pRK+s}, v{pRK+s}, v{pAD+s}, 2')
        if MOVE:
            I(f'v_add_u32 v{pAD+s}, {estride(s)}, v{vEB}')
        else:
            I(f'''v_lshrrev_b32 v{pAD+s}, 20, v{pREC+s}
            v_lshl_add_u32 v{pAD+s}, v{pAD+s}, 5, v{vEB}
            v_lshlrev_b32 v{pREC+s}, 1, v{pREC+s}''')
        I(f'''ds_write_b32 v{pRK+s}, v{pREC+s}
        ds_write_b32 v{pRK+s}, v{pAD+s} offset:16384''')
    I(f'PB2_DONE{tag}:\ns_mov_b64 exec, -1')

def dma_tile(ix, xm0, em0, xoff, eoff):
    g = []
    for q in range(4):
        g.append([f's_add_u32 m0, s{xm0}, {xoff + q*1024}',
                  f'v_and_or_b32 v{ix+q}, v{ix+q}, s{sMASK}, v{vKX0 if q % 2 == 0 else vKX1}',
                  f'buffer_load_dwordx4 v{ix+q}, {sr(sX,4)}, 0 offen lds'])
    g.append([f's_add_u32 m0, s{em0}, {eoff}',
              f'v_add_u32 v{ix+4}, v{ix+4}, v{vKE}',
              f'buffer_load_dwordx4 v{ix+4}, {sr(sE,4)}, 0 offen {OPT["E_AUX"]} lds'])
    return g

def flush_j(j, sn):
    I(f'''v_add_f32 v{T1}, v{ACC+2*j}, v{ACC+2*j+1}
    v_add_f32 v{T2}, v{ACC+8+2*j}, v{ACC+8+2*j+1}
    s_bfe_u32 s{sTMP}, s{sn}, {(6 << 16) | (8*j)}
    s_lshl_b32 s{sTMP}, s{sTMP}, 9
    v_permlane32_swap_b32 v{T1}, v{T2}
    v_add_u32 v{T0}, s{sTMP}, v{vLA}
    v_mov_b64 {r(ACC+2*j,2)}, 0
    v_add_f32 v{T1}, v{T1}, v{T2}
    v_mov_b64 {r(ACC+8+2*j,2)}, 0
    v_cvt_f64_f32 {r(T4,2)}, v{T1}
    ds_add_f64 v{T0}, {r(T4,2)}''')
def xa_j(j, sn):
    I(f'''s_bfe_u32 s{sTMP}, s{sn}, {(6 << 16) | (8*j)}
    s_lshl_b32 s{sTMP}, s{sTMP}, 8
    v_add_u32 v{T0}, s{sTMP}, v{vLT}
    ds_read2_b32 {r(XA+4*j,2)}, v{T0}
    ds_read2_b32 {r(XA+4*j+2,2)}, v{T0}
    ds_read2_b32 {r(XA+16+4*j,2)}, v{T0} offset0:32 offset1:32
    ds_read2_b32 {r(XA+16+4*j+2,2)}, v{T0} offset0:32 offset1:32''')

def TR(k):
    if not OPT['TRACE']: return ''
    return f'''s_memtime s[76:77]
    s_waitcnt lgkmcnt(0)
    s_mov_b32 m0, s{sT}
    s_nop 0
    v_writelane_b32 v{220+k}, s76, m0'''
def stamp(i):
    if OPT['STAMP']:
        I(f'{"s_memtime" if OPT["CYC"] and i in (4,5) else "s_memrealtime"} s[{60+2*i}:{61+2*i}]\ns_waitcnt lgkmcnt(0)')

def gen_main():
    header(MAIN)
    stamp(0)
    I(f"""
    s_cmp_ge_u32 s2, {NB}
    s_cbranch_scc1 M_END
    s_load_dwordx4 s[4:7], s[0:1], 0
    s_load_dwordx2 s[24:25], s[0:1], 56
    s_load_dwordx2 s[26:27], s[0:1], 72
    v_lshrrev_b32 v1, 6, v0
    v_and_b32 v2, 63, v0
    v_readfirstlane_b32 s{sW}, v1
    s_and_b32 s{sB}, s2, 7
    s_lshl_b32 s{sB}, s{sB}, 5
    s_lshr_b32 s{sTMP}, s2, 3
    s_add_u32 s{sB}, s{sB}, s{sTMP}
    v_lshlrev_b32 v{IDX+1}, 4, v2
    v_lshrrev_b32 v3, 1, v0
    v_lshlrev_b32 v{IDX}, 2, v3
    v_lshrrev_b32 v{IDX+2}, 4, v2
    s_lshl_b32 s{sTMP}, s{sW}, 2
    v_add_u32 v{IDX+2}, s{sTMP}, v{IDX+2}
    v_xor_b32 v{IDX+2}, v{IDX+2}, v2
    v_and_b32 v{IDX+2}, 7, v{IDX+2}
    v_lshlrev_b32 v{IDX+2}, 4, v{IDX+2}
    v_lshrrev_b32 v{IDX+3}, 3, v2
    v_lshl_or_b32 v{IDX+2}, v{IDX+3}, 7, v{IDX+2}
    s_lshl_b32 s{sTMP}, s{sW}, 10
    s_add_u32 s{sTMP2}, s{sTMP}, {WF}
    s_add_u32 s{sTMP}, s{sTMP}, {XS}
    s_waitcnt lgkmcnt(0)
    """)
    srd(sWS, 26, WS_BYTES)
    for n in range(5):
        if n == 4: I(f's_cmp_ge_u32 s{sW}, 2\ns_cbranch_scc1 M_NOW4')
        I(f"""s_mov_b32 m0, s{sTMP}
        s_add_u32 s{sTMP}, s{sTMP}, 8192
        buffer_load_dwordx4 v{IDX+1}, {sr(sWS,4)}, s{sTMP2} offen lds
        s_add_u32 s{sTMP2}, s{sTMP2}, 8192""")
    I('M_NOW4:')
    srd(sX, 4, N * 128)
    I(f"""
    s_cmp_ge_u32 s{sW}, 7
    s_cbranch_scc1 M_NOROW
    s_lshl_b32 s{sTMP}, s{sW}, 10
    s_mul_i32 s{sTMP2}, s{sB}, {BN*128}
    s_add_u32 m0, s{sTMP}, {ROWS}
    s_add_u32 s{sTMP2}, s{sTMP2}, s{sTMP}
    buffer_load_dwordx4 v{IDX+2}, {sr(sX,4)}, s{sTMP2} offen lds
M_NOROW:
    s_lshl_b32 s{sTMP}, s{sB}, 10
    s_add_u32 s{sTMP}, s{sTMP}, {OFFS}
    buffer_load_dword v{vC}, v{IDX}, {sr(sWS,4)}, s{sTMP} offen
    s_add_u32 s{sOFP}, s26, s{sTMP}
    s_addc_u32 s{sOFP+1}, s27, 0
    """)
    lds_init()
    if MOVE:
        I(f"""s_add_u32 s{sE}, s26, {PAY}
        s_addc_u32 s{sE+1}, s27, 0
        s_mov_b32 s{sE+2}, {E*32}
        s_mov_b32 s{sE+3}, 0x20000""")
    else:
        srd(sE, 6, E * 32)
    srd(sOUT, 24, N * 128)
    I(f"""
    v_mov_b32 v{vONE}, 1
    s_mov_b32 s{sMASK}, {XSENT}
    s_mov_b32 s{sONE}, 1.0
    s_mov_b32 s{sONE+1}, 1.0
    s_mov_b32 s{sMODE}, 0
    s_lshl_b32 s{sM0X}, s{sW}, 13
    s_add_u32 s{sM0X}, s{sM0X}, {XS}
    s_lshl_b32 s{sM0E}, s{sW}, 11
    s_add_u32 s{sM0E}, s{sM0E}, {ES}
    v_lshrrev_b32 v{T0}, 4, v2
    v_xor_b32 v{T0}, v{T0}, v2
    v_and_b32 v{T1}, 7, v{T0}
    v_lshlrev_b32 v{vKX0}, 4, v{T1}
    v_xor_b32 v{vKX1}, 64, v{vKX0}
    v_and_b32 v{T0}, 1, v{T0}
    v_lshlrev_b32 v{vKE}, 4, v{T0}
    v_and_b32 v{T0}, 31, v2
    v_lshlrev_b32 v{vLT}, 2, v{T0}
    v_add_u32 v{vLT}, {XAT}, v{vLT}
    v_lshlrev_b32 v{vLA}, 3, v2
    v_add_u32 v{vLA}, {AGG}, v{vLA}
    """)
    j_, i_, h_, g_, t_, u_ = pA, pA+1, pA+2, pA+3, pA+4, pA+5
    I(f"""
    v_bfe_u32 v{j_}, v2, 3, 2
    v_and_b32 v{i_}, 3, v2
    v_lshrrev_b32 v{h_}, 5, v2
    v_lshrrev_b32 v{t_}, 1, v{j_}
    v_xor_b32 v{g_}, v{t_}, v{j_}
    v_lshrrev_b32 v{u_}, 2, v2
    v_xor_b32 v{g_}, v{g_}, v{u_}
    v_and_b32 v{g_}, 1, v{g_}
    v_xor_b32 v{t_}, v{t_}, v{h_}
    v_lshlrev_b32 v{t_}, 4, v{t_}
    v_lshl_or_b32 v{u_}, v{j_}, 2, v{i_}
    v_lshl_or_b32 v{u_}, v{g_}, 4, v{u_}
    v_lshl_or_b32 v{t_}, v{u_}, 5, v{t_}
    v_add_u32 v{vRE}, s{sM0E}, v{t_}
    v_and_b32 v{t_}, 1, v{i_}
    v_lshl_or_b32 v{u_}, v{g_}, 1, v{t_}
    v_lshlrev_b32 v{u_}, 3, v{u_}
    v_lshl_or_b32 v{u_}, v{j_}, 1, v{u_}
    v_lshrrev_b32 v{i_}, 1, v{i_}
    v_or_b32 v{u_}, v{u_}, v{i_}
    v_lshlrev_b32 v{u_}, 7, v{u_}
    v_add_u32 v{u_}, s{sM0X}, v{u_}
    v_lshl_or_b32 v{t_}, v{t_}, 2, v{j_}
    v_xor_b32 v{t_}, v{t_}, v{h_}
    """)
    for s in range(4):
        I(f"""v_xor_b32 v{g_}, {2*s}, v{t_}
        v_lshl_add_u32 v{vRA+s}, v{g_}, 4, v{u_}""")
    I(f"""
    v_cmp_gt_u32 vcc, {NCH}, v3
    v_mul_u32_u24 v{T1}, {CH}, v3
    v_and_b32 v{T2}, 1, v0
    v_lshlrev_b32 v{T2}, 2, v{T2}
    s_lshr_b32 s{sTMP}, s2, 3
    s_mul_i32 s{sTMP}, s{sTMP}, {391*128}
    v_min_u32 v1, 390, v0
    v_lshlrev_b32 v1, 7, v1
    s_waitcnt vmcnt(0)
    v_cndmask_b32 v{vC}, 0, v{vC}, vcc
    v_and_b32 v{T0}, 0xffff, v{vC}
    v_lshrrev_b32 v{vC}, 16, v{vC}
    v_add3_u32 v{T0}, v{T0}, v{T1}, v{T2}
    v_cmp_lt_u32 {sr(sSAVE,2)}, {2*NSLOT}, v{vC}
    v_sub_u32 v{vC}, v{vC}, v{T2}
    v_lshlrev_b32 v{vEB}, 5, v{T0 if MOVE else T1}
    v_lshlrev_b32 v{T0}, 2, v{T0}
    """)
    for m in range(NSLOT // 4):
        I(f"""v_cmpx_lt_i32 vcc, {8*m}, v{vC}
        s_cbranch_execz M_RL_DONE
        buffer_load_dwordx4 {r(pREC+4*m,4)}, v{T0}, {sr(sWS,4)}, 0 offen offset:{32*m}""")
    I('M_RL_DONE:\ns_mov_b64 exec, -1')
    if OPT['XPF']:
        I(f'buffer_load_dword v1, v1, {sr(sX,4)}, s{sTMP} offen')
    stamp(1)
    I(f"""
    s_waitcnt lgkmcnt(0)
    s_barrier
    s_cmp_eq_u64 {sr(sSAVE,2)}, 0
    s_cbranch_scc1 M_NOFLAG
    v_mov_b32 v{T1}, {FLAG}
    ds_write_b32 v{T1}, v{vONE}
M_NOFLAG:
    """)
    I(f"""
    v_lshlrev_b32 v{T0}, 4, v2
    v_add_u32 v{T0}, {XS}, v{T0}
    s_lshr_b32 s{sTMP}, s{sW}, 2
    s_lshl_b32 s{sTMP}, s{sTMP}, 1
    s_and_b32 s{sTMP2}, s{sW}, 1
    s_add_u32 s{sTMP}, s{sTMP}, s{sTMP2}
    s_lshl_b32 s{sTMP}, s{sTMP}, 12
    v_add_u32 v{T1}, s{sTMP}, v{T0}
    """)
    for s in range(4):
        I(f'ds_read_b128 {r(pW+4*s,4)}, v{T1} offset:{(18+s)*1024}')
    I(f"""
    v_and_b32 v{T1}, 31, v2
    v_lshrrev_b32 v{T2}, 5, v2
    v_bfe_u32 v{IDX}, v2, 1, 3
    v_xor_b32 v{IDX}, v{IDX}, v{T2}
    s_bfe_u32 s{sG0}, s{sW}, 0x10001
    s_lshl_b32 s{sTMP2}, s{sG0}, 12
    s_add_u32 s{sTMP2}, s{sTMP2}, {ROWS}
    v_lshlrev_b32 v{T1}, 7, v{T1}
    v_add_u32 v{T1}, s{sTMP2}, v{T1}
    """)
    for s in range(4):
        I(f"""v_xor_b32 v{IDX+1}, {2*s}, v{IDX}
        v_lshl_add_u32 v{IDX+1}, v{IDX+1}, 4, v{T1}
        ds_read_b128 {r(pA+4*s,4)}, v{IDX+1}""")
    I(f"""
    s_lshl_b32 s{sTMP2}, s{sG0}, 13
    s_and_b32 s{sD}, s{sW}, 1
    s_lshl_b32 s{sD}, s{sD}, 7
    s_add_u32 s{sTMP2}, s{sTMP2}, s{sD}
    v_lshlrev_b32 v{T2}, 10, v{T2}
    v_add3_u32 v{T2}, v{T2}, v{vLT}, s{sTMP2}
    s_mov_b32 s{sD}, {NLOG2E}
    s_waitcnt lgkmcnt(0)
    """)
    I(mf(pD, pA, pW, '0'))
    for s in range(1, 4): I(mf(pD, pA+4*s, pW+4*s, r(pD, 16)))
    for f in range(18):
        I(f'ds_read_b128 {r(WB+4*f,4)}, v{T0} offset:{f*1024}')
    I(f's_cmp_ge_u32 s{sW}, 4\ns_cbranch_scc1 M_XU')
    for k in range(16):
        if k == 12: I(f's_cmp_lg_u32 s{sG0}, 0\ns_cbranch_scc1 M_TDONE')
        I(f'v_mul_f32 v{pD+k}, s{sD}, v{pD+k}\nds_write_b32 v{T2}, v{pD+k} offset:{(8*(k//4)+k%4)*256}')
    I(f"""s_branch M_TDONE
M_XU:
    v_subrev_u32 v{T2}, {XAT}, v{T2}
    v_lshlrev_b32 v{T2}, 1, v{T2}
    v_add_u32 v{T2}, {AGG}, v{T2}
    """)
    for k in range(16):
        if k == 12: I(f's_cmp_lg_u32 s{sG0}, 0\ns_cbranch_scc1 M_TDONE')
        I(f'v_cvt_f64_f32 {r(pA+2*(k%8),2)}, v{pD+k}\nds_write_b64 v{T2}, {r(pA+2*(k%8),2)} offset:{(8*(k//4)+k%4)*512}')
    I('M_TDONE:')
    I(f's_waitcnt vmcnt({1 if OPT["XPF"] else 0})')
    stamp(2)
    pass_a('F', NSLOT)
    I('s_waitcnt lgkmcnt(0)\ns_barrier')
    scan('F')
    I(f"""
    s_cmp_gt_u32 s{sTMP}, {CAP}
    s_cbranch_scc1 M_SLOW
    s_cmp_lg_u32 s{sTMP2}, 0
    s_cbranch_scc1 M_SLOW
    """)
    pass_b('F', NSLOT, lambda s: thr(s) * 32)
    I(f'''
M_BATCH:
    s_add_u32 s{sTMP}, s{sTMP}, 31
    s_lshr_b32 s{sTMP}, s{sTMP}, 5
    s_add_u32 s{sTW}, s{sTMP}, 7
    s_sub_u32 s{sTW}, s{sTW}, s{sW}
    s_lshr_b32 s{sTW}, s{sTW}, 3
    s_lshr_b32 s{sG0}, s{sTMP}, 3
    s_mul_i32 s{sG0}, s{sG0}, s{sW}
    s_and_b32 s{sTMP}, s{sTMP}, 7
    s_min_u32 s{sTMP}, s{sTMP}, s{sW}
    s_add_u32 s{sG0}, s{sG0}, s{sTMP}
    s_lshl_b32 s{sG0}, s{sG0}, 7
    s_add_u32 s{sG0}, s{sG0}, {LX}
    s_lshl_b32 s{sTMP2}, s{sTW}, 5
    v_lshrrev_b32 v{T0}, 4, v2
    v_mul_u32_u24 v{T0}, s{sTMP2}, v{T0}
    v_bfe_u32 v{T1}, v2, 3, 1
    v_lshl_add_u32 v{T0}, v{T1}, 4, v{T0}
    v_add_u32 v{vLX}, s{sG0}, v{T0}
    v_bfe_u32 v{T0}, v2, 3, 2
    v_mul_u32_u24 v{T0}, s{sTMP2}, v{T0}
    v_bfe_u32 v{T1}, v2, 2, 1
    v_lshl_add_u32 v{T0}, v{T1}, 4, v{T0}
    v_lshrrev_b32 v{T1}, 5, v2
    v_lshl_add_u32 v{T0}, v{T1}, 3, v{T0}
    v_bfe_u32 v{T1}, v2, 1, 1
    v_lshl_add_u32 v{T0}, v{T1}, 2, v{T0}
    v_add_u32 v{vLE}, s{sG0}, v{T0}
    s_sub_u32 s{sTMP}, s{sTW}, 1
    v_min_u32 v{T0}, s{sTMP}, v2
    v_lshlrev_b32 v{T0}, 5, v{T0}
    v_add_u32 v{T0}, s{sG0}, v{T0}
    v_add_u32 v{T1}, s{sTMP2}, v{T0}
    v_add_u32 v{T2}, s{sTMP2}, v{T1}
    v_add_u32 v{vSCH}, s{sTMP2}, v{T2}
    ''')
    for k in range(8): I(f'v_mov_b64 {r(ACC+2*k,2)}, 0')
    I(f'''
    s_waitcnt lgkmcnt(0)
    s_barrier
    ''')
    stamp(3)
    if OPT['NOX']: I(f's_mov_b32 s{sX+2}, 0')
    if OPT['NOE']: I(f's_mov_b32 s{sE+2}, 0')
    I(f'''
    s_cmp_eq_u32 s{sTW}, 0
    s_cbranch_scc1 M_BDONE
    ds_read_b128 {r(Z,4)}, v{vLX}
    ds_read_b32 v{Z+4}, v{vLE} offset:16384
    ds_read_b128 {r(Z+8,4)}, v{vLX} offset:32
    ds_read_b32 v{Z+12}, v{vLE} offset:{16384+32}
    ds_read_b32 v{T0}, v{T0}
    ds_read_b32 v{T1}, v{T1}
    ds_read_b32 v{T2}, v{T2}
    ds_read_b32 v{vSCH}, v{vSCH}
    ds_read_b128 {r(IDX,4)}, v{vLX} offset:64
    ds_read_b32 v{IDX+4}, v{vLE} offset:{16384+64}
    s_waitcnt lgkmcnt(8)
    ''')
    for g in dma_tile(Z, sM0X, sM0E, 0, 0): I('\n'.join(g))
    I(f'''
    s_waitcnt lgkmcnt(0)
    s_cmp_lt_u32 s{sTW}, 2
    s_cbranch_scc1 M_NOT1
    ''')
    for g in dma_tile(Z+8, sM0X, sM0E, 4096, 1024): I('\n'.join(g))
    I(f'''
M_NOT1:
    v_bfe_u32 v{T0}, v{T0}, 1, 6
    v_bfe_u32 v{T1}, v{T1}, 1, 6
    v_bfe_u32 v{T2}, v{T2}, 1, 6
    v_bfe_u32 v{vSCH}, v{vSCH}, 1, 6
    v_lshl_or_b32 v{T0}, v{T1}, 8, v{T0}
    v_lshl_or_b32 v{T0}, v{T2}, 16, v{T0}
    v_lshl_or_b32 v{vSCH}, v{vSCH}, 24, v{T0}
    v_add_u32 v{vLX}, 96, v{vLX}
    v_add_u32 v{vLE}, {16384+96}, v{vLE}
    v_readfirstlane_b32 s{sNC}, v{vSCH}
    s_mov_b32 s{sT}, 1
    s_nop 2
    s_mov_b32 s{sNP}, s{sNC}
    ''')
    for j in range(4): xa_j(j, sNC)
    I(f'''
    s_cmp_lt_u32 s{sTW}, 2
    s_cbranch_scc1 M_W0
    s_waitcnt vmcnt(5)
    s_branch M_W1
M_W0:
    s_waitcnt vmcnt(0)
M_W1:
    ''')
    for s in range(4): I(f'ds_read_b128 {r(AF+4*s,4)}, v{vRA+s}')
    I(f'''ds_read_b128 {r(AF+16,4)}, v{vRE}
    s_waitcnt lgkmcnt(0)''')
    z0 = zm(0)
    I(z0[0])
    I(f's_cmp_lt_u32 s{sTW}, 3\ns_cbranch_scc1 M_NOT2')
    for g in dma_tile(IDX, sM0X, sM0E, 0, 0): I('\n'.join(g))
    I('M_NOT2:')
    for m in z0[1:]: I(m)
    I('s_nop 7\ns_nop 3')
    stamp(4)
    I('.p2align 6')
    for p in range(2):
        nb = 1 - p
        I(f'''
M_LOOP{p}:
    {TR(0)}
    s_xor_b32 s{sD}, s{sNP}, s{sNC}
    {';' if OPT['NOEV'] else ''}s_cbranch_scc1 M_FL{p}
M_FLR{p}:
        ''')
        hv = hm(0)
        I('\n'.join(weave(exps(0), {0: [hv[0]], 3: [hv[1]], 6: [hv[2]], 9: [hv[3]],
                                    11: [f'v_readlane_b32 s{sNN}, v{vSCH}, s{sT}']})))
        I('\n'.join(pkadd(0)))
        zz = zm(1)
        I('\n'.join(weave(rcps(0), {0: [zz[0]], 3: [zz[1]], 6: [zz[2]], 9: [zz[3]], 12: [zz[4]]})))
        I('\n'.join(pkf(0)))
        I(f'''
    s_xor_b32 s{sD}, s{sNC}, s{sNN}
    {';' if OPT['NOEV'] else ''}s_cbranch_scc1 M_XA{p}
M_XAR{p}:
    s_add_u32 s{sTMP}, s{sT}, 1
    s_cmp_lt_u32 s{sTMP}, s{sTW}
    s_cbranch_scc0 M_WZ{p}
    s_waitcnt vmcnt(5)
M_WZR{p}:
        ''')
        hv = hm(1)
        rd = [f'ds_read_b128 {r(AF+4*s,4)}, v{vRA+s} offset:{nb*4096}' for s in range(4)]
        if OPT['NODS']:
            I('\n'.join(weave(exps(1), {0: [hv[0]], 3: [hv[1]], 6: [hv[2]], 9: [hv[3]]})))
        else: I('\n'.join(weave(exps(1), {
            0: [hv[0], rd[0]],
            1: [f'ds_read_b128 {r(AF+16,4)}, v{vRE} offset:{nb*1024}'],
            3: [hv[1], rd[1]],
            4: [f'ds_read_b128 {r(IDX,4)}, v{vLX}'],
            6: [hv[2], rd[2]],
            7: [f'ds_read_b32 v{IDX+4}, v{vLE}'],
            9: [hv[3], rd[3]],
        })))
        I('\n'.join(pkadd(1)))
        zz = zm(0)
        I(f'''
    s_add_u32 s{sTMP}, s{sT}, 2
    s_cmp_lt_u32 s{sTMP}, s{sTW}
    s_waitcnt lgkmcnt(0)
    s_cbranch_scc0 M_ND{p}
        ''')
        g = dma_tile(IDX, sM0X, sM0E, nb*4096, nb*1024)
        if OPT['NODMA']: g = [x[:2] for x in g]
        I('\n'.join(weave(rcps(1), {
            0: [zz[0]], 1: g[0], 3: [zz[1]], 4: g[1], 6: [zz[2]], 7: g[2], 9: [zz[3]], 10: g[3], 12: [zz[4]], 13: g[4],
            14: [f'v_add_u32 v{vLX}, 32, v{vLX}'], 15: [f'v_add_u32 v{vLE}, 32, v{vLE}']})))
        I(f'M_NDR{p}:')
        I('\n'.join(pkf(1)))
        I(f'''
    s_mov_b32 s{sNP}, s{sNC}
    s_mov_b32 s{sNC}, s{sNN}
    s_add_u32 s{sT}, s{sT}, 1
    s_cmp_le_u32 s{sT}, s{sTW}''')
        if p == 0:
            I('s_cbranch_scc0 M_LEND')
        else:
            I('s_cbranch_scc1 M_LOOP0')
    I('M_LEND:')
    I(TR(0))
    for j in range(4): flush_j(j, sNP)
    I(f'''
M_BDONE:
    s_cmp_lg_u32 s{sMODE}, 0
    s_cbranch_scc1 M_SNEXT
M_EPI:
    ''')
    stamp(5)
    I(f'''
    s_waitcnt lgkmcnt(0)
    s_barrier
    v_cmp_gt_u32 vcc, {BN*8}, v0
    s_and_saveexec_b64 {sr(sSAVE,2)}, vcc
    s_cbranch_execz M_FIN
    v_lshlrev_b32 v{T0}, 6, v0
    v_add_u32 v{T0}, {AGG}, v{T0}
    ds_read_b128 {r(Z+16,4)}, v{T0}
    ds_read_b128 {r(Z+20,4)}, v{T0} offset:16
    ds_read_b128 {r(Z+24,4)}, v{T0} offset:32
    ds_read_b128 {r(Z+28,4)}, v{T0} offset:48
    s_mov_b32 s{sTMP}, {NLOG2E}
    s_mul_i32 s{sTMP2}, s{sB}, {BN*128}
    v_lshlrev_b32 v{T1}, 4, v0
    s_waitcnt lgkmcnt(0)
    ''')
    for k in range(8): I(f'v_cvt_f32_f64 v{Z+k}, {r(Z+16+2*k,2)}')
    for k in range(8): I(f'v_mul_f32 v{Z+8+k}, s{sTMP}, v{Z+k}')
    for k in range(8): I(f'v_exp_f32 v{Z+8+k}, v{Z+8+k}')
    for k in range(8): I(f'v_add_f32 v{Z+8+k}, 1.0, v{Z+8+k}')
    for k in range(8): I(f'v_rcp_f32 v{Z+8+k}, v{Z+8+k}')
    for k in range(8): I(f'v_mul_f32 v{Z+k}, v{Z+k}, v{Z+8+k}')
    for k in range(4): I(f'v_cvt_pk_bf16_f32 v{Z+16+k}, v{Z+2*k}, v{Z+2*k+1}')
    I(f'buffer_store_dwordx4 {r(Z+16,4)}, v{T1}, {sr(sOUT,4)}, s{sTMP2} offen')
    I('M_FIN:')
    if OPT['DBG']: dbgdump(7, 6)
    elif OPT['STAMP']:
        I(f'''s_mov_b64 exec, 1
        s_memrealtime s[72:73]
        s_load_dwordx2 s[4:5], s[0:1], 72
        s_waitcnt lgkmcnt(0) vmcnt(0)
        s_add_u32 s52, s4, 0x8000000
        s_addc_u32 s53, s5, 0
        s_mov_b32 s54, 0x100000
        s_mov_b32 s55, 0x20000
        s_lshl_b32 s56, s2, 3
        s_add_u32 s56, s56, s{sW}
        s_lshl_b32 s56, s56, 5
        v_mov_b32 v1, 0''')
        for i in range(7): I(f'v_mov_b32 v{8+i}, s{60+2*i}')
        I(f'''v_mov_b32 v15, s{sTW}
        buffer_store_dwordx4 v[8:11], v1, s[52:55], s56 offen
        buffer_store_dwordx4 v[12:15], v1, s[52:55], s56 offen offset:16''')
        if OPT['TRACE']:
            I(f'''s_mov_b64 exec, -1
            s_lshl_b32 s56, s56, 3
            s_add_u32 s56, s56, 0x20000
            v_lshlrev_b32 v1, 2, v2
            buffer_store_dword v220, v1, s[52:55], s56 offen''')
    I('M_END:\ns_endpgm')
    for p in range(2):
        I(f'M_FL{p}:')
        for j in range(4):
            I(f's_and_b32 s{sTMP}, s{sD}, {0xff << (8*j)}\ns_cbranch_scc0 M_FL{p}_{j}')
            flush_j(j, sNP)
            I(f'M_FL{p}_{j}:')
        I(f's_branch M_FLR{p}')
        I(f'M_XA{p}:')
        for j in range(4):
            I(f's_and_b32 s{sTMP}, s{sD}, {0xff << (8*j)}\ns_cbranch_scc0 M_XA{p}_{j}')
            xa_j(j, sNN)
            I(f'M_XA{p}_{j}:')
        I(f's_branch M_XAR{p}')
        I(f'M_WZ{p}:\ns_waitcnt vmcnt(0)\ns_branch M_WZR{p}')
        I(f'M_ND{p}:')
        zz = zm(0)
        I('\n'.join(weave(rcps(1), {0: [zz[0]], 3: [zz[1]], 6: [zz[2]], 9: [zz[3]], 12: [zz[4]]})))
        I(f's_branch M_NDR{p}')
    I(f'''
M_SLOW:
    s_mov_b32 s{sMODE}, 1
    s_mov_b32 s{sSEG}, -1
M_SNEXT:
    s_add_u32 s{sSEG}, s{sSEG}, 1
    s_cmp_ge_u32 s{sSEG}, {NCH}
    s_cbranch_scc1 M_EPI
    s_lshl_b32 s{sTMP}, s{sSEG}, 2
    s_load_dword s{sD}, {sr(sOFP,2)}, s{sTMP}
    s_waitcnt lgkmcnt(0)
    s_lshr_b32 s{sTMP2}, s{sD}, 16
    s_cmp_eq_u32 s{sTMP2}, 0
    s_cbranch_scc1 M_SNEXT
    s_barrier
    ''')
    lds_init()
    I(f'''
    s_and_b32 s{sD}, s{sD}, 0xffff
    s_mul_i32 s{sTMP}, s{sSEG}, {CH}
    s_add_u32 s{sD}, s{sD}, s{sTMP}
    v_add_u32 v{T0}, s{sD}, v0
    v_mov_b32 v{T1}, s{sTMP}
    v_lshlrev_b32 v{vEB}, 5, v{T0 if MOVE else T1}
    v_lshlrev_b32 v{T0}, 2, v{T0}
    v_sub_u32 v{vC}, s{sTMP2}, v0
    v_add_u32 v{vC}, 511, v{vC}
    v_ashrrev_i32 v{vC}, 9, v{vC}
    v_cmp_lt_i32 vcc, 4, v{vC}
    v_add_u32 v{T1}, 4, v{vC}
    s_nop 0
    v_cndmask_b32 v{vC}, v{vC}, v{T1}, vcc
    ''')
    for s in range(7):
        I(f'buffer_load_dword v{pREC+s}, v{T0}, {sr(sWS,4)}, 0 offen')
        if s < 6: I(f'v_add_u32 v{T0}, 2048, v{T0}')
    I('s_waitcnt vmcnt(0) lgkmcnt(0)\ns_barrier')
    pass_a('S', 7)
    I('s_waitcnt lgkmcnt(0)\ns_barrier')
    scan('S')
    pass_b('S', 7, lambda s: s * 16384)
    I('s_branch M_BATCH')

def kd(name, vgpr, sgpr):
    return f'''.amdhsa_kernel {name}
  .amdhsa_next_free_vgpr {vgpr}
  .amdhsa_next_free_sgpr {sgpr}
  .amdhsa_accum_offset {(vgpr+3)//4*4}
  .amdhsa_group_segment_fixed_size 0
  .amdhsa_kernarg_size 80
  .amdhsa_user_sgpr_count 2
  .amdhsa_user_sgpr_kernarg_segment_ptr 1
  .amdhsa_system_sgpr_workgroup_id_x 1
.end_amdhsa_kernel
'''

HEAD = open('gather_scatter__edge_featured_mpnn_egc__graph.s.ref').read().split('; Override')[0]
gen_part()
gen_main()
if OPT['EXTRA']:
    header('nop_kernel'); I('s_endpgm')
out = HEAD + f'''; Two launches: part_kernel bins the edges by destination bucket, the main kernel does the rest.
{'; @launch kernel=nop_kernel grid=(1,1,1) block=(64,1,1) lds=0'+chr(10) if OPT['EXTRA']==1 else ''}; @launch kernel=part_kernel grid=({NCH+5},1,1) block=(512,1,1) lds={K1_LDS}
{'; @launch kernel=nop_kernel grid=(1,1,1) block=(64,1,1) lds=0'+chr(10) if OPT['EXTRA']==2 else ''}; @launch kernel={MAIN} grid=({NB},1,1) block=(512,1,1) lds={M_LDS}
{'; @launch kernel=nop_kernel grid=(1,1,1) block=(64,1,1) lds=0'+chr(10) if OPT['EXTRA']==3 else ''}.amdgcn_target "amdgcn-amd-amdhsa--gfx950"
.text
''' + '\n'.join(L) + '''
.section .rodata,"a"
.p2align 6
''' + kd('part_kernel', 88, 80) + '.p2align 6\n' + kd(MAIN, NV+(8 if OPT['TRACE'] else 0), 80) + ('.p2align 6\n' + kd('nop_kernel', 8, 8) if OPT['EXTRA'] else '')
open(sys.argv[1], 'w').write(out)
```

```python
import sys, struct

OPT = dict(MOVE=0, E_AUX='', K1_LD_AUX='', K1_ST_AUX='', PAY_ST_AUX='', STAMP=0, PRIO=0, NOX=0, NOE=0, CYC=0, PKA=1, PKF=1, NOEV=0, NODMA=0, NODS=0, NOVM=0, TRACE=0, XPF=1, K1SLEEP=0, EXTRA=0, DBG=0, NOHV=0, NOZ=0, NOTR=0, LOOP=2, PB=1, PE=2, PB2=-1, WOUT=0, ES=3, EF=0, PPOS=0, P2POS=8, AMP=0)
for a in sys.argv[2:]:
    k, v = a.split('=')
    OPT[k] = int(v) if v.lstrip('-').isdigit() else v.replace('_', ' ')
MOVE = OPT['MOVE']

N, E = 12500, 800000
NB, BN = 256, 49
NCH, CH = 250, 3200
REC, OFFS, WF, PAY = 0, 0x400000, 0x480000, 0x800000
WS_BYTES = PAY + E * 32
NFRAG = 34
NLOG2E = struct.unpack('<I', struct.pack('<f', -1.4426950408889634))[0]
MAIN = 'gather_scatter__edge_featured_mpnn_egc__graph_kernel'

L = []
def I(s):
    for ln in s.strip('\n').split('\n'):
        ln = ln.strip()
        if ln:
            L.append(ln if ln.endswith(':') else '    ' + ln)
def r(a, n): return f'v[{a}:{a+n-1}]'
def sr(a, n): return f's[{a}:{a+n-1}]'
def srd(d, base, nbytes):
    I(f'''s_mov_b32 s{d}, s{base}
    s_mov_b32 s{d+1}, s{base+1}
    s_mov_b32 s{d+2}, {nbytes}
    s_mov_b32 s{d+3}, 0x20000''')
def dpp_scan(v):
    for ctl in ('row_shr:1', 'row_shr:2', 'row_shr:4', 'row_shr:8'):
        I(f's_nop 1\nv_add_u32_dpp v{v}, v{v}, v{v} {ctl} row_mask:0xf bank_mask:0xf bound_ctrl:1')
    I(f's_nop 1\nv_add_u32_dpp v{v}, v{v}, v{v} row_bcast:15 row_mask:0xa bank_mask:0xf')
    I(f's_nop 1\nv_add_u32_dpp v{v}, v{v}, v{v} row_bcast:31 row_mask:0xc bank_mask:0xf')
def header(name):
    I(f'.globl {name}\n.p2align 8\n.type {name},@function\n{name}:')

K1_HIST, K1_BASE, K1_SORT, K1_SORTE, K1_EIMG = 0, 1024, 2048, 14848, 27648
K1_LDS = (K1_EIMG + CH * 32) if MOVE else K1_SORTE

def kstamp(i):
    if OPT['STAMP']: I(f's_memrealtime s[{60+2*i}:{61+2*i}]\ns_waitcnt lgkmcnt(0)')
def dbgdump(n, last):
    I(f'''s_waitcnt vmcnt(0)
    s_memrealtime s[{60+2*last}:{61+2*last}]
    s_load_dwordx2 s[52:53], s[0:1], 64
    s_mov_b64 exec, 1
    s_waitcnt lgkmcnt(0)
    s_mov_b32 s54, 256
    s_mov_b32 s55, 0x20000
    v_mov_b32 v1, 0''')
    for i in range(n):
        I(f'''v_mov_b32 v8, s{60+2*i}
        buffer_atomic_umax v8, v1, s[52:55], 0 offen offset:{4*i}
        v_not_b32 v9, s{60+2*i}
        buffer_atomic_umax v9, v1, s[52:55], 0 offen offset:{32+4*i}
        s_waitcnt vmcnt(0)''')
def kdump():
    if OPT['DBG']:
        dbgdump(6, 5); return
    if OPT['STAMP']:
        I(f'''; K1STAMP
        s_waitcnt vmcnt(0)
        s_memrealtime s[70:71]
        s_mov_b64 exec, 1
        s_waitcnt lgkmcnt(0)
        s_add_u32 s52, s24, 0x8100000
        s_addc_u32 s53, s25, 0
        s_mov_b32 s54, 0x100000
        s_mov_b32 s55, 0x20000
        s_lshl_b32 s56, s2, 3
        s_add_u32 s56, s56, s28
        s_lshl_b32 s56, s56, 5
        v_mov_b32 v1, 0''')
        for i in range(8): I(f'v_mov_b32 v{8+i}, s{60+2*min(i,5)}')
        I('''buffer_store_dwordx4 v[8:11], v1, s[52:55], s56 offen
        buffer_store_dwordx4 v[12:15], v1, s[52:55], s56 offen offset:16''')
def gen_part():
    header('part_kernel')
    if OPT['AMP']: I('s_memrealtime s[74:75]')
    kstamp(0)
    D, S, B4, RK, RC, EL = 8, 16, 24, 32, 40, 48
    I(f'''
    s_cmp_ge_u32 s2, {NCH+5}
    s_cbranch_scc1 P_END
    s_load_dwordx4 s[4:7], s[0:1], 16
    s_load_dwordx2 s[24:25], s[0:1], 72
    s_load_dwordx2 s[26:27], s[0:1], 8
    v_lshrrev_b32 v3, 6, v0
    v_lshlrev_b32 v1, 2, v0
    v_readfirstlane_b32 s28, v3
    s_cmp_ge_u32 s2, {NCH}
    s_cbranch_scc1 P_PREP
    v_mov_b32 v2, 0
    ds_write_b32 v1, v2
    v_lshlrev_b32 v4, 4, v0
    v_lshlrev_b32 v5, 3, v0
    v_add_u32 v5, 8192, v5
    v_add_u32 v6, 12288, v1
    s_mul_i32 s29, s2, {CH*4}
    s_waitcnt lgkmcnt(0)
    ''')
    srd(8, 4, E * 4); srd(12, 6, E * 4); srd(16, 24, WS_BYTES)
    if OPT['AMP']:
        I(f'''s_cmp_lg_u32 s2, 0
        s_cbranch_scc1 P_NOAMP
        s_cmp_lg_u32 s28, 0
        s_cbranch_scc1 P_NOAMP
        v_mov_b32 v80, s74
        v_mov_b32 v81, {WF + 0x10000}
        buffer_store_dword v80, v81, s[16:19], 0 offen
P_NOAMP:''')
    ax = OPT['K1_LD_AUX']
    I(f'''
    s_cmp_ge_u32 s28, 2
    s_cbranch_scc1 P_NO6A
    buffer_load_dword v{D+6}, v6, s[12:15], s29 offen {ax}
    buffer_load_dword v{S+6}, v6, s[8:11], s29 offen {ax}
P_NO6A:
    buffer_load_dwordx4 {r(D,4)}, v4, s[12:15], s29 offen {ax}
    buffer_load_dwordx2 {r(D+4,2)}, v5, s[12:15], s29 offen {ax}
    buffer_load_dwordx4 {r(S,4)}, v4, s[8:11], s29 offen {ax}
    buffer_load_dwordx2 {r(S+4,2)}, v5, s[8:11], s29 offen {ax}
    ''')
    if MOVE:
        srd(20, 26, E * 32)
        I(f'''
        v_and_b32 v7, 63, v0
        v_lshlrev_b32 v7, 4, v7
        s_mul_i32 s30, s2, {CH*32}
        s_lshl_b32 s31, s28, 10
        s_add_u32 s30, s30, s31
        s_add_u32 s31, s31, {K1_EIMG}
        ''')
        for n in range(13):
            if n == 12:
                I('s_cmp_ge_u32 s28, 4\ns_cbranch_scc1 P_NO13')
            I(f'''s_mov_b32 m0, s31
            s_add_u32 s31, s31, 8192
            buffer_load_dwordx4 v7, s[20:23], s30 offen {ax} lds
            s_add_u32 s30, s30, 8192''')
        I('P_NO13:')
    sh = 5 if MOVE else 20
    I(f'''
    v_lshlrev_b32 v56, {2+sh}, v0
    v_lshlrev_b32 v57, {1+sh}, v0
    v_add_u32 v57, {2048 << sh}, v57
    v_lshlrev_b32 v58, {sh}, v0
    v_add_u32 v58, {3072 << sh}, v58
    v_mov_b32 v59, 1
    s_mov_b32 s32, {-BN & 0xffffffff}
    s_mov_b32 s33, {1 << sh}
    s_mov_b32 s34, {2 << sh}
    s_mov_b32 s35, {3 << sh}
    s_barrier
    ''')
    kstamp(1)
    I(f's_waitcnt vmcnt({12 if MOVE else 0})')
    kstamp(2)
    def slot(k):
        eb = 56 if k < 4 else (57 if k < 6 else 58)
        kk = k if k < 4 else (k - 4 if k < 6 else 0)
        ks = '0' if kk == 0 else f's{32+kk}'
        I(f'''v_mul_u32_u24 v{B4+k}, 21400, v{D+k}
        v_lshrrev_b32 v{B4+k}, 20, v{B4+k}
        v_mad_i32_i24 v{D+k}, v{B4+k}, s32, v{D+k}
        v_lshlrev_b32 v{B4+k}, 2, v{B4+k}
        ds_add_rtn_u32 v{RK+k}, v{B4+k}, v59''')
        if MOVE:
            I(f'''v_lshlrev_b32 v{RC+k}, 7, v{S+k}
            v_lshl_or_b32 v{RC+k}, v{D+k}, 1, v{RC+k}
            v_lshl_or_b32 v{RC+k}, v{D+k}, 26, v{RC+k}
            v_add_u32 v{EL+k}, {ks}, v{eb}''')
        else:
            I(f'''v_lshl_or_b32 v{RC+k}, v{S+k}, 6, v{D+k}
            v_add3_u32 v{RC+k}, v{RC+k}, v{eb}, {ks}''')
    for k in range(6): slot(k)
    I('s_cmp_ge_u32 s28, 2\ns_cbranch_scc1 P_NO6B')
    slot(6)
    I(f'''
P_NO6B:
    v_and_b32 v60, 63, v0
    v_lshlrev_b32 v60, 4, v60
    s_waitcnt lgkmcnt(0)
    s_barrier
    ds_read_b128 v[64:67], v60
    s_waitcnt lgkmcnt(0)
    v_add_u32 v69, v64, v65
    v_add_u32 v70, v69, v66
    v_add_u32 v71, v70, v67
    v_mov_b32 v72, v71
    ''')
    dpp_scan(72)
    I(f'''
    v_sub_u32 v68, v72, v71
    v_add_u32 v71, v68, v70
    v_add_u32 v70, v68, v69
    v_add_u32 v69, v68, v64
    ds_write_b128 v60, v[68:71] offset:{K1_BASE}
    s_waitcnt lgkmcnt(0)
    ''')
    for k in range(6):
        I(f'ds_read_b32 v{D+k}, v{B4+k} offset:{K1_BASE}')
    I(f'''
    s_cmp_lt_u32 s28, 4
    s_cbranch_scc1 P_NOOFF
    v_add_u32 v61, -1024, v1
    ds_read_b32 v62, v61
    ds_read_b32 v63, v61 offset:{K1_BASE}
    v_lshlrev_b32 v61, 8, v61
    s_lshl_b32 s36, s2, 2
    s_add_u32 s36, s36, {OFFS}
    s_waitcnt lgkmcnt(0)
    v_lshl_or_b32 v62, v62, 16, v63
    buffer_store_dword v62, v61, s[16:19], s36 offen {OPT['K1_ST_AUX']}
P_NOOFF:
    s_cmp_ge_u32 s28, 2
    s_cbranch_scc1 P_NO6C
    ds_read_b32 v{D+6}, v{B4+6} offset:{K1_BASE}
    s_waitcnt lgkmcnt(0)
    v_add_lshl_u32 v{RK+6}, v{RK+6}, v{D+6}, 2
    ds_write_b32 v{RK+6}, v{RC+6} offset:{K1_SORT}
    ''')
    if MOVE: I(f'ds_write_b32 v{RK+6}, v{EL+6} offset:{K1_SORTE}')
    I('P_NO6C:\ns_waitcnt lgkmcnt(0)')
    for k in range(6):
        I(f'''v_add_lshl_u32 v{RK+k}, v{RK+k}, v{D+k}, 2
        ds_write_b32 v{RK+k}, v{RC+k} offset:{K1_SORT}''')
        if MOVE: I(f'ds_write_b32 v{RK+k}, v{EL+k} offset:{K1_SORTE}')
    I(f'''
    s_waitcnt lgkmcnt(0)
    ''')
    kstamp(3)
    I(f'''
    {"s_waitcnt vmcnt(0)" if MOVE else ""}
    s_barrier
    ''')
    kstamp(4)
    I(f'''
    ds_read_b128 v[8:11], v4 offset:{K1_SORT}
    v_cmp_gt_u32 vcc, 288, v0
    s_and_saveexec_b64 s[38:39], vcc
    ds_read_b128 v[12:15], v4 offset:{K1_SORT+8192}
    s_mov_b64 exec, s[38:39]
    ''')
    if MOVE:
        I(f'''v_lshrrev_b32 v84, 1, v0
        v_lshlrev_b32 v84, 2, v84
        v_and_b32 v85, 1, v0
        v_lshlrev_b32 v85, 4, v85
        v_add_u32 v85, {K1_EIMG}, v85''')
        for n in range(13):
            I(f'ds_read_b32 v{16+n}, v84 offset:{K1_SORTE + n*1024}')
    I(f'''
    s_waitcnt lgkmcnt({13 if MOVE else 0})
    buffer_store_dwordx4 v[8:11], v4, s[16:19], s29 offen {OPT['K1_ST_AUX']}
    s_add_u32 s36, s29, 8192
    s_and_saveexec_b64 s[38:39], vcc
    s_cbranch_execz P_NOST2
    buffer_store_dwordx4 v[12:15], v4, s[16:19], s36 offen {OPT['K1_ST_AUX']}
P_NOST2:
    s_mov_b64 exec, s[38:39]
    ''')
    if MOVE:
        I(f'''s_mul_i32 s30, s2, {CH*32}
        s_add_u32 s30, s30, {PAY}
        s_waitcnt lgkmcnt(0)''')
        for n in range(12):
            I(f'v_add_u32 v{16+n}, v{16+n}, v85\nds_read_b128 {r(32+4*n,4)}, v{16+n}')
        for n in range(12):
            I(f'''s_waitcnt lgkmcnt({min(15, 11-n)})
            buffer_store_dwordx4 {r(32+4*n,4)}, v4, s[16:19], s30 offen {OPT['PAY_ST_AUX']}
            s_add_u32 s30, s30, 8192''')
        I(f'''s_cmp_ge_u32 s28, 4
        s_cbranch_scc1 P_FIN
        v_add_u32 v28, v28, v85
        ds_read_b128 v[8:11], v28
        s_waitcnt lgkmcnt(0)
        buffer_store_dwordx4 v[8:11], v4, s[16:19], s30 offen {OPT['PAY_ST_AUX']}''')
    I('P_FIN:')
    for _ in range(OPT['K1SLEEP']): I('s_sleep 64')
    kdump()
    I('s_endpgm')
    I(f'''
P_PREP:
    s_load_dwordx4 s[8:11], s[0:1], 32
    s_load_dwordx2 s[12:13], s[0:1], 48
    s_sub_u32 s30, s2, {NCH}
    s_lshl_b32 s30, s30, 3
    s_add_u32 s30, s30, s28
    s_cmp_ge_u32 s30, {NFRAG}
    s_cbranch_scc1 P_END
    s_waitcnt lgkmcnt(0)
    s_mov_b32 s20, s12
    s_mov_b32 s21, s13
    s_mov_b32 s22, {144*128}
    s_mov_b32 s23, 0x20000
    s_mov_b32 s33, {NLOG2E}
    s_mov_b32 s31, s30
    s_mov_b32 s32, 64
    s_cmp_lt_u32 s30, 8
    s_cbranch_scc1 P_GO
    s_cmp_lt_u32 s30, 16
    s_cbranch_scc0 P_C1
    s_sub_u32 s31, s30, 8
    s_mov_b32 s32, 0
    s_mov_b32 s33, 1.0
    s_mov_b32 s20, s10
    s_mov_b32 s21, s11
    s_mov_b32 s22, {64*128}
    s_branch P_GO
P_C1:
    s_cmp_lt_u32 s30, 18
    s_cbranch_scc0 P_C2
    s_sub_u32 s31, s30, 16
    s_lshl_b32 s31, s31, 2
    s_mov_b32 s32, 128
    s_branch P_GO
P_C2:
    s_mov_b32 s33, 1.0
    s_mov_b32 s32, 0
    s_sub_u32 s31, s30, 18
    s_cmp_lt_u32 s30, 26
    s_cbranch_scc1 P_GO
    s_sub_u32 s31, s30, 26
    s_mov_b32 s20, s8
    s_mov_b32 s21, s9
    s_mov_b32 s22, {64*128}
P_GO:
    s_and_b32 s34, s31, 3
    s_lshl_b32 s34, s34, 4
    s_add_u32 s34, s34, s32
    s_lshl_b32 s34, s34, 7
    s_lshr_b32 s35, s31, 2
    s_lshl_b32 s35, s35, 6
    s_add_u32 s34, s34, s35
    v_and_b32 v1, 31, v0
    v_lshlrev_b32 v1, 1, v1
    v_bfe_u32 v2, v0, 5, 1
    v_lshl_or_b32 v1, v2, 10, v1
    ''')
    for t in range(8):
        I(f'buffer_load_ushort v{8+t}, v1, s[20:23], s34 offen offset:{t*128}')
    srd(16, 24, WS_BYTES)
    I(f'''
    v_and_b32 v3, 63, v0
    v_lshlrev_b32 v3, 4, v3
    s_lshl_b32 s36, s30, 10
    s_add_u32 s36, s36, {WF}
    s_waitcnt vmcnt(0)
    ''')
    for t in range(8):
        I(f'v_lshlrev_b32 v{8+t}, 16, v{8+t}\nv_mul_f32 v{8+t}, s33, v{8+t}')
    for t in range(4):
        I(f'v_cvt_pk_bf16_f32 v{16+t}, v{8+2*t}, v{9+2*t}')
    I('''buffer_store_dwordx4 v[16:19], v3, s[16:19], s36 offen
P_END:
    s_endpgm''')

CNT, FLAG, BASE = 0, 256, 512
XS = 1024
ES = XS + 65536
LX = ES + 16384
LE = LX + 16384
XAT = LE + 16384
AGG = XAT + 14336
M_LDS = AGG + 2*14336
ROWS = XS + 36864
XSENT, ESENT = 0x1FFF80, 0x7FFFFF00
CAP = 4096
NSLOT = 20

WB, WV, WC = 4, 36, 68
XA = 76
Z = 108
H = 140
AF = 156
ACC = 176
IDX = 192
vLX, vLE, vKX0, vKX1, vKE = 197, 198, 199, 200, 201
vRA, vRE = 202, 206
vSCH, vLT = 207, 208
T0, T1, T2 = 209, 210, 211
vC, vEB = 212, 213
vONE = 214
vLA = 215
T4 = 216
AF2 = 220
NV = 236 if OPT['LOOP'] == 2 else 218
vTR = NV
pREC, pRK, pAD = 76, 96, 116
pD, pA, pW = 136, 152, 168
sX, sE, sWS, sOUT = 8, 12, 16, 20
sW, sT, sTW, sNP, sNC, sNN, sD, sM0X, sM0E, sMASK, sTMP, sTMP2, sMODE, sSEG, sG0 = range(28, 43)
sONE = 44
sSAVE = 46
sOFP = 48
sB = 50

def thr(s): return 8 * (s // 4) + s % 4

def mf(d, a, b, c): return f'v_mfma_f32_32x32x16_bf16 {r(d,16)}, {r(a,4)}, {r(b,4)}, {c}'
def zm(ft, af=None):
    if af is None: af = AF
    out = [mf(Z+16*ft, AF+16, WC+4*ft, r(XA+16*ft, 16))]
    for k in range(4): out.append(mf(Z+16*ft, af+4*k, WB+16*ft+4*k, r(Z+16*ft, 16)) if not OPT['NOZ'] else 's_nop 1')
    return out
def hm(ft, af=None):
    if af is None: af = AF
    out = [mf(H, af, WV+16*ft, '0')]
    for k in range(1, 4): out.append(mf(H, af+4*k, WV+16*ft+4*k, r(H, 16)))
    if OPT['NOHV']: out = ['s_nop 1'] * 4
    return out
def exps(ft): return [f'v_exp_f32 v{Z+16*ft+i}, v{Z+16*ft+i}' if not OPT['NOTR'] else 's_nop 1' for i in range(16)]
def rcps(ft): return [f'v_rcp_f32 v{Z+16*ft+i}, v{Z+16*ft+i}' if not OPT['NOTR'] else 's_nop 1' for i in range(16)]
def pkadd(ft):
    if not OPT['PKA']: return [f'v_add_f32 v{Z+16*ft+i}, 1.0, v{Z+16*ft+i}' for i in range(16)]
    return [f'v_pk_add_f32 {r(Z+16*ft+2*i,2)}, {r(Z+16*ft+2*i,2)}, {sr(sONE,2)}' for i in range(8)]
def pkf(ft):
    if not OPT['PKF']: return [f'v_fmac_f32 v{ACC+8*ft+2*(i//4)+i%2}, v{Z+16*ft+i}, v{H+i}' for i in range(16)]
    return [f'v_pk_fma_f32 {r(ACC+8*ft+2*(i//2),2)}, {r(Z+16*ft+2*i,2)}, {r(H+2*i,2)}, {r(ACC+8*ft+2*(i//2),2)}' for i in range(8)]
def weave(main, ins):
    out = []
    for i, m in enumerate(main):
        out += ins.get(i, [])
        out.append(m)
    out += ins.get(len(main), [])
    return out

def lds_init():
    I(f'''v_lshlrev_b32 v{T0}, 4, v0
    v_add_u32 v{T0}, {LX}, v{T0}
    v_mov_b32 v{pD}, {XSENT}
    v_mov_b32 v{pD+1}, {XSENT}
    v_mov_b32 v{pD+2}, {XSENT}
    v_mov_b32 v{pD+3}, {XSENT}
    v_mov_b32 v{pD+4}, {ESENT}
    v_mov_b32 v{pD+5}, {ESENT}
    v_mov_b32 v{pD+6}, {ESENT}
    v_mov_b32 v{pD+7}, {ESENT}
    v_and_b32 v{T1}, 127, v0
    v_lshlrev_b32 v{T1}, 2, v{T1}
    v_mov_b32 v{T2}, 0
    ds_write_b128 v{T0}, {r(pD,4)}
    ds_write_b128 v{T0}, {r(pD,4)} offset:8192
    ds_write_b128 v{T0}, {r(pD+4,4)} offset:16384
    ds_write_b128 v{T0}, {r(pD+4,4)} offset:24576
    ds_write_b32 v{T1}, v{T2}''')

def pass_a(tag, nslot):
    for s in range(nslot):
        I(f'v_cmpx_lt_i32 vcc, {thr(s)}, v{vC}\ns_cbranch_execz PA_DONE{tag}')
        if MOVE:
            I(f'v_lshrrev_b32 v{pAD+s}, 24, v{pREC+s}')
        else:
            I(f'v_and_b32 v{pAD+s}, 63, v{pREC+s}\nv_lshlrev_b32 v{pAD+s}, 2, v{pAD+s}')
        I(f'ds_add_rtn_u32 v{pRK+s}, v{pAD+s}, v{vONE}')
    I(f'PA_DONE{tag}:\ns_mov_b64 exec, -1')

def scan(tag):
    I(f'''v_and_b32 v{T0}, 63, v0
    v_lshlrev_b32 v{T0}, 2, v{T0}
    ds_read_b32 v{T1}, v{T0}
    v_mov_b32 v{T2}, {FLAG}
    ds_read_b32 v{IDX}, v{T2}
    s_waitcnt lgkmcnt(0)
    v_add_u32 v{T1}, 7, v{T1}
    v_and_b32 v{T1}, -8, v{T1}
    v_mov_b32 v{T2}, v{T1}''')
    dpp_scan(T2)
    I(f'''v_sub_u32 v{T1}, v{T2}, v{T1}
    v_add_u32 v{T1}, {LX//4}, v{T1}
    ds_write_b32 v{T0}, v{T1} offset:{BASE}
    v_readlane_b32 s{sTMP}, v{T2}, 63
    v_readfirstlane_b32 s{sTMP2}, v{IDX}
    s_waitcnt lgkmcnt(0)''')

def pass_b(tag, nslot, estride):
    for s in range(nslot):
        I(f'v_cmpx_lt_i32 vcc, {thr(s)}, v{vC}\ns_cbranch_execz PB1_DONE{tag}')
        I(f'ds_read_b32 v{pAD+s}, v{pAD+s} offset:{BASE}')
    I(f'PB1_DONE{tag}:\ns_mov_b64 exec, -1\ns_waitcnt lgkmcnt(0)')
    for s in range(nslot):
        I(f'v_cmpx_lt_i32 vcc, {thr(s)}, v{vC}\ns_cbranch_execz PB2_DONE{tag}')
        I(f'v_add_lshl_u32 v{pRK+s}, v{pRK+s}, v{pAD+s}, 2')
        if MOVE:
            I(f'v_add_u32 v{pAD+s}, {estride(s)}, v{vEB}')
        else:
            I(f'''v_lshrrev_b32 v{pAD+s}, 20, v{pREC+s}
            v_lshl_add_u32 v{pAD+s}, v{pAD+s}, 5, v{vEB}
            v_lshlrev_b32 v{pREC+s}, 1, v{pREC+s}''')
        I(f'''ds_write_b32 v{pRK+s}, v{pREC+s}
        ds_write_b32 v{pRK+s}, v{pAD+s} offset:16384''')
    I(f'PB2_DONE{tag}:\ns_mov_b64 exec, -1')

def dma_tile(ix, xm0, em0, xoff, eoff):
    g = []
    for q in range(4):
        g.append([f's_add_u32 m0, s{xm0}, {xoff + q*1024}',
                  f'v_and_or_b32 v{ix+q}, v{ix+q}, s{sMASK}, v{vKX0 if q % 2 == 0 else vKX1}',
                  f'buffer_load_dwordx4 v{ix+q}, {sr(sX,4)}, 0 offen lds'])
    g.append([f's_add_u32 m0, s{em0}, {eoff}',
              f'v_add_u32 v{ix+4}, v{ix+4}, v{vKE}',
              f'buffer_load_dwordx4 v{ix+4}, {sr(sE,4)}, 0 offen {OPT["E_AUX"]} lds'])
    return g

def flush_j(j, sn):
    I(f'''v_add_f32 v{T1}, v{ACC+2*j}, v{ACC+2*j+1}
    v_add_f32 v{T2}, v{ACC+8+2*j}, v{ACC+8+2*j+1}
    s_bfe_u32 s{sTMP}, s{sn}, {(6 << 16) | (8*j)}
    s_lshl_b32 s{sTMP}, s{sTMP}, 9
    v_permlane32_swap_b32 v{T1}, v{T2}
    v_add_u32 v{T0}, s{sTMP}, v{vLA}
    v_mov_b64 {r(ACC+2*j,2)}, 0
    v_add_f32 v{T1}, v{T1}, v{T2}
    v_mov_b64 {r(ACC+8+2*j,2)}, 0
    v_cvt_f64_f32 {r(T4,2)}, v{T1}
    ds_add_f64 v{T0}, {r(T4,2)}''')
def xa_j(j, sn):
    I(f'''s_bfe_u32 s{sTMP}, s{sn}, {(6 << 16) | (8*j)}
    s_lshl_b32 s{sTMP}, s{sTMP}, 8
    v_add_u32 v{T0}, s{sTMP}, v{vLT}
    ds_read2_b32 {r(XA+4*j,2)}, v{T0}
    ds_read2_b32 {r(XA+4*j+2,2)}, v{T0}
    ds_read2_b32 {r(XA+16+4*j,2)}, v{T0} offset0:32 offset1:32
    ds_read2_b32 {r(XA+16+4*j+2,2)}, v{T0} offset0:32 offset1:32''')

def TR(k):
    if not OPT['TRACE']: return ''
    return f'''s_memtime s[76:77]
    s_memrealtime s[78:79]
    s_waitcnt lgkmcnt(0)
    s_mov_b32 m0, s{sT}
    s_nop 0
    v_writelane_b32 v{vTR+k}, s76, m0
    s_add_u32 m0, m0, 32
    s_nop 0
    v_writelane_b32 v{vTR+k}, s78, m0'''
def stamp(i):
    if OPT['STAMP'] and OPT['CYC'] == 2:
        if i in (1, 2): return
        if i in (4, 5): I(f's_memtime s[{60+2*(i-3)}:{61+2*(i-3)}]')
        I(f's_memrealtime s[{60+2*i}:{61+2*i}]\ns_waitcnt lgkmcnt(0)')
    elif OPT['STAMP']:
        I(f'{"s_memtime" if OPT["CYC"] and i in (4,5) else "s_memrealtime"} s[{60+2*i}:{61+2*i}]\ns_waitcnt lgkmcnt(0)')

def gen_main():
    header(MAIN)
    if OPT['AMP']: I('s_memrealtime s[74:75]')
    stamp(0)
    I(f"""
    s_cmp_ge_u32 s2, {NB}
    s_cbranch_scc1 M_END
    s_load_dwordx4 s[4:7], s[0:1], 0
    s_load_dwordx2 s[24:25], s[0:1], 56
    s_load_dwordx2 s[26:27], s[0:1], 72
    v_lshrrev_b32 v1, 6, v0
    v_and_b32 v2, 63, v0
    v_readfirstlane_b32 s{sW}, v1
    s_and_b32 s{sB}, s2, 7
    s_lshl_b32 s{sB}, s{sB}, 5
    s_lshr_b32 s{sTMP}, s2, 3
    s_add_u32 s{sB}, s{sB}, s{sTMP}
    v_lshlrev_b32 v{IDX+1}, 4, v2
    v_lshrrev_b32 v3, 1, v0
    v_lshlrev_b32 v{IDX}, 2, v3
    v_lshrrev_b32 v{IDX+2}, 4, v2
    s_lshl_b32 s{sTMP}, s{sW}, 2
    v_add_u32 v{IDX+2}, s{sTMP}, v{IDX+2}
    v_xor_b32 v{IDX+2}, v{IDX+2}, v2
    v_and_b32 v{IDX+2}, 7, v{IDX+2}
    v_lshlrev_b32 v{IDX+2}, 4, v{IDX+2}
    v_lshrrev_b32 v{IDX+3}, 3, v2
    v_lshl_or_b32 v{IDX+2}, v{IDX+3}, 7, v{IDX+2}
    s_lshl_b32 s{sTMP}, s{sW}, 10
    s_add_u32 s{sTMP2}, s{sTMP}, {WF}
    s_add_u32 s{sTMP}, s{sTMP}, {XS}
    s_waitcnt lgkmcnt(0)
    """)
    srd(sWS, 26, WS_BYTES)
    for n in range(5):
        if n == 4: I(f's_cmp_ge_u32 s{sW}, 2\ns_cbranch_scc1 M_NOW4')
        I(f"""s_mov_b32 m0, s{sTMP}
        s_add_u32 s{sTMP}, s{sTMP}, 8192
        buffer_load_dwordx4 v{IDX+1}, {sr(sWS,4)}, s{sTMP2} offen lds
        s_add_u32 s{sTMP2}, s{sTMP2}, 8192""")
    I('M_NOW4:')
    srd(sX, 4, N * 128)
    I(f"""
    s_cmp_ge_u32 s{sW}, 7
    s_cbranch_scc1 M_NOROW
    s_lshl_b32 s{sTMP}, s{sW}, 10
    s_mul_i32 s{sTMP2}, s{sB}, {BN*128}
    s_add_u32 m0, s{sTMP}, {ROWS}
    s_add_u32 s{sTMP2}, s{sTMP2}, s{sTMP}
    buffer_load_dwordx4 v{IDX+2}, {sr(sX,4)}, s{sTMP2} offen lds
M_NOROW:
    s_lshl_b32 s{sTMP}, s{sB}, 10
    s_add_u32 s{sTMP}, s{sTMP}, {OFFS}
    buffer_load_dword v{vC}, v{IDX}, {sr(sWS,4)}, s{sTMP} offen
    s_add_u32 s{sOFP}, s26, s{sTMP}
    s_addc_u32 s{sOFP+1}, s27, 0
    """)
    lds_init()
    if MOVE:
        I(f"""s_add_u32 s{sE}, s26, {PAY}
        s_addc_u32 s{sE+1}, s27, 0
        s_mov_b32 s{sE+2}, {E*32}
        s_mov_b32 s{sE+3}, 0x20000""")
    else:
        srd(sE, 6, E * 32)
    srd(sOUT, 24, N * 128)
    I(f"""
    v_mov_b32 v{vONE}, 1
    s_mov_b32 s{sMASK}, {XSENT}
    s_mov_b32 s{sONE}, 1.0
    s_mov_b32 s{sONE+1}, 1.0
    s_mov_b32 s{sMODE}, 0
    s_lshl_b32 s{sM0X}, s{sW}, 13
    s_add_u32 s{sM0X}, s{sM0X}, {XS}
    s_lshl_b32 s{sM0E}, s{sW}, 11
    s_add_u32 s{sM0E}, s{sM0E}, {ES}
    v_lshrrev_b32 v{T0}, 4, v2
    v_xor_b32 v{T0}, v{T0}, v2
    v_and_b32 v{T1}, 7, v{T0}
    v_lshlrev_b32 v{vKX0}, 4, v{T1}
    v_xor_b32 v{vKX1}, 64, v{vKX0}
    v_and_b32 v{T0}, 1, v{T0}
    v_lshlrev_b32 v{vKE}, 4, v{T0}
    v_and_b32 v{T0}, 31, v2
    v_lshlrev_b32 v{vLT}, 2, v{T0}
    v_add_u32 v{vLT}, {XAT}, v{vLT}
    v_lshlrev_b32 v{vLA}, 3, v2
    v_add_u32 v{vLA}, {AGG}, v{vLA}
    """)
    j_, i_, h_, g_, t_, u_ = pA, pA+1, pA+2, pA+3, pA+4, pA+5
    I(f"""
    v_bfe_u32 v{j_}, v2, 3, 2
    v_and_b32 v{i_}, 3, v2
    v_lshrrev_b32 v{h_}, 5, v2
    v_lshrrev_b32 v{t_}, 1, v{j_}
    v_xor_b32 v{g_}, v{t_}, v{j_}
    v_lshrrev_b32 v{u_}, 2, v2
    v_xor_b32 v{g_}, v{g_}, v{u_}
    v_and_b32 v{g_}, 1, v{g_}
    v_xor_b32 v{t_}, v{t_}, v{h_}
    v_lshlrev_b32 v{t_}, 4, v{t_}
    v_lshl_or_b32 v{u_}, v{j_}, 2, v{i_}
    v_lshl_or_b32 v{u_}, v{g_}, 4, v{u_}
    v_lshl_or_b32 v{t_}, v{u_}, 5, v{t_}
    v_add_u32 v{vRE}, s{sM0E}, v{t_}
    v_and_b32 v{t_}, 1, v{i_}
    v_lshl_or_b32 v{u_}, v{g_}, 1, v{t_}
    v_lshlrev_b32 v{u_}, 3, v{u_}
    v_lshl_or_b32 v{u_}, v{j_}, 1, v{u_}
    v_lshrrev_b32 v{i_}, 1, v{i_}
    v_or_b32 v{u_}, v{u_}, v{i_}
    v_lshlrev_b32 v{u_}, 7, v{u_}
    v_add_u32 v{u_}, s{sM0X}, v{u_}
    v_lshl_or_b32 v{t_}, v{t_}, 2, v{j_}
    v_xor_b32 v{t_}, v{t_}, v{h_}
    """)
    for s in range(4):
        I(f"""v_xor_b32 v{g_}, {2*s}, v{t_}
        v_lshl_add_u32 v{vRA+s}, v{g_}, 4, v{u_}""")
    I(f"""
    v_cmp_gt_u32 vcc, {NCH}, v3
    v_mul_u32_u24 v{T1}, {CH}, v3
    v_and_b32 v{T2}, 1, v0
    v_lshlrev_b32 v{T2}, 2, v{T2}
    s_lshr_b32 s{sTMP}, s2, 3
    s_mul_i32 s{sTMP}, s{sTMP}, {391*128}
    v_min_u32 v1, 390, v0
    v_lshlrev_b32 v1, 7, v1
    s_waitcnt vmcnt(0)
    v_cndmask_b32 v{vC}, 0, v{vC}, vcc
    v_and_b32 v{T0}, 0xffff, v{vC}
    v_lshrrev_b32 v{vC}, 16, v{vC}
    v_add3_u32 v{T0}, v{T0}, v{T1}, v{T2}
    v_cmp_lt_u32 {sr(sSAVE,2)}, {2*NSLOT}, v{vC}
    v_sub_u32 v{vC}, v{vC}, v{T2}
    v_lshlrev_b32 v{vEB}, 5, v{T0 if MOVE else T1}
    v_lshlrev_b32 v{T0}, 2, v{T0}
    """)
    for m in range(NSLOT // 4):
        I(f"""v_cmpx_lt_i32 vcc, {8*m}, v{vC}
        s_cbranch_execz M_RL_DONE
        buffer_load_dwordx4 {r(pREC+4*m,4)}, v{T0}, {sr(sWS,4)}, 0 offen offset:{32*m}""")
    I('M_RL_DONE:\ns_mov_b64 exec, -1')
    if OPT['XPF']:
        I(f'buffer_load_dword v1, v1, {sr(sX,4)}, s{sTMP} offen')
    stamp(1)
    I(f"""
    s_waitcnt lgkmcnt(0)
    s_barrier
    s_cmp_eq_u64 {sr(sSAVE,2)}, 0
    s_cbranch_scc1 M_NOFLAG
    v_mov_b32 v{T1}, {FLAG}
    ds_write_b32 v{T1}, v{vONE}
M_NOFLAG:
    """)
    I(f"""
    v_lshlrev_b32 v{T0}, 4, v2
    v_add_u32 v{T0}, {XS}, v{T0}
    s_lshr_b32 s{sTMP}, s{sW}, 2
    s_lshl_b32 s{sTMP}, s{sTMP}, 1
    s_and_b32 s{sTMP2}, s{sW}, 1
    s_add_u32 s{sTMP}, s{sTMP}, s{sTMP2}
    s_lshl_b32 s{sTMP}, s{sTMP}, 12
    v_add_u32 v{T1}, s{sTMP}, v{T0}
    """)
    for s in range(4):
        I(f'ds_read_b128 {r(pW+4*s,4)}, v{T1} offset:{(18+s)*1024}')
    I(f"""
    v_and_b32 v{T1}, 31, v2
    v_lshrrev_b32 v{T2}, 5, v2
    v_bfe_u32 v{IDX}, v2, 1, 3
    v_xor_b32 v{IDX}, v{IDX}, v{T2}
    s_bfe_u32 s{sG0}, s{sW}, 0x10001
    s_lshl_b32 s{sTMP2}, s{sG0}, 12
    s_add_u32 s{sTMP2}, s{sTMP2}, {ROWS}
    v_lshlrev_b32 v{T1}, 7, v{T1}
    v_add_u32 v{T1}, s{sTMP2}, v{T1}
    """)
    for s in range(4):
        I(f"""v_xor_b32 v{IDX+1}, {2*s}, v{IDX}
        v_lshl_add_u32 v{IDX+1}, v{IDX+1}, 4, v{T1}
        ds_read_b128 {r(pA+4*s,4)}, v{IDX+1}""")
    I(f"""
    s_lshl_b32 s{sTMP2}, s{sG0}, 13
    s_and_b32 s{sD}, s{sW}, 1
    s_lshl_b32 s{sD}, s{sD}, 7
    s_add_u32 s{sTMP2}, s{sTMP2}, s{sD}
    v_lshlrev_b32 v{T2}, 10, v{T2}
    v_add3_u32 v{T2}, v{T2}, v{vLT}, s{sTMP2}
    s_mov_b32 s{sD}, {NLOG2E}
    s_waitcnt lgkmcnt(0)
    """)
    I(mf(pD, pA, pW, '0'))
    for s in range(1, 4): I(mf(pD, pA+4*s, pW+4*s, r(pD, 16)))
    for f in range(18):
        I(f'ds_read_b128 {r(WB+4*f,4)}, v{T0} offset:{f*1024}')
    I(f's_cmp_ge_u32 s{sW}, 4\ns_cbranch_scc1 M_XU')
    for k in range(16):
        if k == 12: I(f's_cmp_lg_u32 s{sG0}, 0\ns_cbranch_scc1 M_TDONE')
        I(f'v_mul_f32 v{pD+k}, s{sD}, v{pD+k}\nds_write_b32 v{T2}, v{pD+k} offset:{(8*(k//4)+k%4)*256}')
    I(f"""s_branch M_TDONE
M_XU:
    v_subrev_u32 v{T2}, {XAT}, v{T2}
    v_lshlrev_b32 v{T2}, 1, v{T2}
    v_add_u32 v{T2}, {AGG}, v{T2}
    """)
    for k in range(16):
        if k == 12: I(f's_cmp_lg_u32 s{sG0}, 0\ns_cbranch_scc1 M_TDONE')
        I(f'v_cvt_f64_f32 {r(pA+2*(k%8),2)}, v{pD+k}\nds_write_b64 v{T2}, {r(pA+2*(k%8),2)} offset:{(8*(k//4)+k%4)*512}')
    I('M_TDONE:')
    I(f's_waitcnt vmcnt({1 if OPT["XPF"] else 0})')
    stamp(2)
    pass_a('F', NSLOT)
    I('s_waitcnt lgkmcnt(0)\ns_barrier')
    scan('F')
    I(f"""
    s_cmp_gt_u32 s{sTMP}, {CAP}
    s_cbranch_scc1 M_SLOW
    s_cmp_lg_u32 s{sTMP2}, 0
    s_cbranch_scc1 M_SLOW
    """)
    pass_b('F', NSLOT, lambda s: thr(s) * 32)
    I(f'''
M_BATCH:
    s_add_u32 s{sTMP}, s{sTMP}, 31
    s_lshr_b32 s{sTMP}, s{sTMP}, 5
    s_add_u32 s{sTW}, s{sTMP}, 7
    s_sub_u32 s{sTW}, s{sTW}, s{sW}
    s_lshr_b32 s{sTW}, s{sTW}, 3
    s_lshr_b32 s{sG0}, s{sTMP}, 3
    s_mul_i32 s{sG0}, s{sG0}, s{sW}
    s_and_b32 s{sTMP}, s{sTMP}, 7
    s_min_u32 s{sTMP}, s{sTMP}, s{sW}
    s_add_u32 s{sG0}, s{sG0}, s{sTMP}
    s_lshl_b32 s{sG0}, s{sG0}, 7
    s_add_u32 s{sG0}, s{sG0}, {LX}
    s_lshl_b32 s{sTMP2}, s{sTW}, 5
    v_lshrrev_b32 v{T0}, 4, v2
    v_mul_u32_u24 v{T0}, s{sTMP2}, v{T0}
    v_bfe_u32 v{T1}, v2, 3, 1
    v_lshl_add_u32 v{T0}, v{T1}, 4, v{T0}
    v_add_u32 v{vLX}, s{sG0}, v{T0}
    v_bfe_u32 v{T0}, v2, 3, 2
    v_mul_u32_u24 v{T0}, s{sTMP2}, v{T0}
    v_bfe_u32 v{T1}, v2, 2, 1
    v_lshl_add_u32 v{T0}, v{T1}, 4, v{T0}
    v_lshrrev_b32 v{T1}, 5, v2
    v_lshl_add_u32 v{T0}, v{T1}, 3, v{T0}
    v_bfe_u32 v{T1}, v2, 1, 1
    v_lshl_add_u32 v{T0}, v{T1}, 2, v{T0}
    v_add_u32 v{vLE}, s{sG0}, v{T0}
    s_sub_u32 s{sTMP}, s{sTW}, 1
    v_min_u32 v{T0}, s{sTMP}, v2
    v_lshlrev_b32 v{T0}, 5, v{T0}
    v_add_u32 v{T0}, s{sG0}, v{T0}
    v_add_u32 v{T1}, s{sTMP2}, v{T0}
    v_add_u32 v{T2}, s{sTMP2}, v{T1}
    v_add_u32 v{vSCH}, s{sTMP2}, v{T2}
    ''')
    for k in range(8): I(f'v_mov_b64 {r(ACC+2*k,2)}, 0')
    I(f'''
    s_waitcnt lgkmcnt(0)
    s_barrier
    ''')
    stamp(3)
    if OPT['NOX']: I(f's_mov_b32 s{sX+2}, 0')
    if OPT['NOE']: I(f's_mov_b32 s{sE+2}, 0')
    I(f'''
    s_cmp_eq_u32 s{sTW}, 0
    s_cbranch_scc1 M_BDONE
    ds_read_b128 {r(Z,4)}, v{vLX}
    ds_read_b32 v{Z+4}, v{vLE} offset:16384
    ds_read_b128 {r(Z+8,4)}, v{vLX} offset:32
    ds_read_b32 v{Z+12}, v{vLE} offset:{16384+32}
    ds_read_b32 v{T0}, v{T0}
    ds_read_b32 v{T1}, v{T1}
    ds_read_b32 v{T2}, v{T2}
    ds_read_b32 v{vSCH}, v{vSCH}
    ds_read_b128 {r(IDX,4)}, v{vLX} offset:64
    ds_read_b32 v{IDX+4}, v{vLE} offset:{16384+64}
    s_waitcnt lgkmcnt(8)
    ''')
    for g in dma_tile(Z, sM0X, sM0E, 0, 0): I('\n'.join(g))
    I(f'''
    s_waitcnt lgkmcnt(0)
    s_cmp_lt_u32 s{sTW}, 2
    s_cbranch_scc1 M_NOT1
    ''')
    for g in dma_tile(Z+8, sM0X, sM0E, 4096, 1024): I('\n'.join(g))
    I(f'''
M_NOT1:
    v_bfe_u32 v{T0}, v{T0}, 1, 6
    v_bfe_u32 v{T1}, v{T1}, 1, 6
    v_bfe_u32 v{T2}, v{T2}, 1, 6
    v_bfe_u32 v{vSCH}, v{vSCH}, 1, 6
    v_lshl_or_b32 v{T0}, v{T1}, 8, v{T0}
    v_lshl_or_b32 v{T0}, v{T2}, 16, v{T0}
    v_lshl_or_b32 v{vSCH}, v{vSCH}, 24, v{T0}
    v_add_u32 v{vLX}, 96, v{vLX}
    v_add_u32 v{vLE}, {16384+96}, v{vLE}
    v_readfirstlane_b32 s{sNC}, v{vSCH}
    s_mov_b32 s{sT}, 1
    s_nop 2
    s_mov_b32 s{sNP}, s{sNC}
    ''')
    for j in range(4): xa_j(j, sNC)
    I(f'''
    s_cmp_lt_u32 s{sTW}, 2
    s_cbranch_scc1 M_W0
    s_waitcnt vmcnt(5)
    s_branch M_W1
M_W0:
    s_waitcnt vmcnt(0)
M_W1:
    ''')
    for s in range(4): I(f'ds_read_b128 {r(AF+4*s,4)}, v{vRA+s}')
    I(f'''ds_read_b128 {r(AF+16,4)}, v{vRE}
    s_waitcnt lgkmcnt(0)''')
    z0 = zm(0)
    I(z0[0])
    if OPT['LOOP'] == 2:
        for g in dma_tile(IDX, sM0X, sM0E, 0, 0): I(g[1])
    else:
        I(f's_cmp_lt_u32 s{sTW}, 3\ns_cbranch_scc1 M_NOT2')
        for g in dma_tile(IDX, sM0X, sM0E, 0, 0): I('\n'.join(g))
        I('M_NOT2:')
    for m in z0[1:]: I(m)
    I('s_nop 7\ns_nop 3')
    stamp(4)
    I('.p2align 6')
    for p in range(2 if OPT['LOOP'] == 2 else 0):
        nb = 1 - p
        afc, afn = (AF, AF2) if p == 0 else (AF2, AF)
        PB = OPT['PB']
        I(f'''
M_LOOP{p}:
    {TR(0)}
    s_xor_b32 s{sD}, s{sNP}, s{sNC}
    {';' if OPT['NOEV'] else ''}s_cbranch_scc1 M_FL{p}
M_FLR{p}:
    s_setprio 0
    s_add_u32 s{sTMP}, s{sT}, 1
    s_cmp_lt_u32 s{sTMP}, s{sTW}
    s_cbranch_scc0 M_ND{p}
        ''')
        g = dma_tile(IDX, sM0X, sM0E, p*4096, p*1024)
        I(g[0][0])
        for q in range(5):
            I('s_nop 0' if q == 0 else g[q][0])
            if q > 0: I('s_nop 0')
            I(g[q][2])
        I(f'M_ND{p}:')
        def eblk(ft, extra):
            hv = hm(ft, afc)
            ES_, EF = OPT['ES'], OPT['EF']
            ins = {}
            for k in range(4): ins.setdefault(EF + ES_*k, []).append(hv[k])
            if OPT['PPOS'] == 0 and EF == 0: ins[0].append(f's_setprio {PB}')
            else: ins.setdefault(max(1, OPT['PPOS']), []).insert(0, f's_setprio {PB}')
            if OPT['PB2'] >= 0: ins.setdefault(OPT['P2POS'], []).insert(0, f's_setprio {OPT["PB2"]}')
            for k, v in extra.items(): ins.setdefault(k, []).extend(v)
            I('\n'.join(weave(exps(ft), ins)))
        eblk(0, {11: [f'v_readlane_b32 s{sNN}, v{vSCH}, s{sT}']})
        I('\n'.join(pkadd(0)))
        zz = zm(1, afc)
        I('\n'.join(weave(rcps(0), {0: [zz[0]], 3: [zz[1]], 6: [zz[2]], 9: [zz[3]], 12: [zz[4]]})))
        I('\n'.join(pkf(0)))
        I(f'''
    s_xor_b32 s{sD}, s{sNC}, s{sNN}
    {';' if OPT['NOEV'] else ''}s_cbranch_scc1 M_XA{p}
M_XAR{p}:
    s_setprio 0
    s_add_u32 s{sTMP}, s{sT}, 1
    s_cmp_lt_u32 s{sTMP}, s{sTW}
    s_cbranch_scc0 M_WZ{p}
    s_waitcnt vmcnt(5)
M_WZR{p}:
        ''')
        I(f'ds_read_b128 {r(AF+16,4)}, v{vRE} offset:{nb*1024}')
        for s_ in range(4): I(f'ds_read_b128 {r(afn+4*s_,4)}, v{vRA+s_} offset:{nb*4096}')
        I(f'ds_read_b128 {r(IDX,4)}, v{vLX}\nds_read_b32 v{IDX+4}, v{vLE}')
        if OPT['WOUT']: I('s_waitcnt lgkmcnt(0)')
        eblk(1, {})
        I('\n'.join(pkadd(1)))
        zz = zm(0, afn)
        if not OPT['WOUT']: I('s_waitcnt lgkmcnt(0)')
        I('\n'.join(weave(rcps(1), {0: [zz[0]], 3: [zz[1]], 6: [zz[2]], 9: [zz[3]], 12: [zz[4]]})))
        I('\n'.join(pkf(1)))
        for q in range(5): I(g[q][1])
        I(f'''
    v_add_u32 v{vLX}, 32, v{vLX}
    v_add_u32 v{vLE}, 32, v{vLE}
    s_mov_b32 s{sNP}, s{sNC}
    s_mov_b32 s{sNC}, s{sNN}
    s_add_u32 s{sT}, s{sT}, 1
    s_cmp_le_u32 s{sT}, s{sTW}''')
        I('s_cbranch_scc0 M_LEND' if p == 0 else 's_cbranch_scc1 M_LOOP0')
    for p in range(2 if OPT['LOOP'] == 1 else 0):
        nb = 1 - p
        I(f'''
M_LOOP{p}:
    {TR(0)}
    s_xor_b32 s{sD}, s{sNP}, s{sNC}
    {';' if OPT['NOEV'] else ''}s_cbranch_scc1 M_FL{p}
M_FLR{p}:
        ''')
        hv = hm(0)
        I('\n'.join(weave(exps(0), {0: [hv[0]], 3: [hv[1]], 6: [hv[2]], 9: [hv[3]],
                                    11: [f'v_readlane_b32 s{sNN}, v{vSCH}, s{sT}']})))
        I('\n'.join(pkadd(0)))
        zz = zm(1)
        I('\n'.join(weave(rcps(0), {0: [zz[0]], 3: [zz[1]], 6: [zz[2]], 9: [zz[3]], 12: [zz[4]]})))
        I('\n'.join(pkf(0)))
        I(f'''
    s_xor_b32 s{sD}, s{sNC}, s{sNN}
    {';' if OPT['NOEV'] else ''}s_cbranch_scc1 M_XA{p}
M_XAR{p}:
    s_add_u32 s{sTMP}, s{sT}, 1
    s_cmp_lt_u32 s{sTMP}, s{sTW}
    s_cbranch_scc0 M_WZ{p}
    s_waitcnt vmcnt(5)
M_WZR{p}:
        ''')
        hv = hm(1)
        rd = [f'ds_read_b128 {r(AF+4*s,4)}, v{vRA+s} offset:{nb*4096}' for s in range(4)]
        if OPT['NODS']:
            I('\n'.join(weave(exps(1), {0: [hv[0]], 3: [hv[1]], 6: [hv[2]], 9: [hv[3]]})))
        else: I('\n'.join(weave(exps(1), {
            0: [hv[0], rd[0]],
            1: [f'ds_read_b128 {r(AF+16,4)}, v{vRE} offset:{nb*1024}'],
            3: [hv[1], rd[1]],
            4: [f'ds_read_b128 {r(IDX,4)}, v{vLX}'],
            6: [hv[2], rd[2]],
            7: [f'ds_read_b32 v{IDX+4}, v{vLE}'],
            9: [hv[3], rd[3]],
        })))
        I('\n'.join(pkadd(1)))
        zz = zm(0)
        I(f'''
    s_add_u32 s{sTMP}, s{sT}, 2
    s_cmp_lt_u32 s{sTMP}, s{sTW}
    s_waitcnt lgkmcnt(0)
    s_cbranch_scc0 M_ND{p}
        ''')
        g = dma_tile(IDX, sM0X, sM0E, nb*4096, nb*1024)
        if OPT['NODMA']: g = [x[:2] for x in g]
        I('\n'.join(weave(rcps(1), {
            0: [zz[0]], 1: g[0], 3: [zz[1]], 4: g[1], 6: [zz[2]], 7: g[2], 9: [zz[3]], 10: g[3], 12: [zz[4]], 13: g[4],
            14: [f'v_add_u32 v{vLX}, 32, v{vLX}'], 15: [f'v_add_u32 v{vLE}, 32, v{vLE}']})))
        I(f'M_NDR{p}:')
        I('\n'.join(pkf(1)))
        I(f'''
    s_mov_b32 s{sNP}, s{sNC}
    s_mov_b32 s{sNC}, s{sNN}
    s_add_u32 s{sT}, s{sT}, 1
    s_cmp_le_u32 s{sT}, s{sTW}''')
        if p == 0:
            I('s_cbranch_scc0 M_LEND')
        else:
            I('s_cbranch_scc1 M_LOOP0')
    I('M_LEND:')
    I(TR(0))
    I('s_setprio 0')
    for j in range(4): flush_j(j, sNP)
    I(f'''
M_BDONE:
    s_cmp_lg_u32 s{sMODE}, 0
    s_cbranch_scc1 M_SNEXT
M_EPI:
    ''')
    stamp(5)
    I(f'''
    s_waitcnt lgkmcnt(0)
    s_barrier
    v_cmp_gt_u32 vcc, {BN*8}, v0
    s_and_saveexec_b64 {sr(sSAVE,2)}, vcc
    s_cbranch_execz M_FIN
    v_lshlrev_b32 v{T0}, 6, v0
    v_add_u32 v{T0}, {AGG}, v{T0}
    ds_read_b128 {r(Z+16,4)}, v{T0}
    ds_read_b128 {r(Z+20,4)}, v{T0} offset:16
    ds_read_b128 {r(Z+24,4)}, v{T0} offset:32
    ds_read_b128 {r(Z+28,4)}, v{T0} offset:48
    s_mov_b32 s{sTMP}, {NLOG2E}
    s_mul_i32 s{sTMP2}, s{sB}, {BN*128}
    v_lshlrev_b32 v{T1}, 4, v0
    s_waitcnt lgkmcnt(0)
    ''')
    for k in range(8): I(f'v_cvt_f32_f64 v{Z+k}, {r(Z+16+2*k,2)}')
    for k in range(8): I(f'v_mul_f32 v{Z+8+k}, s{sTMP}, v{Z+k}')
    for k in range(8): I(f'v_exp_f32 v{Z+8+k}, v{Z+8+k}')
    for k in range(8): I(f'v_add_f32 v{Z+8+k}, 1.0, v{Z+8+k}')
    for k in range(8): I(f'v_rcp_f32 v{Z+8+k}, v{Z+8+k}')
    for k in range(8): I(f'v_mul_f32 v{Z+k}, v{Z+k}, v{Z+8+k}')
    for k in range(4): I(f'v_cvt_pk_bf16_f32 v{Z+16+k}, v{Z+2*k}, v{Z+2*k+1}')
    I(f'buffer_store_dwordx4 {r(Z+16,4)}, v{T1}, {sr(sOUT,4)}, s{sTMP2} offen')
    I('M_FIN:')
    if OPT['AMP']:
        I(f'''s_cmp_lg_u32 s2, 0
        s_cbranch_scc1 M_END
        s_cmp_lg_u32 s{sW}, 0
        s_cbranch_scc1 M_END
        s_waitcnt vmcnt(0)
        s_memrealtime s[60:61]
        s_add_u32 s56, s26, {WF + 0x10000}
        s_addc_u32 s57, s27, 0
        s_load_dword s58, s[56:57], 0
        s_waitcnt lgkmcnt(0)''')
        if OPT['AMP'] == 2: I('s_mov_b32 s60, s74')
        if OPT['AMP'] == 3: I('s_mov_b32 s58, s74')
        I(f'''s_sub_u32 s59, s60, s58
        s_min_u32 s59, s59, 20000
        s_mul_i32 s59, s59, 10
        s_memrealtime s[60:61]
        s_waitcnt lgkmcnt(0)
        s_mov_b32 s58, s60
M_SPIN:
        s_memrealtime s[60:61]
        s_waitcnt lgkmcnt(0)
        s_sub_u32 s62, s60, s58
        s_cmp_lt_u32 s62, s59
        s_cbranch_scc1 M_SPIN''')
    if OPT['DBG']: dbgdump(7, 6)
    elif OPT['STAMP']:
        I(f'''s_mov_b64 exec, 1
        s_memrealtime s[72:73]
        s_load_dwordx2 s[4:5], s[0:1], 72
        s_waitcnt lgkmcnt(0) vmcnt(0)
        s_add_u32 s52, s4, 0x8000000
        s_addc_u32 s53, s5, 0
        s_mov_b32 s54, 0x100000
        s_mov_b32 s55, 0x20000
        s_lshl_b32 s56, s2, 3
        s_add_u32 s56, s56, s{sW}
        s_lshl_b32 s56, s56, 5
        v_mov_b32 v1, 0''')
        for i in range(7): I(f'v_mov_b32 v{8+i}, s{60+2*i}')
        I(f'''v_mov_b32 v15, s{sTW}
        buffer_store_dwordx4 v[8:11], v1, s[52:55], s56 offen
        buffer_store_dwordx4 v[12:15], v1, s[52:55], s56 offen offset:16''')
        if OPT['TRACE']:
            I(f'''s_mov_b64 exec, -1
            s_lshl_b32 s56, s56, 3
            s_add_u32 s56, s56, 0x20000
            v_lshlrev_b32 v1, 2, v2
            buffer_store_dword v{vTR}, v1, s[52:55], s56 offen''')
    I('M_END:\ns_endpgm')
    for p in range(2):
        I(f'M_FL{p}:')
        if OPT['LOOP'] == 2: I(f's_setprio {OPT["PE"]}')
        for j in range(4):
            I(f's_and_b32 s{sTMP}, s{sD}, {0xff << (8*j)}\ns_cbranch_scc0 M_FL{p}_{j}')
            flush_j(j, sNP)
            I(f'M_FL{p}_{j}:')
        I(f's_branch M_FLR{p}')
        I(f'M_XA{p}:')
        if OPT['LOOP'] == 2: I(f's_setprio {OPT["PE"]}')
        for j in range(4):
            I(f's_and_b32 s{sTMP}, s{sD}, {0xff << (8*j)}\ns_cbranch_scc0 M_XA{p}_{j}')
            xa_j(j, sNN)
            I(f'M_XA{p}_{j}:')
        I(f's_branch M_XAR{p}')
        I(f'M_WZ{p}:\ns_waitcnt vmcnt(0)\ns_branch M_WZR{p}')
        if OPT['LOOP'] == 1:
            I(f'M_ND{p}:')
            zz = zm(0)
            I('\n'.join(weave(rcps(1), {0: [zz[0]], 3: [zz[1]], 6: [zz[2]], 9: [zz[3]], 12: [zz[4]]})))
            I(f's_branch M_NDR{p}')
    I(f'''
M_SLOW:
    s_mov_b32 s{sMODE}, 1
    s_mov_b32 s{sSEG}, -1
M_SNEXT:
    s_add_u32 s{sSEG}, s{sSEG}, 1
    s_cmp_ge_u32 s{sSEG}, {NCH}
    s_cbranch_scc1 M_EPI
    s_lshl_b32 s{sTMP}, s{sSEG}, 2
    s_load_dword s{sD}, {sr(sOFP,2)}, s{sTMP}
    s_waitcnt lgkmcnt(0)
    s_lshr_b32 s{sTMP2}, s{sD}, 16
    s_cmp_eq_u32 s{sTMP2}, 0
    s_cbranch_scc1 M_SNEXT
    s_barrier
    ''')
    lds_init()
    I(f'''
    s_and_b32 s{sD}, s{sD}, 0xffff
    s_mul_i32 s{sTMP}, s{sSEG}, {CH}
    s_add_u32 s{sD}, s{sD}, s{sTMP}
    v_add_u32 v{T0}, s{sD}, v0
    v_mov_b32 v{T1}, s{sTMP}
    v_lshlrev_b32 v{vEB}, 5, v{T0 if MOVE else T1}
    v_lshlrev_b32 v{T0}, 2, v{T0}
    v_sub_u32 v{vC}, s{sTMP2}, v0
    v_add_u32 v{vC}, 511, v{vC}
    v_ashrrev_i32 v{vC}, 9, v{vC}
    v_cmp_lt_i32 vcc, 4, v{vC}
    v_add_u32 v{T1}, 4, v{vC}
    s_nop 0
    v_cndmask_b32 v{vC}, v{vC}, v{T1}, vcc
    ''')
    for s in range(7):
        I(f'buffer_load_dword v{pREC+s}, v{T0}, {sr(sWS,4)}, 0 offen')
        if s < 6: I(f'v_add_u32 v{T0}, 2048, v{T0}')
    I('s_waitcnt vmcnt(0) lgkmcnt(0)\ns_barrier')
    pass_a('S', 7)
    I('s_waitcnt lgkmcnt(0)\ns_barrier')
    scan('S')
    pass_b('S', 7, lambda s: s * 16384)
    I('s_branch M_BATCH')

def kd(name, vgpr, sgpr):
    return f'''.amdhsa_kernel {name}
  .amdhsa_next_free_vgpr {vgpr}
  .amdhsa_next_free_sgpr {sgpr}
  .amdhsa_accum_offset {(vgpr+3)//4*4}
  .amdhsa_group_segment_fixed_size 0
  .amdhsa_kernarg_size 80
  .amdhsa_user_sgpr_count 2
  .amdhsa_user_sgpr_kernarg_segment_ptr 1
  .amdhsa_system_sgpr_workgroup_id_x 1
.end_amdhsa_kernel
'''

HEAD = open('gather_scatter__edge_featured_mpnn_egc__graph.s.ref').read().split('; Override')[0]
gen_part()
gen_main()
if OPT['EXTRA']:
    header('nop_kernel'); I('s_endpgm')
out = HEAD + f'''; Two launches: part_kernel bins the edges by destination bucket, the main kernel does the rest.
{'; @launch kernel=nop_kernel grid=(1,1,1) block=(64,1,1) lds=0'+chr(10) if OPT['EXTRA']==1 else ''}; @launch kernel=part_kernel grid=({NCH+5},1,1) block=(512,1,1) lds={K1_LDS}
{'; @launch kernel=nop_kernel grid=(1,1,1) block=(64,1,1) lds=0'+chr(10) if OPT['EXTRA']==2 else ''}; @launch kernel={MAIN} grid=({NB},1,1) block=(512,1,1) lds={M_LDS}
{'; @launch kernel=nop_kernel grid=(1,1,1) block=(64,1,1) lds=0'+chr(10) if OPT['EXTRA']==3 else ''}.amdgcn_target "amdgcn-amd-amdhsa--gfx950"
.text
''' + '\n'.join(L) + '''
.section .rodata,"a"
.p2align 6
''' + kd('part_kernel', 88, 80) + '.p2align 6\n' + kd(MAIN, NV+(8 if OPT['TRACE'] else 0), 80) + ('.p2align 6\n' + kd('nop_kernel', 8, 8) if OPT['EXTRA'] else '')
open(sys.argv[1], 'w').write(out)
```

```python
import sys, struct

OPT = dict(MOVE=0, E_AUX='', K1_LD_AUX='', K1_ST_AUX='', PAY_ST_AUX='', STAMP=0, PRIO=0, NOX=0, NOE=0, CYC=0, PKA=1, PKF=1, NOEV=0, NODMA=0, NODS=0, NOVM=0, TRACE=0, XPF=2, K1SLEEP=0, EXTRA=0, DBG=0, NOHV=0, NOZ=0, NOTR=0, LOOP=2, PB=1, PE=3, PB2=2, WOUT=1, ES=3, EF=3, PPOS=0, P2POS=8, AMP=0, FINE=0, WLATE=1)
for a in sys.argv[2:]:
    k, v = a.split('=')
    OPT[k] = int(v) if v.lstrip('-').isdigit() else v.replace('_', ' ')
MOVE = OPT['MOVE']

N, E = 12500, 800000
NB, BN = 256, 49
NCH, CH = 250, 3200
REC, OFFS, WF, PAY = 0, 0x400000, 0x480000, 0x800000
WS_BYTES = PAY + E * 32
NFRAG = 34
NLOG2E = struct.unpack('<I', struct.pack('<f', -1.4426950408889634))[0]
MAIN = 'gather_scatter__edge_featured_mpnn_egc__graph_kernel'

L = []
def I(s):
    for ln in s.strip('\n').split('\n'):
        ln = ln.strip()
        if ln:
            L.append(ln if ln.endswith(':') else '    ' + ln)
def r(a, n): return f'v[{a}:{a+n-1}]'
def sr(a, n): return f's[{a}:{a+n-1}]'
def srd(d, base, nbytes):
    I(f'''s_mov_b32 s{d}, s{base}
    s_mov_b32 s{d+1}, s{base+1}
    s_mov_b32 s{d+2}, {nbytes}
    s_mov_b32 s{d+3}, 0x20000''')
def dpp_scan(v):
    for ctl in ('row_shr:1', 'row_shr:2', 'row_shr:4', 'row_shr:8'):
        I(f's_nop 1\nv_add_u32_dpp v{v}, v{v}, v{v} {ctl} row_mask:0xf bank_mask:0xf bound_ctrl:1')
    I(f's_nop 1\nv_add_u32_dpp v{v}, v{v}, v{v} row_bcast:15 row_mask:0xa bank_mask:0xf')
    I(f's_nop 1\nv_add_u32_dpp v{v}, v{v}, v{v} row_bcast:31 row_mask:0xc bank_mask:0xf')
def header(name):
    I(f'.globl {name}\n.p2align 8\n.type {name},@function\n{name}:')

K1_HIST, K1_BASE, K1_SORT, K1_SORTE, K1_EIMG = 0, 1024, 2048, 14848, 27648
K1_LDS = (K1_EIMG + CH * 32) if MOVE else K1_SORTE

def kstamp(i):
    if OPT['STAMP']: I(f's_memrealtime s[{60+2*i}:{61+2*i}]\ns_waitcnt lgkmcnt(0)')
def dbgdump(n, last):
    I(f'''s_waitcnt vmcnt(0)
    s_memrealtime s[{60+2*last}:{61+2*last}]
    s_load_dwordx2 s[52:53], s[0:1], 64
    s_mov_b64 exec, 1
    s_waitcnt lgkmcnt(0)
    s_mov_b32 s54, 256
    s_mov_b32 s55, 0x20000
    v_mov_b32 v1, 0''')
    for i in range(n):
        I(f'''v_mov_b32 v8, s{60+2*i}
        buffer_atomic_umax v8, v1, s[52:55], 0 offen offset:{4*i}
        v_not_b32 v9, s{60+2*i}
        buffer_atomic_umax v9, v1, s[52:55], 0 offen offset:{32+4*i}
        s_waitcnt vmcnt(0)''')
def kdump():
    if OPT['DBG']:
        dbgdump(6, 5); return
    if OPT['STAMP']:
        I(f'''; K1STAMP
        s_waitcnt vmcnt(0)
        s_memrealtime s[70:71]
        s_mov_b64 exec, 1
        s_waitcnt lgkmcnt(0)
        s_add_u32 s52, s24, 0x8100000
        s_addc_u32 s53, s25, 0
        s_mov_b32 s54, 0x100000
        s_mov_b32 s55, 0x20000
        s_lshl_b32 s56, s2, 3
        s_add_u32 s56, s56, s28
        s_lshl_b32 s56, s56, 5
        v_mov_b32 v1, 0''')
        for i in range(8): I(f'v_mov_b32 v{8+i}, s{60+2*min(i,5)}')
        I('''buffer_store_dwordx4 v[8:11], v1, s[52:55], s56 offen
        buffer_store_dwordx4 v[12:15], v1, s[52:55], s56 offen offset:16''')
def gen_part():
    header('part_kernel')
    if OPT['AMP']: I('s_memrealtime s[74:75]')
    kstamp(0)
    D, S, B4, RK, RC, EL = 8, 16, 24, 32, 40, 48
    I(f'''
    s_cmp_ge_u32 s2, {NCH+5}
    s_cbranch_scc1 P_END
    s_load_dwordx4 s[4:7], s[0:1], 16
    s_load_dwordx2 s[24:25], s[0:1], 72
    s_load_dwordx2 s[26:27], s[0:1], 8
    v_lshrrev_b32 v3, 6, v0
    v_lshlrev_b32 v1, 2, v0
    v_readfirstlane_b32 s28, v3
    s_cmp_ge_u32 s2, {NCH}
    s_cbranch_scc1 P_PREP
    v_mov_b32 v2, 0
    ds_write_b32 v1, v2
    v_lshlrev_b32 v4, 4, v0
    v_lshlrev_b32 v5, 3, v0
    v_add_u32 v5, 8192, v5
    v_add_u32 v6, 12288, v1
    s_mul_i32 s29, s2, {CH*4}
    s_waitcnt lgkmcnt(0)
    ''')
    srd(8, 4, E * 4); srd(12, 6, E * 4); srd(16, 24, WS_BYTES)
    if OPT['AMP']:
        I(f'''s_cmp_lg_u32 s2, 0
        s_cbranch_scc1 P_NOAMP
        s_cmp_lg_u32 s28, 0
        s_cbranch_scc1 P_NOAMP
        v_mov_b32 v80, s74
        v_mov_b32 v81, {WF + 0x10000}
        buffer_store_dword v80, v81, s[16:19], 0 offen
P_NOAMP:''')
    ax = OPT['K1_LD_AUX']
    I(f'''
    s_cmp_ge_u32 s28, 2
    s_cbranch_scc1 P_NO6A
    buffer_load_dword v{D+6}, v6, s[12:15], s29 offen {ax}
    buffer_load_dword v{S+6}, v6, s[8:11], s29 offen {ax}
P_NO6A:
    buffer_load_dwordx4 {r(D,4)}, v4, s[12:15], s29 offen {ax}
    buffer_load_dwordx2 {r(D+4,2)}, v5, s[12:15], s29 offen {ax}
    buffer_load_dwordx4 {r(S,4)}, v4, s[8:11], s29 offen {ax}
    buffer_load_dwordx2 {r(S+4,2)}, v5, s[8:11], s29 offen {ax}
    ''')
    if MOVE:
        srd(20, 26, E * 32)
        I(f'''
        v_and_b32 v7, 63, v0
        v_lshlrev_b32 v7, 4, v7
        s_mul_i32 s30, s2, {CH*32}
        s_lshl_b32 s31, s28, 10
        s_add_u32 s30, s30, s31
        s_add_u32 s31, s31, {K1_EIMG}
        ''')
        for n in range(13):
            if n == 12:
                I('s_cmp_ge_u32 s28, 4\ns_cbranch_scc1 P_NO13')
            I(f'''s_mov_b32 m0, s31
            s_add_u32 s31, s31, 8192
            buffer_load_dwordx4 v7, s[20:23], s30 offen {ax} lds
            s_add_u32 s30, s30, 8192''')
        I('P_NO13:')
    sh = 14
    I(f'''
    v_lshlrev_b32 v56, {2+sh}, v0
    v_lshlrev_b32 v57, {1+sh}, v0
    v_add_u32 v57, {2048 << sh}, v57
    v_lshlrev_b32 v58, {sh}, v0
    v_add_u32 v58, {3072 << sh}, v58
    v_mov_b32 v59, 1
    s_mov_b32 s32, {-BN & 0xffffffff}
    s_mov_b32 s33, {1 << sh}
    s_mov_b32 s34, {2 << sh}
    s_mov_b32 s35, {3 << sh}
    s_barrier
    ''')
    kstamp(1)
    I(f's_waitcnt vmcnt({12 if MOVE else 0})')
    kstamp(2)
    def slot(k):
        eb = 56 if k < 4 else (57 if k < 6 else 58)
        kk = k if k < 4 else (k - 4 if k < 6 else 0)
        ks = '0' if kk == 0 else f's{32+kk}'
        I(f'''v_mul_u32_u24 v{B4+k}, 21400, v{D+k}
        v_lshrrev_b32 v{B4+k}, 20, v{B4+k}
        v_mad_i32_i24 v{D+k}, v{B4+k}, s32, v{D+k}
        v_lshlrev_b32 v{B4+k}, 2, v{B4+k}
        ds_add_rtn_u32 v{RK+k}, v{B4+k}, v59
        v_lshl_or_b32 v{RC+k}, v{D+k}, 26, v{S+k}
        v_add3_u32 v{RC+k}, v{RC+k}, v{eb}, {ks}''')
        if MOVE:
            I(f'''v_bfe_u32 v{EL+k}, v{RC+k}, 14, 12
            v_lshlrev_b32 v{EL+k}, 5, v{EL+k}''')
    for k in range(6): slot(k)
    I('s_cmp_ge_u32 s28, 2\ns_cbranch_scc1 P_NO6B')
    slot(6)
    I(f'''
P_NO6B:
    v_and_b32 v60, 63, v0
    v_lshlrev_b32 v60, 4, v60
    s_waitcnt lgkmcnt(0)
    s_barrier
    ds_read_b128 v[64:67], v60
    s_waitcnt lgkmcnt(0)
    v_add_u32 v69, v64, v65
    v_add_u32 v70, v69, v66
    v_add_u32 v71, v70, v67
    v_mov_b32 v72, v71
    ''')
    dpp_scan(72)
    I(f'''
    v_sub_u32 v68, v72, v71
    v_add_u32 v71, v68, v70
    v_add_u32 v70, v68, v69
    v_add_u32 v69, v68, v64
    ds_write_b128 v60, v[68:71] offset:{K1_BASE}
    s_waitcnt lgkmcnt(0)
    ''')
    for k in range(6):
        I(f'ds_read_b32 v{D+k}, v{B4+k} offset:{K1_BASE}')
    I(f'''
    s_cmp_lt_u32 s28, 4
    s_cbranch_scc1 P_NOOFF
    v_add_u32 v61, -1024, v1
    ds_read_b32 v62, v61
    ds_read_b32 v63, v61 offset:{K1_BASE}
    v_lshlrev_b32 v61, 8, v61
    s_lshl_b32 s36, s2, 2
    s_add_u32 s36, s36, {OFFS}
    s_waitcnt lgkmcnt(0)
    v_lshl_or_b32 v62, v62, 16, v63
    buffer_store_dword v62, v61, s[16:19], s36 offen {OPT['K1_ST_AUX']}
P_NOOFF:
    s_cmp_ge_u32 s28, 2
    s_cbranch_scc1 P_NO6C
    ds_read_b32 v{D+6}, v{B4+6} offset:{K1_BASE}
    s_waitcnt lgkmcnt(0)
    v_add_lshl_u32 v{RK+6}, v{RK+6}, v{D+6}, 2
    ds_write_b32 v{RK+6}, v{RC+6} offset:{K1_SORT}
    ''')
    if MOVE: I(f'ds_write_b32 v{RK+6}, v{EL+6} offset:{K1_SORTE}')
    I('P_NO6C:\ns_waitcnt lgkmcnt(0)')
    for k in range(6):
        I(f'''v_add_lshl_u32 v{RK+k}, v{RK+k}, v{D+k}, 2
        ds_write_b32 v{RK+k}, v{RC+k} offset:{K1_SORT}''')
        if MOVE: I(f'ds_write_b32 v{RK+k}, v{EL+k} offset:{K1_SORTE}')
    I(f'''
    s_waitcnt lgkmcnt(0)
    ''')
    kstamp(3)
    I(f'''
    {"s_waitcnt vmcnt(0)" if MOVE else ""}
    s_barrier
    ''')
    kstamp(4)
    I(f'''
    ds_read_b128 v[8:11], v4 offset:{K1_SORT}
    v_cmp_gt_u32 vcc, 288, v0
    s_and_saveexec_b64 s[38:39], vcc
    ds_read_b128 v[12:15], v4 offset:{K1_SORT+8192}
    s_mov_b64 exec, s[38:39]
    ''')
    if MOVE:
        I(f'''v_lshrrev_b32 v84, 1, v0
        v_lshlrev_b32 v84, 2, v84
        v_and_b32 v85, 1, v0
        v_lshlrev_b32 v85, 4, v85
        v_add_u32 v85, {K1_EIMG}, v85''')
        for n in range(13):
            I(f'ds_read_b32 v{16+n}, v84 offset:{K1_SORTE + n*1024}')
    I(f'''
    s_waitcnt lgkmcnt({13 if MOVE else 0})
    buffer_store_dwordx4 v[8:11], v4, s[16:19], s29 offen {OPT['K1_ST_AUX']}
    s_add_u32 s36, s29, 8192
    s_and_saveexec_b64 s[38:39], vcc
    s_cbranch_execz P_NOST2
    buffer_store_dwordx4 v[12:15], v4, s[16:19], s36 offen {OPT['K1_ST_AUX']}
P_NOST2:
    s_mov_b64 exec, s[38:39]
    ''')
    if MOVE:
        I(f'''s_mul_i32 s30, s2, {CH*32}
        s_add_u32 s30, s30, {PAY}
        s_waitcnt lgkmcnt(0)''')
        for n in range(12):
            I(f'v_add_u32 v{16+n}, v{16+n}, v85\nds_read_b128 {r(32+4*n,4)}, v{16+n}')
        for n in range(12):
            I(f'''s_waitcnt lgkmcnt({min(15, 11-n)})
            buffer_store_dwordx4 {r(32+4*n,4)}, v4, s[16:19], s30 offen {OPT['PAY_ST_AUX']}
            s_add_u32 s30, s30, 8192''')
        I(f'''s_cmp_ge_u32 s28, 4
        s_cbranch_scc1 P_FIN
        v_add_u32 v28, v28, v85
        ds_read_b128 v[8:11], v28
        s_waitcnt lgkmcnt(0)
        buffer_store_dwordx4 v[8:11], v4, s[16:19], s30 offen {OPT['PAY_ST_AUX']}''')
    I('P_FIN:')
    for _ in range(OPT['K1SLEEP']): I('s_sleep 64')
    kdump()
    I('s_endpgm')
    I(f'''
P_PREP:
    s_load_dwordx4 s[8:11], s[0:1], 32
    s_load_dwordx2 s[12:13], s[0:1], 48
    s_sub_u32 s30, s2, {NCH}
    s_lshl_b32 s30, s30, 3
    s_add_u32 s30, s30, s28
    s_cmp_ge_u32 s30, {NFRAG}
    s_cbranch_scc1 P_END
    s_waitcnt lgkmcnt(0)
    s_mov_b32 s20, s12
    s_mov_b32 s21, s13
    s_mov_b32 s22, {144*128}
    s_mov_b32 s23, 0x20000
    s_mov_b32 s33, {NLOG2E}
    s_mov_b32 s31, s30
    s_mov_b32 s32, 64
    s_cmp_lt_u32 s30, 8
    s_cbranch_scc1 P_GO
    s_cmp_lt_u32 s30, 16
    s_cbranch_scc0 P_C1
    s_sub_u32 s31, s30, 8
    s_mov_b32 s32, 0
    s_mov_b32 s33, 1.0
    s_mov_b32 s20, s10
    s_mov_b32 s21, s11
    s_mov_b32 s22, {64*128}
    s_branch P_GO
P_C1:
    s_cmp_lt_u32 s30, 18
    s_cbranch_scc0 P_C2
    s_sub_u32 s31, s30, 16
    s_lshl_b32 s31, s31, 2
    s_mov_b32 s32, 128
    s_branch P_GO
P_C2:
    s_mov_b32 s33, 1.0
    s_mov_b32 s32, 0
    s_sub_u32 s31, s30, 18
    s_cmp_lt_u32 s30, 26
    s_cbranch_scc1 P_GO
    s_sub_u32 s31, s30, 26
    s_mov_b32 s20, s8
    s_mov_b32 s21, s9
    s_mov_b32 s22, {64*128}
P_GO:
    s_and_b32 s34, s31, 3
    s_lshl_b32 s34, s34, 4
    s_add_u32 s34, s34, s32
    s_lshl_b32 s34, s34, 7
    s_lshr_b32 s35, s31, 2
    s_lshl_b32 s35, s35, 6
    s_add_u32 s34, s34, s35
    v_and_b32 v1, 31, v0
    v_lshlrev_b32 v1, 1, v1
    v_bfe_u32 v2, v0, 5, 1
    v_lshl_or_b32 v1, v2, 10, v1
    ''')
    for t in range(8):
        I(f'buffer_load_ushort v{8+t}, v1, s[20:23], s34 offen offset:{t*128}')
    srd(16, 24, WS_BYTES)
    I(f'''
    v_and_b32 v3, 63, v0
    v_lshlrev_b32 v3, 4, v3
    s_lshl_b32 s36, s30, 10
    s_add_u32 s36, s36, {WF}
    s_waitcnt vmcnt(0)
    ''')
    for t in range(8):
        I(f'v_lshlrev_b32 v{8+t}, 16, v{8+t}\nv_mul_f32 v{8+t}, s33, v{8+t}')
    for t in range(4):
        I(f'v_cvt_pk_bf16_f32 v{16+t}, v{8+2*t}, v{9+2*t}')
    I('''buffer_store_dwordx4 v[16:19], v3, s[16:19], s36 offen
P_END:
    s_endpgm''')

CNT, FLAG, BASE = 0, 256, 512
XS = 1024
ES = XS + 65536
LX = ES + 16384
LE = LX + 16384
XAT = LE + 16384
AGG = XAT + 14336
M_LDS = AGG + 2*14336
ROWS = XS + 36864
XSENT, ESENT = 0x1FFF80, 0x7FFFFF00
CAP = 4096
NSLOT = 20

WB, WV, WC = 4, 36, 68
XA = 76
Z = 108
H = 140
AF = 156
ACC = 176
IDX = 192
vLX, vLE, vKX0, vKX1, vKE = 197, 198, 199, 200, 201
vRA, vRE = 202, 206
vSCH, vLT = 207, 208
T0, T1, T2 = 209, 210, 211
vC, vEB = 212, 213
vONE = 214
vLA = 215
vINV, vFC = 218, 219
T4 = 216
AF2 = 220
NV = 236 if OPT['LOOP'] == 2 else 220
vTR = NV
pREC, pRK, pAD = 76, 96, 116
pD, pA, pW = 136, 152, 168
sX, sE, sWS, sOUT = 8, 12, 16, 20
sW, sT, sTW, sNP, sNC, sNN, sD, sM0X, sM0E, sMASK, sTMP, sTMP2, sMODE, sSEG, sG0 = range(28, 43)
sONE = 44
sSAVE = 46
sOFP = 48
sB = 50
sXR = 51

def thr(s): return 8 * (s // 4) + s % 4

def mf(d, a, b, c): return f'v_mfma_f32_32x32x16_bf16 {r(d,16)}, {r(a,4)}, {r(b,4)}, {c}'
def zm(ft, af=None):
    if af is None: af = AF
    out = [mf(Z+16*ft, AF+16, WC+4*ft, r(XA+16*ft, 16))]
    for k in range(4): out.append(mf(Z+16*ft, af+4*k, WB+16*ft+4*k, r(Z+16*ft, 16)) if not OPT['NOZ'] else 's_nop 1')
    return out
def hm(ft, af=None):
    if af is None: af = AF
    out = [mf(H, af, WV+16*ft, '0')]
    for k in range(1, 4): out.append(mf(H, af+4*k, WV+16*ft+4*k, r(H, 16)))
    if OPT['NOHV']: out = ['s_nop 1'] * 4
    return out
def exps(ft): return [f'v_exp_f32 v{Z+16*ft+i}, v{Z+16*ft+i}' if not OPT['NOTR'] else 's_nop 1' for i in range(16)]
def rcps(ft): return [f'v_rcp_f32 v{Z+16*ft+i}, v{Z+16*ft+i}' if not OPT['NOTR'] else 's_nop 1' for i in range(16)]
def pkadd(ft):
    if not OPT['PKA']: return [f'v_add_f32 v{Z+16*ft+i}, 1.0, v{Z+16*ft+i}' for i in range(16)]
    return [f'v_pk_add_f32 {r(Z+16*ft+2*i,2)}, {r(Z+16*ft+2*i,2)}, {sr(sONE,2)}' for i in range(8)]
def pkf(ft):
    if not OPT['PKF']: return [f'v_fmac_f32 v{ACC+8*ft+2*(i//4)+i%2}, v{Z+16*ft+i}, v{H+i}' for i in range(16)]
    return [f'v_pk_fma_f32 {r(ACC+8*ft+2*(i//2),2)}, {r(Z+16*ft+2*i,2)}, {r(H+2*i,2)}, {r(ACC+8*ft+2*(i//2),2)}' for i in range(8)]
def weave(main, ins):
    out = []
    for i, m in enumerate(main):
        out += ins.get(i, [])
        out.append(m)
    out += ins.get(len(main), [])
    return out

def lds_init():
    I(f'''v_lshlrev_b32 v{T0}, 4, v0
    v_add_u32 v{T0}, {LX}, v{T0}
    v_mov_b32 v{AF}, {XSENT}
    v_mov_b32 v{AF+1}, {XSENT}
    v_mov_b32 v{AF+2}, {XSENT}
    v_mov_b32 v{AF+3}, {XSENT}
    v_mov_b32 v{AF+4}, {ESENT}
    v_mov_b32 v{AF+5}, {ESENT}
    v_mov_b32 v{AF+6}, {ESENT}
    v_mov_b32 v{AF+7}, {ESENT}
    v_and_b32 v{T1}, 127, v0
    v_lshlrev_b32 v{T1}, 2, v{T1}
    v_mov_b32 v{T2}, 0
    ds_write_b128 v{T0}, {r(AF,4)}
    ds_write_b128 v{T0}, {r(AF,4)} offset:8192
    ds_write_b128 v{T0}, {r(AF+4,4)} offset:16384
    ds_write_b128 v{T0}, {r(AF+4,4)} offset:24576
    ds_write_b32 v{T1}, v{T2}''')

def pEO(s): return AF2 + s if s < 16 else 184 + s - 16
def sVM(s): return 76 + 2 * (s % 12)
def validate(lo, hi):
    for s in range(lo, hi): I(f'v_cmp_lt_i32 {sr(sVM(s),2)}, {thr(s)}, v{vC}')
def pass_a(lo, hi, estride, mid=None):
    for s in range(lo, hi):
        I(f'v_and_b32_sdwa v{pAD+s}, v{vFC}, v{pREC+s} dst_sel:DWORD dst_unused:UNUSED_PAD src0_sel:DWORD src1_sel:BYTE_3')
    for s in range(lo, hi):
        I(f'''s_mov_b64 exec, {sr(sVM(s),2)}
        ds_add_rtn_u32 v{pRK+s}, v{pAD+s}, v{vONE}''')
    I('s_mov_b64 exec, -1')
    if mid: mid()
    for s in range(lo, hi):
        if MOVE:
            I(f'v_add_u32 v{pEO(s)}, {estride(s)}, v{vEB}')
        else:
            I(f'''v_bfe_u32 v{pEO(s)}, v{pREC+s}, 14, 12
            v_lshl_add_u32 v{pEO(s)}, v{pEO(s)}, 5, v{vEB}''')
        I(f'v_alignbit_b32 v{pREC+s}, v{pREC+s}, v{pREC+s}, 25')

def scan():
    I(f'''v_lshlrev_b32 v{T0}, 2, v2
    ds_read_b32 v{T1}, v{T0}
    v_mov_b32 v{T2}, {FLAG}
    ds_read_b32 v{IDX}, v{T2}
    s_waitcnt lgkmcnt(0)
    v_add_u32 v{T1}, 7, v{T1}
    v_and_b32 v{T1}, -8, v{T1}
    v_readfirstlane_b32 s{sTMP2}, v{IDX}
    v_mov_b32 v{T2}, v{T1}''')
    dpp_scan(T2)
    I(f'''v_sub_u32 v{T1}, v{T2}, v{T1}
    v_readlane_b32 s{sTMP}, v{T2}, 63
    v_add_u32 v{T1}, {LX//4}, v{T1}
    ds_write_b32 v{T0}, v{T1} offset:{BASE}''')
def pass_b1(lo, hi):
    for s in range(lo, hi):
        I(f'''s_mov_b64 exec, {sr(sVM(s),2)}
        ds_read_b32 v{pAD+s}, v{pAD+s} offset:{BASE}''')
    I('s_mov_b64 exec, -1')
def pass_b2(lo, hi):
    for s in range(lo, hi): I(f'v_add_lshl_u32 v{pRK+s}, v{pRK+s}, v{pAD+s}, 2')
    for s in range(lo, hi):
        I(f'''s_mov_b64 exec, {sr(sVM(s),2)}
        ds_write2st64_b32 v{pRK+s}, v{pREC+s}, v{pEO(s)} offset1:64''')
    I('s_mov_b64 exec, -1')

def dma_tile(ix, xm0, em0, xoff, eoff):
    g = []
    for q in range(4):
        g.append([f's_add_u32 m0, s{xm0}, {xoff + q*1024}',
                  f'v_and_or_b32 v{ix+q}, v{ix+q}, s{sMASK}, v{vKX0 if q % 2 == 0 else vKX1}',
                  f'buffer_load_dwordx4 v{ix+q}, {sr(sX,4)}, 0 offen lds'])
    g.append([f's_add_u32 m0, s{em0}, {eoff}',
              f'v_add_u32 v{ix+4}, v{ix+4}, v{vKE}',
              f'buffer_load_dwordx4 v{ix+4}, {sr(sE,4)}, 0 offen {OPT["E_AUX"]} lds'])
    return g

def flush_j(j, sn):
    I(f'''v_add_f32 v{T1}, v{ACC+2*j}, v{ACC+2*j+1}
    v_add_f32 v{T2}, v{ACC+8+2*j}, v{ACC+8+2*j+1}
    s_bfe_u32 s{sTMP}, s{sn}, {(6 << 16) | (8*j)}
    s_lshl_b32 s{sTMP}, s{sTMP}, 9
    v_permlane32_swap_b32 v{T1}, v{T2}
    v_add_u32 v{T0}, s{sTMP}, v{vLA}
    v_mov_b64 {r(ACC+2*j,2)}, 0
    v_add_f32 v{T1}, v{T1}, v{T2}
    v_mov_b64 {r(ACC+8+2*j,2)}, 0
    v_cvt_f64_f32 {r(T4,2)}, v{T1}
    ds_add_f64 v{T0}, {r(T4,2)}''')
def xa_j(j, sn):
    I(f'''s_bfe_u32 s{sTMP}, s{sn}, {(6 << 16) | (8*j)}
    s_lshl_b32 s{sTMP}, s{sTMP}, 8
    v_add_u32 v{T0}, s{sTMP}, v{vLT}
    ds_read2_b32 {r(XA+4*j,2)}, v{T0}
    ds_read2_b32 {r(XA+4*j+2,2)}, v{T0}
    ds_read2_b32 {r(XA+16+4*j,2)}, v{T0} offset0:32 offset1:32
    ds_read2_b32 {r(XA+16+4*j+2,2)}, v{T0} offset0:32 offset1:32''')

def TR(k):
    if not OPT['TRACE']: return ''
    return f'''s_memtime s[76:77]
    s_memrealtime s[78:79]
    s_waitcnt lgkmcnt(0)
    s_mov_b32 m0, s{sT}
    s_nop 0
    v_writelane_b32 v{vTR+k}, s76, m0
    s_add_u32 m0, m0, 32
    s_nop 0
    v_writelane_b32 v{vTR+k}, s78, m0'''
def fstamp(i):
    if OPT['STAMP'] and OPT['FINE']: I(f's_memrealtime s[{60+2*i}:{61+2*i}]\ns_waitcnt lgkmcnt(0)')
def stamp(i):
    if OPT['AMP'] == 10 + i: I('s_memrealtime s[72:73]\ns_waitcnt lgkmcnt(0)')
    if OPT['FINE'] and i not in (0,): return
    if OPT['STAMP'] and OPT['CYC'] == 2:
        if i in (1, 2): return
        if i in (4, 5): I(f's_memtime s[{60+2*(i-3)}:{61+2*(i-3)}]')
        I(f's_memrealtime s[{60+2*i}:{61+2*i}]\ns_waitcnt lgkmcnt(0)')
    elif OPT['STAMP']:
        I(f'{"s_memtime" if OPT["CYC"] and i in (4,5) else "s_memrealtime"} s[{60+2*i}:{61+2*i}]\ns_waitcnt lgkmcnt(0)')

def frag_lds(f):
    if f < 18: return XS + (f // 4) * 8192 + 4096 + (f % 4) * 1024
    g = f - 18
    return XS + (g // 4) * 8192 + (g % 4) * 1024
def row_lds(k): return XS + (4 + k // 4) * 8192 + (k % 4) * 1024

def bvc():
    return f'''s_add_u32 m0, s{sNP}, {XS+4096}
    s_add_u32 s{sTMP}, s{sNC}, 8192
    buffer_load_dwordx4 v{IDX+1}, {sr(sWS,4)}, s{sNC} offen lds
    s_add_u32 m0, s{sNP}, {XS+4096+16384}
    s_cmp_ge_u32 s{sW}, 2
    buffer_load_dwordx4 v{IDX+1}, {sr(sWS,4)}, s{sTMP} offen lds
    s_cbranch_scc1 M_NOW4
    s_add_u32 m0, s{sNP}, {XS+4096+32768}
    s_add_u32 s{sTMP}, s{sNC}, {16*1024}
    buffer_load_dwordx4 v{IDX+1}, {sr(sWS,4)}, s{sTMP} offen lds
M_NOW4:'''
def gen_main():
    header(MAIN)
    if OPT['AMP']: I('s_memrealtime s[74:75]')
    stamp(0)
    I(f"""
    s_cmp_ge_u32 s2, {NB}
    s_cbranch_scc1 M_END
    s_load_dwordx2 s[26:27], s[0:1], 72
    s_load_dwordx4 s[4:7], s[0:1], 0
    s_load_dwordx2 s[24:25], s[0:1], 56
    v_lshrrev_b32 v1, 6, v0
    v_and_b32 v2, 63, v0
    v_readfirstlane_b32 s{sW}, v1
    s_and_b32 s{sB}, s2, 7
    s_lshl_b32 s{sB}, s{sB}, 5
    s_lshr_b32 s{sTMP}, s2, 3
    s_add_u32 s{sB}, s{sB}, s{sTMP}
    v_lshrrev_b32 v3, 1, v0
    v_lshlrev_b32 v{IDX}, 2, v3
    v_lshlrev_b32 v{IDX+1}, 4, v2
    s_lshl_b32 s{sD}, s{sB}, 10
    s_add_u32 s{sD}, s{sD}, {OFFS}
    s_mov_b32 s{sWS+2}, {WS_BYTES}
    s_mov_b32 s{sWS+3}, 0x20000
    s_lshr_b32 s{sTMP}, s{sW}, 2
    s_lshl_b32 s{sTMP}, s{sTMP}, 13
    s_and_b32 s{sTMP2}, s{sW}, 3
    s_lshl_b32 s{sTMP2}, s{sTMP2}, 10
    s_add_u32 s{sG0}, s{sTMP}, s{sTMP2}
    s_lshl_b32 s{sTMP2}, s{sW}, 10
    s_add_u32 s{sTMP2}, s{sTMP2}, {WF}
    s_waitcnt lgkmcnt(0)
    s_mov_b32 s{sWS}, s26
    s_mov_b32 s{sWS+1}, s27
    s_add_u32 m0, s{sG0}, {XS}
    buffer_load_dword v{vC}, v{IDX}, {sr(sWS,4)}, s{sD} offen
    s_add_u32 s{sTMP}, s{sTMP2}, {18*1024}
    buffer_load_dwordx4 v{IDX+1}, {sr(sWS,4)}, s{sTMP} offen lds
    s_add_u32 m0, s{sG0}, {XS+16384}
    s_add_u32 s{sTMP}, s{sTMP2}, {26*1024}
    buffer_load_dwordx4 v{IDX+1}, {sr(sWS,4)}, s{sTMP} offen lds
    s_mov_b32 s{sNP}, s{sG0}
    s_mov_b32 s{sNC}, s{sTMP2}
    {'' if OPT['WLATE'] else bvc()}
    v_lshrrev_b32 v{IDX+2}, 4, v2
    s_lshl_b32 s{sTMP}, s{sW}, 2
    v_add_u32 v{IDX+2}, s{sTMP}, v{IDX+2}
    v_xor_b32 v{IDX+2}, v{IDX+2}, v2
    v_and_b32 v{IDX+2}, 7, v{IDX+2}
    v_lshlrev_b32 v{IDX+2}, 4, v{IDX+2}
    v_lshrrev_b32 v{IDX+3}, 3, v2
    v_lshl_or_b32 v{IDX+2}, v{IDX+3}, 7, v{IDX+2}
    """)
    srd(sX, 4, N * 128)
    I(f"""
    s_cmp_ge_u32 s{sW}, 7
    s_cbranch_scc1 M_NOROW
    s_lshl_b32 s{sTMP}, s{sW}, 10
    s_mul_i32 s{sTMP2}, s{sB}, {BN*128}
    s_add_u32 m0, s{sG0}, {XS+32768}
    s_add_u32 s{sTMP2}, s{sTMP2}, s{sTMP}
    buffer_load_dwordx4 v{IDX+2}, {sr(sX,4)}, s{sTMP2} offen lds
M_NOROW:
    s_add_u32 s{sOFP}, s26, s{sD}
    s_addc_u32 s{sOFP+1}, s27, 0
    v_cmp_gt_u32 vcc, {NCH}, v3
    v_mul_u32_u24 v{T1}, {CH}, v3
    v_and_b32 v{T2}, 1, v0
    v_lshlrev_b32 v{T2}, 2, v{T2}
    s_lshr_b32 s{sTMP}, s2, 3
    s_mul_i32 s{sTMP}, s{sTMP}, {391*128}
    v_min_u32 v1, 390, v0
    v_lshlrev_b32 v1, 7, v1
    s_mov_b32 s{sNN}, s{sTMP}
    s_waitcnt vmcnt({2 if OPT['WLATE'] else 4})
    v_cndmask_b32 v{vC}, 0, v{vC}, vcc
    v_and_b32 v{T0}, 0xffff, v{vC}
    v_lshrrev_b32 v{vC}, 16, v{vC}
    v_add3_u32 v{T0}, v{T0}, v{T1}, v{T2}
    v_cmp_lt_u32 {sr(sSAVE,2)}, {2*NSLOT}, v{vC}
    v_sub_u32 v{vC}, v{vC}, v{T2}
    v_lshlrev_b32 v{vEB}, 5, v{T0 if MOVE else T1}
    v_lshlrev_b32 v{T0}, 2, v{T0}
    v_cmp_lt_i32 vcc, 16, v{vC}
    v_cmp_lt_i32 {sr(52,2)}, 24, v{vC}
    buffer_load_dwordx4 {r(pREC,4)}, v{T0}, {sr(sWS,4)}, 0 offen
    buffer_load_dwordx4 {r(pREC+4,4)}, v{T0}, {sr(sWS,4)}, 0 offen offset:32
    s_mov_b32 s{sXR}, 0
    s_cmp_eq_u64 {sr(52,2)}, 0
    s_cbranch_scc1 M_RL3
    s_mov_b32 s{sXR}, 1
    buffer_load_dwordx4 {r(pREC+12,4)}, v{T0}, {sr(sWS,4)}, 0 offen offset:96
    buffer_load_dwordx4 {r(pREC+16,4)}, v{T0}, {sr(sWS,4)}, 0 offen offset:128
M_RL3:
    s_or_b64 vcc, vcc, 1
    s_mov_b64 exec, vcc
    buffer_load_dwordx4 {r(pREC+8,4)}, v{T0}, {sr(sWS,4)}, 0 offen offset:64
    s_mov_b64 exec, -1
    """)
    stamp(1)
    lds_init()
    if MOVE:
        I(f"""s_add_u32 s{sE}, s26, {PAY}
        s_addc_u32 s{sE+1}, s27, 0
        s_mov_b32 s{sE+2}, {E*32}
        s_mov_b32 s{sE+3}, 0x20000""")
    else:
        srd(sE, 6, E * 32)
    srd(sOUT, 24, N * 128)
    I(f"""
    v_lshlrev_b32 v{T0}, 4, v2
    s_lshr_b32 s{sTMP}, s{sW}, 2
    s_lshl_b32 s{sTMP}, s{sTMP}, 1
    s_and_b32 s{sTMP2}, s{sW}, 1
    s_add_u32 s{sTMP}, s{sTMP}, s{sTMP2}
    s_lshl_b32 s{sTMP}, s{sTMP}, 13
    s_add_u32 s{sTMP}, s{sTMP}, {XS}
    v_add_u32 v{IDX+2}, s{sTMP}, v{T0}
    v_and_b32 v{T1}, 31, v2
    v_lshlrev_b32 v{vLT}, 2, v{T1}
    v_add_u32 v{vLT}, {XAT}, v{vLT}
    v_lshrrev_b32 v{T2}, 5, v2
    v_bfe_u32 v{IDX}, v2, 1, 3
    v_xor_b32 v{IDX}, v{IDX}, v{T2}
    s_bfe_u32 s{sG0}, s{sW}, 0x10001
    s_lshl_b32 s{sTMP2}, s{sG0}, 13
    s_add_u32 s{sTMP}, s{sTMP2}, {row_lds(0)}
    v_lshlrev_b32 v{T1}, 7, v{T1}
    v_add_u32 v{T1}, s{sTMP}, v{T1}
    s_and_b32 s{sD}, s{sW}, 1
    s_lshl_b32 s{sD}, s{sD}, 7
    s_add_u32 s{sTMP2}, s{sTMP2}, s{sD}
    v_lshlrev_b32 v{T2}, 10, v{T2}
    v_add3_u32 v{T2}, v{T2}, v{vLT}, s{sTMP2}
    s_mov_b32 s{sD}, {NLOG2E}
    """)
    for s in range(4):
        I(f"""v_xor_b32 v{AF2+s}, {2*s}, v{IDX}
        v_lshl_add_u32 v{AF2+s}, v{AF2+s}, 4, v{T1}""")
    I(f"""
    v_mov_b32 v{vONE}, 1
    v_mov_b32 v{vFC}, 0xfc
    v_mov_b32 v{vINV}, v{T2}
    """)
    validate(0, 12)
    I('s_waitcnt vmcnt(3) lgkmcnt(0)\ns_barrier')
    if OPT['XPF'] == 2: I(f'buffer_load_dword v1, v1, {sr(sX,4)}, s{sNN} offen')
    for s in range(4):
        I(f'ds_read_b128 {r(pW+4*s,4)}, v{IDX+2} offset:{s*1024}\nds_read_b128 {r(pA+4*s,4)}, v{AF2+s}')
    for f in range(0 if OPT['WLATE'] else 18):
        I(f'ds_read_b128 {r(WB+4*f,4)}, v{IDX+1} offset:{frag_lds(f)}')
    I(f"""
    s_cmp_eq_u64 {sr(sSAVE,2)}, 0
    s_cbranch_scc1 M_NOFLAG
    v_mov_b32 v{T1}, {FLAG}
    ds_write_b32 v{T1}, v{vONE}
M_NOFLAG:
    s_mov_b32 s{sMASK}, {XSENT}
    s_mov_b32 s{sONE}, 1.0
    s_mov_b32 s{sONE+1}, 1.0
    s_mov_b32 s{sMODE}, 0
    s_lshl_b32 s{sM0X}, s{sW}, 13
    s_add_u32 s{sM0X}, s{sM0X}, {XS}
    s_lshl_b32 s{sM0E}, s{sW}, 11
    s_add_u32 s{sM0E}, s{sM0E}, {ES}
    s_waitcnt vmcnt({1 if OPT['XPF'] == 2 else 0}) lgkmcnt(0)
    """)
    stamp(2)
    fs = lambda s: thr(s) * 32
    fstamp(1)
    def mid():
        I(mf(pD, pA, pW, '0'))
        if OPT['WLATE']: I(bvc())
        if OPT['XPF'] == 1:
            I(f'buffer_load_dword v1, v1, {sr(sX,4)}, s{sNN} offen')
        for k in range(1, 4): I(mf(pD, pA+4*k, pW+4*k, r(pD, 16)))
    pass_a(0, 12, fs, mid)
    I(f's_cmp_ge_u32 s{sW}, 4\ns_cbranch_scc1 M_ADONE')
    for k in range(16):
        if k == 12: I(f's_cmp_lg_u32 s{sG0}, 0\ns_cbranch_scc1 M_ADONE')
        I(f'v_mul_f32 v{pD+k}, s{sD}, v{pD+k}\nds_write_b32 v{vINV}, v{pD+k} offset:{(8*(k//4)+k%4)*256}')
    I('M_ADONE:')
    fstamp(2)
    I(f's_cmp_eq_u32 s{sXR}, 0\ns_cbranch_scc0 M_RA\nM_RAR:')
    I('s_waitcnt lgkmcnt(0)\ns_barrier')
    fstamp(3)
    scan()
    fstamp(4)
    I(f"""
    s_cmp_gt_u32 s{sTMP}, {CAP}
    s_cbranch_scc1 M_SLOW
    s_cmp_lg_u32 s{sTMP2}, 0
    s_cbranch_scc1 M_SLOW
    s_cmp_eq_u32 s{sXR}, 0
    s_cbranch_scc0 M_RB
M_RBR:
    """)
    I(f'''
M_BATCH:
    ''')
    pass_b1(0, 12)
    I(f'''
    s_add_u32 s{sTMP}, s{sTMP}, 31
    s_lshr_b32 s{sTMP}, s{sTMP}, 5
    s_add_u32 s{sTW}, s{sTMP}, 7
    s_sub_u32 s{sTW}, s{sTW}, s{sW}
    s_lshr_b32 s{sTW}, s{sTW}, 3
    s_lshr_b32 s{sG0}, s{sTMP}, 3
    s_mul_i32 s{sG0}, s{sG0}, s{sW}
    s_and_b32 s{sTMP}, s{sTMP}, 7
    s_min_u32 s{sTMP}, s{sTMP}, s{sW}
    s_add_u32 s{sG0}, s{sG0}, s{sTMP}
    s_lshl_b32 s{sG0}, s{sG0}, 7
    s_add_u32 s{sG0}, s{sG0}, {LX}
    s_lshl_b32 s{sTMP2}, s{sTW}, 5
    v_lshrrev_b32 v{T0}, 4, v2
    v_mul_u32_u24 v{T0}, s{sTMP2}, v{T0}
    v_bfe_u32 v{T1}, v2, 3, 1
    v_lshl_add_u32 v{T0}, v{T1}, 4, v{T0}
    v_add_u32 v{vLX}, s{sG0}, v{T0}
    v_bfe_u32 v{T0}, v2, 3, 2
    v_mul_u32_u24 v{T0}, s{sTMP2}, v{T0}
    v_bfe_u32 v{T1}, v2, 2, 1
    v_lshl_add_u32 v{T0}, v{T1}, 4, v{T0}
    v_lshrrev_b32 v{T1}, 5, v2
    v_lshl_add_u32 v{T0}, v{T1}, 3, v{T0}
    v_bfe_u32 v{T1}, v2, 1, 1
    v_lshl_add_u32 v{T0}, v{T1}, 2, v{T0}
    v_add_u32 v{vLE}, s{sG0}, v{T0}
    s_sub_u32 s{sTMP}, s{sTW}, 1
    v_min_u32 v{T0}, s{sTMP}, v2
    v_lshlrev_b32 v{T0}, 5, v{T0}
    v_add_u32 v{T0}, s{sG0}, v{T0}
    v_add_u32 v{T1}, s{sTMP2}, v{T0}
    v_add_u32 v{T2}, s{sTMP2}, v{T1}
    v_add_u32 v{vSCH}, s{sTMP2}, v{T2}
    ''')
    I(f'''
    v_lshrrev_b32 v{vKE}, 4, v2
    v_xor_b32 v{vKE}, v{vKE}, v2
    v_and_b32 v{vKX0}, 7, v{vKE}
    v_lshlrev_b32 v{vKX0}, 4, v{vKX0}
    v_xor_b32 v{vKX1}, 64, v{vKX0}
    v_and_b32 v{vKE}, 1, v{vKE}
    v_lshlrev_b32 v{vKE}, 4, v{vKE}
    s_waitcnt lgkmcnt(0)''')
    pass_b2(0, 12)
    fstamp(5)
    I(f'''
    s_waitcnt vmcnt(0) lgkmcnt(0)
    s_barrier
    ''')
    stamp(3)
    if OPT['NOX']: I(f's_mov_b32 s{sX+2}, 0')
    if OPT['NOE']: I(f's_mov_b32 s{sE+2}, 0')
    I(f'''
    ds_read_b128 {r(Z,4)}, v{vLX}
    ds_read_b32 v{Z+4}, v{vLE} offset:16384
    ds_read_b128 {r(Z+16,4)}, v{vLX} offset:32
    ds_read_b32 v{Z+20}, v{vLE} offset:{16384+32}
    ds_read_b32 v{T0}, v{T0}
    ds_read_b32 v{T1}, v{T1}
    ds_read_b32 v{T2}, v{T2}
    ds_read_b32 v{vSCH}, v{vSCH}
    ds_read_b128 {r(IDX,4)}, v{vLX} offset:64
    ds_read_b32 v{IDX+4}, v{vLE} offset:{16384+64}
    s_cmp_eq_u32 s{sTW}, 0
    s_waitcnt lgkmcnt(8)
    s_cbranch_scc1 M_NOT0
    ''')
    for g in dma_tile(Z, sM0X, sM0E, 0, 0): I('\n'.join(g))
    I(f'''
M_NOT0:
    s_waitcnt lgkmcnt(0)
    v_bfe_u32 v{T0}, v{T0}, 1, 6
    v_bfe_u32 v{T1}, v{T1}, 1, 6
    v_bfe_u32 v{T2}, v{T2}, 1, 6
    v_bfe_u32 v{vSCH}, v{vSCH}, 1, 6
    v_lshl_or_b32 v{T0}, v{T1}, 8, v{T0}
    v_lshl_or_b32 v{T0}, v{T2}, 16, v{T0}
    v_lshl_or_b32 v{vSCH}, v{vSCH}, 24, v{T0}
    v_add_u32 v{vLX}, 96, v{vLX}
    v_add_u32 v{vLE}, {16384+96}, v{vLE}
    v_readfirstlane_b32 s{sNC}, v{vSCH}
    s_mov_b32 s{sT}, 1
    s_nop 2
    s_mov_b32 s{sNP}, s{sNC}
    ''')
    for j in range(4):
        I(f'''s_bfe_u32 s{sTMP}, s{sNC}, {(6 << 16) | (8*j)}
        s_lshl_b32 s{sTMP}, s{sTMP}, 8
        v_add_u32 v{T0}, s{sTMP}, v{vLT}
        ds_read_b32 v{XA+4*j}, v{T0}
        ds_read_b32 v{XA+16+4*j}, v{T0} offset:128''')
    I(f'''
    s_cmp_eq_u32 s{sMODE}, 2
    s_cbranch_scc1 M_NOWT
    ''')
    if OPT['WLATE']:
        I(f'v_lshlrev_b32 v{vFC}, 4, v2')
        for f in range(18): I(f'ds_read_b128 {r(WB+4*f,4)}, v{vFC} offset:{frag_lds(f)}')
    I(f"""s_cmp_lt_u32 s{sW}, 4
    s_cbranch_scc1 M_TDONE
    s_bfe_u32 s{sXR}, s{sW}, 0x10001
    v_subrev_u32 v{vINV}, {XAT}, v{vINV}
    v_lshlrev_b32 v{vINV}, 1, v{vINV}
    v_add_u32 v{vINV}, {AGG}, v{vINV}
    """)
    for k in range(16):
        if k == 12: I(f's_cmp_lg_u32 s{sXR}, 0\ns_cbranch_scc1 M_TDONE')
        I(f'v_cvt_f64_f32 {r(AF+2*(k%8),2)}, v{pD+k}\nds_write_b64 v{vINV}, {r(AF+2*(k%8),2)} offset:{(8*(k//4)+k%4)*512}')
    I('M_TDONE:')
    j_, i_, h_, g_, t_, u_ = AF, AF+1, AF+2, AF+3, AF+4, AF+5
    I(f"""
    s_lshl_b32 s{sMODE}, s{sMODE}, 1
    v_lshlrev_b32 v{vLA}, 3, v2
    v_add_u32 v{vLA}, {AGG}, v{vLA}
    v_bfe_u32 v{j_}, v2, 3, 2
    v_and_b32 v{i_}, 3, v2
    v_lshrrev_b32 v{h_}, 5, v2
    v_lshrrev_b32 v{t_}, 1, v{j_}
    v_xor_b32 v{g_}, v{t_}, v{j_}
    v_lshrrev_b32 v{u_}, 2, v2
    v_xor_b32 v{g_}, v{g_}, v{u_}
    v_and_b32 v{g_}, 1, v{g_}
    v_xor_b32 v{t_}, v{t_}, v{h_}
    v_lshlrev_b32 v{t_}, 4, v{t_}
    v_lshl_or_b32 v{u_}, v{j_}, 2, v{i_}
    v_lshl_or_b32 v{u_}, v{g_}, 4, v{u_}
    v_lshl_or_b32 v{t_}, v{u_}, 5, v{t_}
    v_add_u32 v{vRE}, s{sM0E}, v{t_}
    v_and_b32 v{t_}, 1, v{i_}
    v_lshl_or_b32 v{u_}, v{g_}, 1, v{t_}
    v_lshlrev_b32 v{u_}, 3, v{u_}
    v_lshl_or_b32 v{u_}, v{j_}, 1, v{u_}
    v_lshrrev_b32 v{i_}, 1, v{i_}
    v_or_b32 v{u_}, v{u_}, v{i_}
    v_lshlrev_b32 v{u_}, 7, v{u_}
    v_add_u32 v{u_}, s{sM0X}, v{u_}
    v_lshl_or_b32 v{t_}, v{t_}, 2, v{j_}
    v_xor_b32 v{t_}, v{t_}, v{h_}
    """)
    for s in range(4):
        I(f"""v_xor_b32 v{g_}, {2*s}, v{t_}
        v_lshl_add_u32 v{vRA+s}, v{g_}, 4, v{u_}""")
    I('M_NOWT:')
    for k in range(8): I(f'v_mov_b64 {r(ACC+2*k,2)}, 0')
    I(f"""
    s_waitcnt lgkmcnt(0)
    s_barrier
    s_cmp_eq_u32 s{sTW}, 0
    s_cbranch_scc1 M_BDONE
    """)
    for ft in range(2):
        for j in range(4):
            for i in range(1, 4): I(f'v_mov_b32 v{XA+16*ft+4*j+i}, v{XA+16*ft+4*j}')
    g1 = dma_tile(Z+16, sM0X, sM0E, 4096, 1024)
    for g in g1: I(g[1])
    for g in dma_tile(IDX, sM0X, sM0E, 0, 0): I(g[1])
    I('s_waitcnt vmcnt(0)')
    I(f'ds_read_b128 {r(AF+16,4)}, v{vRE}')
    for s in range(4): I(f'ds_read_b128 {r(AF+4*s,4)}, v{vRA+s}')
    I(f's_cmp_lt_u32 s{sTW}, 2\ns_cbranch_scc1 M_NOT1')
    for g in g1: I(g[0] + '\ns_nop 0\n' + g[2])
    I('M_NOT1:\ns_waitcnt lgkmcnt(0)')
    for m in zm(0): I(m)
    I('s_nop 7\ns_nop 3')
    stamp(4)
    I('.p2align 6')
    for p in range(2 if OPT['LOOP'] == 2 else 0):
        nb = 1 - p
        afc, afn = (AF, AF2) if p == 0 else (AF2, AF)
        PB = OPT['PB']
        I(f'''
M_LOOP{p}:
    {TR(0)}
    s_xor_b32 s{sD}, s{sNP}, s{sNC}
    {';' if OPT['NOEV'] else ''}s_cbranch_scc1 M_FL{p}
M_FLR{p}:
    s_setprio 0
    s_add_u32 s{sTMP}, s{sT}, 1
    s_cmp_lt_u32 s{sTMP}, s{sTW}
    s_cbranch_scc0 M_ND{p}
        ''')
        g = dma_tile(IDX, sM0X, sM0E, p*4096, p*1024)
        I(g[0][0])
        for q in range(5):
            I('s_nop 0' if q == 0 else g[q][0])
            if q > 0: I('s_nop 0')
            I(g[q][2])
        I(f'M_ND{p}:')
        def eblk(ft, extra):
            hv = hm(ft, afc)
            ES_, EF = OPT['ES'], OPT['EF']
            ins = {}
            for k in range(4): ins.setdefault(EF + ES_*k, []).append(hv[k])
            if OPT['PPOS'] == 0 and EF == 0: ins[0].append(f's_setprio {PB}')
            else: ins.setdefault(max(1, OPT['PPOS']), []).insert(0, f's_setprio {PB}')
            if OPT['PB2'] >= 0: ins.setdefault(OPT['P2POS'], []).insert(0, f's_setprio {OPT["PB2"]}')
            for k, v in extra.items(): ins.setdefault(k, []).extend(v)
            I('\n'.join(weave(exps(ft), ins)))
        eblk(0, {11: [f'v_readlane_b32 s{sNN}, v{vSCH}, s{sT}']})
        I('\n'.join(pkadd(0)))
        zz = zm(1, afc)
        I('\n'.join(weave(rcps(0), {0: [zz[0]], 3: [zz[1]], 6: [zz[2]], 9: [zz[3]], 12: [zz[4]]})))
        I('\n'.join(pkf(0)))
        I(f'''
    s_xor_b32 s{sD}, s{sNC}, s{sNN}
    {';' if OPT['NOEV'] else ''}s_cbranch_scc1 M_XA{p}
M_XAR{p}:
    s_setprio 0
    s_add_u32 s{sTMP}, s{sT}, 1
    s_cmp_lt_u32 s{sTMP}, s{sTW}
    s_cbranch_scc0 M_WZ{p}
    s_waitcnt vmcnt(5)
M_WZR{p}:
        ''')
        I(f'ds_read_b128 {r(AF+16,4)}, v{vRE} offset:{nb*1024}')
        for s_ in range(4): I(f'ds_read_b128 {r(afn+4*s_,4)}, v{vRA+s_} offset:{nb*4096}')
        I(f'ds_read_b128 {r(IDX,4)}, v{vLX}\nds_read_b32 v{IDX+4}, v{vLE}')
        if OPT['WOUT']: I('s_waitcnt lgkmcnt(0)')
        eblk(1, {})
        I('\n'.join(pkadd(1)))
        zz = zm(0, afn)
        if not OPT['WOUT']: I('s_waitcnt lgkmcnt(0)')
        I('\n'.join(weave(rcps(1), {0: [zz[0]], 3: [zz[1]], 6: [zz[2]], 9: [zz[3]], 12: [zz[4]]})))
        I('\n'.join(pkf(1)))
        for q in range(5): I(g[q][1])
        I(f'''
    v_add_u32 v{vLX}, 32, v{vLX}
    v_add_u32 v{vLE}, 32, v{vLE}
    s_mov_b32 s{sNP}, s{sNC}
    s_mov_b32 s{sNC}, s{sNN}
    s_add_u32 s{sT}, s{sT}, 1
    s_cmp_le_u32 s{sT}, s{sTW}''')
        I('s_cbranch_scc0 M_LEND' if p == 0 else 's_cbranch_scc1 M_LOOP0')
    for p in range(2 if OPT['LOOP'] == 1 else 0):
        nb = 1 - p
        I(f'''
M_LOOP{p}:
    {TR(0)}
    s_xor_b32 s{sD}, s{sNP}, s{sNC}
    {';' if OPT['NOEV'] else ''}s_cbranch_scc1 M_FL{p}
M_FLR{p}:
        ''')
        hv = hm(0)
        I('\n'.join(weave(exps(0), {0: [hv[0]], 3: [hv[1]], 6: [hv[2]], 9: [hv[3]],
                                    11: [f'v_readlane_b32 s{sNN}, v{vSCH}, s{sT}']})))
        I('\n'.join(pkadd(0)))
        zz = zm(1)
        I('\n'.join(weave(rcps(0), {0: [zz[0]], 3: [zz[1]], 6: [zz[2]], 9: [zz[3]], 12: [zz[4]]})))
        I('\n'.join(pkf(0)))
        I(f'''
    s_xor_b32 s{sD}, s{sNC}, s{sNN}
    {';' if OPT['NOEV'] else ''}s_cbranch_scc1 M_XA{p}
M_XAR{p}:
    s_add_u32 s{sTMP}, s{sT}, 1
    s_cmp_lt_u32 s{sTMP}, s{sTW}
    s_cbranch_scc0 M_WZ{p}
    s_waitcnt vmcnt(5)
M_WZR{p}:
        ''')
        hv = hm(1)
        rd = [f'ds_read_b128 {r(AF+4*s,4)}, v{vRA+s} offset:{nb*4096}' for s in range(4)]
        if OPT['NODS']:
            I('\n'.join(weave(exps(1), {0: [hv[0]], 3: [hv[1]], 6: [hv[2]], 9: [hv[3]]})))
        else: I('\n'.join(weave(exps(1), {
            0: [hv[0], rd[0]],
            1: [f'ds_read_b128 {r(AF+16,4)}, v{vRE} offset:{nb*1024}'],
            3: [hv[1], rd[1]],
            4: [f'ds_read_b128 {r(IDX,4)}, v{vLX}'],
            6: [hv[2], rd[2]],
            7: [f'ds_read_b32 v{IDX+4}, v{vLE}'],
            9: [hv[3], rd[3]],
        })))
        I('\n'.join(pkadd(1)))
        zz = zm(0)
        I(f'''
    s_add_u32 s{sTMP}, s{sT}, 2
    s_cmp_lt_u32 s{sTMP}, s{sTW}
    s_waitcnt lgkmcnt(0)
    s_cbranch_scc0 M_ND{p}
        ''')
        g = dma_tile(IDX, sM0X, sM0E, nb*4096, nb*1024)
        if OPT['NODMA']: g = [x[:2] for x in g]
        I('\n'.join(weave(rcps(1), {
            0: [zz[0]], 1: g[0], 3: [zz[1]], 4: g[1], 6: [zz[2]], 7: g[2], 9: [zz[3]], 10: g[3], 12: [zz[4]], 13: g[4],
            14: [f'v_add_u32 v{vLX}, 32, v{vLX}'], 15: [f'v_add_u32 v{vLE}, 32, v{vLE}']})))
        I(f'M_NDR{p}:')
        I('\n'.join(pkf(1)))
        I(f'''
    s_mov_b32 s{sNP}, s{sNC}
    s_mov_b32 s{sNC}, s{sNN}
    s_add_u32 s{sT}, s{sT}, 1
    s_cmp_le_u32 s{sT}, s{sTW}''')
        if p == 0:
            I('s_cbranch_scc0 M_LEND')
        else:
            I('s_cbranch_scc1 M_LOOP0')
    I('M_LEND:')
    I(TR(0))
    I('s_setprio 0')
    for j in range(4): flush_j(j, sNP)
    I(f'''
M_BDONE:
    s_cmp_lg_u32 s{sMODE}, 0
    s_cbranch_scc1 M_SNEXT
M_EPI:
    ''')
    stamp(5)
    I(f'''
    s_waitcnt lgkmcnt(0)
    s_barrier
    v_cmp_gt_u32 vcc, {BN*8}, v0
    s_and_saveexec_b64 {sr(sSAVE,2)}, vcc
    s_cbranch_execz M_FIN
    v_lshlrev_b32 v{T0}, 6, v0
    v_add_u32 v{T0}, {AGG}, v{T0}
    ds_read_b128 {r(Z+16,4)}, v{T0}
    ds_read_b128 {r(Z+20,4)}, v{T0} offset:16
    ds_read_b128 {r(Z+24,4)}, v{T0} offset:32
    ds_read_b128 {r(Z+28,4)}, v{T0} offset:48
    s_mov_b32 s{sTMP}, {NLOG2E}
    s_mul_i32 s{sTMP2}, s{sB}, {BN*128}
    v_lshlrev_b32 v{T1}, 4, v0
    s_waitcnt lgkmcnt(0)
    ''')
    for k in range(8): I(f'v_cvt_f32_f64 v{Z+k}, {r(Z+16+2*k,2)}')
    for k in range(8): I(f'v_mul_f32 v{Z+8+k}, s{sTMP}, v{Z+k}')
    for k in range(8): I(f'v_exp_f32 v{Z+8+k}, v{Z+8+k}')
    for k in range(8): I(f'v_add_f32 v{Z+8+k}, 1.0, v{Z+8+k}')
    for k in range(8): I(f'v_rcp_f32 v{Z+8+k}, v{Z+8+k}')
    for k in range(8): I(f'v_mul_f32 v{Z+k}, v{Z+k}, v{Z+8+k}')
    for k in range(4): I(f'v_cvt_pk_bf16_f32 v{Z+16+k}, v{Z+2*k}, v{Z+2*k+1}')
    I(f'buffer_store_dwordx4 {r(Z+16,4)}, v{T1}, {sr(sOUT,4)}, s{sTMP2} offen')
    I('M_FIN:')
    if OPT['AMP']:
        I(f'''s_cmp_lg_u32 s2, 0
        s_cbranch_scc1 M_END
        s_cmp_lg_u32 s{sW}, 0
        s_cbranch_scc1 M_END
        s_waitcnt vmcnt(0)
        s_memrealtime s[60:61]
        s_add_u32 s56, s26, {WF + 0x10000}
        s_addc_u32 s57, s27, 0
        s_load_dword s58, s[56:57], 0
        s_waitcnt lgkmcnt(0)''')
        if OPT['AMP'] == 2: I('s_mov_b32 s60, s74')
        if OPT['AMP'] == 3: I('s_mov_b32 s58, s74')
        if OPT['AMP'] >= 10: I('s_mov_b32 s58, s74\ns_mov_b32 s60, s72')
        I(f'''s_sub_u32 s59, s60, s58
        s_min_u32 s59, s59, 20000
        s_mul_i32 s59, s59, 10
        s_memrealtime s[60:61]
        s_waitcnt lgkmcnt(0)
        s_mov_b32 s58, s60
M_SPIN:
        s_memrealtime s[60:61]
        s_waitcnt lgkmcnt(0)
        s_sub_u32 s62, s60, s58
        s_cmp_lt_u32 s62, s59
        s_cbranch_scc1 M_SPIN''')
    if OPT['DBG']: dbgdump(7, 6)
    elif OPT['STAMP']:
        I(f'''s_mov_b64 exec, 1
        s_memrealtime s[72:73]
        s_load_dwordx2 s[4:5], s[0:1], 72
        s_waitcnt lgkmcnt(0) vmcnt(0)
        s_add_u32 s52, s4, 0x8000000
        s_addc_u32 s53, s5, 0
        s_mov_b32 s54, 0x100000
        s_mov_b32 s55, 0x20000
        s_lshl_b32 s56, s2, 3
        s_add_u32 s56, s56, s{sW}
        s_lshl_b32 s56, s56, 5
        v_mov_b32 v1, 0''')
        for i in range(7): I(f'v_mov_b32 v{8+i}, s{60+2*i}')
        I(f'''v_mov_b32 v15, s{sTW}
        buffer_store_dwordx4 v[8:11], v1, s[52:55], s56 offen
        buffer_store_dwordx4 v[12:15], v1, s[52:55], s56 offen offset:16''')
        if OPT['TRACE']:
            I(f'''s_mov_b64 exec, -1
            s_lshl_b32 s56, s56, 3
            s_add_u32 s56, s56, 0x20000
            v_lshlrev_b32 v1, 2, v2
            buffer_store_dword v{vTR}, v1, s[52:55], s56 offen''')
    I('M_END:\ns_endpgm')
    for p in range(2):
        I(f'M_FL{p}:')
        if OPT['LOOP'] == 2: I(f's_setprio {OPT["PE"]}')
        for j in range(4):
            I(f's_and_b32 s{sTMP}, s{sD}, {0xff << (8*j)}\ns_cbranch_scc0 M_FL{p}_{j}')
            flush_j(j, sNP)
            I(f'M_FL{p}_{j}:')
        I(f's_branch M_FLR{p}')
        I(f'M_XA{p}:')
        if OPT['LOOP'] == 2: I(f's_setprio {OPT["PE"]}')
        for j in range(4):
            I(f's_and_b32 s{sTMP}, s{sD}, {0xff << (8*j)}\ns_cbranch_scc0 M_XA{p}_{j}')
            xa_j(j, sNN)
            I(f'M_XA{p}_{j}:')
        I(f's_branch M_XAR{p}')
        I(f'M_WZ{p}:\ns_waitcnt vmcnt(0)\ns_branch M_WZR{p}')
        if OPT['LOOP'] == 1:
            I(f'M_ND{p}:')
            zz = zm(0)
            I('\n'.join(weave(rcps(1), {0: [zz[0]], 3: [zz[1]], 6: [zz[2]], 9: [zz[3]], 12: [zz[4]]})))
            I(f's_branch M_NDR{p}')
    I('M_RA:')
    validate(12, 20)
    pass_a(12, 20, fs)
    I('s_branch M_RAR')
    I('M_RB:')
    pass_b1(12, 20)
    I('s_waitcnt lgkmcnt(0)')
    pass_b2(12, 20)
    validate(0, 8)
    I('s_nop 3\ns_branch M_RBR')
    I(f'''
M_SLOW:
    s_mov_b32 s{sMODE}, 1
    s_mov_b32 s{sSEG}, -1
M_SNEXT:
    s_add_u32 s{sSEG}, s{sSEG}, 1
    s_cmp_ge_u32 s{sSEG}, {NCH}
    s_cbranch_scc1 M_EPI
    s_lshl_b32 s{sTMP}, s{sSEG}, 2
    s_load_dword s{sD}, {sr(sOFP,2)}, s{sTMP}
    s_waitcnt lgkmcnt(0)
    s_lshr_b32 s{sTMP2}, s{sD}, 16
    s_cmp_eq_u32 s{sTMP2}, 0
    s_cbranch_scc1 M_SNEXT
    s_barrier
    ''')
    lds_init()
    I(f'''
    s_and_b32 s{sD}, s{sD}, 0xffff
    s_mul_i32 s{sTMP}, s{sSEG}, {CH}
    s_add_u32 s{sD}, s{sD}, s{sTMP}
    v_add_u32 v{T0}, s{sD}, v0
    v_mov_b32 v{T1}, s{sTMP}
    v_lshlrev_b32 v{vEB}, 5, v{T0 if MOVE else T1}
    v_lshlrev_b32 v{T0}, 2, v{T0}
    v_sub_u32 v{vC}, s{sTMP2}, v0
    v_add_u32 v{vC}, 511, v{vC}
    v_ashrrev_i32 v{vC}, 9, v{vC}
    v_cmp_lt_i32 vcc, 4, v{vC}
    v_add_u32 v{T1}, 4, v{vC}
    s_nop 0
    v_cndmask_b32 v{vC}, v{vC}, v{T1}, vcc
    ''')
    for s in range(7):
        I(f'buffer_load_dword v{pREC+s}, v{T0}, {sr(sWS,4)}, 0 offen')
        if s < 6: I(f'v_add_u32 v{T0}, 2048, v{T0}')
    I('s_waitcnt vmcnt(0) lgkmcnt(0)\ns_barrier')
    validate(0, 12)
    I(f'v_mov_b32 v{vFC}, 0xfc')
    pass_a(0, 12, lambda s: s * 16384)
    I('s_waitcnt lgkmcnt(0)\ns_barrier')
    scan()
    I('s_branch M_BATCH')

def kd(name, vgpr, sgpr):
    return f'''.amdhsa_kernel {name}
  .amdhsa_next_free_vgpr {vgpr}
  .amdhsa_next_free_sgpr {sgpr}
  .amdhsa_accum_offset {(vgpr+3)//4*4}
  .amdhsa_group_segment_fixed_size 0
  .amdhsa_kernarg_size 80
  .amdhsa_user_sgpr_count 2
  .amdhsa_user_sgpr_kernarg_segment_ptr 1
  .amdhsa_system_sgpr_workgroup_id_x 1
.end_amdhsa_kernel
'''

HEAD = open('gather_scatter__edge_featured_mpnn_egc__graph.s.ref').read().split('; Override')[0]
gen_part()
gen_main()
if OPT['EXTRA']:
    header('nop_kernel'); I('s_endpgm')
out = HEAD + f'''; Two launches: part_kernel bins the edges by destination bucket, the main kernel does the rest.
{'; @launch kernel=nop_kernel grid=(1,1,1) block=(64,1,1) lds=0'+chr(10) if OPT['EXTRA']==1 else ''}; @launch kernel=part_kernel grid=({NCH+5},1,1) block=(512,1,1) lds={K1_LDS}
{'; @launch kernel=nop_kernel grid=(1,1,1) block=(64,1,1) lds=0'+chr(10) if OPT['EXTRA']==2 else ''}; @launch kernel={MAIN} grid=({NB},1,1) block=(512,1,1) lds={M_LDS}
{'; @launch kernel=nop_kernel grid=(1,1,1) block=(64,1,1) lds=0'+chr(10) if OPT['EXTRA']==3 else ''}.amdgcn_target "amdgcn-amd-amdhsa--gfx950"
.text
''' + '\n'.join(L) + '''
.section .rodata,"a"
.p2align 6
''' + kd('part_kernel', 88, 80) + '.p2align 6\n' + kd(MAIN, NV+(8 if OPT['TRACE'] else 0), 102) + ('.p2align 6\n' + kd('nop_kernel', 8, 8) if OPT['EXTRA'] else '')
open(sys.argv[1], 'w').write(out)
```

```python
import sys, struct

OPT = dict(MOVE=0, E_AUX='', K1_LD_AUX='', K1_ST_AUX='sc1', PAY_ST_AUX='', STAMP=0, PRIO=0, NOX=0, NOE=0, CYC=0, PKA=1, PKF=1, NOEV=0, NODMA=0, NODS=0, NOVM=0, TRACE=0, XPF=1, K1SLEEP=0, EXTRA=0, DBG=0, NOHV=0, NOZ=0, NOTR=0, LOOP=2, PB=1, PE=3, PB2=2, WOUT=1, ES=3, EF=3, PPOS=0, P2POS=8, AMP=0, FINE=0, WLATE=1, CPF=1, OFF_ST_AUX='sc1', K1SPLIT=1, NOPK=0, LATE0=0, YP=0, DLY=0, DLYN=0)
for a in sys.argv[2:]:
    k, v = a.split('=')
    OPT[k] = int(v) if v.lstrip('-').isdigit() else v.replace('_', ' ')
MOVE = OPT['MOVE']

N, E = 12500, 800000
NB, BN = 256, 49
NCH, CH = 250, 3200
REC, OFFS, WF, PAY = 0, 0x400000, 0x480000, 0x800000
WS_BYTES = PAY + E * 32
NFRAG = 34
NLOG2E = struct.unpack('<I', struct.pack('<f', -1.4426950408889634))[0]
MAIN = 'gather_scatter__edge_featured_mpnn_egc__graph_kernel'

L = []
def I(s):
    for ln in s.strip('\n').split('\n'):
        ln = ln.strip()
        if ln:
            L.append(ln if ln.endswith(':') else '    ' + ln)
def r(a, n): return f'v[{a}:{a+n-1}]'
def sr(a, n): return f's[{a}:{a+n-1}]'
def srd(d, base, nbytes):
    I(f'''s_mov_b32 s{d}, s{base}
    s_mov_b32 s{d+1}, s{base+1}
    s_mov_b32 s{d+2}, {nbytes}
    s_mov_b32 s{d+3}, 0x20000''')
def dpp_scan(v):
    for ctl in ('row_shr:1', 'row_shr:2', 'row_shr:4', 'row_shr:8'):
        I(f's_nop 1\nv_add_u32_dpp v{v}, v{v}, v{v} {ctl} row_mask:0xf bank_mask:0xf bound_ctrl:1')
    I(f's_nop 1\nv_add_u32_dpp v{v}, v{v}, v{v} row_bcast:15 row_mask:0xa bank_mask:0xf')
    I(f's_nop 1\nv_add_u32_dpp v{v}, v{v}, v{v} row_bcast:31 row_mask:0xc bank_mask:0xf')
def header(name):
    I(f'.globl {name}\n.p2align 8\n.type {name},@function\n{name}:')

K1_HIST, K1_BASE, K1_SORT, K1_SORTE, K1_EIMG = 0, 1024, 2048, 14848, 27648
K1_LDS = (K1_EIMG + CH * 32) if MOVE else K1_SORTE

def kstamp(i):
    if OPT['STAMP']: I(f's_memrealtime s[{60+2*i}:{61+2*i}]\ns_waitcnt lgkmcnt(0)')
def dbgdump(n, last):
    I(f'''s_waitcnt vmcnt(0)
    s_memrealtime s[{60+2*last}:{61+2*last}]
    s_load_dwordx2 s[52:53], s[0:1], 64
    s_mov_b64 exec, 1
    s_waitcnt lgkmcnt(0)
    s_mov_b32 s54, 256
    s_mov_b32 s55, 0x20000
    v_mov_b32 v1, 0''')
    for i in range(n):
        I(f'''v_mov_b32 v8, s{60+2*i}
        buffer_atomic_umax v8, v1, s[52:55], 0 offen offset:{4*i}
        v_not_b32 v9, s{60+2*i}
        buffer_atomic_umax v9, v1, s[52:55], 0 offen offset:{32+4*i}
        s_waitcnt vmcnt(0)''')
def kdump():
    if OPT['DBG']:
        dbgdump(6, 5); return
    if OPT['STAMP']:
        I(f'''; K1STAMP
        s_waitcnt vmcnt(0)
        s_memrealtime s[70:71]
        s_mov_b64 exec, 1
        s_waitcnt lgkmcnt(0)
        s_add_u32 s52, s24, 0x8100000
        s_addc_u32 s53, s25, 0
        s_mov_b32 s54, 0x100000
        s_mov_b32 s55, 0x20000
        s_lshl_b32 s56, s2, 3
        s_add_u32 s56, s56, s28
        s_lshl_b32 s56, s56, 5
        v_mov_b32 v1, 0''')
        for i in range(8): I(f'v_mov_b32 v{8+i}, s{60+2*min(i,5)}')
        I('''buffer_store_dwordx4 v[8:11], v1, s[52:55], s56 offen
        buffer_store_dwordx4 v[12:15], v1, s[52:55], s56 offen offset:16''')
def gen_part():
    header('part_kernel')
    if OPT['AMP']: I('s_memrealtime s[74:75]')
    kstamp(0)
    D, S, B4, RK, RC, EL = 8, 16, 24, 32, 40, 48
    I(f'''
    s_cmp_ge_u32 s2, {NCH+5}
    s_cbranch_scc1 P_END
    s_load_dwordx4 s[4:7], s[0:1], 16
    s_load_dwordx2 s[24:25], s[0:1], 72
    s_load_dwordx2 s[26:27], s[0:1], 8
    v_lshrrev_b32 v3, 6, v0
    v_lshlrev_b32 v1, 2, v0
    v_readfirstlane_b32 s28, v3
    s_cmp_ge_u32 s2, {NCH}
    s_cbranch_scc1 P_PREP
    v_mov_b32 v2, 0
    ds_write_b32 v1, v2
    v_lshlrev_b32 v4, 4, v0
    v_lshlrev_b32 v5, 3, v0
    v_add_u32 v5, 8192, v5
    v_add_u32 v6, 12288, v1
    s_mul_i32 s29, s2, {CH*4}
    s_waitcnt lgkmcnt(0)
    ''')
    srd(8, 4, E * 4); srd(12, 6, E * 4); srd(16, 24, WS_BYTES)
    if OPT['AMP']:
        I(f'''s_cmp_lg_u32 s2, 0
        s_cbranch_scc1 P_NOAMP
        s_cmp_lg_u32 s28, 0
        s_cbranch_scc1 P_NOAMP
        v_mov_b32 v80, s74
        v_mov_b32 v81, {WF + 0x10000}
        buffer_store_dword v80, v81, s[16:19], 0 offen
P_NOAMP:''')
    ax = OPT['K1_LD_AUX']
    SPL = OPT['K1SPLIT'] and not MOVE
    srcld = f'''buffer_load_dwordx4 {r(S,4)}, v4, s[8:11], s29 offen {ax}
    buffer_load_dwordx2 {r(S+4,2)}, v5, s[8:11], s29 offen {ax}
    buffer_load_dword v{S+6}, v6, s[8:11], s29 offen {ax}'''
    I(f'''
    s_cmp_ge_u32 s28, 2
    s_cbranch_scc1 P_NO6A
    buffer_load_dword v{D+6}, v6, s[12:15], s29 offen {ax}
    {'' if SPL else f'buffer_load_dword v{S+6}, v6, s[8:11], s29 offen {ax}'}
P_NO6A:
    buffer_load_dwordx4 {r(D,4)}, v4, s[12:15], s29 offen {ax}
    buffer_load_dwordx2 {r(D+4,2)}, v5, s[12:15], s29 offen {ax}
    ''')
    if not SPL:
        I(f'''buffer_load_dwordx4 {r(S,4)}, v4, s[8:11], s29 offen {ax}
        buffer_load_dwordx2 {r(S+4,2)}, v5, s[8:11], s29 offen {ax}''')
    if MOVE:
        srd(20, 26, E * 32)
        I(f'''
        v_and_b32 v7, 63, v0
        v_lshlrev_b32 v7, 4, v7
        s_mul_i32 s30, s2, {CH*32}
        s_lshl_b32 s31, s28, 10
        s_add_u32 s30, s30, s31
        s_add_u32 s31, s31, {K1_EIMG}
        ''')
        for n in range(13):
            if n == 12:
                I('s_cmp_ge_u32 s28, 4\ns_cbranch_scc1 P_NO13')
            I(f'''s_mov_b32 m0, s31
            s_add_u32 s31, s31, 8192
            buffer_load_dwordx4 v7, s[20:23], s30 offen {ax} lds
            s_add_u32 s30, s30, 8192''')
        I('P_NO13:')
    sh = 14
    I(f'''
    v_lshlrev_b32 v56, {2+sh}, v0
    v_lshlrev_b32 v57, {1+sh}, v0
    v_add_u32 v57, {2048 << sh}, v57
    v_lshlrev_b32 v58, {sh}, v0
    v_add_u32 v58, {3072 << sh}, v58
    v_mov_b32 v59, 1
    s_mov_b32 s32, {-BN & 0xffffffff}
    s_mov_b32 s33, {1 << sh}
    s_mov_b32 s34, {2 << sh}
    s_mov_b32 s35, {3 << sh}
    s_barrier
    ''')
    if SPL:
        I(f's_cmp_ge_u32 s28, 2\ns_cselect_b32 s37, 0x40000000, 0\nv_or_b32 v6, s37, v6')
        I(srcld)
    kstamp(1)
    I(f's_waitcnt vmcnt({12 if MOVE else (3 if SPL else 0)})')
    kstamp(2)
    def slot(k):
        I(f'''v_mul_u32_u24 v{B4+k}, 21400, v{D+k}
        v_lshrrev_b32 v{B4+k}, 20, v{B4+k}
        v_mad_i32_i24 v{RC+k}, v{B4+k}, s32, v{D+k}
        v_lshlrev_b32 v{B4+k}, 2, v{B4+k}
        ds_add_rtn_u32 v{RK+k}, v{B4+k}, v59''')
    def rec(k):
        eb = 56 if k < 4 else (57 if k < 6 else 58)
        kk = k if k < 4 else (k - 4 if k < 6 else 0)
        ks = '0' if kk == 0 else f's{32+kk}'
        I(f'''v_lshl_or_b32 v{RC+k}, v{RC+k}, 26, v{S+k}
        v_add3_u32 v{RC+k}, v{RC+k}, v{eb}, {ks}''')
        if MOVE:
            I(f'''v_bfe_u32 v{EL+k}, v{RC+k}, 14, 12
            v_lshlrev_b32 v{EL+k}, 5, v{EL+k}''')
    for k in range(6): slot(k)
    I('s_cmp_ge_u32 s28, 2\ns_cbranch_scc1 P_NO6B')
    slot(6)
    I(f'''
P_NO6B:
    v_and_b32 v60, 63, v0
    v_lshlrev_b32 v60, 4, v60
    s_waitcnt lgkmcnt(0)
    s_barrier
    ds_read_b128 v[64:67], v60
    s_waitcnt lgkmcnt(0)
    v_add_u32 v69, v64, v65
    v_add_u32 v70, v69, v66
    v_add_u32 v71, v70, v67
    v_mov_b32 v72, v71
    ''')
    dpp_scan(72)
    I(f'''
    v_sub_u32 v68, v72, v71
    v_add_u32 v71, v68, v70
    v_add_u32 v70, v68, v69
    v_add_u32 v69, v68, v64
    ds_write_b128 v60, v[68:71] offset:{K1_BASE}
    s_waitcnt lgkmcnt(0)
    ''')
    for k in range(6):
        I(f'ds_read_b32 v{D+k}, v{B4+k} offset:{K1_BASE}')
    if SPL: I('s_waitcnt vmcnt(0)')
    I(f'''
    s_cmp_lg_u32 s28, 4
    s_cbranch_scc1 P_NOOFF
    v_lshl_or_b32 v64, v64, 16, v68
    v_lshl_or_b32 v65, v65, 16, v69
    v_lshl_or_b32 v66, v66, 16, v70
    v_lshl_or_b32 v67, v67, 16, v71
    v_lshlrev_b32 v61, 8, v60
    s_lshl_b32 s36, s2, 4
    s_add_u32 s36, s36, {OFFS}
    buffer_store_dwordx4 v[64:67], v61, s[16:19], s36 offen {OPT['OFF_ST_AUX']}
P_NOOFF:
    ''')
    for k in range(7): rec(k)
    if OPT['CPF'] & 1:
        I(f'''s_cmp_lg_u32 s28, 7
        s_cbranch_scc1 P_NOCPF
        s_cmp_ge_u32 s2, 32
        s_cbranch_scc1 P_NOCPF
        s_getpc_b64 s[40:41]
P_PC:
        s_add_u32 s40, s40, {MAIN}-P_PC
        s_addc_u32 s41, s41, 0
        v_and_b32 v82, 63, v0
        v_lshlrev_b32 v82, 7, v82
        v_min_u32 v83, M_CODE_END-{MAIN}-8196, v82
        v_add_u32 v83, 8192, v83
        global_load_dword v86, v82, s[40:41]
        global_load_dword v86, v83, s[40:41]''')
        if OPT['CPF'] & 4:
            I(f'''s_load_dwordx2 s[42:43], s[0:1], 0
            s_load_dwordx2 s[44:45], s[0:1], 56
            v_lshlrev_b32 v82, 12, v82
            v_min_u32 v82, {E*32-4}, v82
            v_mov_b32 v83, 0
            global_load_dword v86, v82, s[26:27]
            s_waitcnt lgkmcnt(0)
            global_load_dword v86, v83, s[42:43]
            global_load_dword v86, v83, s[44:45]''')
        I('P_NOCPF:')
    I(f'''
    s_cmp_ge_u32 s28, 2
    s_cbranch_scc1 P_NO6C
    ds_read_b32 v{D+6}, v{B4+6} offset:{K1_BASE}
    s_waitcnt lgkmcnt(0)
    v_add_lshl_u32 v{RK+6}, v{RK+6}, v{D+6}, 2
    ds_write_b32 v{RK+6}, v{RC+6} offset:{K1_SORT}
    ''')
    if MOVE: I(f'ds_write_b32 v{RK+6}, v{EL+6} offset:{K1_SORTE}')
    I('P_NO6C:\ns_waitcnt lgkmcnt(0)')
    for k in range(6):
        I(f'''v_add_lshl_u32 v{RK+k}, v{RK+k}, v{D+k}, 2
        ds_write_b32 v{RK+k}, v{RC+k} offset:{K1_SORT}''')
        if MOVE: I(f'ds_write_b32 v{RK+k}, v{EL+k} offset:{K1_SORTE}')
    I(f'''
    s_waitcnt lgkmcnt(0)
    ''')
    kstamp(3)
    I(f'''
    {"s_waitcnt vmcnt(0)" if MOVE else ""}
    s_barrier
    ''')
    kstamp(4)
    I(f'''
    ds_read_b128 v[8:11], v4 offset:{K1_SORT}
    v_cmp_gt_u32 vcc, 288, v0
    s_and_saveexec_b64 s[38:39], vcc
    ds_read_b128 v[12:15], v4 offset:{K1_SORT+8192}
    s_mov_b64 exec, s[38:39]
    ''')
    if MOVE:
        I(f'''v_lshrrev_b32 v84, 1, v0
        v_lshlrev_b32 v84, 2, v84
        v_and_b32 v85, 1, v0
        v_lshlrev_b32 v85, 4, v85
        v_add_u32 v85, {K1_EIMG}, v85''')
        for n in range(13):
            I(f'ds_read_b32 v{16+n}, v84 offset:{K1_SORTE + n*1024}')
    I(f'''
    s_waitcnt lgkmcnt({13 if MOVE else 0})
    buffer_store_dwordx4 v[8:11], v4, s[16:19], s29 offen {OPT['K1_ST_AUX']}
    s_add_u32 s36, s29, 8192
    s_and_saveexec_b64 s[38:39], vcc
    s_cbranch_execz P_NOST2
    buffer_store_dwordx4 v[12:15], v4, s[16:19], s36 offen {OPT['K1_ST_AUX']}
P_NOST2:
    s_mov_b64 exec, s[38:39]
    ''')
    if MOVE:
        I(f'''s_mul_i32 s30, s2, {CH*32}
        s_add_u32 s30, s30, {PAY}
        s_waitcnt lgkmcnt(0)''')
        for n in range(12):
            I(f'v_add_u32 v{16+n}, v{16+n}, v85\nds_read_b128 {r(32+4*n,4)}, v{16+n}')
        for n in range(12):
            I(f'''s_waitcnt lgkmcnt({min(15, 11-n)})
            buffer_store_dwordx4 {r(32+4*n,4)}, v4, s[16:19], s30 offen {OPT['PAY_ST_AUX']}
            s_add_u32 s30, s30, 8192''')
        I(f'''s_cmp_ge_u32 s28, 4
        s_cbranch_scc1 P_FIN
        v_add_u32 v28, v28, v85
        ds_read_b128 v[8:11], v28
        s_waitcnt lgkmcnt(0)
        buffer_store_dwordx4 v[8:11], v4, s[16:19], s30 offen {OPT['PAY_ST_AUX']}''')
    I('P_FIN:')
    for _ in range(OPT['K1SLEEP']): I('s_sleep 64')
    kdump()
    I('s_endpgm')
    I(f'''
P_PREP:
    s_load_dwordx4 s[8:11], s[0:1], 32
    s_load_dwordx2 s[12:13], s[0:1], 48
    s_sub_u32 s30, s2, {NCH}
    s_lshl_b32 s30, s30, 3
    s_add_u32 s30, s30, s28
    s_cmp_ge_u32 s30, {NFRAG}
    s_cbranch_scc1 P_END
    s_waitcnt lgkmcnt(0)
    s_mov_b32 s20, s12
    s_mov_b32 s21, s13
    s_mov_b32 s22, {144*128}
    s_mov_b32 s23, 0x20000
    s_mov_b32 s33, {NLOG2E}
    s_mov_b32 s31, s30
    s_mov_b32 s32, 64
    s_cmp_lt_u32 s30, 8
    s_cbranch_scc1 P_GO
    s_cmp_lt_u32 s30, 16
    s_cbranch_scc0 P_C1
    s_sub_u32 s31, s30, 8
    s_mov_b32 s32, 0
    s_mov_b32 s33, 1.0
    s_mov_b32 s20, s10
    s_mov_b32 s21, s11
    s_mov_b32 s22, {64*128}
    s_branch P_GO
P_C1:
    s_cmp_lt_u32 s30, 18
    s_cbranch_scc0 P_C2
    s_sub_u32 s31, s30, 16
    s_lshl_b32 s31, s31, 2
    s_mov_b32 s32, 128
    s_branch P_GO
P_C2:
    s_mov_b32 s33, 1.0
    s_mov_b32 s32, 0
    s_sub_u32 s31, s30, 18
    s_cmp_lt_u32 s30, 26
    s_cbranch_scc1 P_GO
    s_sub_u32 s31, s30, 26
    s_mov_b32 s20, s8
    s_mov_b32 s21, s9
    s_mov_b32 s22, {64*128}
P_GO:
    s_and_b32 s34, s31, 3
    s_lshl_b32 s34, s34, 4
    s_add_u32 s34, s34, s32
    s_lshl_b32 s34, s34, 7
    s_lshr_b32 s35, s31, 2
    s_lshl_b32 s35, s35, 6
    s_add_u32 s34, s34, s35
    v_and_b32 v1, 31, v0
    v_lshlrev_b32 v1, 1, v1
    v_bfe_u32 v2, v0, 5, 1
    v_lshl_or_b32 v1, v2, 10, v1
    ''')
    for t in range(8):
        I(f'buffer_load_ushort v{8+t}, v1, s[20:23], s34 offen offset:{t*128}')
    srd(16, 24, WS_BYTES)
    I(f'''
    v_and_b32 v3, 63, v0
    v_lshlrev_b32 v3, 4, v3
    s_lshl_b32 s36, s30, 10
    s_add_u32 s36, s36, {WF}
    s_waitcnt vmcnt(0)
    ''')
    for t in range(8):
        I(f'v_lshlrev_b32 v{8+t}, 16, v{8+t}\nv_mul_f32 v{8+t}, s33, v{8+t}')
    for t in range(4):
        I(f'v_cvt_pk_bf16_f32 v{16+t}, v{8+2*t}, v{9+2*t}')
    I('''buffer_store_dwordx4 v[16:19], v3, s[16:19], s36 offen
P_END:
    s_endpgm''')

CNT, FLAG, BASE = 0, 256, 512
XS = 1024
ES = XS + 65536
LX = ES + 16384
LE = LX + 16384
XAT = LE + 16384
AGG = XAT + 14336
M_LDS = AGG + 2*14336
ROWS = XS + 36864
XSENT, ESENT = 0x1FFF80, 0x7FFFFF00
CAP = 4096
NSLOT = 20

WB, WV, WC = 4, 36, 68
XA = 76
Z = 108
H = 140
AF = 156
ACC = 176
IDX = 192
vLX, vLE, vKX0, vKX1, vKE = 197, 198, 199, 200, 201
vRA, vRE = 202, 206
vSCH, vLT = 207, 208
T0, T1, T2 = 209, 210, 211
vC, vEB = 212, 213
vONE = 214
vLA = 215
vINV, vFC = 218, 219
T4 = 216
AF2 = 220
NV = 236 if OPT['LOOP'] == 2 else 220
vTR = NV
pREC, pRK, pAD = 76, 96, 116
pD, pA, pW = 136, 152, 168
sX, sE, sWS, sOUT = 8, 12, 16, 20
sW, sT, sTW, sNP, sNC, sNN, sD, sM0X, sM0E, sMASK, sTMP, sTMP2, sMODE, sSEG, sG0 = range(28, 43)
sONE = 44
sSAVE = 46
sOFP = 48
sB = 50
sXR = 51

def thr(s): return 8 * (s // 4) + s % 4

def mf(d, a, b, c): return f'v_mfma_f32_32x32x16_bf16 {r(d,16)}, {r(a,4)}, {r(b,4)}, {c}'
def zm(ft, af=None):
    if af is None: af = AF
    out = [mf(Z+16*ft, AF+16, WC+4*ft, r(XA+16*ft, 16))]
    for k in range(4): out.append(mf(Z+16*ft, af+4*k, WB+16*ft+4*k, r(Z+16*ft, 16)) if not OPT['NOZ'] else 'v_nop\nv_nop')
    return out
def hm(ft, af=None):
    if af is None: af = AF
    out = [mf(H, af, WV+16*ft, '0')]
    for k in range(1, 4): out.append(mf(H, af+4*k, WV+16*ft+4*k, r(H, 16)))
    if OPT['NOHV']: out = ['v_nop\nv_nop'] * 4
    return out
def exps(ft): return [f'v_exp_f32 v{Z+16*ft+i}, v{Z+16*ft+i}' if not OPT['NOTR'] else 'v_nop\nv_nop' for i in range(16)]
def rcps(ft): return [f'v_rcp_f32 v{Z+16*ft+i}, v{Z+16*ft+i}' if not OPT['NOTR'] else 'v_nop\nv_nop' for i in range(16)]
def pkadd(ft):
    if OPT['NOPK']: return ['v_nop'] * 8
    if not OPT['PKA']: return [f'v_add_f32 v{Z+16*ft+i}, 1.0, v{Z+16*ft+i}' for i in range(16)]
    return [f'v_pk_add_f32 {r(Z+16*ft+2*i,2)}, {r(Z+16*ft+2*i,2)}, {sr(sONE,2)}' for i in range(8)]
def pkf(ft):
    if OPT['NOPK']: return ['v_nop'] * 8
    if not OPT['PKF']: return [f'v_fmac_f32 v{ACC+8*ft+2*(i//4)+i%2}, v{Z+16*ft+i}, v{H+i}' for i in range(16)]
    return [f'v_pk_fma_f32 {r(ACC+8*ft+2*(i//2),2)}, {r(Z+16*ft+2*i,2)}, {r(H+2*i,2)}, {r(ACC+8*ft+2*(i//2),2)}' for i in range(8)]
def weave(main, ins):
    out = []
    for i, m in enumerate(main):
        out += ins.get(i, [])
        out.append(m)
    out += ins.get(len(main), [])
    return out

def lds_init():
    I(f'''v_lshlrev_b32 v{T0}, 4, v0
    v_add_u32 v{T0}, {LX}, v{T0}
    v_mov_b32 v{AF}, {XSENT}
    v_mov_b32 v{AF+1}, {XSENT}
    v_mov_b32 v{AF+2}, {XSENT}
    v_mov_b32 v{AF+3}, {XSENT}
    v_mov_b32 v{AF+4}, {ESENT}
    v_mov_b32 v{AF+5}, {ESENT}
    v_mov_b32 v{AF+6}, {ESENT}
    v_mov_b32 v{AF+7}, {ESENT}
    v_and_b32 v{T1}, 127, v0
    v_lshlrev_b32 v{T1}, 2, v{T1}
    v_mov_b32 v{T2}, 0
    ds_write_b128 v{T0}, {r(AF,4)}
    ds_write_b128 v{T0}, {r(AF,4)} offset:8192
    ds_write_b128 v{T0}, {r(AF+4,4)} offset:16384
    ds_write_b128 v{T0}, {r(AF+4,4)} offset:24576
    ds_write_b32 v{T1}, v{T2}''')

def pEO(s): return AF2 + s if s < 16 else 184 + s - 16
def sVM(s): return 76 + 2 * (s % 12)
def validate(lo, hi):
    for s in range(lo, hi): I(f'v_cmp_lt_i32 {sr(sVM(s),2)}, {thr(s)}, v{vC}')
def pass_a(lo, hi, estride, mid=None):
    for s in range(lo, hi):
        I(f'v_and_b32_sdwa v{pAD+s}, v{vFC}, v{pREC+s} dst_sel:DWORD dst_unused:UNUSED_PAD src0_sel:DWORD src1_sel:BYTE_3')
    for s in range(lo, hi):
        I(f'''s_mov_b64 exec, {sr(sVM(s),2)}
        ds_add_rtn_u32 v{pRK+s}, v{pAD+s}, v{vONE}''')
    I('s_mov_b64 exec, -1')
    if mid: mid()
    for s in range(lo, hi):
        if MOVE:
            I(f'v_add_u32 v{pEO(s)}, {estride(s)}, v{vEB}')
        else:
            I(f'''v_bfe_u32 v{pEO(s)}, v{pREC+s}, 14, 12
            v_lshl_add_u32 v{pEO(s)}, v{pEO(s)}, 5, v{vEB}''')
        I(f'v_alignbit_b32 v{pREC+s}, v{pREC+s}, v{pREC+s}, 25')

def scan():
    I(f'''v_lshlrev_b32 v{T0}, 2, v2
    ds_read_b32 v{T1}, v{T0}
    v_mov_b32 v{T2}, {FLAG}
    ds_read_b32 v{IDX}, v{T2}
    s_waitcnt lgkmcnt(0)
    v_add_u32 v{T1}, 7, v{T1}
    v_and_b32 v{T1}, -8, v{T1}
    v_readfirstlane_b32 s{sTMP2}, v{IDX}
    v_mov_b32 v{T2}, v{T1}''')
    dpp_scan(T2)
    I(f'''v_sub_u32 v{T1}, v{T2}, v{T1}
    v_readlane_b32 s{sTMP}, v{T2}, 63
    v_add_u32 v{T1}, {LX//4}, v{T1}
    ds_write_b32 v{T0}, v{T1} offset:{BASE}''')
def pass_b1(lo, hi):
    for s in range(lo, hi):
        I(f'''s_mov_b64 exec, {sr(sVM(s),2)}
        ds_read_b32 v{pAD+s}, v{pAD+s} offset:{BASE}''')
    I('s_mov_b64 exec, -1')
def pass_b2(lo, hi):
    for s in range(lo, hi): I(f'v_add_lshl_u32 v{pRK+s}, v{pRK+s}, v{pAD+s}, 2')
    for s in range(lo, hi):
        I(f'''s_mov_b64 exec, {sr(sVM(s),2)}
        ds_write2st64_b32 v{pRK+s}, v{pREC+s}, v{pEO(s)} offset1:64''')
    I('s_mov_b64 exec, -1')

def dma_tile(ix, xm0, em0, xoff, eoff):
    g = []
    for q in range(4):
        g.append([f's_add_u32 m0, s{xm0}, {xoff + q*1024}',
                  f'v_and_or_b32 v{ix+q}, v{ix+q}, s{sMASK}, v{vKX0 if q % 2 == 0 else vKX1}',
                  f'buffer_load_dwordx4 v{ix+q}, {sr(sX,4)}, 0 offen lds'])
    g.append([f's_add_u32 m0, s{em0}, {eoff}',
              f'v_add_u32 v{ix+4}, v{ix+4}, v{vKE}',
              f'buffer_load_dwordx4 v{ix+4}, {sr(sE,4)}, 0 offen {OPT["E_AUX"]} lds'])
    return g

def flush_j(j, sn):
    I(f'''v_add_f32 v{T1}, v{ACC+2*j}, v{ACC+2*j+1}
    v_add_f32 v{T2}, v{ACC+8+2*j}, v{ACC+8+2*j+1}
    s_bfe_u32 s{sTMP}, s{sn}, {(6 << 16) | (8*j)}
    s_lshl_b32 s{sTMP}, s{sTMP}, 9
    v_permlane32_swap_b32 v{T1}, v{T2}
    v_add_u32 v{T0}, s{sTMP}, v{vLA}
    v_mov_b64 {r(ACC+2*j,2)}, 0
    v_add_f32 v{T1}, v{T1}, v{T2}
    v_mov_b64 {r(ACC+8+2*j,2)}, 0
    v_cvt_f64_f32 {r(T4,2)}, v{T1}
    ds_add_f64 v{T0}, {r(T4,2)}''')
def xa_j(j, sn):
    I(f'''s_bfe_u32 s{sTMP}, s{sn}, {(6 << 16) | (8*j)}
    s_lshl_b32 s{sTMP}, s{sTMP}, 8
    v_add_u32 v{T0}, s{sTMP}, v{vLT}
    ds_read2_b32 {r(XA+4*j,2)}, v{T0}
    ds_read2_b32 {r(XA+4*j+2,2)}, v{T0}
    ds_read2_b32 {r(XA+16+4*j,2)}, v{T0} offset0:32 offset1:32
    ds_read2_b32 {r(XA+16+4*j+2,2)}, v{T0} offset0:32 offset1:32''')

def TR(k):
    if not OPT['TRACE']: return ''
    return f'''s_memtime s[76:77]
    s_memrealtime s[78:79]
    s_waitcnt lgkmcnt(0)
    s_mov_b32 m0, s{sT}
    s_nop 0
    v_writelane_b32 v{vTR+k}, s76, m0
    s_add_u32 m0, m0, 32
    s_nop 0
    v_writelane_b32 v{vTR+k}, s78, m0'''
def fstamp(i):
    if OPT['STAMP'] and OPT['FINE']: I(f's_memrealtime s[{60+2*i}:{61+2*i}]\ns_waitcnt lgkmcnt(0)')
def stamp(i):
    if OPT['AMP'] == 10 + i: I('s_memrealtime s[72:73]\ns_waitcnt lgkmcnt(0)')
    if OPT['FINE'] and i not in (0,): return
    if OPT['STAMP'] and OPT['CYC'] == 2:
        if i in (1, 2): return
        if i in (4, 5): I(f's_memtime s[{60+2*(i-3)}:{61+2*(i-3)}]')
        I(f's_memrealtime s[{60+2*i}:{61+2*i}]\ns_waitcnt lgkmcnt(0)')
    elif OPT['STAMP']:
        I(f'{"s_memtime" if OPT["CYC"] and i in (4,5) else "s_memrealtime"} s[{60+2*i}:{61+2*i}]\ns_waitcnt lgkmcnt(0)')

def frag_lds(f):
    if f < 18: return XS + (f // 4) * 8192 + 4096 + (f % 4) * 1024
    g = f - 18
    return XS + (g // 4) * 8192 + (g % 4) * 1024
def row_lds(k): return XS + (4 + k // 4) * 8192 + (k % 4) * 1024

def bvc():
    return f'''s_add_u32 m0, s{sNP}, {XS+4096}
    s_add_u32 s{sTMP}, s{sNC}, 8192
    buffer_load_dwordx4 v{IDX+1}, {sr(sWS,4)}, s{sNC} offen lds
    s_add_u32 m0, s{sNP}, {XS+4096+16384}
    s_cmp_ge_u32 s{sW}, 2
    buffer_load_dwordx4 v{IDX+1}, {sr(sWS,4)}, s{sTMP} offen lds
    s_cbranch_scc1 M_NOW4
    s_add_u32 m0, s{sNP}, {XS+4096+32768}
    s_add_u32 s{sTMP}, s{sNC}, {16*1024}
    buffer_load_dwordx4 v{IDX+1}, {sr(sWS,4)}, s{sTMP} offen lds
M_NOW4:'''
def gen_main():
    header(MAIN)
    if OPT['AMP']: I('s_memrealtime s[74:75]')
    stamp(0)
    I(f"""
    s_cmp_ge_u32 s2, {NB}
    s_cbranch_scc1 M_END
    s_load_dwordx2 s[26:27], s[0:1], 72
    s_load_dwordx4 s[4:7], s[0:1], 0
    s_load_dwordx2 s[24:25], s[0:1], 56
    v_lshrrev_b32 v1, 6, v0
    v_and_b32 v2, 63, v0
    v_readfirstlane_b32 s{sW}, v1
    s_and_b32 s{sB}, s2, 7
    s_lshl_b32 s{sB}, s{sB}, 5
    s_lshr_b32 s{sTMP}, s2, 3
    s_add_u32 s{sB}, s{sB}, s{sTMP}
    v_lshrrev_b32 v3, 1, v0
    v_lshlrev_b32 v{IDX}, 4, v3
    v_lshlrev_b32 v{IDX+1}, 4, v2
    s_lshr_b32 s{sD}, s{sB}, 2
    s_lshl_b32 s{sD}, s{sD}, 10
    s_and_b32 s{sTMP}, s{sB}, 3
    s_add_u32 s{sD}, s{sD}, s{sTMP}
    s_lshl_b32 s{sD}, s{sD}, 2
    s_add_u32 s{sD}, s{sD}, {OFFS}
    s_mov_b32 s{sWS+2}, {WS_BYTES}
    s_mov_b32 s{sWS+3}, 0x20000
    s_lshr_b32 s{sTMP}, s{sW}, 2
    s_lshl_b32 s{sTMP}, s{sTMP}, 13
    s_and_b32 s{sTMP2}, s{sW}, 3
    s_lshl_b32 s{sTMP2}, s{sTMP2}, 10
    s_add_u32 s{sG0}, s{sTMP}, s{sTMP2}
    s_lshl_b32 s{sTMP2}, s{sW}, 10
    s_add_u32 s{sTMP2}, s{sTMP2}, {WF}
    s_waitcnt lgkmcnt(0)
    s_mov_b32 s{sWS}, s26
    s_mov_b32 s{sWS+1}, s27
    s_add_u32 m0, s{sG0}, {XS}
    buffer_load_dword v{vC}, v{IDX}, {sr(sWS,4)}, s{sD} offen
    s_add_u32 s{sTMP}, s{sTMP2}, {18*1024}
    buffer_load_dwordx4 v{IDX+1}, {sr(sWS,4)}, s{sTMP} offen lds
    s_add_u32 m0, s{sG0}, {XS+16384}
    s_add_u32 s{sTMP}, s{sTMP2}, {26*1024}
    buffer_load_dwordx4 v{IDX+1}, {sr(sWS,4)}, s{sTMP} offen lds
    s_mov_b32 s{sNP}, s{sG0}
    s_mov_b32 s{sNC}, s{sTMP2}
    {'' if OPT['WLATE'] else bvc()}
    v_lshrrev_b32 v{IDX+2}, 4, v2
    s_lshl_b32 s{sTMP}, s{sW}, 2
    v_add_u32 v{IDX+2}, s{sTMP}, v{IDX+2}
    v_xor_b32 v{IDX+2}, v{IDX+2}, v2
    v_and_b32 v{IDX+2}, 7, v{IDX+2}
    v_lshlrev_b32 v{IDX+2}, 4, v{IDX+2}
    v_lshrrev_b32 v{IDX+3}, 3, v2
    v_lshl_or_b32 v{IDX+2}, v{IDX+3}, 7, v{IDX+2}
    """)
    srd(sX, 4, N * 128)
    I(f"""
    s_cmp_ge_u32 s{sW}, 7
    s_cbranch_scc1 {'M_CPF' if OPT['CPF'] & 2 else 'M_NOROW'}
    s_lshl_b32 s{sTMP}, s{sW}, 10
    s_mul_i32 s{sTMP2}, s{sB}, {BN*128}
    s_add_u32 m0, s{sG0}, {XS+32768}
    s_add_u32 s{sTMP2}, s{sTMP2}, s{sTMP}
    buffer_load_dwordx4 v{IDX+2}, {sr(sX,4)}, s{sTMP2} offen lds
M_NOROW:
    s_add_u32 s{sOFP}, s26, s{sD}
    s_addc_u32 s{sOFP+1}, s27, 0
    v_cmp_gt_u32 vcc, {NCH}, v3
    v_mul_u32_u24 v{T1}, {CH}, v3
    v_and_b32 v{T2}, 1, v0
    v_lshlrev_b32 v{T2}, 2, v{T2}
    s_lshr_b32 s{sTMP}, s2, 3
    s_mul_i32 s{sTMP}, s{sTMP}, {391*128}
    v_min_u32 v1, 390, v0
    v_lshlrev_b32 v1, 7, v1
    s_mov_b32 s{sNN}, s{sTMP}
    s_waitcnt vmcnt({2 if OPT['WLATE'] else 4})
    v_cndmask_b32 v{vC}, 0, v{vC}, vcc
    v_and_b32 v{T0}, 0xffff, v{vC}
    v_lshrrev_b32 v{vC}, 16, v{vC}
    v_add3_u32 v{T0}, v{T0}, v{T1}, v{T2}
    v_cmp_lt_u32 {sr(sSAVE,2)}, {2*NSLOT}, v{vC}
    v_sub_u32 v{vC}, v{vC}, v{T2}
    v_lshlrev_b32 v{vEB}, 5, v{T0 if MOVE else T1}
    v_lshlrev_b32 v{T0}, 2, v{T0}
    v_cmp_lt_i32 vcc, 16, v{vC}
    v_cmp_lt_i32 {sr(52,2)}, 24, v{vC}
    buffer_load_dwordx4 {r(pREC,4)}, v{T0}, {sr(sWS,4)}, 0 offen
    buffer_load_dwordx4 {r(pREC+4,4)}, v{T0}, {sr(sWS,4)}, 0 offen offset:32
    s_mov_b32 s{sXR}, 0
    s_cmp_eq_u64 {sr(52,2)}, 0
    s_cbranch_scc1 M_RL3
    s_mov_b32 s{sXR}, 1
    buffer_load_dwordx4 {r(pREC+12,4)}, v{T0}, {sr(sWS,4)}, 0 offen offset:96
    buffer_load_dwordx4 {r(pREC+16,4)}, v{T0}, {sr(sWS,4)}, 0 offen offset:128
M_RL3:
    s_or_b64 vcc, vcc, 1
    s_mov_b64 exec, vcc
    buffer_load_dwordx4 {r(pREC+8,4)}, v{T0}, {sr(sWS,4)}, 0 offen offset:64
    s_mov_b64 exec, -1
    """)
    stamp(1)
    lds_init()
    if MOVE:
        I(f"""s_add_u32 s{sE}, s26, {PAY}
        s_addc_u32 s{sE+1}, s27, 0
        s_mov_b32 s{sE+2}, {E*32}
        s_mov_b32 s{sE+3}, 0x20000""")
    else:
        srd(sE, 6, E * 32)
    srd(sOUT, 24, N * 128)
    I(f"""
    v_lshlrev_b32 v{T0}, 4, v2
    s_lshr_b32 s{sTMP}, s{sW}, 2
    s_lshl_b32 s{sTMP}, s{sTMP}, 1
    s_and_b32 s{sTMP2}, s{sW}, 1
    s_add_u32 s{sTMP}, s{sTMP}, s{sTMP2}
    s_lshl_b32 s{sTMP}, s{sTMP}, 13
    s_add_u32 s{sTMP}, s{sTMP}, {XS}
    v_add_u32 v{IDX+2}, s{sTMP}, v{T0}
    v_and_b32 v{T1}, 31, v2
    v_lshlrev_b32 v{vLT}, 2, v{T1}
    v_add_u32 v{vLT}, {XAT}, v{vLT}
    v_lshrrev_b32 v{T2}, 5, v2
    v_bfe_u32 v{IDX}, v2, 1, 3
    v_xor_b32 v{IDX}, v{IDX}, v{T2}
    s_bfe_u32 s{sG0}, s{sW}, 0x10001
    s_lshl_b32 s{sTMP2}, s{sG0}, 13
    s_add_u32 s{sTMP}, s{sTMP2}, {row_lds(0)}
    v_lshlrev_b32 v{T1}, 7, v{T1}
    v_add_u32 v{T1}, s{sTMP}, v{T1}
    s_and_b32 s{sD}, s{sW}, 1
    s_lshl_b32 s{sD}, s{sD}, 7
    s_add_u32 s{sTMP2}, s{sTMP2}, s{sD}
    v_lshlrev_b32 v{T2}, 10, v{T2}
    v_add3_u32 v{T2}, v{T2}, v{vLT}, s{sTMP2}
    s_mov_b32 s{sD}, {NLOG2E}
    """)
    for s in range(4):
        I(f"""v_xor_b32 v{AF2+s}, {2*s}, v{IDX}
        v_lshl_add_u32 v{AF2+s}, v{AF2+s}, 4, v{T1}""")
    I(f"""
    v_mov_b32 v{vONE}, 1
    v_mov_b32 v{vFC}, 0xfc
    v_mov_b32 v{vINV}, v{T2}
    """)
    validate(0, 12)
    I('s_waitcnt vmcnt(3) lgkmcnt(0)\ns_barrier')
    if OPT['XPF'] == 2: I(f'buffer_load_dword v1, v1, {sr(sX,4)}, s{sNN} offen')
    for s in range(4):
        I(f'ds_read_b128 {r(pW+4*s,4)}, v{IDX+2} offset:{s*1024}\nds_read_b128 {r(pA+4*s,4)}, v{AF2+s}')
    for f in range(0 if OPT['WLATE'] else 18):
        I(f'ds_read_b128 {r(WB+4*f,4)}, v{IDX+1} offset:{frag_lds(f)}')
    I(f"""
    s_cmp_eq_u64 {sr(sSAVE,2)}, 0
    s_cbranch_scc1 M_NOFLAG
    v_mov_b32 v{T1}, {FLAG}
    ds_write_b32 v{T1}, v{vONE}
M_NOFLAG:
    s_mov_b32 s{sMASK}, {XSENT}
    s_mov_b32 s{sONE}, 1.0
    s_mov_b32 s{sONE+1}, 1.0
    s_mov_b32 s{sMODE}, 0
    s_lshl_b32 s{sM0X}, s{sW}, 13
    s_add_u32 s{sM0X}, s{sM0X}, {XS}
    s_lshl_b32 s{sM0E}, s{sW}, 11
    s_add_u32 s{sM0E}, s{sM0E}, {ES}
    s_waitcnt vmcnt({1 if OPT['XPF'] == 2 else 0}) lgkmcnt(0)
    """)
    stamp(2)
    fs = lambda s: thr(s) * 32
    fstamp(1)
    def mid():
        I(mf(pD, pA, pW, '0'))
        if OPT['WLATE']: I(bvc())
        if OPT['XPF'] == 1:
            I(f'buffer_load_dword v1, v1, {sr(sX,4)}, s{sNN} offen')
        for k in range(1, 4): I(mf(pD, pA+4*k, pW+4*k, r(pD, 16)))
    pass_a(0, 12, fs, mid)
    I(f's_cmp_ge_u32 s{sW}, 4\ns_cbranch_scc1 M_ADONE')
    for k in range(16):
        if k == 12: I(f's_cmp_lg_u32 s{sG0}, 0\ns_cbranch_scc1 M_ADONE')
        I(f'v_mul_f32 v{pD+k}, s{sD}, v{pD+k}\nds_write_b32 v{vINV}, v{pD+k} offset:{(8*(k//4)+k%4)*256}')
    I('M_ADONE:')
    fstamp(2)
    I(f's_cmp_eq_u32 s{sXR}, 0\ns_cbranch_scc0 M_RA\nM_RAR:')
    I('s_waitcnt lgkmcnt(0)\ns_barrier')
    fstamp(3)
    scan()
    fstamp(4)
    I(f"""
    s_cmp_gt_u32 s{sTMP}, {CAP}
    s_cbranch_scc1 M_SLOW
    s_cmp_lg_u32 s{sTMP2}, 0
    s_cbranch_scc1 M_SLOW
    s_cmp_eq_u32 s{sXR}, 0
    s_cbranch_scc0 M_RB
M_RBR:
    """)
    I(f'''
M_BATCH:
    ''')
    pass_b1(0, 12)
    I(f'''
    s_add_u32 s{sTMP}, s{sTMP}, 31
    s_lshr_b32 s{sTMP}, s{sTMP}, 5
    s_add_u32 s{sTW}, s{sTMP}, 7
    s_sub_u32 s{sTW}, s{sTW}, s{sW}
    s_lshr_b32 s{sTW}, s{sTW}, 3
    s_lshr_b32 s{sG0}, s{sTMP}, 3
    s_mul_i32 s{sG0}, s{sG0}, s{sW}
    s_and_b32 s{sTMP}, s{sTMP}, 7
    s_min_u32 s{sTMP}, s{sTMP}, s{sW}
    s_add_u32 s{sG0}, s{sG0}, s{sTMP}
    s_lshl_b32 s{sG0}, s{sG0}, 7
    s_add_u32 s{sG0}, s{sG0}, {LX}
    s_lshl_b32 s{sTMP2}, s{sTW}, 5
    v_lshrrev_b32 v{T0}, 4, v2
    v_mul_u32_u24 v{T0}, s{sTMP2}, v{T0}
    v_bfe_u32 v{T1}, v2, 3, 1
    v_lshl_add_u32 v{T0}, v{T1}, 4, v{T0}
    v_add_u32 v{vLX}, s{sG0}, v{T0}
    v_bfe_u32 v{T0}, v2, 3, 2
    v_mul_u32_u24 v{T0}, s{sTMP2}, v{T0}
    v_bfe_u32 v{T1}, v2, 2, 1
    v_lshl_add_u32 v{T0}, v{T1}, 4, v{T0}
    v_lshrrev_b32 v{T1}, 5, v2
    v_lshl_add_u32 v{T0}, v{T1}, 3, v{T0}
    v_bfe_u32 v{T1}, v2, 1, 1
    v_lshl_add_u32 v{T0}, v{T1}, 2, v{T0}
    v_add_u32 v{vLE}, s{sG0}, v{T0}
    s_sub_u32 s{sTMP}, s{sTW}, 1
    v_min_u32 v{T0}, s{sTMP}, v2
    v_lshlrev_b32 v{T0}, 5, v{T0}
    v_add_u32 v{T0}, s{sG0}, v{T0}
    v_add_u32 v{T1}, s{sTMP2}, v{T0}
    v_add_u32 v{T2}, s{sTMP2}, v{T1}
    v_add_u32 v{vSCH}, s{sTMP2}, v{T2}
    ''')
    I(f'''
    v_lshrrev_b32 v{vKE}, 4, v2
    v_xor_b32 v{vKE}, v{vKE}, v2
    v_and_b32 v{vKX0}, 7, v{vKE}
    v_lshlrev_b32 v{vKX0}, 4, v{vKX0}
    v_xor_b32 v{vKX1}, 64, v{vKX0}
    v_and_b32 v{vKE}, 1, v{vKE}
    v_lshlrev_b32 v{vKE}, 4, v{vKE}
    s_waitcnt lgkmcnt(0)''')
    pass_b2(0, 12)
    fstamp(5)
    I(f'''
    s_waitcnt vmcnt({1 if OPT['XPF'] == 1 else 0}) lgkmcnt(0)
    s_barrier
    ''')
    stamp(3)
    if OPT['NOX']: I(f's_mov_b32 s{sX+2}, 0')
    if OPT['NOE']: I(f's_mov_b32 s{sE+2}, 0')
    I(f'''
    ds_read_b128 {r(Z,4)}, v{vLX}
    ds_read_b32 v{Z+4}, v{vLE} offset:16384
    ds_read_b128 {r(Z+16,4)}, v{vLX} offset:32
    ds_read_b32 v{Z+20}, v{vLE} offset:{16384+32}
    ds_read_b32 v{T0}, v{T0}
    ds_read_b32 v{T1}, v{T1}
    ds_read_b32 v{T2}, v{T2}
    ds_read_b32 v{vSCH}, v{vSCH}
    ds_read_b128 {r(IDX,4)}, v{vLX} offset:64
    ds_read_b32 v{IDX+4}, v{vLE} offset:{16384+64}
    s_cmp_eq_u32 s{sTW}, 0
    s_waitcnt lgkmcnt(8)
    s_cbranch_scc1 M_NOT0
    ''')
    for g in dma_tile(Z, sM0X, sM0E, 0, 0): I('\n'.join(g))
    I(f'''
M_NOT0:
    s_waitcnt lgkmcnt(0)
    v_bfe_u32 v{T0}, v{T0}, 1, 6
    v_bfe_u32 v{T1}, v{T1}, 1, 6
    v_bfe_u32 v{T2}, v{T2}, 1, 6
    v_bfe_u32 v{vSCH}, v{vSCH}, 1, 6
    v_lshl_or_b32 v{T0}, v{T1}, 8, v{T0}
    v_lshl_or_b32 v{T0}, v{T2}, 16, v{T0}
    v_lshl_or_b32 v{vSCH}, v{vSCH}, 24, v{T0}
    v_add_u32 v{vLX}, 96, v{vLX}
    v_add_u32 v{vLE}, {16384+96}, v{vLE}
    v_readfirstlane_b32 s{sNC}, v{vSCH}
    s_mov_b32 s{sT}, 1
    s_nop 2
    s_mov_b32 s{sNP}, s{sNC}
    ''')
    for j in range(4):
        I(f'''s_bfe_u32 s{sTMP}, s{sNC}, {(6 << 16) | (8*j)}
        s_lshl_b32 s{sTMP}, s{sTMP}, 8
        v_add_u32 v{T0}, s{sTMP}, v{vLT}
        ds_read_b32 v{XA+4*j}, v{T0}
        ds_read_b32 v{XA+16+4*j}, v{T0} offset:128''')
    I(f'''
    s_cmp_eq_u32 s{sMODE}, 2
    s_cbranch_scc1 M_NOWT
    ''')
    if OPT['WLATE']:
        I(f'v_lshlrev_b32 v{vFC}, 4, v2')
        for f in range(18): I(f'ds_read_b128 {r(WB+4*f,4)}, v{vFC} offset:{frag_lds(f)}')
    I(f"""s_cmp_lt_u32 s{sW}, 4
    s_cbranch_scc1 M_TDONE
    s_bfe_u32 s{sXR}, s{sW}, 0x10001
    v_subrev_u32 v{vINV}, {XAT}, v{vINV}
    v_lshlrev_b32 v{vINV}, 1, v{vINV}
    v_add_u32 v{vINV}, {AGG}, v{vINV}
    """)
    for k in range(16):
        if k == 12: I(f's_cmp_lg_u32 s{sXR}, 0\ns_cbranch_scc1 M_TDONE')
        I(f'v_cvt_f64_f32 {r(AF+2*(k%8),2)}, v{pD+k}\nds_write_b64 v{vINV}, {r(AF+2*(k%8),2)} offset:{(8*(k//4)+k%4)*512}')
    I('M_TDONE:')
    j_, i_, h_, g_, t_, u_ = AF, AF+1, AF+2, AF+3, AF+4, AF+5
    I(f"""
    s_lshl_b32 s{sMODE}, s{sMODE}, 1
    v_lshlrev_b32 v{vLA}, 3, v2
    v_add_u32 v{vLA}, {AGG}, v{vLA}
    v_bfe_u32 v{j_}, v2, 3, 2
    v_and_b32 v{i_}, 3, v2
    v_lshrrev_b32 v{h_}, 5, v2
    v_lshrrev_b32 v{t_}, 1, v{j_}
    v_xor_b32 v{g_}, v{t_}, v{j_}
    v_lshrrev_b32 v{u_}, 2, v2
    v_xor_b32 v{g_}, v{g_}, v{u_}
    v_and_b32 v{g_}, 1, v{g_}
    v_xor_b32 v{t_}, v{t_}, v{h_}
    v_lshlrev_b32 v{t_}, 4, v{t_}
    v_lshl_or_b32 v{u_}, v{j_}, 2, v{i_}
    v_lshl_or_b32 v{u_}, v{g_}, 4, v{u_}
    v_lshl_or_b32 v{t_}, v{u_}, 5, v{t_}
    v_add_u32 v{vRE}, s{sM0E}, v{t_}
    v_and_b32 v{t_}, 1, v{i_}
    v_lshl_or_b32 v{u_}, v{g_}, 1, v{t_}
    v_lshlrev_b32 v{u_}, 3, v{u_}
    v_lshl_or_b32 v{u_}, v{j_}, 1, v{u_}
    v_lshrrev_b32 v{i_}, 1, v{i_}
    v_or_b32 v{u_}, v{u_}, v{i_}
    v_lshlrev_b32 v{u_}, 7, v{u_}
    v_add_u32 v{u_}, s{sM0X}, v{u_}
    v_lshl_or_b32 v{t_}, v{t_}, 2, v{j_}
    v_xor_b32 v{t_}, v{t_}, v{h_}
    """)
    for s in range(4):
        I(f"""v_xor_b32 v{g_}, {2*s}, v{t_}
        v_lshl_add_u32 v{vRA+s}, v{g_}, 4, v{u_}""")
    I('M_NOWT:')
    for k in range(8): I(f'v_mov_b64 {r(ACC+2*k,2)}, 0')
    I(f"""
    s_waitcnt lgkmcnt(0)
    s_barrier
    s_cmp_eq_u32 s{sTW}, 0
    s_cbranch_scc1 M_BDONE
    """)
    for ft in range(2):
        for j in range(4):
            for i in range(1, 4): I(f'v_mov_b32 v{XA+16*ft+4*j+i}, v{XA+16*ft+4*j}')
    g1 = dma_tile(Z+16, sM0X, sM0E, 4096, 1024)
    for g in g1: I(g[1])
    for g in dma_tile(IDX, sM0X, sM0E, 0, 0): I(g[1])
    I('s_waitcnt vmcnt(0)')
    I(f'ds_read_b128 {r(AF+16,4)}, v{vRE}')
    for s in range(4): I(f'ds_read_b128 {r(AF+4*s,4)}, v{vRA+s}')
    I(f's_cmp_lt_u32 s{sTW}, 2\ns_cbranch_scc1 M_NOT1')
    for g in g1: I(g[0] + '\ns_nop 0\n' + g[2])
    I('M_NOT1:\ns_waitcnt lgkmcnt(0)')
    for m in zm(0): I(m)
    I('s_nop 7\ns_nop 3')
    if OPT['DLY'] == 1:
        I(f's_cmp_lt_u32 s{sW}, 4\ns_cbranch_scc1 M_NODLY\ns_sleep {OPT["DLYN"]}\nM_NODLY:')
    if OPT['DLY'] == 2:
        I(f'''s_bfe_u32 s{sTMP}, s2, 0x20003
M_DL:
        s_cmp_eq_u32 s{sTMP}, 0
        s_cbranch_scc1 M_NODLY
        s_sleep {OPT["DLYN"]}
        s_sub_u32 s{sTMP}, s{sTMP}, 1
        s_branch M_DL
M_NODLY:''')
    stamp(4)
    I('.p2align 6')
    for p in range(2 if OPT['LOOP'] == 2 else 0):
        nb = 1 - p
        afc, afn = (AF, AF2) if p == 0 else (AF2, AF)
        PB = OPT['PB']
        I(f'''
M_LOOP{p}:
    {TR(0)}
    s_xor_b32 s{sD}, s{sNP}, s{sNC}
    {';' if OPT['NOEV'] else ''}s_cbranch_scc1 M_FL{p}
M_FLR{p}:
    {'' if OPT['LATE0'] else 's_setprio 0'}
    s_add_u32 s{sTMP}, s{sT}, 1
    s_cmp_lt_u32 s{sTMP}, s{sTW}
    s_cbranch_scc0 M_ND{p}
        ''')
        g = dma_tile(IDX, sM0X, sM0E, p*4096, p*1024)
        I(g[0][0])
        for q in range(5):
            I('s_nop 0' if q == 0 else g[q][0])
            if q > 0: I('s_nop 0')
            I(g[q][2])
        I(f'M_ND{p}:')
        def eblk(ft, extra):
            if OPT['LATE0']: I('s_setprio 0')
            hv = hm(ft, afc)
            ES_, EF = OPT['ES'], OPT['EF']
            ins = {}
            for k in range(4): ins.setdefault(EF + ES_*k, []).append(hv[k])
            if OPT['PPOS'] == 0 and EF == 0: ins[0].append(f's_setprio {PB}')
            else: ins.setdefault(max(1, OPT['PPOS']), []).insert(0, f's_setprio {PB}')
            if OPT['PB2'] >= 0: ins.setdefault(OPT['P2POS'], []).insert(0, f's_setprio {OPT["PB2"]}')
            for k, v in extra.items(): ins.setdefault(k, []).extend(v)
            I('\n'.join(weave(exps(ft), ins)))
        eblk(0, {11: [f'v_readlane_b32 s{sNN}, v{vSCH}, s{sT}']})
        I('\n'.join(pkadd(0)))
        zz = zm(1, afc)
        I('\n'.join(weave(rcps(0), {0: [zz[0]], 3: [zz[1]], 6: [zz[2]], 9: [zz[3]], 12: [zz[4]]})))
        I('\n'.join(pkf(0)))
        I(f'''
    s_xor_b32 s{sD}, s{sNC}, s{sNN}
    {';' if OPT['NOEV'] else ''}s_cbranch_scc1 M_XA{p}
M_XAR{p}:
    {'' if OPT['LATE0'] else 's_setprio 0'}
    s_add_u32 s{sTMP}, s{sT}, 1
    s_cmp_lt_u32 s{sTMP}, s{sTW}
    s_cbranch_scc0 M_WZ{p}
    s_waitcnt vmcnt(5)
M_WZR{p}:
        ''')
        I(f'ds_read_b128 {r(AF+16,4)}, v{vRE} offset:{nb*1024}')
        for s_ in range(4): I(f'ds_read_b128 {r(afn+4*s_,4)}, v{vRA+s_} offset:{nb*4096}')
        I(f'ds_read_b128 {r(IDX,4)}, v{vLX}\nds_read_b32 v{IDX+4}, v{vLE}')
        if OPT['WOUT']: I('s_waitcnt lgkmcnt(0)')
        eblk(1, {})
        I('\n'.join(pkadd(1)))
        zz = zm(0, afn)
        if not OPT['WOUT']: I('s_waitcnt lgkmcnt(0)')
        I('\n'.join(weave(rcps(1), {0: [zz[0]], 3: [zz[1]], 6: [zz[2]], 9: [zz[3]], 12: [zz[4]]})))
        I('\n'.join(pkf(1)))
        for q in range(5): I(g[q][1])
        I(f'''
    v_add_u32 v{vLX}, 32, v{vLX}
    v_add_u32 v{vLE}, 32, v{vLE}
    s_mov_b32 s{sNP}, s{sNC}
    s_mov_b32 s{sNC}, s{sNN}
    s_add_u32 s{sT}, s{sT}, 1
    s_cmp_le_u32 s{sT}, s{sTW}''')
        I('s_cbranch_scc0 M_LEND' if p == 0 else 's_cbranch_scc1 M_LOOP0')
    for p in range(2 if OPT['LOOP'] == 1 else 0):
        nb = 1 - p
        I(f'''
M_LOOP{p}:
    {TR(0)}
    s_xor_b32 s{sD}, s{sNP}, s{sNC}
    {';' if OPT['NOEV'] else ''}s_cbranch_scc1 M_FL{p}
M_FLR{p}:
        ''')
        hv = hm(0)
        I('\n'.join(weave(exps(0), {0: [hv[0]], 3: [hv[1]], 6: [hv[2]], 9: [hv[3]],
                                    11: [f'v_readlane_b32 s{sNN}, v{vSCH}, s{sT}']})))
        I('\n'.join(pkadd(0)))
        zz = zm(1)
        I('\n'.join(weave(rcps(0), {0: [zz[0]], 3: [zz[1]], 6: [zz[2]], 9: [zz[3]], 12: [zz[4]]})))
        I('\n'.join(pkf(0)))
        I(f'''
    s_xor_b32 s{sD}, s{sNC}, s{sNN}
    {';' if OPT['NOEV'] else ''}s_cbranch_scc1 M_XA{p}
M_XAR{p}:
    s_add_u32 s{sTMP}, s{sT}, 1
    s_cmp_lt_u32 s{sTMP}, s{sTW}
    s_cbranch_scc0 M_WZ{p}
    s_waitcnt vmcnt(5)
M_WZR{p}:
        ''')
        hv = hm(1)
        rd = [f'ds_read_b128 {r(AF+4*s,4)}, v{vRA+s} offset:{nb*4096}' for s in range(4)]
        if OPT['NODS']:
            I('\n'.join(weave(exps(1), {0: [hv[0]], 3: [hv[1]], 6: [hv[2]], 9: [hv[3]]})))
        else: I('\n'.join(weave(exps(1), {
            0: [hv[0], rd[0]],
            1: [f'ds_read_b128 {r(AF+16,4)}, v{vRE} offset:{nb*1024}'],
            3: [hv[1], rd[1]],
            4: [f'ds_read_b128 {r(IDX,4)}, v{vLX}'],
            6: [hv[2], rd[2]],
            7: [f'ds_read_b32 v{IDX+4}, v{vLE}'],
            9: [hv[3], rd[3]],
        })))
        I('\n'.join(pkadd(1)))
        zz = zm(0)
        I(f'''
    s_add_u32 s{sTMP}, s{sT}, 2
    s_cmp_lt_u32 s{sTMP}, s{sTW}
    s_waitcnt lgkmcnt(0)
    s_cbranch_scc0 M_ND{p}
        ''')
        g = dma_tile(IDX, sM0X, sM0E, nb*4096, nb*1024)
        if OPT['NODMA']: g = [x[:2] for x in g]
        I('\n'.join(weave(rcps(1), {
            0: [zz[0]], 1: g[0], 3: [zz[1]], 4: g[1], 6: [zz[2]], 7: g[2], 9: [zz[3]], 10: g[3], 12: [zz[4]], 13: g[4],
            14: [f'v_add_u32 v{vLX}, 32, v{vLX}'], 15: [f'v_add_u32 v{vLE}, 32, v{vLE}']})))
        I(f'M_NDR{p}:')
        I('\n'.join(pkf(1)))
        I(f'''
    s_mov_b32 s{sNP}, s{sNC}
    s_mov_b32 s{sNC}, s{sNN}
    s_add_u32 s{sT}, s{sT}, 1
    s_cmp_le_u32 s{sT}, s{sTW}''')
        if p == 0:
            I('s_cbranch_scc0 M_LEND')
        else:
            I('s_cbranch_scc1 M_LOOP0')
    I('M_LEND:')
    I(TR(0))
    I('s_setprio 0')
    for j in range(4): flush_j(j, sNP)
    I(f'''
M_BDONE:
    s_cmp_lg_u32 s{sMODE}, 0
    s_cbranch_scc1 M_SNEXT
M_EPI:
    ''')
    stamp(5)
    I(f'''
    s_waitcnt lgkmcnt(0)
    s_barrier
    v_cmp_gt_u32 vcc, {BN*8}, v0
    s_and_saveexec_b64 {sr(sSAVE,2)}, vcc
    s_cbranch_execz M_FIN
    v_lshlrev_b32 v{T0}, 6, v0
    v_add_u32 v{T0}, {AGG}, v{T0}
    ds_read_b128 {r(Z+16,4)}, v{T0}
    ds_read_b128 {r(Z+20,4)}, v{T0} offset:16
    ds_read_b128 {r(Z+24,4)}, v{T0} offset:32
    ds_read_b128 {r(Z+28,4)}, v{T0} offset:48
    s_mov_b32 s{sTMP}, {NLOG2E}
    s_mul_i32 s{sTMP2}, s{sB}, {BN*128}
    v_lshlrev_b32 v{T1}, 4, v0
    s_waitcnt lgkmcnt(0)
    ''')
    for k in range(8): I(f'v_cvt_f32_f64 v{Z+k}, {r(Z+16+2*k,2)}')
    for k in range(8): I(f'v_mul_f32 v{Z+8+k}, s{sTMP}, v{Z+k}')
    for k in range(8): I(f'v_exp_f32 v{Z+8+k}, v{Z+8+k}')
    for k in range(8): I(f'v_add_f32 v{Z+8+k}, 1.0, v{Z+8+k}')
    for k in range(8): I(f'v_rcp_f32 v{Z+8+k}, v{Z+8+k}')
    for k in range(8): I(f'v_mul_f32 v{Z+k}, v{Z+k}, v{Z+8+k}')
    for k in range(4): I(f'v_cvt_pk_bf16_f32 v{Z+16+k}, v{Z+2*k}, v{Z+2*k+1}')
    I(f'buffer_store_dwordx4 {r(Z+16,4)}, v{T1}, {sr(sOUT,4)}, s{sTMP2} offen')
    I('M_FIN:')
    if OPT['AMP']:
        I(f'''s_cmp_lg_u32 s2, 0
        s_cbranch_scc1 M_END
        s_cmp_lg_u32 s{sW}, 0
        s_cbranch_scc1 M_END
        s_waitcnt vmcnt(0)
        s_memrealtime s[60:61]
        s_add_u32 s56, s26, {WF + 0x10000}
        s_addc_u32 s57, s27, 0
        s_load_dword s58, s[56:57], 0
        s_waitcnt lgkmcnt(0)''')
        if OPT['AMP'] == 2: I('s_mov_b32 s60, s74')
        if OPT['AMP'] == 3: I('s_mov_b32 s58, s74')
        if OPT['AMP'] >= 10: I('s_mov_b32 s58, s74\ns_mov_b32 s60, s72')
        I(f'''s_sub_u32 s59, s60, s58
        s_min_u32 s59, s59, 20000
        s_mul_i32 s59, s59, 10
        s_memrealtime s[60:61]
        s_waitcnt lgkmcnt(0)
        s_mov_b32 s58, s60
M_SPIN:
        s_memrealtime s[60:61]
        s_waitcnt lgkmcnt(0)
        s_sub_u32 s62, s60, s58
        s_cmp_lt_u32 s62, s59
        s_cbranch_scc1 M_SPIN''')
    if OPT['DBG']: dbgdump(7, 6)
    elif OPT['STAMP']:
        I(f'''s_mov_b64 exec, 1
        s_memrealtime s[72:73]
        s_load_dwordx2 s[4:5], s[0:1], 72
        s_waitcnt lgkmcnt(0) vmcnt(0)
        s_add_u32 s52, s4, 0x8000000
        s_addc_u32 s53, s5, 0
        s_mov_b32 s54, 0x100000
        s_mov_b32 s55, 0x20000
        s_lshl_b32 s56, s2, 3
        s_add_u32 s56, s56, s{sW}
        s_lshl_b32 s56, s56, 5
        v_mov_b32 v1, 0''')
        for i in range(7): I(f'v_mov_b32 v{8+i}, s{60+2*i}')
        I(f'''v_mov_b32 v15, s{sTW}
        buffer_store_dwordx4 v[8:11], v1, s[52:55], s56 offen
        buffer_store_dwordx4 v[12:15], v1, s[52:55], s56 offen offset:16''')
        if OPT['TRACE']:
            I(f'''s_mov_b64 exec, -1
            s_lshl_b32 s56, s56, 3
            s_add_u32 s56, s56, 0x20000
            v_lshlrev_b32 v1, 2, v2
            buffer_store_dword v{vTR}, v1, s[52:55], s56 offen''')
    I('M_END:\ns_endpgm')
    for p in range(2):
        I(f'M_FL{p}:')
        if OPT['LOOP'] == 2: I(f's_setprio {OPT["PE"]}')
        for j in range(4):
            I(f's_and_b32 s{sTMP}, s{sD}, {0xff << (8*j)}\ns_cbranch_scc0 M_FL{p}_{j}')
            flush_j(j, sNP)
            I(f'M_FL{p}_{j}:')
        I(f's_branch M_FLR{p}')
        I(f'M_XA{p}:')
        if OPT['LOOP'] == 2: I(f's_setprio {OPT["PE"]}')
        for j in range(4):
            I(f's_and_b32 s{sTMP}, s{sD}, {0xff << (8*j)}\ns_cbranch_scc0 M_XA{p}_{j}')
            xa_j(j, sNN)
            I(f'M_XA{p}_{j}:')
        I(f's_branch M_XAR{p}')
        I(f'M_WZ{p}:\ns_waitcnt vmcnt(0)\ns_branch M_WZR{p}')
        if OPT['LOOP'] == 1:
            I(f'M_ND{p}:')
            zz = zm(0)
            I('\n'.join(weave(rcps(1), {0: [zz[0]], 3: [zz[1]], 6: [zz[2]], 9: [zz[3]], 12: [zz[4]]})))
            I(f's_branch M_NDR{p}')
    if OPT['CPF'] & 2:
        I(f'''M_CPF:
        s_getpc_b64 s[52:53]
M_PC:
        s_sub_u32 s52, s52, M_PC-{MAIN}
        s_subb_u32 s53, s53, 0
        v_lshlrev_b32 v{AF}, 7, v2
        v_min_u32 v{AF+1}, M_SLOW-{MAIN}-8196, v{AF}
        v_add_u32 v{AF+1}, 8192, v{AF+1}
        global_load_dword v{AF+8}, v{AF}, s[52:53]
        global_load_dword v{AF+8}, v{AF+1}, s[52:53]
        s_branch M_NOROW''')
    I('M_RA:')
    validate(12, 20)
    pass_a(12, 20, fs)
    I('s_branch M_RAR')
    I('M_RB:')
    pass_b1(12, 20)
    I('s_waitcnt lgkmcnt(0)')
    pass_b2(12, 20)
    validate(0, 8)
    I('s_nop 3\ns_branch M_RBR')
    I(f'''
M_SLOW:
    s_mov_b32 s{sMODE}, 1
    s_mov_b32 s{sSEG}, -1
M_SNEXT:
    s_add_u32 s{sSEG}, s{sSEG}, 1
    s_cmp_ge_u32 s{sSEG}, {NCH}
    s_cbranch_scc1 M_EPI
    s_lshl_b32 s{sTMP}, s{sSEG}, 4
    s_load_dword s{sD}, {sr(sOFP,2)}, s{sTMP}
    s_waitcnt lgkmcnt(0)
    s_lshr_b32 s{sTMP2}, s{sD}, 16
    s_cmp_eq_u32 s{sTMP2}, 0
    s_cbranch_scc1 M_SNEXT
    s_barrier
    ''')
    lds_init()
    I(f'''
    s_and_b32 s{sD}, s{sD}, 0xffff
    s_mul_i32 s{sTMP}, s{sSEG}, {CH}
    s_add_u32 s{sD}, s{sD}, s{sTMP}
    v_add_u32 v{T0}, s{sD}, v0
    v_mov_b32 v{T1}, s{sTMP}
    v_lshlrev_b32 v{vEB}, 5, v{T0 if MOVE else T1}
    v_lshlrev_b32 v{T0}, 2, v{T0}
    v_sub_u32 v{vC}, s{sTMP2}, v0
    v_add_u32 v{vC}, 511, v{vC}
    v_ashrrev_i32 v{vC}, 9, v{vC}
    v_cmp_lt_i32 vcc, 4, v{vC}
    v_add_u32 v{T1}, 4, v{vC}
    s_nop 0
    v_cndmask_b32 v{vC}, v{vC}, v{T1}, vcc
    ''')
    for s in range(7):
        I(f'buffer_load_dword v{pREC+s}, v{T0}, {sr(sWS,4)}, 0 offen')
        if s < 6: I(f'v_add_u32 v{T0}, 2048, v{T0}')
    I('s_waitcnt vmcnt(0) lgkmcnt(0)\ns_barrier')
    validate(0, 12)
    I(f'v_mov_b32 v{vFC}, 0xfc')
    pass_a(0, 12, lambda s: s * 16384)
    I('s_waitcnt lgkmcnt(0)\ns_barrier')
    scan()
    I('s_branch M_BATCH')
    I('M_CODE_END:')

def kd(name, vgpr, sgpr):
    return f'''.amdhsa_kernel {name}
  .amdhsa_next_free_vgpr {vgpr}
  .amdhsa_next_free_sgpr {sgpr}
  .amdhsa_accum_offset {(vgpr+3)//4*4}
  .amdhsa_group_segment_fixed_size 0
  .amdhsa_kernarg_size 80
  .amdhsa_user_sgpr_count 2
  .amdhsa_user_sgpr_kernarg_segment_ptr 1
  .amdhsa_system_sgpr_workgroup_id_x 1
.end_amdhsa_kernel
'''

HEAD = open('gather_scatter__edge_featured_mpnn_egc__graph.s.ref').read().split('; Override')[0]
gen_part()
gen_main()
if OPT['EXTRA']:
    header('nop_kernel'); I('s_endpgm')
out = HEAD + f'''; Two launches: part_kernel bins the edges by destination bucket, the main kernel does the rest.
{'; @launch kernel=nop_kernel grid=(1,1,1) block=(64,1,1) lds=0'+chr(10) if OPT['EXTRA']==1 else ''}; @launch kernel=part_kernel grid=({NCH+5},1,1) block=(512,1,1) lds={K1_LDS}
{'; @launch kernel=nop_kernel grid=(1,1,1) block=(64,1,1) lds=0'+chr(10) if OPT['EXTRA']==2 else ''}; @launch kernel={MAIN} grid=({NB},1,1) block=(512,1,1) lds={M_LDS}
{'; @launch kernel=nop_kernel grid=(1,1,1) block=(64,1,1) lds=0'+chr(10) if OPT['EXTRA']==3 else ''}.amdgcn_target "amdgcn-amd-amdhsa--gfx950"
.text
''' + '\n'.join(L) + '''
.section .rodata,"a"
.p2align 6
''' + kd('part_kernel', 88, 80) + '.p2align 6\n' + kd(MAIN, NV+(8 if OPT['TRACE'] else 0), 102) + ('.p2align 6\n' + kd('nop_kernel', 8, 8) if OPT['EXTRA'] else '')
open(sys.argv[1], 'w').write(out)
```

```python
import sys, struct

OPT = dict(MOVE=0, E_AUX='', K1_LD_AUX='', K1_ST_AUX='sc1', PAY_ST_AUX='', STAMP=0, PRIO=0, NOX=0, NOE=0, CYC=0, PKA=1, PKF=1, NOEV=0, NODMA=0, NODS=0, NOVM=0, TRACE=0, XPF=1, K1SLEEP=0, EXTRA=0, DBG=0, NOHV=0, NOZ=0, NOTR=0, LOOP=2, PB=1, PE=3, PB2=2, WOUT=1, ES=3, EF=3, PPOS=0, P2POS=8, AMP=0, FINE=0, WLATE=1, CPF=1, OFF_ST_AUX='sc1', K1SPLIT=1, NOPK=0, LATE0=0, YP=0, DLY=0, DLYN=0, EPF=0, EPF_AUX='', IDLE=0, IDLEK=99, PRE=0, PREPOS=0, STAG=4, DELTA=6, INL=1)
for a in sys.argv[2:]:
    k, v = a.split('=')
    OPT[k] = int(v) if v.lstrip('-').isdigit() else v.replace('_', ' ')
MOVE = OPT['MOVE']

N, E = 12500, 800000
NB, BN = 256, 49
NCH, CH = 250, 3200
REC, OFFS, WF, PAY = 0, 0x400000, 0x480000, 0x800000
WS_BYTES = PAY + E * 32
NFRAG = 34
NLOG2E = struct.unpack('<I', struct.pack('<f', -1.4426950408889634))[0]
MAIN = 'gather_scatter__edge_featured_mpnn_egc__graph_kernel'

L = []
def I(s):
    for ln in s.strip('\n').split('\n'):
        ln = ln.strip()
        if ln:
            L.append(ln if ln.endswith(':') else '    ' + ln)
def r(a, n): return f'v[{a}:{a+n-1}]'
def sr(a, n): return f's[{a}:{a+n-1}]'
def srd(d, base, nbytes):
    I(f'''s_mov_b32 s{d}, s{base}
    s_mov_b32 s{d+1}, s{base+1}
    s_mov_b32 s{d+2}, {nbytes}
    s_mov_b32 s{d+3}, 0x20000''')
def dpp_scan(v):
    for ctl in ('row_shr:1', 'row_shr:2', 'row_shr:4', 'row_shr:8'):
        I(f's_nop 1\nv_add_u32_dpp v{v}, v{v}, v{v} {ctl} row_mask:0xf bank_mask:0xf bound_ctrl:1')
    I(f's_nop 1\nv_add_u32_dpp v{v}, v{v}, v{v} row_bcast:15 row_mask:0xa bank_mask:0xf')
    I(f's_nop 1\nv_add_u32_dpp v{v}, v{v}, v{v} row_bcast:31 row_mask:0xc bank_mask:0xf')
def header(name):
    I(f'.globl {name}\n.p2align 8\n.type {name},@function\n{name}:')

K1_HIST, K1_BASE, K1_SORT, K1_SORTE, K1_EIMG = 0, 1024, 2048, 14848, 27648
K1_LDS = (K1_EIMG + CH * 32) if MOVE else K1_SORTE

def kstamp(i):
    if OPT['STAMP']: I(f's_memrealtime s[{60+2*i}:{61+2*i}]\ns_waitcnt lgkmcnt(0)')
def dbgdump(n, last):
    I(f'''s_waitcnt vmcnt(0)
    s_memrealtime s[{60+2*last}:{61+2*last}]
    s_load_dwordx2 s[52:53], s[0:1], 64
    s_mov_b64 exec, 1
    s_waitcnt lgkmcnt(0)
    s_mov_b32 s54, 256
    s_mov_b32 s55, 0x20000
    v_mov_b32 v1, 0''')
    for i in range(n):
        I(f'''v_mov_b32 v8, s{60+2*i}
        buffer_atomic_umax v8, v1, s[52:55], 0 offen offset:{4*i}
        v_not_b32 v9, s{60+2*i}
        buffer_atomic_umax v9, v1, s[52:55], 0 offen offset:{32+4*i}
        s_waitcnt vmcnt(0)''')
def kdump():
    if OPT['DBG']:
        dbgdump(6, 5); return
    if OPT['STAMP']:
        I(f'''; K1STAMP
        s_waitcnt vmcnt(0)
        s_memrealtime s[70:71]
        s_mov_b64 exec, 1
        s_waitcnt lgkmcnt(0)
        s_add_u32 s52, s24, 0x8100000
        s_addc_u32 s53, s25, 0
        s_mov_b32 s54, 0x100000
        s_mov_b32 s55, 0x20000
        s_lshl_b32 s56, s2, 3
        s_add_u32 s56, s56, s28
        s_lshl_b32 s56, s56, 5
        v_mov_b32 v1, 0''')
        for i in range(8): I(f'v_mov_b32 v{8+i}, s{60+2*min(i,5)}')
        I('''buffer_store_dwordx4 v[8:11], v1, s[52:55], s56 offen
        buffer_store_dwordx4 v[12:15], v1, s[52:55], s56 offen offset:16''')
def gen_part():
    header('part_kernel')
    if OPT['AMP']: I('s_memrealtime s[74:75]')
    kstamp(0)
    D, S, B4, RK, RC, EL = 8, 16, 24, 32, 40, 48
    I(f'''
    s_cmp_ge_u32 s2, {NCH+5}
    s_cbranch_scc1 P_END
    s_load_dwordx4 s[4:7], s[0:1], 16
    s_load_dwordx2 s[24:25], s[0:1], 72
    s_load_dwordx2 s[26:27], s[0:1], 8
    v_lshrrev_b32 v3, 6, v0
    v_lshlrev_b32 v1, 2, v0
    v_readfirstlane_b32 s28, v3
    s_cmp_ge_u32 s2, {NCH}
    s_cbranch_scc1 P_PREP
    v_mov_b32 v2, 0
    ds_write_b32 v1, v2
    v_lshlrev_b32 v4, 4, v0
    v_lshlrev_b32 v5, 3, v0
    v_add_u32 v5, 8192, v5
    v_add_u32 v6, 12288, v1
    s_mul_i32 s29, s2, {CH*4}
    s_waitcnt lgkmcnt(0)
    ''')
    srd(8, 4, E * 4); srd(12, 6, E * 4); srd(16, 24, WS_BYTES)
    if OPT['AMP']:
        I(f'''s_cmp_lg_u32 s2, 0
        s_cbranch_scc1 P_NOAMP
        s_cmp_lg_u32 s28, 0
        s_cbranch_scc1 P_NOAMP
        v_mov_b32 v80, s74
        v_mov_b32 v81, {WF + 0x10000}
        buffer_store_dword v80, v81, s[16:19], 0 offen
P_NOAMP:''')
    ax = OPT['K1_LD_AUX']
    SPL = OPT['K1SPLIT'] and not MOVE
    srcld = f'''buffer_load_dwordx4 {r(S,4)}, v4, s[8:11], s29 offen {ax}
    buffer_load_dwordx2 {r(S+4,2)}, v5, s[8:11], s29 offen {ax}
    buffer_load_dword v{S+6}, v6, s[8:11], s29 offen {ax}'''
    I(f'''
    s_cmp_ge_u32 s28, 2
    s_cbranch_scc1 P_NO6A
    buffer_load_dword v{D+6}, v6, s[12:15], s29 offen {ax}
    {'' if SPL else f'buffer_load_dword v{S+6}, v6, s[8:11], s29 offen {ax}'}
P_NO6A:
    buffer_load_dwordx4 {r(D,4)}, v4, s[12:15], s29 offen {ax}
    buffer_load_dwordx2 {r(D+4,2)}, v5, s[12:15], s29 offen {ax}
    ''')
    if not SPL:
        I(f'''buffer_load_dwordx4 {r(S,4)}, v4, s[8:11], s29 offen {ax}
        buffer_load_dwordx2 {r(S+4,2)}, v5, s[8:11], s29 offen {ax}''')
    if MOVE:
        srd(20, 26, E * 32)
        I(f'''
        v_and_b32 v7, 63, v0
        v_lshlrev_b32 v7, 4, v7
        s_mul_i32 s30, s2, {CH*32}
        s_lshl_b32 s31, s28, 10
        s_add_u32 s30, s30, s31
        s_add_u32 s31, s31, {K1_EIMG}
        ''')
        for n in range(13):
            if n == 12:
                I('s_cmp_ge_u32 s28, 4\ns_cbranch_scc1 P_NO13')
            I(f'''s_mov_b32 m0, s31
            s_add_u32 s31, s31, 8192
            buffer_load_dwordx4 v7, s[20:23], s30 offen {ax} lds
            s_add_u32 s30, s30, 8192''')
        I('P_NO13:')
    sh = 14
    I(f'''
    v_lshlrev_b32 v56, {2+sh}, v0
    v_lshlrev_b32 v57, {1+sh}, v0
    v_add_u32 v57, {2048 << sh}, v57
    v_lshlrev_b32 v58, {sh}, v0
    v_add_u32 v58, {3072 << sh}, v58
    v_mov_b32 v59, 1
    s_mov_b32 s32, {-BN & 0xffffffff}
    s_mov_b32 s33, {1 << sh}
    s_mov_b32 s34, {2 << sh}
    s_mov_b32 s35, {3 << sh}
    s_barrier
    ''')
    if SPL:
        I(f's_cmp_ge_u32 s28, 2\ns_cselect_b32 s37, 0x40000000, 0\nv_or_b32 v6, s37, v6')
        I(srcld)
    kstamp(1)
    I(f's_waitcnt vmcnt({12 if MOVE else (3 if SPL else 0)})')
    kstamp(2)
    def slot(k):
        I(f'''v_mul_u32_u24 v{B4+k}, 21400, v{D+k}
        v_lshrrev_b32 v{B4+k}, 20, v{B4+k}
        v_mad_i32_i24 v{RC+k}, v{B4+k}, s32, v{D+k}
        v_lshlrev_b32 v{B4+k}, 2, v{B4+k}
        ds_add_rtn_u32 v{RK+k}, v{B4+k}, v59''')
    def rec(k):
        eb = 56 if k < 4 else (57 if k < 6 else 58)
        kk = k if k < 4 else (k - 4 if k < 6 else 0)
        ks = '0' if kk == 0 else f's{32+kk}'
        I(f'''v_lshl_or_b32 v{RC+k}, v{RC+k}, 26, v{S+k}
        v_add3_u32 v{RC+k}, v{RC+k}, v{eb}, {ks}''')
        if MOVE:
            I(f'''v_bfe_u32 v{EL+k}, v{RC+k}, 14, 12
            v_lshlrev_b32 v{EL+k}, 5, v{EL+k}''')
    if OPT['EPF'] == 1:
        srd(20, 26, E * 32)
        I(f'''v_lshlrev_b32 v80, 7, v0
        s_mul_i32 s30, s2, {CH*32}
        v_add_u32 v81, 65536, v80
        v_min_u32 v81, {CH*32-128}, v81
        buffer_load_dword v87, v80, s[20:23], s30 offen {OPT['EPF_AUX']}
        buffer_load_dword v87, v81, s[20:23], s30 offen {OPT['EPF_AUX']}''')
    for k in range(6): slot(k)
    I('s_cmp_ge_u32 s28, 2\ns_cbranch_scc1 P_NO6B')
    slot(6)
    I(f'''
P_NO6B:
    v_and_b32 v60, 63, v0
    v_lshlrev_b32 v60, 4, v60
    s_waitcnt lgkmcnt(0)
    s_barrier
    ds_read_b128 v[64:67], v60
    s_waitcnt lgkmcnt(0)
    v_add_u32 v69, v64, v65
    v_add_u32 v70, v69, v66
    v_add_u32 v71, v70, v67
    v_mov_b32 v72, v71
    ''')
    dpp_scan(72)
    I(f'''
    v_sub_u32 v68, v72, v71
    v_add_u32 v71, v68, v70
    v_add_u32 v70, v68, v69
    v_add_u32 v69, v68, v64
    ds_write_b128 v60, v[68:71] offset:{K1_BASE}
    s_waitcnt lgkmcnt(0)
    ''')
    for k in range(6):
        I(f'ds_read_b32 v{D+k}, v{B4+k} offset:{K1_BASE}')
    if SPL: I(f's_waitcnt vmcnt({2 if OPT["EPF"] == 1 else 0})')
    I(f'''
    s_cmp_lg_u32 s28, 4
    s_cbranch_scc1 P_NOOFF
    v_lshl_or_b32 v64, v64, 16, v68
    v_lshl_or_b32 v65, v65, 16, v69
    v_lshl_or_b32 v66, v66, 16, v70
    v_lshl_or_b32 v67, v67, 16, v71
    v_lshlrev_b32 v61, 8, v60
    s_lshl_b32 s36, s2, 4
    s_add_u32 s36, s36, {OFFS}
    buffer_store_dwordx4 v[64:67], v61, s[16:19], s36 offen {OPT['OFF_ST_AUX']}
P_NOOFF:
    ''')
    for k in range(7): rec(k)
    if OPT['CPF'] & 1:
        I(f'''s_cmp_lg_u32 s28, 7
        s_cbranch_scc1 P_NOCPF
        s_cmp_ge_u32 s2, 32
        s_cbranch_scc1 P_NOCPF
        s_getpc_b64 s[40:41]
P_PC:
        s_add_u32 s40, s40, {MAIN}-P_PC
        s_addc_u32 s41, s41, 0
        v_and_b32 v82, 63, v0
        v_lshlrev_b32 v82, 7, v82
        v_min_u32 v83, M_CODE_END-{MAIN}-8196, v82
        v_add_u32 v83, 8192, v83
        global_load_dword v86, v82, s[40:41]
        global_load_dword v86, v83, s[40:41]''')
        if OPT['CPF'] & 4:
            I(f'''s_load_dwordx2 s[42:43], s[0:1], 0
            s_load_dwordx2 s[44:45], s[0:1], 56
            v_lshlrev_b32 v82, 12, v82
            v_min_u32 v82, {E*32-4}, v82
            v_mov_b32 v83, 0
            global_load_dword v86, v82, s[26:27]
            s_waitcnt lgkmcnt(0)
            global_load_dword v86, v83, s[42:43]
            global_load_dword v86, v83, s[44:45]''')
        I('P_NOCPF:')
    I(f'''
    s_cmp_ge_u32 s28, 2
    s_cbranch_scc1 P_NO6C
    ds_read_b32 v{D+6}, v{B4+6} offset:{K1_BASE}
    s_waitcnt lgkmcnt(0)
    v_add_lshl_u32 v{RK+6}, v{RK+6}, v{D+6}, 2
    ds_write_b32 v{RK+6}, v{RC+6} offset:{K1_SORT}
    ''')
    if MOVE: I(f'ds_write_b32 v{RK+6}, v{EL+6} offset:{K1_SORTE}')
    I('P_NO6C:\ns_waitcnt lgkmcnt(0)')
    for k in range(6):
        I(f'''v_add_lshl_u32 v{RK+k}, v{RK+k}, v{D+k}, 2
        ds_write_b32 v{RK+k}, v{RC+k} offset:{K1_SORT}''')
        if MOVE: I(f'ds_write_b32 v{RK+k}, v{EL+k} offset:{K1_SORTE}')
    I(f'''
    s_waitcnt lgkmcnt(0)
    ''')
    kstamp(3)
    I(f'''
    {"s_waitcnt vmcnt(0)" if MOVE else ""}
    s_barrier
    ''')
    kstamp(4)
    I(f'''
    ds_read_b128 v[8:11], v4 offset:{K1_SORT}
    v_cmp_gt_u32 vcc, 288, v0
    s_and_saveexec_b64 s[38:39], vcc
    ds_read_b128 v[12:15], v4 offset:{K1_SORT+8192}
    s_mov_b64 exec, s[38:39]
    ''')
    if MOVE:
        I(f'''v_lshrrev_b32 v84, 1, v0
        v_lshlrev_b32 v84, 2, v84
        v_and_b32 v85, 1, v0
        v_lshlrev_b32 v85, 4, v85
        v_add_u32 v85, {K1_EIMG}, v85''')
        for n in range(13):
            I(f'ds_read_b32 v{16+n}, v84 offset:{K1_SORTE + n*1024}')
    I(f'''
    s_waitcnt lgkmcnt({13 if MOVE else 0})
    buffer_store_dwordx4 v[8:11], v4, s[16:19], s29 offen {OPT['K1_ST_AUX']}
    s_add_u32 s36, s29, 8192
    s_and_saveexec_b64 s[38:39], vcc
    s_cbranch_execz P_NOST2
    buffer_store_dwordx4 v[12:15], v4, s[16:19], s36 offen {OPT['K1_ST_AUX']}
P_NOST2:
    s_mov_b64 exec, s[38:39]
    ''')
    if MOVE:
        I(f'''s_mul_i32 s30, s2, {CH*32}
        s_add_u32 s30, s30, {PAY}
        s_waitcnt lgkmcnt(0)''')
        for n in range(12):
            I(f'v_add_u32 v{16+n}, v{16+n}, v85\nds_read_b128 {r(32+4*n,4)}, v{16+n}')
        for n in range(12):
            I(f'''s_waitcnt lgkmcnt({min(15, 11-n)})
            buffer_store_dwordx4 {r(32+4*n,4)}, v4, s[16:19], s30 offen {OPT['PAY_ST_AUX']}
            s_add_u32 s30, s30, 8192''')
        I(f'''s_cmp_ge_u32 s28, 4
        s_cbranch_scc1 P_FIN
        v_add_u32 v28, v28, v85
        ds_read_b128 v[8:11], v28
        s_waitcnt lgkmcnt(0)
        buffer_store_dwordx4 v[8:11], v4, s[16:19], s30 offen {OPT['PAY_ST_AUX']}''')
    I('P_FIN:')
    for _ in range(OPT['K1SLEEP']): I('s_sleep 64')
    kdump()
    I('s_endpgm')
    I(f'''
P_PREP:
    s_load_dwordx4 s[8:11], s[0:1], 32
    s_load_dwordx2 s[12:13], s[0:1], 48
    s_sub_u32 s30, s2, {NCH}
    s_lshl_b32 s30, s30, 3
    s_add_u32 s30, s30, s28
    s_cmp_ge_u32 s30, {NFRAG}
    s_cbranch_scc1 P_END
    s_waitcnt lgkmcnt(0)
    s_mov_b32 s20, s12
    s_mov_b32 s21, s13
    s_mov_b32 s22, {144*128}
    s_mov_b32 s23, 0x20000
    s_mov_b32 s33, {NLOG2E}
    s_mov_b32 s31, s30
    s_mov_b32 s32, 64
    s_cmp_lt_u32 s30, 8
    s_cbranch_scc1 P_GO
    s_cmp_lt_u32 s30, 16
    s_cbranch_scc0 P_C1
    s_sub_u32 s31, s30, 8
    s_mov_b32 s32, 0
    s_mov_b32 s33, 1.0
    s_mov_b32 s20, s10
    s_mov_b32 s21, s11
    s_mov_b32 s22, {64*128}
    s_branch P_GO
P_C1:
    s_cmp_lt_u32 s30, 18
    s_cbranch_scc0 P_C2
    s_sub_u32 s31, s30, 16
    s_lshl_b32 s31, s31, 2
    s_mov_b32 s32, 128
    s_branch P_GO
P_C2:
    s_mov_b32 s33, 1.0
    s_mov_b32 s32, 0
    s_sub_u32 s31, s30, 18
    s_cmp_lt_u32 s30, 26
    s_cbranch_scc1 P_GO
    s_sub_u32 s31, s30, 26
    s_mov_b32 s20, s8
    s_mov_b32 s21, s9
    s_mov_b32 s22, {64*128}
P_GO:
    s_and_b32 s34, s31, 3
    s_lshl_b32 s34, s34, 4
    s_add_u32 s34, s34, s32
    s_lshl_b32 s34, s34, 7
    s_lshr_b32 s35, s31, 2
    s_lshl_b32 s35, s35, 6
    s_add_u32 s34, s34, s35
    v_and_b32 v1, 31, v0
    v_lshlrev_b32 v1, 1, v1
    v_bfe_u32 v2, v0, 5, 1
    v_lshl_or_b32 v1, v2, 10, v1
    ''')
    for t in range(8):
        I(f'buffer_load_ushort v{8+t}, v1, s[20:23], s34 offen offset:{t*128}')
    srd(16, 24, WS_BYTES)
    I(f'''
    v_and_b32 v3, 63, v0
    v_lshlrev_b32 v3, 4, v3
    s_lshl_b32 s36, s30, 10
    s_add_u32 s36, s36, {WF}
    s_waitcnt vmcnt(0)
    ''')
    for t in range(8):
        I(f'v_lshlrev_b32 v{8+t}, 16, v{8+t}\nv_mul_f32 v{8+t}, s33, v{8+t}')
    for t in range(4):
        I(f'v_cvt_pk_bf16_f32 v{16+t}, v{8+2*t}, v{9+2*t}')
    I('''buffer_store_dwordx4 v[16:19], v3, s[16:19], s36 offen
P_END:
    s_endpgm''')

CNT, FLAG, BASE = 0, 256, 512
XS = 1024
ES = XS + 65536
LX = ES + 16384
LE = LX + 16384
XAT = LE + 16384
AGG = XAT + 14336
M_LDS = AGG + 2*14336
ROWS = XS + 36864
XSENT, ESENT = 0x1FFF80, 0x7FFFFF00
CAP = 4096
NSLOT = 20

WB, WV, WC = 4, 36, 68
XA = 76
Z = 108
H = 140
AF = 156
ACC = 176
IDX = 192
vLX, vLE, vKX0, vKX1, vKE = 197, 198, 199, 200, 201
vRA, vRE = 202, 206
vSCH, vLT = 207, 208
T0, T1, T2 = 209, 210, 211
vC, vEB = 212, 213
vONE = 214
vLA = 215
vINV, vFC = 218, 219
T4 = 216
AF2 = 220
NV = 236 if OPT['LOOP'] == 2 else 220
vTR = NV
pREC, pRK, pAD = 76, 96, 116
pD, pA, pW = 136, 152, 168
sX, sE, sWS, sOUT = 8, 12, 16, 20
sW, sT, sTW, sNP, sNC, sNN, sD, sM0X, sM0E, sMASK, sTMP, sTMP2, sMODE, sSEG, sG0 = range(28, 43)
sONE = 44
sSAVE = 46
sOFP = 48
sB = 50
sXR = 51
sBAR = 43

def thr(s): return 8 * (s // 4) + s % 4

def mf(d, a, b, c): return f'v_mfma_f32_32x32x16_bf16 {r(d,16)}, {r(a,4)}, {r(b,4)}, {c}'
def zm(ft, af=None):
    if af is None: af = AF
    out = [mf(Z+16*ft, AF+16, WC+4*ft, r(XA+16*ft, 16))]
    for k in range(4): out.append(mf(Z+16*ft, af+4*k, WB+16*ft+4*k, r(Z+16*ft, 16)) if not OPT['NOZ'] else 'v_nop\nv_nop')
    return out
def hm(ft, af=None):
    if af is None: af = AF
    out = [mf(H, af, WV+16*ft, '0')]
    for k in range(1, 4): out.append(mf(H, af+4*k, WV+16*ft+4*k, r(H, 16)))
    if OPT['NOHV']: out = ['v_nop\nv_nop'] * 4
    return out
def exps(ft): return [f'v_exp_f32 v{Z+16*ft+i}, v{Z+16*ft+i}' if not OPT['NOTR'] else 'v_nop\nv_nop' for i in range(16)]
def rcps(ft): return [f'v_rcp_f32 v{Z+16*ft+i}, v{Z+16*ft+i}' if not OPT['NOTR'] else 'v_nop\nv_nop' for i in range(16)]
def pkadd(ft):
    if OPT['NOPK']: return ['v_nop'] * 8
    if not OPT['PKA']: return [f'v_add_f32 v{Z+16*ft+i}, 1.0, v{Z+16*ft+i}' for i in range(16)]
    return [f'v_pk_add_f32 {r(Z+16*ft+2*i,2)}, {r(Z+16*ft+2*i,2)}, {sr(sONE,2)}' for i in range(8)]
def pkf(ft):
    if OPT['NOPK']: return ['v_nop'] * 8
    if not OPT['PKF']: return [f'v_fmac_f32 v{ACC+8*ft+2*(i//4)+i%2}, v{Z+16*ft+i}, v{H+i}' for i in range(16)]
    return [f'v_pk_fma_f32 {r(ACC+8*ft+2*(i//2),2)}, {r(Z+16*ft+2*i,2)}, {r(H+2*i,2)}, {r(ACC+8*ft+2*(i//2),2)}' for i in range(8)]
def weave(main, ins):
    out = []
    for i, m in enumerate(main):
        out += ins.get(i, [])
        out.append(m)
    out += ins.get(len(main), [])
    return out

def lds_init():
    I(f'''v_lshlrev_b32 v{T0}, 4, v0
    v_add_u32 v{T0}, {LX}, v{T0}
    v_mov_b32 v{AF}, {XSENT}
    v_mov_b32 v{AF+1}, {XSENT}
    v_mov_b32 v{AF+2}, {XSENT}
    v_mov_b32 v{AF+3}, {XSENT}
    v_mov_b32 v{AF+4}, {ESENT}
    v_mov_b32 v{AF+5}, {ESENT}
    v_mov_b32 v{AF+6}, {ESENT}
    v_mov_b32 v{AF+7}, {ESENT}
    v_and_b32 v{T1}, 127, v0
    v_lshlrev_b32 v{T1}, 2, v{T1}
    v_mov_b32 v{T2}, 0
    ds_write_b128 v{T0}, {r(AF,4)}
    ds_write_b128 v{T0}, {r(AF,4)} offset:8192
    ds_write_b128 v{T0}, {r(AF+4,4)} offset:16384
    ds_write_b128 v{T0}, {r(AF+4,4)} offset:24576
    ds_write_b32 v{T1}, v{T2}''')

def pEO(s): return AF2 + s if s < 16 else 184 + s - 16
def sVM(s): return 76 + 2 * (s % 12)
def validate(lo, hi):
    for s in range(lo, hi): I(f'v_cmp_lt_i32 {sr(sVM(s),2)}, {thr(s)}, v{vC}')
def pass_a(lo, hi, estride, mid=None):
    for s in range(lo, hi):
        I(f'v_and_b32_sdwa v{pAD+s}, v{vFC}, v{pREC+s} dst_sel:DWORD dst_unused:UNUSED_PAD src0_sel:DWORD src1_sel:BYTE_3')
    for s in range(lo, hi):
        I(f'''s_mov_b64 exec, {sr(sVM(s),2)}
        ds_add_rtn_u32 v{pRK+s}, v{pAD+s}, v{vONE}''')
    I('s_mov_b64 exec, -1')
    if mid: mid()
    for s in range(lo, hi):
        if MOVE:
            I(f'v_add_u32 v{pEO(s)}, {estride(s)}, v{vEB}')
        else:
            I(f'''v_bfe_u32 v{pEO(s)}, v{pREC+s}, 14, 12
            v_lshl_add_u32 v{pEO(s)}, v{pEO(s)}, 5, v{vEB}''')
        I(f'v_alignbit_b32 v{pREC+s}, v{pREC+s}, v{pREC+s}, 25')

def scan():
    I(f'''v_lshlrev_b32 v{T0}, 2, v2
    ds_read_b32 v{T1}, v{T0}
    v_mov_b32 v{T2}, {FLAG}
    ds_read_b32 v{IDX}, v{T2}
    s_waitcnt lgkmcnt(0)
    v_add_u32 v{T1}, 7, v{T1}
    v_and_b32 v{T1}, -8, v{T1}
    v_readfirstlane_b32 s{sTMP2}, v{IDX}
    v_mov_b32 v{T2}, v{T1}''')
    dpp_scan(T2)
    I(f'''v_sub_u32 v{T1}, v{T2}, v{T1}
    v_readlane_b32 s{sTMP}, v{T2}, 63
    v_add_u32 v{T1}, {LX//4}, v{T1}
    ds_write_b32 v{T0}, v{T1} offset:{BASE}''')
def pass_b1(lo, hi):
    for s in range(lo, hi):
        I(f'''s_mov_b64 exec, {sr(sVM(s),2)}
        ds_read_b32 v{pAD+s}, v{pAD+s} offset:{BASE}''')
    I('s_mov_b64 exec, -1')
def pass_b2(lo, hi):
    for s in range(lo, hi): I(f'v_add_lshl_u32 v{pRK+s}, v{pRK+s}, v{pAD+s}, 2')
    for s in range(lo, hi):
        I(f'''s_mov_b64 exec, {sr(sVM(s),2)}
        ds_write2st64_b32 v{pRK+s}, v{pREC+s}, v{pEO(s)} offset1:64''')
    I('s_mov_b64 exec, -1')

def dma_tile(ix, xm0, em0, xoff, eoff):
    g = []
    for q in range(4):
        g.append([f's_add_u32 m0, s{xm0}, {xoff + q*1024}',
                  f'v_and_or_b32 v{ix+q}, v{ix+q}, s{sMASK}, v{vKX0 if q % 2 == 0 else vKX1}',
                  f'buffer_load_dwordx4 v{ix+q}, {sr(sX,4)}, 0 offen lds'])
    g.append([f's_add_u32 m0, s{em0}, {eoff}',
              f'v_add_u32 v{ix+4}, v{ix+4}, v{vKE}',
              f'buffer_load_dwordx4 v{ix+4}, {sr(sE,4)}, 0 offen {OPT["E_AUX"]} lds'])
    return g

def flush_j(j, sn):
    I(f'''v_add_f32 v{T1}, v{ACC+2*j}, v{ACC+2*j+1}
    v_add_f32 v{T2}, v{ACC+8+2*j}, v{ACC+8+2*j+1}
    s_bfe_u32 s{sTMP}, s{sn}, {(6 << 16) | (8*j)}
    s_lshl_b32 s{sTMP}, s{sTMP}, 9
    v_permlane32_swap_b32 v{T1}, v{T2}
    v_add_u32 v{T0}, s{sTMP}, v{vLA}
    v_mov_b64 {r(ACC+2*j,2)}, 0
    v_add_f32 v{T1}, v{T1}, v{T2}
    v_mov_b64 {r(ACC+8+2*j,2)}, 0
    v_cvt_f64_f32 {r(T4,2)}, v{T1}
    ds_add_f64 v{T0}, {r(T4,2)}''')
def xa_j(j, sn):
    I(f'''s_bfe_u32 s{sTMP}, s{sn}, {(6 << 16) | (8*j)}
    s_lshl_b32 s{sTMP}, s{sTMP}, 8
    v_add_u32 v{T0}, s{sTMP}, v{vLT}
    ds_read2_b32 {r(XA+4*j,2)}, v{T0}
    ds_read2_b32 {r(XA+4*j+2,2)}, v{T0}
    ds_read2_b32 {r(XA+16+4*j,2)}, v{T0} offset0:32 offset1:32
    ds_read2_b32 {r(XA+16+4*j+2,2)}, v{T0} offset0:32 offset1:32''')

def TR(k):
    if not OPT['TRACE']: return ''
    return f'''s_memtime s[76:77]
    s_memrealtime s[78:79]
    s_waitcnt lgkmcnt(0)
    s_mov_b32 m0, s{sT}
    s_nop 0
    v_writelane_b32 v{vTR+k}, s76, m0
    s_add_u32 m0, m0, 32
    s_nop 0
    v_writelane_b32 v{vTR+k}, s78, m0'''
def fstamp(i):
    if OPT['STAMP'] and OPT['FINE']: I(f's_memrealtime s[{60+2*i}:{61+2*i}]\ns_waitcnt lgkmcnt(0)')
def stamp(i):
    if OPT['AMP'] == 10 + i: I('s_memrealtime s[72:73]\ns_waitcnt lgkmcnt(0)')
    if OPT['FINE'] and i not in (0,): return
    if OPT['STAMP'] and OPT['CYC'] == 2:
        if i in (1, 2): return
        if i in (4, 5): I(f's_memtime s[{60+2*(i-3)}:{61+2*(i-3)}]')
        I(f's_memrealtime s[{60+2*i}:{61+2*i}]\ns_waitcnt lgkmcnt(0)')
    elif OPT['STAMP']:
        I(f'{"s_memtime" if OPT["CYC"] and i in (4,5) else "s_memrealtime"} s[{60+2*i}:{61+2*i}]\ns_waitcnt lgkmcnt(0)')

WBASE = XS + 32768
def frag_off(f):
    if f < 16: return (f // 4) * 8192 + 4096 + (f % 4) * 1024
    return ES + (4 + f - 16) * 2048 + 1024 - WBASE
def row_lds(k): return XS + (4 + k // 4) * 8192 + (k % 4) * 1024

def burn(pos):
    if not OPT['PRE'] or OPT['PREPOS'] != pos: return
    I(f's_mov_b32 s{sTW}, 0x9E3779B1')
    for k in range(8):
        I(f'v_add_u32 v{4+k}, {k*977+13}, v0\nv_mul_lo_u32 v{4+k}, v{4+k}, s{sTW}\nv_and_b32 v{4+k}, 0xbe7fbe7f, v{4+k}\nv_or_b32 v{4+k}, 0x3c003c00, v{4+k}')
    I(f's_mov_b32 s{sTW}, {OPT["PRE"]}\nM_BURN:')
    for k in range(4):
        I(mf(16, 4, 8, '0') if k % 2 == 0 else mf(32, 8, 4, '0'))
    I(f's_sub_u32 s{sTW}, s{sTW}, 1\ns_cmp_lg_u32 s{sTW}, 0\ns_cbranch_scc1 M_BURN')
def bvc():
    return f'''s_add_u32 m0, s{sNP}, {WBASE+4096}
    s_add_u32 s{sTMP}, s{sNC}, 8192
    buffer_load_dwordx4 v{IDX+1}, {sr(sWS,4)}, s{sNC} offen lds
    s_add_u32 m0, s{sNP}, {WBASE+4096+16384}
    s_cmp_ge_u32 s{sW}, 2
    buffer_load_dwordx4 v{IDX+1}, {sr(sWS,4)}, s{sTMP} offen lds
    s_cbranch_scc1 M_NOW4
    s_add_u32 m0, s{sM0E}, {4*2048+1024}
    s_add_u32 s{sTMP}, s{sNC}, {16*1024}
    buffer_load_dwordx4 v{IDX+1}, {sr(sWS,4)}, s{sTMP} offen lds
M_NOW4:'''
OUT = []
def evchk(kind, p, sn):
    if OPT['NOEV']: return ''
    return '\n'.join(f's_bitcmp1_b32 s{sn}, {8*j+6}\ns_cbranch_scc1 M_{kind}{p}{j}\nM_{kind}R{p}{j}:' for j in range(4))
def gen_main():
    header(MAIN)
    if OPT['AMP']: I('s_memrealtime s[74:75]')
    stamp(0)
    I(f"""
    s_cmp_ge_u32 s2, {NB}
    s_cbranch_scc1 M_END
    """)
    burn(0)
    I(f"""
    s_load_dwordx2 s[26:27], s[0:1], 72
    s_load_dwordx4 s[4:7], s[0:1], 0
    s_load_dwordx2 s[24:25], s[0:1], 56
    v_lshrrev_b32 v1, 6, v0
    v_and_b32 v2, 63, v0
    v_readfirstlane_b32 s{sW}, v1
    s_and_b32 s{sB}, s2, 7
    s_lshl_b32 s{sB}, s{sB}, 5
    s_lshr_b32 s{sTMP}, s2, 3
    s_add_u32 s{sB}, s{sB}, s{sTMP}
    v_lshrrev_b32 v3, 1, v0
    v_lshlrev_b32 v{IDX}, 4, v3
    v_lshlrev_b32 v{IDX+1}, 4, v2
    s_lshr_b32 s{sD}, s{sB}, 2
    s_lshl_b32 s{sD}, s{sD}, 10
    s_and_b32 s{sTMP}, s{sB}, 3
    s_add_u32 s{sD}, s{sD}, s{sTMP}
    s_lshl_b32 s{sD}, s{sD}, 2
    s_add_u32 s{sD}, s{sD}, {OFFS}
    s_mov_b32 s{sWS+2}, {WS_BYTES}
    s_mov_b32 s{sWS+3}, 0x20000
    s_lshr_b32 s{sTMP}, s{sW}, 2
    s_lshl_b32 s{sTMP}, s{sTMP}, 13
    s_and_b32 s{sTMP2}, s{sW}, 3
    s_lshl_b32 s{sTMP2}, s{sTMP2}, 10
    s_add_u32 s{sG0}, s{sTMP}, s{sTMP2}
    s_lshl_b32 s{sTMP2}, s{sW}, 10
    s_add_u32 s{sTMP2}, s{sTMP2}, {WF}
    s_waitcnt lgkmcnt(0)
    s_mov_b32 s{sWS}, s26
    s_mov_b32 s{sWS+1}, s27
    s_add_u32 m0, s{sG0}, {XS}
    buffer_load_dword v{vC}, v{IDX}, {sr(sWS,4)}, s{sD} offen
    s_add_u32 s{sTMP}, s{sTMP2}, {18*1024}
    buffer_load_dwordx4 v{IDX+1}, {sr(sWS,4)}, s{sTMP} offen lds
    s_add_u32 m0, s{sG0}, {XS+16384}
    s_add_u32 s{sTMP}, s{sTMP2}, {26*1024}
    buffer_load_dwordx4 v{IDX+1}, {sr(sWS,4)}, s{sTMP} offen lds
    s_mov_b32 s{sNP}, s{sG0}
    s_mov_b32 s{sNC}, s{sTMP2}
    {'' if OPT['WLATE'] else bvc()}
    v_lshrrev_b32 v{IDX+2}, 4, v2
    s_lshl_b32 s{sTMP}, s{sW}, 2
    v_add_u32 v{IDX+2}, s{sTMP}, v{IDX+2}
    v_xor_b32 v{IDX+2}, v{IDX+2}, v2
    v_and_b32 v{IDX+2}, 7, v{IDX+2}
    v_lshlrev_b32 v{IDX+2}, 4, v{IDX+2}
    v_lshrrev_b32 v{IDX+3}, 3, v2
    v_lshl_or_b32 v{IDX+2}, v{IDX+3}, 7, v{IDX+2}
    """)
    srd(sX, 4, N * 128)
    I(f"""
    s_cmp_ge_u32 s{sW}, 7
    s_cbranch_scc1 {'M_CPF' if OPT['CPF'] & 2 else 'M_NOROW'}
    s_lshl_b32 s{sTMP}, s{sW}, 10
    s_mul_i32 s{sTMP2}, s{sB}, {BN*128}
    s_add_u32 m0, s{sG0}, {XS+32768}
    s_add_u32 s{sTMP2}, s{sTMP2}, s{sTMP}
    buffer_load_dwordx4 v{IDX+2}, {sr(sX,4)}, s{sTMP2} offen lds
M_NOROW:
    s_add_u32 s{sOFP}, s26, s{sD}
    s_addc_u32 s{sOFP+1}, s27, 0
    v_cmp_gt_u32 vcc, {NCH}, v3
    v_mul_u32_u24 v{T1}, {CH}, v3
    v_and_b32 v{T2}, 1, v0
    v_lshlrev_b32 v{T2}, 2, v{T2}
    s_lshr_b32 s{sTMP}, s2, 3
    s_mul_i32 s{sTMP}, s{sTMP}, {391*128}
    v_min_u32 v1, 390, v0
    v_lshlrev_b32 v1, 7, v1
    s_mov_b32 s{sNN}, s{sTMP}
    s_waitcnt vmcnt({2 if OPT['WLATE'] else 4})
    v_cndmask_b32 v{vC}, 0, v{vC}, vcc
    v_and_b32 v{T0}, 0xffff, v{vC}
    v_lshrrev_b32 v{vC}, 16, v{vC}
    v_add3_u32 v{T0}, v{T0}, v{T1}, v{T2}
    v_cmp_lt_u32 {sr(sSAVE,2)}, {2*NSLOT}, v{vC}
    v_sub_u32 v{vC}, v{vC}, v{T2}
    v_lshlrev_b32 v{vEB}, 5, v{T0 if MOVE else T1}
    v_lshlrev_b32 v{T0}, 2, v{T0}
    v_cmp_lt_i32 vcc, 16, v{vC}
    v_cmp_lt_i32 {sr(52,2)}, 24, v{vC}
    buffer_load_dwordx4 {r(pREC,4)}, v{T0}, {sr(sWS,4)}, 0 offen
    buffer_load_dwordx4 {r(pREC+4,4)}, v{T0}, {sr(sWS,4)}, 0 offen offset:32
    s_mov_b32 s{sXR}, 0
    s_cmp_eq_u64 {sr(52,2)}, 0
    s_cbranch_scc1 M_RL3
    s_mov_b32 s{sXR}, 1
    buffer_load_dwordx4 {r(pREC+12,4)}, v{T0}, {sr(sWS,4)}, 0 offen offset:96
    buffer_load_dwordx4 {r(pREC+16,4)}, v{T0}, {sr(sWS,4)}, 0 offen offset:128
M_RL3:
    s_or_b64 vcc, vcc, 1
    s_mov_b64 exec, vcc
    buffer_load_dwordx4 {r(pREC+8,4)}, v{T0}, {sr(sWS,4)}, 0 offen offset:64
    s_mov_b64 exec, -1
    """)
    stamp(1)
    burn(1)
    lds_init()
    I(f'''v_add_u32 v{T0}, {AGG-LX}, v{T0}
    v_mov_b64 {r(AF+8,2)}, 0
    v_mov_b64 {r(AF+10,2)}, 0
    s_cmp_lg_u32 s{sW}, 0
    ds_write_b128 v{T0}, {r(AF+8,4)}
    ds_write_b128 v{T0}, {r(AF+8,4)} offset:8192
    ds_write_b128 v{T0}, {r(AF+8,4)} offset:16384
    s_cbranch_scc1 M_NOZ3
    ds_write_b128 v{T0}, {r(AF+8,4)} offset:24576
M_NOZ3:''')
    if MOVE:
        I(f"""s_add_u32 s{sE}, s26, {PAY}
        s_addc_u32 s{sE+1}, s27, 0
        s_mov_b32 s{sE+2}, {E*32}
        s_mov_b32 s{sE+3}, 0x20000""")
    else:
        srd(sE, 6, E * 32)
    srd(sOUT, 24, N * 128)
    I(f"""
    v_lshlrev_b32 v{T0}, 4, v2
    s_lshr_b32 s{sTMP}, s{sW}, 2
    s_lshl_b32 s{sTMP}, s{sTMP}, 1
    s_and_b32 s{sTMP2}, s{sW}, 1
    s_add_u32 s{sTMP}, s{sTMP}, s{sTMP2}
    s_lshl_b32 s{sTMP}, s{sTMP}, 13
    s_add_u32 s{sTMP}, s{sTMP}, {XS}
    v_add_u32 v{IDX+2}, s{sTMP}, v{T0}
    v_and_b32 v{T1}, 31, v2
    v_lshlrev_b32 v{vLT}, 2, v{T1}
    v_add_u32 v{vLT}, {XAT}, v{vLT}
    v_lshrrev_b32 v{T2}, 5, v2
    v_bfe_u32 v{IDX}, v2, 1, 3
    v_xor_b32 v{IDX}, v{IDX}, v{T2}
    s_bfe_u32 s{sG0}, s{sW}, 0x10001
    s_lshl_b32 s{sTMP2}, s{sG0}, 13
    s_add_u32 s{sTMP}, s{sTMP2}, {row_lds(0)}
    v_lshlrev_b32 v{T1}, 7, v{T1}
    v_add_u32 v{T1}, s{sTMP}, v{T1}
    s_and_b32 s{sD}, s{sW}, 1
    s_lshl_b32 s{sD}, s{sD}, 7
    s_add_u32 s{sTMP2}, s{sTMP2}, s{sD}
    v_lshlrev_b32 v{T2}, 10, v{T2}
    v_add3_u32 v{T2}, v{T2}, v{vLT}, s{sTMP2}
    s_mov_b32 s{sD}, {NLOG2E}
    """)
    for s in range(4):
        I(f"""v_xor_b32 v{AF2+s}, {2*s}, v{IDX}
        v_lshl_add_u32 v{AF2+s}, v{AF2+s}, 4, v{T1}""")
    I(f"""
    v_mov_b32 v{vONE}, 1
    v_mov_b32 v{vFC}, 0xfc
    v_mov_b32 v{vINV}, v{T2}
    """)
    validate(0, 12)
    I('s_waitcnt vmcnt(3) lgkmcnt(0)\ns_barrier')
    if OPT['XPF'] == 2: I(f'buffer_load_dword v1, v1, {sr(sX,4)}, s{sNN} offen')
    for s in range(4):
        I(f'ds_read_b128 {r(pW+4*s,4)}, v{IDX+2} offset:{s*1024}\nds_read_b128 {r(pA+4*s,4)}, v{AF2+s}')
    for f in range(0 if OPT['WLATE'] else 18):
        I(f'ds_read_b128 {r(WB+4*f,4)}, v{IDX+1} offset:{frag_lds(f)}')
    I(f"""
    s_cmp_eq_u64 {sr(sSAVE,2)}, 0
    s_cbranch_scc1 M_NOFLAG
    v_mov_b32 v{T1}, {FLAG}
    ds_write_b32 v{T1}, v{vONE}
M_NOFLAG:
    s_mov_b32 s{sMASK}, {XSENT}
    s_mov_b32 s{sONE}, 1.0
    s_mov_b32 s{sONE+1}, 1.0
    s_mov_b32 s{sMODE}, 0
    s_lshl_b32 s{sM0X}, s{sW}, 13
    s_add_u32 s{sM0X}, s{sM0X}, {XS}
    s_lshl_b32 s{sM0E}, s{sW}, 11
    s_add_u32 s{sM0E}, s{sM0E}, {ES}
    s_waitcnt vmcnt({1 if OPT['XPF'] == 2 else 0}) lgkmcnt(0)
    """)
    stamp(2)
    fs = lambda s: thr(s) * 32
    fstamp(1)
    def mid():
        I(mf(pD, pA, pW, '0'))
        if OPT['WLATE']: I(bvc())
        if OPT['XPF'] == 1:
            I(f'buffer_load_dword v1, v1, {sr(sX,4)}, s{sNN} offen')
        for k in range(1, 4): I(mf(pD, pA+4*k, pW+4*k, r(pD, 16)))
    pass_a(0, 12, fs, mid)
    I(f's_cmp_ge_u32 s{sW}, 4\ns_cbranch_scc1 M_ADONE')
    for k in range(16):
        if k == 12: I(f's_cmp_lg_u32 s{sG0}, 0\ns_cbranch_scc1 M_ADONE')
        I(f'v_mul_f32 v{pD+k}, s{sD}, v{pD+k}\nds_write_b32 v{vINV}, v{pD+k} offset:{(8*(k//4)+k%4)*256}')
    I('M_ADONE:')
    fstamp(2)
    I(f's_cmp_eq_u32 s{sXR}, 0\ns_cbranch_scc0 M_RA\nM_RAR:')
    I('s_waitcnt lgkmcnt(0)\ns_barrier')
    fstamp(3)
    scan()
    fstamp(4)
    I(f"""
    s_cmp_gt_u32 s{sTMP}, {CAP}
    s_cbranch_scc1 M_SLOW
    s_cmp_lg_u32 s{sTMP2}, 0
    s_cbranch_scc1 M_SLOW
    s_cmp_eq_u32 s{sXR}, 0
    s_cbranch_scc0 M_RB
M_RBR:
    """)
    I(f'''
M_BATCH:
    ''')
    pass_b1(0, 12)
    I(f'''
    s_add_u32 s{sTMP}, s{sTMP}, 31
    s_lshr_b32 s52, s{sTMP}, 7
    s_bfe_u32 s53, s{sTMP}, 0x20005
    s_max_u32 s54, s52, {OPT['DELTA']}
    s_sub_u32 s54, s54, {OPT['DELTA']}
    s_lshr_b32 s54, s54, 1
    s_add_u32 s55, s52, 1
    s_max_u32 s56, s55, {OPT['DELTA']}
    s_sub_u32 s56, s56, {OPT['DELTA']}
    s_lshr_b32 s56, s56, 1
    s_sub_u32 s52, s52, s54
    s_sub_u32 s55, s55, s56
    s_mul_i32 s57, s55, s53
    s_sub_u32 s58, 4, s53
    s_mul_i32 s58, s58, s52
    s_add_u32 s57, s57, s58
    s_cmp_ge_u32 s{sW}, 4
    s_cselect_b32 s52, s54, s52
    s_cselect_b32 s55, s56, s55
    s_cselect_b32 s57, s57, 0
    s_cselect_b32 s{sBAR}, 0, {OPT['STAG']+1}
    s_and_b32 s58, s{sW}, 3
    s_cmp_lt_u32 s58, s53
    s_cselect_b32 s{sTW}, s55, s52
    s_min_u32 s53, s53, s58
    s_sub_u32 s58, s58, s53
    s_mul_i32 s53, s53, s55
    s_mul_i32 s58, s58, s52
    s_add_u32 s{sG0}, s57, s53
    s_add_u32 s{sG0}, s{sG0}, s58
    s_lshl_b32 s{sG0}, s{sG0}, 7
    s_add_u32 s{sG0}, s{sG0}, {LX}
    s_lshl_b32 s{sTMP2}, s{sTW}, 5
    v_lshrrev_b32 v{T0}, 4, v2
    v_mul_u32_u24 v{T0}, s{sTMP2}, v{T0}
    v_bfe_u32 v{T1}, v2, 3, 1
    v_lshl_add_u32 v{T0}, v{T1}, 4, v{T0}
    v_add_u32 v{vLX}, s{sG0}, v{T0}
    v_bfe_u32 v{T0}, v2, 3, 2
    v_mul_u32_u24 v{T0}, s{sTMP2}, v{T0}
    v_bfe_u32 v{T1}, v2, 2, 1
    v_lshl_add_u32 v{T0}, v{T1}, 4, v{T0}
    v_lshrrev_b32 v{T1}, 5, v2
    v_lshl_add_u32 v{T0}, v{T1}, 3, v{T0}
    v_bfe_u32 v{T1}, v2, 1, 1
    v_lshl_add_u32 v{T0}, v{T1}, 2, v{T0}
    v_add_u32 v{vLE}, s{sG0}, v{T0}
    s_sub_u32 s{sTMP}, s{sTW}, 1
    v_min_u32 v{T0}, s{sTMP}, v2
    v_lshlrev_b32 v{T0}, 5, v{T0}
    v_add_u32 v{T0}, s{sG0}, v{T0}
    v_add_u32 v{T1}, s{sTMP2}, v{T0}
    v_add_u32 v{T2}, s{sTMP2}, v{T1}
    v_add_u32 v{vSCH}, s{sTMP2}, v{T2}
    ''')
    I(f'''
    v_lshrrev_b32 v{vKE}, 4, v2
    v_xor_b32 v{vKE}, v{vKE}, v2
    v_and_b32 v{vKX0}, 7, v{vKE}
    v_lshlrev_b32 v{vKX0}, 4, v{vKX0}
    v_xor_b32 v{vKX1}, 64, v{vKX0}
    v_and_b32 v{vKE}, 1, v{vKE}
    v_lshlrev_b32 v{vKE}, 4, v{vKE}
    s_waitcnt lgkmcnt(0)''')
    pass_b2(0, 12)
    fstamp(5)
    I(f'''
    s_waitcnt vmcnt({1 if OPT['XPF'] == 1 else 0}) lgkmcnt(0)
    s_barrier
    ''')
    stamp(3)
    if OPT['NOX']: I(f's_mov_b32 s{sX+2}, 0')
    if OPT['NOE']: I(f's_mov_b32 s{sE+2}, 0')
    g0 = dma_tile(Z, sM0X, sM0E, 0, 0)
    g1 = dma_tile(Z+16, sM0X, sM0E, 4096, 1024)
    I(f"""
    ds_read_b128 {r(Z,4)}, v{vLX}
    ds_read_b32 v{Z+4}, v{vLE} offset:16384
    ds_read_b32 v{T0}, v{T0}
    ds_read_b32 v{T1}, v{T1}
    ds_read_b32 v{T2}, v{T2}
    ds_read_b32 v{vSCH}, v{vSCH}
    ds_read_b128 {r(Z+16,4)}, v{vLX} offset:32
    ds_read_b32 v{Z+20}, v{vLE} offset:{16384+32}
    ds_read_b128 {r(IDX,4)}, v{vLX} offset:64
    ds_read_b32 v{IDX+4}, v{vLE} offset:{16384+64}
    v_lshlrev_b32 v{vFC}, 4, v2
    v_add_u32 v{vFC}, {WBASE}, v{vFC}
    s_cmp_ge_u32 s{sW}, 4
    s_cbranch_scc1 M_NOT0
    s_setprio 1
    s_cmp_eq_u32 s{sTW}, 0
    s_waitcnt lgkmcnt(8)
    s_cbranch_scc1 M_NOT0
    """)
    for g in g0: I('\n'.join(g))
    I(f"""
M_NOT0:
    s_waitcnt lgkmcnt(0)
    v_bfe_u32 v{T0}, v{T0}, 1, 6
    v_bfe_u32 v{T1}, v{T1}, 1, 6
    v_bfe_u32 v{T2}, v{T2}, 1, 6
    v_bfe_u32 v{vSCH}, v{vSCH}, 1, 6
    v_lshl_or_b32 v{T0}, v{T1}, 8, v{T0}
    v_lshl_or_b32 v{T0}, v{T2}, 16, v{T0}
    v_lshl_or_b32 v{vSCH}, v{vSCH}, 24, v{T0}
    v_add_u32 v{vLX}, 96, v{vLX}
    v_mov_b32 v{T0}, v{vSCH}
    v_readfirstlane_b32 s{sNC}, v{vSCH}
    v_add_u32 v{vLE}, {16384+96}, v{vLE}
    v_mov_b32_dpp v{T0}, v{vSCH} wave_shr:1 row_mask:0xf bank_mask:0xf
    s_mov_b32 s{sT}, 1
    v_xor_b32 v{T0}, v{T0}, v{vSCH}
    v_add_u32 v{T0}, 0x3f3f3f3f, v{T0}
    v_and_b32 v{T0}, 0x40404040, v{T0}
    v_or_b32 v{vSCH}, v{vSCH}, v{T0}
    s_mov_b32 s{sNP}, s{sNC}
    """)
    for j in range(4):
        I(f"""s_bfe_u32 s{sTMP}, s{sNC}, {(6 << 16) | (8*j)}
        s_lshl_b32 s{sTMP}, s{sTMP}, 8
        v_add_u32 v{T0}, s{sTMP}, v{vLT}
        ds_read_b32 v{XA+4*j}, v{T0}
        ds_read_b32 v{XA+16+4*j}, v{T0} offset:128""")
    I(f"""
    s_cmp_eq_u32 s{sMODE}, 2
    s_cbranch_scc1 M_NOWT
    """)
    for f in (16, 0, 1, 2, 3, 8, 9, 10, 11, 17, 4, 5, 6, 7, 12, 13, 14, 15):
        I(f'ds_read_b128 {r(WB+4*f,4)}, v{vFC} offset:{frag_off(f)}')
    I(f"""s_cmp_lt_u32 s{sW}, 4
    s_cbranch_scc1 M_TDONE
    s_bfe_u32 s{sXR}, s{sW}, 0x10001
    v_subrev_u32 v{vINV}, {XAT}, v{vINV}
    v_lshlrev_b32 v{vINV}, 1, v{vINV}
    v_add_u32 v{vINV}, {AGG}, v{vINV}
    """)
    for k in range(16):
        if k == 12: I(f's_cmp_lg_u32 s{sXR}, 0\ns_cbranch_scc1 M_TDONE')
        I(f'v_cvt_f64_f32 {r(AF+2*(k%8),2)}, v{pD+k}\nds_add_f64 v{vINV}, {r(AF+2*(k%8),2)} offset:{(8*(k//4)+k%4)*512}')
    I('M_TDONE:')
    j_, i_, h_, g_, t_, u_ = AF2, AF2+1, AF2+2, AF2+3, AF2+4, AF2+5
    I(f"""
    s_lshl_b32 s{sMODE}, s{sMODE}, 1
    v_lshlrev_b32 v{vLA}, 3, v2
    v_add_u32 v{vLA}, {AGG}, v{vLA}
    v_bfe_u32 v{j_}, v2, 3, 2
    v_and_b32 v{i_}, 3, v2
    v_lshrrev_b32 v{h_}, 5, v2
    v_lshrrev_b32 v{t_}, 1, v{j_}
    v_xor_b32 v{g_}, v{t_}, v{j_}
    v_lshrrev_b32 v{u_}, 2, v2
    v_xor_b32 v{g_}, v{g_}, v{u_}
    v_and_b32 v{g_}, 1, v{g_}
    v_xor_b32 v{t_}, v{t_}, v{h_}
    v_lshlrev_b32 v{t_}, 4, v{t_}
    v_lshl_or_b32 v{u_}, v{j_}, 2, v{i_}
    v_lshl_or_b32 v{u_}, v{g_}, 4, v{u_}
    v_lshl_or_b32 v{t_}, v{u_}, 5, v{t_}
    v_add_u32 v{vRE}, s{sM0E}, v{t_}
    v_and_b32 v{t_}, 1, v{i_}
    v_lshl_or_b32 v{u_}, v{g_}, 1, v{t_}
    v_lshlrev_b32 v{u_}, 3, v{u_}
    v_lshl_or_b32 v{u_}, v{j_}, 1, v{u_}
    v_lshrrev_b32 v{i_}, 1, v{i_}
    v_or_b32 v{u_}, v{u_}, v{i_}
    v_lshlrev_b32 v{u_}, 7, v{u_}
    v_add_u32 v{u_}, s{sM0X}, v{u_}
    v_lshl_or_b32 v{t_}, v{t_}, 2, v{j_}
    v_xor_b32 v{t_}, v{t_}, v{h_}
    """)
    for s in range(4):
        I(f"""v_xor_b32 v{g_}, {2*s}, v{t_}
        v_lshl_add_u32 v{vRA+s}, v{g_}, 4, v{u_}""")
    I('M_NOWT:')
    for k in range(8): I(f'v_mov_b64 {r(ACC+2*k,2)}, 0')
    for g in g1: I(g[1])
    for g in dma_tile(IDX, sM0X, sM0E, 0, 0): I(g[1])
    I(f"""
    s_cmp_ge_u32 s{sW}, 4
    s_cbranch_scc1 M_YNG
    s_cmp_eq_u32 s{sTW}, 0
    s_cbranch_scc1 M_BDONE
    s_cmp_lt_u32 s{sTW}, 2
    s_cbranch_scc1 M_W0
    """)
    for g in g1: I(g[0] + '\ns_nop 0\n' + g[2])
    I(f"""s_waitcnt vmcnt(5) lgkmcnt(0)
M_W1:""")
    I(f'ds_read_b128 {r(AF+16,4)}, v{vRE}')
    for s in range(4): I(f'ds_read_b128 {r(AF+4*s,4)}, v{vRA+s}')
    for ft in range(2):
        for j in range(4):
            for i in range(1, 4): I(f'v_mov_b32 v{XA+16*ft+4*j+i}, v{XA+16*ft+4*j}')
    I('s_waitcnt lgkmcnt(0)')
    for m in zm(0): I(m)
    I(f"""s_cmp_eq_u32 s{sBAR}, 0
    s_cbranch_scc1 M_YNG2
    s_nop 7
    s_nop 1
M_GO:""")
    OUT.append(lambda: (
        I(f"""M_W0:
        s_waitcnt vmcnt(0) lgkmcnt(0)
        s_branch M_W1
M_YNG:
        s_cmp_eq_u32 s{sTW}, 0
        s_cbranch_scc1 M_YE"""),
        [I('\n'.join(g)) for g in g0],
        I(f"""s_branch M_W0
M_YE:
        s_waitcnt lgkmcnt(0)
        s_barrier
        s_branch M_BDONE2
M_YNG2:
        s_barrier
        s_cmp_lt_u32 s{sTW}, 2
        s_cbranch_scc1 M_YG"""),
        [I(g[0] + '\ns_nop 0\n' + g[2]) for g in g1],
        I('M_YG:\ns_nop 7\ns_branch M_GO')))
    if OPT['DLY'] == 1:
        I(f's_cmp_lt_u32 s{sW}, 4\ns_cbranch_scc1 M_NODLY\ns_sleep {OPT["DLYN"]}\nM_NODLY:')
    if OPT['DLY'] == 2:
        I(f'''s_bfe_u32 s{sTMP}, s2, 0x20003
M_DL:
        s_cmp_eq_u32 s{sTMP}, 0
        s_cbranch_scc1 M_NODLY
        s_sleep {OPT["DLYN"]}
        s_sub_u32 s{sTMP}, s{sTMP}, 1
        s_branch M_DL
M_NODLY:''')
    stamp(4)
    I('.p2align 6')
    for p in range(2 if OPT['LOOP'] == 2 else 0):
        nb = 1 - p
        afc, afn = (AF, AF2) if p == 0 else (AF2, AF)
        PB = OPT['PB']
        I(f'''
M_LOOP{p}:
    {TR(0)}
    {evchk('F', p, sNC)}
    s_cmp_eq_u32 s{sT}, s{sBAR}
    s_cbranch_scc1 M_SB{p}
M_SBR{p}:
    {'' if OPT['LATE0'] else 's_setprio 0'}
    s_add_u32 s{sTMP}, s{sT}, 1
    s_cmp_lt_u32 s{sTMP}, s{sTW}
    s_cbranch_scc0 M_ND{p}
        ''')
        g = dma_tile(IDX, sM0X, sM0E, p*4096, p*1024)
        I(g[0][0])
        for q in range(5):
            I('s_nop 0' if q == 0 else g[q][0])
            if q > 0: I('s_nop 0')
            I(g[q][2])
        I(f'M_ND{p}:')
        def eblk(ft, extra):
            if OPT['LATE0']: I('s_setprio 0')
            hv = hm(ft, afc)
            ES_, EF = OPT['ES'], OPT['EF']
            ins = {}
            for k in range(4): ins.setdefault(EF + ES_*k, []).append(hv[k])
            if OPT['PPOS'] == 0 and EF == 0: ins[0].append(f's_setprio {PB}')
            else: ins.setdefault(max(1, OPT['PPOS']), []).insert(0, f's_setprio {PB}')
            if OPT['PB2'] >= 0: ins.setdefault(OPT['P2POS'], []).insert(0, f's_setprio {OPT["PB2"]}')
            for k, v in extra.items(): ins.setdefault(k, []).extend(v)
            I('\n'.join(weave(exps(ft), ins)))
        eblk(0, {11: [f'v_readlane_b32 s{sNN}, v{vSCH}, s{sT}']})
        I('\n'.join(pkadd(0)))
        zz = zm(1, afc)
        I('\n'.join(weave(rcps(0), {0: [zz[0]], 3: [zz[1]], 6: [zz[2]], 9: [zz[3]], 12: [zz[4]]})))
        I('\n'.join(pkf(0)))
        I(f'''
    {evchk('X', p, sNN)}
    {'' if OPT['LATE0'] else 's_setprio 0'}
    s_add_u32 s{sTMP}, s{sT}, 1
    s_cmp_lt_u32 s{sTMP}, s{sTW}
    s_cbranch_scc0 M_WZ{p}
    s_waitcnt vmcnt(5)
M_WZR{p}:
        ''')
        I(f'ds_read_b128 {r(AF+16,4)}, v{vRE} offset:{nb*1024}')
        for s_ in range(4): I(f'ds_read_b128 {r(afn+4*s_,4)}, v{vRA+s_} offset:{nb*4096}')
        I(f'ds_read_b128 {r(IDX,4)}, v{vLX}\nds_read_b32 v{IDX+4}, v{vLE}')
        if OPT['WOUT']: I('s_waitcnt lgkmcnt(0)')
        eblk(1, {})
        I('\n'.join(pkadd(1)))
        zz = zm(0, afn)
        if not OPT['WOUT']: I('s_waitcnt lgkmcnt(0)')
        I('\n'.join(weave(rcps(1), {0: [zz[0]], 3: [zz[1]], 6: [zz[2]], 9: [zz[3]], 12: [zz[4]]})))
        I('\n'.join(pkf(1)))
        if OPT['IDLE']:
            I(f's_cmp_gt_u32 s{sT}, {OPT["IDLEK"]}\ns_cbranch_scc1 M_NOIDLE{p}')
            for _ in range(OPT['IDLE']): I(f'v_mov_b32 v{T4}, v{T4}')
            I(f'M_NOIDLE{p}:')
        for q in range(5): I(g[q][1])
        I(f'''
    v_add_u32 v{vLX}, 32, v{vLX}
    v_add_u32 v{vLE}, 32, v{vLE}
    s_mov_b32 s{sNP}, s{sNC}
    s_mov_b32 s{sNC}, s{sNN}
    s_add_u32 s{sT}, s{sT}, 1
    s_cmp_le_u32 s{sT}, s{sTW}''')
        I('s_cbranch_scc0 M_LEND' if p == 0 else 's_cbranch_scc1 M_LOOP0')
    I('M_LEND:')
    I(TR(0))
    I('s_setprio 0')
    for j in range(4): flush_j(j, sNP)
    I(f'''
M_BDONE:
    s_cmp_lt_u32 s{sTW}, s{sBAR}
    s_cbranch_scc0 M_BDONE2
    s_waitcnt lgkmcnt(0)
    s_barrier
M_BDONE2:
    s_setprio 0
    s_cmp_lg_u32 s{sMODE}, 0
    s_cbranch_scc1 M_SNEXT
M_EPI:
    ''')
    stamp(5)
    I(f'''
    s_waitcnt lgkmcnt(0)
    s_barrier
    v_cmp_gt_u32 vcc, {BN*8}, v0
    s_and_saveexec_b64 {sr(sSAVE,2)}, vcc
    s_cbranch_execz M_FIN
    v_lshlrev_b32 v{T0}, 6, v0
    v_add_u32 v{T0}, {AGG}, v{T0}
    ds_read_b128 {r(Z+16,4)}, v{T0}
    ds_read_b128 {r(Z+20,4)}, v{T0} offset:16
    ds_read_b128 {r(Z+24,4)}, v{T0} offset:32
    ds_read_b128 {r(Z+28,4)}, v{T0} offset:48
    s_mov_b32 s{sTMP}, {NLOG2E}
    s_mul_i32 s{sTMP2}, s{sB}, {BN*128}
    v_lshlrev_b32 v{T1}, 4, v0
    s_waitcnt lgkmcnt(0)
    ''')
    for k in range(8): I(f'v_cvt_f32_f64 v{Z+k}, {r(Z+16+2*k,2)}')
    for k in range(8): I(f'v_mul_f32 v{Z+8+k}, s{sTMP}, v{Z+k}')
    for k in range(8): I(f'v_exp_f32 v{Z+8+k}, v{Z+8+k}')
    for k in range(8): I(f'v_add_f32 v{Z+8+k}, 1.0, v{Z+8+k}')
    for k in range(8): I(f'v_rcp_f32 v{Z+8+k}, v{Z+8+k}')
    for k in range(8): I(f'v_mul_f32 v{Z+k}, v{Z+k}, v{Z+8+k}')
    for k in range(4): I(f'v_cvt_pk_bf16_f32 v{Z+16+k}, v{Z+2*k}, v{Z+2*k+1}')
    I(f'buffer_store_dwordx4 {r(Z+16,4)}, v{T1}, {sr(sOUT,4)}, s{sTMP2} offen')
    I('M_FIN:')
    if OPT['AMP']:
        I(f'''s_cmp_lg_u32 s2, 0
        s_cbranch_scc1 M_END
        s_cmp_lg_u32 s{sW}, 0
        s_cbranch_scc1 M_END
        s_waitcnt vmcnt(0)
        s_memrealtime s[60:61]
        s_add_u32 s56, s26, {WF + 0x10000}
        s_addc_u32 s57, s27, 0
        s_load_dword s58, s[56:57], 0
        s_waitcnt lgkmcnt(0)''')
        if OPT['AMP'] == 2: I('s_mov_b32 s60, s74')
        if OPT['AMP'] == 3: I('s_mov_b32 s58, s74')
        if OPT['AMP'] >= 10: I('s_mov_b32 s58, s74\ns_mov_b32 s60, s72')
        I(f'''s_sub_u32 s59, s60, s58
        s_min_u32 s59, s59, 20000
        s_mul_i32 s59, s59, 10
        s_memrealtime s[60:61]
        s_waitcnt lgkmcnt(0)
        s_mov_b32 s58, s60
M_SPIN:
        s_memrealtime s[60:61]
        s_waitcnt lgkmcnt(0)
        s_sub_u32 s62, s60, s58
        s_cmp_lt_u32 s62, s59
        s_cbranch_scc1 M_SPIN''')
    if OPT['DBG']: dbgdump(7, 6)
    elif OPT['STAMP']:
        I(f'''s_mov_b64 exec, 1
        s_memrealtime s[72:73]
        s_load_dwordx2 s[4:5], s[0:1], 72
        s_waitcnt lgkmcnt(0) vmcnt(0)
        s_add_u32 s52, s4, 0x8000000
        s_addc_u32 s53, s5, 0
        s_mov_b32 s54, 0x100000
        s_mov_b32 s55, 0x20000
        s_lshl_b32 s56, s2, 3
        s_add_u32 s56, s56, s{sW}
        s_lshl_b32 s56, s56, 5
        v_mov_b32 v1, 0''')
        for i in range(7): I(f'v_mov_b32 v{8+i}, s{60+2*i}')
        I(f'''v_mov_b32 v15, s{sTW}
        buffer_store_dwordx4 v[8:11], v1, s[52:55], s56 offen
        buffer_store_dwordx4 v[12:15], v1, s[52:55], s56 offen offset:16''')
        if OPT['TRACE']:
            I(f'''s_mov_b64 exec, -1
            s_lshl_b32 s56, s56, 3
            s_add_u32 s56, s56, 0x20000
            v_lshlrev_b32 v1, 2, v2
            buffer_store_dword v{vTR}, v1, s[52:55], s56 offen''')
    I('M_END:\ns_endpgm')
    for p in range(2):
        for j in range(4 if not OPT['NOEV'] else 0):
            I(f'M_F{p}{j}:\ns_setprio {OPT["PE"]}')
            flush_j(j, sNP)
            I(f's_branch M_FR{p}{j}')
            I(f'M_X{p}{j}:\ns_setprio {OPT["PE"]}')
            xa_j(j, sNN)
            I(f's_branch M_XR{p}{j}')
        I(f'M_WZ{p}:\ns_waitcnt vmcnt(0)\ns_branch M_WZR{p}')
        I(f'M_SB{p}:\ns_barrier\ns_branch M_SBR{p}')
    for f in OUT: f()
    if OPT['CPF'] & 2:
        I(f'''M_CPF:
        s_getpc_b64 s[52:53]
M_PC:
        s_sub_u32 s52, s52, M_PC-{MAIN}
        s_subb_u32 s53, s53, 0
        v_lshlrev_b32 v{AF}, 7, v2
        v_min_u32 v{AF+1}, M_SLOW-{MAIN}-8196, v{AF}
        v_add_u32 v{AF+1}, 8192, v{AF+1}
        global_load_dword v{AF+8}, v{AF}, s[52:53]
        global_load_dword v{AF+8}, v{AF+1}, s[52:53]
        s_branch M_NOROW''')
    I('M_RA:')
    validate(12, 20)
    pass_a(12, 20, fs)
    I('s_branch M_RAR')
    I('M_RB:')
    pass_b1(12, 20)
    I('s_waitcnt lgkmcnt(0)')
    pass_b2(12, 20)
    validate(0, 8)
    I('s_nop 3\ns_branch M_RBR')
    I(f'''
M_SLOW:
    s_mov_b32 s{sMODE}, 1
    s_mov_b32 s{sSEG}, -1
M_SNEXT:
    s_add_u32 s{sSEG}, s{sSEG}, 1
    s_cmp_ge_u32 s{sSEG}, {NCH}
    s_cbranch_scc1 M_EPI
    s_lshl_b32 s{sTMP}, s{sSEG}, 4
    s_load_dword s{sD}, {sr(sOFP,2)}, s{sTMP}
    s_waitcnt lgkmcnt(0)
    s_lshr_b32 s{sTMP2}, s{sD}, 16
    s_cmp_eq_u32 s{sTMP2}, 0
    s_cbranch_scc1 M_SNEXT
    s_barrier
    ''')
    lds_init()
    I(f'''
    s_and_b32 s{sD}, s{sD}, 0xffff
    s_mul_i32 s{sTMP}, s{sSEG}, {CH}
    s_add_u32 s{sD}, s{sD}, s{sTMP}
    v_add_u32 v{T0}, s{sD}, v0
    v_mov_b32 v{T1}, s{sTMP}
    v_lshlrev_b32 v{vEB}, 5, v{T0 if MOVE else T1}
    v_lshlrev_b32 v{T0}, 2, v{T0}
    v_sub_u32 v{vC}, s{sTMP2}, v0
    v_add_u32 v{vC}, 511, v{vC}
    v_ashrrev_i32 v{vC}, 9, v{vC}
    v_cmp_lt_i32 vcc, 4, v{vC}
    v_add_u32 v{T1}, 4, v{vC}
    s_nop 0
    v_cndmask_b32 v{vC}, v{vC}, v{T1}, vcc
    ''')
    for s in range(7):
        I(f'buffer_load_dword v{pREC+s}, v{T0}, {sr(sWS,4)}, 0 offen')
        if s < 6: I(f'v_add_u32 v{T0}, 2048, v{T0}')
    I('s_waitcnt vmcnt(0) lgkmcnt(0)\ns_barrier')
    validate(0, 12)
    I(f'v_mov_b32 v{vFC}, 0xfc')
    pass_a(0, 12, lambda s: s * 16384)
    I('s_waitcnt lgkmcnt(0)\ns_barrier')
    scan()
    I('s_branch M_BATCH')
    I('M_CODE_END:')

def kd(name, vgpr, sgpr):
    return f'''.amdhsa_kernel {name}
  .amdhsa_next_free_vgpr {vgpr}
  .amdhsa_next_free_sgpr {sgpr}
  .amdhsa_accum_offset {(vgpr+3)//4*4}
  .amdhsa_group_segment_fixed_size 0
  .amdhsa_kernarg_size 80
  .amdhsa_user_sgpr_count 2
  .amdhsa_user_sgpr_kernarg_segment_ptr 1
  .amdhsa_system_sgpr_workgroup_id_x 1
.end_amdhsa_kernel
'''

HEAD = open('gather_scatter__edge_featured_mpnn_egc__graph.s.ref').read().split('; Override')[0]
gen_part()
gen_main()
if OPT['EXTRA']:
    header('nop_kernel'); I('s_endpgm')
out = HEAD + f'''; Two launches: part_kernel bins the edges by destination bucket, the main kernel does the rest.
{'; @launch kernel=nop_kernel grid=(1,1,1) block=(64,1,1) lds=0'+chr(10) if OPT['EXTRA']==1 else ''}; @launch kernel=part_kernel grid=({NCH+5},1,1) block=(512,1,1) lds={K1_LDS}
{'; @launch kernel=nop_kernel grid=(1,1,1) block=(64,1,1) lds=0'+chr(10) if OPT['EXTRA']==2 else ''}; @launch kernel={MAIN} grid=({NB},1,1) block=(512,1,1) lds={M_LDS}
{'; @launch kernel=nop_kernel grid=(1,1,1) block=(64,1,1) lds=0'+chr(10) if OPT['EXTRA']==3 else ''}.amdgcn_target "amdgcn-amd-amdhsa--gfx950"
.text
''' + '\n'.join(L) + '''
.section .rodata,"a"
.p2align 6
''' + kd('part_kernel', 88, 80) + '.p2align 6\n' + kd(MAIN, NV+(8 if OPT['TRACE'] else 0), 102) + ('.p2align 6\n' + kd('nop_kernel', 8, 8) if OPT['EXTRA'] else '')
open(sys.argv[1], 'w').write(out)
```

```python
import sys, struct

OPT = dict(MOVE=0, E_AUX='', K1_LD_AUX='', K1_ST_AUX='sc1', PAY_ST_AUX='', STAMP=0, PRIO=0, NOX=0, NOE=0, CYC=0, PKA=1, PKF=1, NOEV=0, NODMA=0, NODS=0, NOVM=0, TRACE=0, XPF=1, K1SLEEP=0, EXTRA=0, DBG=0, NOHV=0, NOZ=0, NOTR=0, LOOP=2, PB=1, PE=3, PB2=2, WOUT=1, ES=3, EF=3, PPOS=0, P2POS=8, AMP=0, FINE=0, WLATE=1, CPF=1, OFF_ST_AUX='sc1', K1SPLIT=1, NOPK=0, LATE0=0, YP=0, DLY=0, DLYN=0, EPF=0, EPF_AUX='', IDLE=0, IDLEK=99, PRE=0, PREPOS=0, STAG=4, DELTA=6, INL=1, EARLY=1, STEP=0, SMASK=0)
for a in sys.argv[2:]:
    k, v = a.split('=')
    OPT[k] = int(v) if v.lstrip('-').isdigit() else v.replace('_', ' ')
MOVE = OPT['MOVE']

N, E = 12500, 800000
NB, BN = 256, 49
NCH, CH = 250, 3200
REC, OFFS, WF, PAY = 0, 0x400000, 0x480000, 0x800000
WS_BYTES = PAY + E * 32
NFRAG = 34
NLOG2E = struct.unpack('<I', struct.pack('<f', -1.4426950408889634))[0]
MAIN = 'gather_scatter__edge_featured_mpnn_egc__graph_kernel'

L = []
def I(s):
    for ln in s.strip('\n').split('\n'):
        ln = ln.strip()
        if ln:
            L.append(ln if ln.endswith(':') else '    ' + ln)
def r(a, n): return f'v[{a}:{a+n-1}]'
def sr(a, n): return f's[{a}:{a+n-1}]'
def srd(d, base, nbytes):
    I(f'''s_mov_b32 s{d}, s{base}
    s_mov_b32 s{d+1}, s{base+1}
    s_mov_b32 s{d+2}, {nbytes}
    s_mov_b32 s{d+3}, 0x20000''')
def dpp_scan(v):
    for ctl in ('row_shr:1', 'row_shr:2', 'row_shr:4', 'row_shr:8'):
        I(f's_nop 1\nv_add_u32_dpp v{v}, v{v}, v{v} {ctl} row_mask:0xf bank_mask:0xf bound_ctrl:1')
    I(f's_nop 1\nv_add_u32_dpp v{v}, v{v}, v{v} row_bcast:15 row_mask:0xa bank_mask:0xf')
    I(f's_nop 1\nv_add_u32_dpp v{v}, v{v}, v{v} row_bcast:31 row_mask:0xc bank_mask:0xf')
def header(name):
    I(f'.globl {name}\n.p2align 8\n.type {name},@function\n{name}:')

K1_HIST, K1_BASE, K1_SORT, K1_SORTE, K1_EIMG = 0, 1024, 2048, 14848, 27648
K1_LDS = (K1_EIMG + CH * 32) if MOVE else K1_SORTE

def kstamp(i):
    if OPT['STAMP']: I(f's_memrealtime s[{60+2*i}:{61+2*i}]\ns_waitcnt lgkmcnt(0)')
def dbgdump(n, last):
    I(f'''s_waitcnt vmcnt(0)
    s_memrealtime s[{60+2*last}:{61+2*last}]
    s_load_dwordx2 s[52:53], s[0:1], 64
    s_mov_b64 exec, 1
    s_waitcnt lgkmcnt(0)
    s_mov_b32 s54, 256
    s_mov_b32 s55, 0x20000
    v_mov_b32 v1, 0''')
    for i in range(n):
        I(f'''v_mov_b32 v8, s{60+2*i}
        buffer_atomic_umax v8, v1, s[52:55], 0 offen offset:{4*i}
        v_not_b32 v9, s{60+2*i}
        buffer_atomic_umax v9, v1, s[52:55], 0 offen offset:{32+4*i}
        s_waitcnt vmcnt(0)''')
def kdump():
    if OPT['DBG']:
        dbgdump(6, 5); return
    if OPT['STAMP']:
        I(f'''; K1STAMP
        s_waitcnt vmcnt(0)
        s_memrealtime s[70:71]
        s_mov_b64 exec, 1
        s_waitcnt lgkmcnt(0)
        s_add_u32 s52, s24, 0x8100000
        s_addc_u32 s53, s25, 0
        s_mov_b32 s54, 0x100000
        s_mov_b32 s55, 0x20000
        s_lshl_b32 s56, s2, 3
        s_add_u32 s56, s56, s28
        s_lshl_b32 s56, s56, 5
        v_mov_b32 v1, 0''')
        for i in range(8): I(f'v_mov_b32 v{8+i}, s{60+2*min(i,5)}')
        I('''buffer_store_dwordx4 v[8:11], v1, s[52:55], s56 offen
        buffer_store_dwordx4 v[12:15], v1, s[52:55], s56 offen offset:16''')
def gen_part():
    header('part_kernel')
    if OPT['AMP']: I('s_memrealtime s[74:75]')
    kstamp(0)
    D, S, B4, RK, RC, EL = 8, 16, 24, 32, 40, 48
    I(f'''
    s_cmp_ge_u32 s2, {NCH+5}
    s_cbranch_scc1 P_END
    s_load_dwordx4 s[4:7], s[0:1], 16
    s_load_dwordx2 s[24:25], s[0:1], 72
    s_load_dwordx2 s[26:27], s[0:1], 8
    v_lshrrev_b32 v3, 6, v0
    v_lshlrev_b32 v1, 2, v0
    v_readfirstlane_b32 s28, v3
    s_cmp_ge_u32 s2, {NCH}
    s_cbranch_scc1 P_PREP
    v_mov_b32 v2, 0
    ds_write_b32 v1, v2
    v_lshlrev_b32 v4, 4, v0
    v_lshlrev_b32 v5, 3, v0
    v_add_u32 v5, 8192, v5
    v_add_u32 v6, 12288, v1
    s_mul_i32 s29, s2, {CH*4}
    s_waitcnt lgkmcnt(0)
    ''')
    srd(8, 4, E * 4); srd(12, 6, E * 4); srd(16, 24, WS_BYTES)
    if OPT['AMP']:
        I(f'''s_cmp_lg_u32 s2, 0
        s_cbranch_scc1 P_NOAMP
        s_cmp_lg_u32 s28, 0
        s_cbranch_scc1 P_NOAMP
        v_mov_b32 v80, s74
        v_mov_b32 v81, {WF + 0x10000}
        buffer_store_dword v80, v81, s[16:19], 0 offen
P_NOAMP:''')
    ax = OPT['K1_LD_AUX']
    SPL = OPT['K1SPLIT'] and not MOVE
    srcld = f'''buffer_load_dwordx4 {r(S,4)}, v4, s[8:11], s29 offen {ax}
    buffer_load_dwordx2 {r(S+4,2)}, v5, s[8:11], s29 offen {ax}
    buffer_load_dword v{S+6}, v6, s[8:11], s29 offen {ax}'''
    I(f'''
    s_cmp_ge_u32 s28, 2
    s_cbranch_scc1 P_NO6A
    buffer_load_dword v{D+6}, v6, s[12:15], s29 offen {ax}
    {'' if SPL else f'buffer_load_dword v{S+6}, v6, s[8:11], s29 offen {ax}'}
P_NO6A:
    buffer_load_dwordx4 {r(D,4)}, v4, s[12:15], s29 offen {ax}
    buffer_load_dwordx2 {r(D+4,2)}, v5, s[12:15], s29 offen {ax}
    ''')
    if not SPL:
        I(f'''buffer_load_dwordx4 {r(S,4)}, v4, s[8:11], s29 offen {ax}
        buffer_load_dwordx2 {r(S+4,2)}, v5, s[8:11], s29 offen {ax}''')
    if MOVE:
        srd(20, 26, E * 32)
        I(f'''
        v_and_b32 v7, 63, v0
        v_lshlrev_b32 v7, 4, v7
        s_mul_i32 s30, s2, {CH*32}
        s_lshl_b32 s31, s28, 10
        s_add_u32 s30, s30, s31
        s_add_u32 s31, s31, {K1_EIMG}
        ''')
        for n in range(13):
            if n == 12:
                I('s_cmp_ge_u32 s28, 4\ns_cbranch_scc1 P_NO13')
            I(f'''s_mov_b32 m0, s31
            s_add_u32 s31, s31, 8192
            buffer_load_dwordx4 v7, s[20:23], s30 offen {ax} lds
            s_add_u32 s30, s30, 8192''')
        I('P_NO13:')
    sh = 14
    I(f'''
    v_lshlrev_b32 v56, {2+sh}, v0
    v_lshlrev_b32 v57, {1+sh}, v0
    v_add_u32 v57, {2048 << sh}, v57
    v_lshlrev_b32 v58, {sh}, v0
    v_add_u32 v58, {3072 << sh}, v58
    v_mov_b32 v59, 1
    s_mov_b32 s32, {-BN & 0xffffffff}
    s_mov_b32 s33, {1 << sh}
    s_mov_b32 s34, {2 << sh}
    s_mov_b32 s35, {3 << sh}
    s_barrier
    ''')
    if SPL:
        I(f's_cmp_ge_u32 s28, 2\ns_cselect_b32 s37, 0x40000000, 0\nv_or_b32 v6, s37, v6')
        I(srcld)
    kstamp(1)
    I(f's_waitcnt vmcnt({12 if MOVE else (3 if SPL else 0)})')
    kstamp(2)
    def slot(k):
        I(f'''v_mul_u32_u24 v{B4+k}, 21400, v{D+k}
        v_lshrrev_b32 v{B4+k}, 20, v{B4+k}
        v_mad_i32_i24 v{RC+k}, v{B4+k}, s32, v{D+k}
        v_lshlrev_b32 v{B4+k}, 2, v{B4+k}
        ds_add_rtn_u32 v{RK+k}, v{B4+k}, v59''')
    def rec(k):
        eb = 56 if k < 4 else (57 if k < 6 else 58)
        kk = k if k < 4 else (k - 4 if k < 6 else 0)
        ks = '0' if kk == 0 else f's{32+kk}'
        I(f'''v_lshl_or_b32 v{RC+k}, v{RC+k}, 26, v{S+k}
        v_add3_u32 v{RC+k}, v{RC+k}, v{eb}, {ks}''')
        if MOVE:
            I(f'''v_bfe_u32 v{EL+k}, v{RC+k}, 14, 12
            v_lshlrev_b32 v{EL+k}, 5, v{EL+k}''')
    if OPT['EPF'] == 1:
        srd(20, 26, E * 32)
        I(f'''v_lshlrev_b32 v80, 7, v0
        s_mul_i32 s30, s2, {CH*32}
        v_add_u32 v81, 65536, v80
        v_min_u32 v81, {CH*32-128}, v81
        buffer_load_dword v87, v80, s[20:23], s30 offen {OPT['EPF_AUX']}
        buffer_load_dword v87, v81, s[20:23], s30 offen {OPT['EPF_AUX']}''')
    for k in range(6): slot(k)
    I('s_cmp_ge_u32 s28, 2\ns_cbranch_scc1 P_NO6B')
    slot(6)
    I(f'''
P_NO6B:
    v_and_b32 v60, 63, v0
    v_lshlrev_b32 v60, 4, v60
    s_waitcnt lgkmcnt(0)
    s_barrier
    ds_read_b128 v[64:67], v60
    s_waitcnt lgkmcnt(0)
    v_add_u32 v69, v64, v65
    v_add_u32 v70, v69, v66
    v_add_u32 v71, v70, v67
    v_mov_b32 v72, v71
    ''')
    dpp_scan(72)
    I(f'''
    v_sub_u32 v68, v72, v71
    v_add_u32 v71, v68, v70
    v_add_u32 v70, v68, v69
    v_add_u32 v69, v68, v64
    ds_write_b128 v60, v[68:71] offset:{K1_BASE}
    s_waitcnt lgkmcnt(0)
    ''')
    for k in range(6):
        I(f'ds_read_b32 v{D+k}, v{B4+k} offset:{K1_BASE}')
    if SPL: I(f's_waitcnt vmcnt({2 if OPT["EPF"] == 1 else 0})')
    I(f'''
    s_cmp_lg_u32 s28, 4
    s_cbranch_scc1 P_NOOFF
    v_lshl_or_b32 v64, v64, 16, v68
    v_lshl_or_b32 v65, v65, 16, v69
    v_lshl_or_b32 v66, v66, 16, v70
    v_lshl_or_b32 v67, v67, 16, v71
    v_lshlrev_b32 v61, 8, v60
    s_lshl_b32 s36, s2, 4
    s_add_u32 s36, s36, {OFFS}
    buffer_store_dwordx4 v[64:67], v61, s[16:19], s36 offen {OPT['OFF_ST_AUX']}
P_NOOFF:
    ''')
    for k in range(7): rec(k)
    if OPT['CPF'] & 1:
        I(f'''s_cmp_lg_u32 s28, 7
        s_cbranch_scc1 P_NOCPF
        s_cmp_ge_u32 s2, 32
        s_cbranch_scc1 P_NOCPF
        s_getpc_b64 s[40:41]
P_PC:
        s_add_u32 s40, s40, {MAIN}-P_PC
        s_addc_u32 s41, s41, 0
        v_and_b32 v82, 63, v0
        v_lshlrev_b32 v82, 7, v82
        v_min_u32 v83, M_CODE_END-{MAIN}-8196, v82
        v_add_u32 v83, 8192, v83
        global_load_dword v86, v82, s[40:41]
        global_load_dword v86, v83, s[40:41]''')
        if OPT['CPF'] & 4:
            I(f'''s_load_dwordx2 s[42:43], s[0:1], 0
            s_load_dwordx2 s[44:45], s[0:1], 56
            v_lshlrev_b32 v82, 12, v82
            v_min_u32 v82, {E*32-4}, v82
            v_mov_b32 v83, 0
            global_load_dword v86, v82, s[26:27]
            s_waitcnt lgkmcnt(0)
            global_load_dword v86, v83, s[42:43]
            global_load_dword v86, v83, s[44:45]''')
        I('P_NOCPF:')
    I(f'''
    s_cmp_ge_u32 s28, 2
    s_cbranch_scc1 P_NO6C
    ds_read_b32 v{D+6}, v{B4+6} offset:{K1_BASE}
    s_waitcnt lgkmcnt(0)
    v_add_lshl_u32 v{RK+6}, v{RK+6}, v{D+6}, 2
    ds_write_b32 v{RK+6}, v{RC+6} offset:{K1_SORT}
    ''')
    if MOVE: I(f'ds_write_b32 v{RK+6}, v{EL+6} offset:{K1_SORTE}')
    I('P_NO6C:\ns_waitcnt lgkmcnt(0)')
    for k in range(6):
        I(f'''v_add_lshl_u32 v{RK+k}, v{RK+k}, v{D+k}, 2
        ds_write_b32 v{RK+k}, v{RC+k} offset:{K1_SORT}''')
        if MOVE: I(f'ds_write_b32 v{RK+k}, v{EL+k} offset:{K1_SORTE}')
    I(f'''
    s_waitcnt lgkmcnt(0)
    ''')
    kstamp(3)
    I(f'''
    {"s_waitcnt vmcnt(0)" if MOVE else ""}
    s_barrier
    ''')
    kstamp(4)
    I(f'''
    ds_read_b128 v[8:11], v4 offset:{K1_SORT}
    v_cmp_gt_u32 vcc, 288, v0
    s_and_saveexec_b64 s[38:39], vcc
    ds_read_b128 v[12:15], v4 offset:{K1_SORT+8192}
    s_mov_b64 exec, s[38:39]
    ''')
    if MOVE:
        I(f'''v_lshrrev_b32 v84, 1, v0
        v_lshlrev_b32 v84, 2, v84
        v_and_b32 v85, 1, v0
        v_lshlrev_b32 v85, 4, v85
        v_add_u32 v85, {K1_EIMG}, v85''')
        for n in range(13):
            I(f'ds_read_b32 v{16+n}, v84 offset:{K1_SORTE + n*1024}')
    I(f'''
    s_waitcnt lgkmcnt({13 if MOVE else 0})
    buffer_store_dwordx4 v[8:11], v4, s[16:19], s29 offen {OPT['K1_ST_AUX']}
    s_add_u32 s36, s29, 8192
    s_and_saveexec_b64 s[38:39], vcc
    s_cbranch_execz P_NOST2
    buffer_store_dwordx4 v[12:15], v4, s[16:19], s36 offen {OPT['K1_ST_AUX']}
P_NOST2:
    s_mov_b64 exec, s[38:39]
    ''')
    if MOVE:
        I(f'''s_mul_i32 s30, s2, {CH*32}
        s_add_u32 s30, s30, {PAY}
        s_waitcnt lgkmcnt(0)''')
        for n in range(12):
            I(f'v_add_u32 v{16+n}, v{16+n}, v85\nds_read_b128 {r(32+4*n,4)}, v{16+n}')
        for n in range(12):
            I(f'''s_waitcnt lgkmcnt({min(15, 11-n)})
            buffer_store_dwordx4 {r(32+4*n,4)}, v4, s[16:19], s30 offen {OPT['PAY_ST_AUX']}
            s_add_u32 s30, s30, 8192''')
        I(f'''s_cmp_ge_u32 s28, 4
        s_cbranch_scc1 P_FIN
        v_add_u32 v28, v28, v85
        ds_read_b128 v[8:11], v28
        s_waitcnt lgkmcnt(0)
        buffer_store_dwordx4 v[8:11], v4, s[16:19], s30 offen {OPT['PAY_ST_AUX']}''')
    I('P_FIN:')
    for _ in range(OPT['K1SLEEP']): I('s_sleep 64')
    kdump()
    I('s_endpgm')
    I(f'''
P_PREP:
    s_load_dwordx4 s[8:11], s[0:1], 32
    s_load_dwordx2 s[12:13], s[0:1], 48
    s_sub_u32 s30, s2, {NCH}
    s_lshl_b32 s30, s30, 3
    s_add_u32 s30, s30, s28
    s_cmp_ge_u32 s30, {NFRAG}
    s_cbranch_scc1 P_END
    s_waitcnt lgkmcnt(0)
    s_mov_b32 s20, s12
    s_mov_b32 s21, s13
    s_mov_b32 s22, {144*128}
    s_mov_b32 s23, 0x20000
    s_mov_b32 s33, {NLOG2E}
    s_mov_b32 s31, s30
    s_mov_b32 s32, 64
    s_cmp_lt_u32 s30, 8
    s_cbranch_scc1 P_GO
    s_cmp_lt_u32 s30, 16
    s_cbranch_scc0 P_C1
    s_sub_u32 s31, s30, 8
    s_mov_b32 s32, 0
    s_mov_b32 s33, 1.0
    s_mov_b32 s20, s10
    s_mov_b32 s21, s11
    s_mov_b32 s22, {64*128}
    s_branch P_GO
P_C1:
    s_cmp_lt_u32 s30, 18
    s_cbranch_scc0 P_C2
    s_sub_u32 s31, s30, 16
    s_lshl_b32 s31, s31, 2
    s_mov_b32 s32, 128
    s_branch P_GO
P_C2:
    s_mov_b32 s33, 1.0
    s_mov_b32 s32, 0
    s_sub_u32 s31, s30, 18
    s_cmp_lt_u32 s30, 26
    s_cbranch_scc1 P_GO
    s_sub_u32 s31, s30, 26
    s_mov_b32 s20, s8
    s_mov_b32 s21, s9
    s_mov_b32 s22, {64*128}
P_GO:
    s_and_b32 s34, s31, 3
    s_lshl_b32 s34, s34, 4
    s_add_u32 s34, s34, s32
    s_lshl_b32 s34, s34, 7
    s_lshr_b32 s35, s31, 2
    s_lshl_b32 s35, s35, 6
    s_add_u32 s34, s34, s35
    v_and_b32 v1, 31, v0
    v_lshlrev_b32 v1, 1, v1
    v_bfe_u32 v2, v0, 5, 1
    v_lshl_or_b32 v1, v2, 10, v1
    ''')
    for t in range(8):
        I(f'buffer_load_ushort v{8+t}, v1, s[20:23], s34 offen offset:{t*128}')
    srd(16, 24, WS_BYTES)
    I(f'''
    v_and_b32 v3, 63, v0
    v_lshlrev_b32 v3, 4, v3
    s_lshl_b32 s36, s30, 10
    s_add_u32 s36, s36, {WF}
    s_waitcnt vmcnt(0)
    ''')
    for t in range(8):
        I(f'v_lshlrev_b32 v{8+t}, 16, v{8+t}\nv_mul_f32 v{8+t}, s33, v{8+t}')
    for t in range(4):
        I(f'v_cvt_pk_bf16_f32 v{16+t}, v{8+2*t}, v{9+2*t}')
    I('''buffer_store_dwordx4 v[16:19], v3, s[16:19], s36 offen
P_END:
    s_endpgm''')

CNT, FLAG, BASE = 0, 256, 512
XS = 1024
ES = XS + 65536
LX = ES + 16384
LE = LX + 16384
XAT = LE + 16384
AGG = XAT + 14336
M_LDS = AGG + 2*14336
ROWS = XS + 36864
XSENT, ESENT = 0x1FFF80, 0x7FFFFF00
CAP = 4096
NSLOT = 20

WB, WV, WC = 4, 36, 68
XA = 76
Z = 108
H = 140
AF = 156
ACC = 176
IDX = 192
vLX, vLE, vKX0, vKX1, vKE = 197, 198, 199, 200, 201
vRA, vRE = 202, 206
vSCH, vLT = 207, 208
T0, T1, T2 = 209, 210, 211
vC, vEB = 212, 213
vONE = 214
vLA = 215
vINV, vFC = 218, 219
T4 = 216
AF2 = 220
NV = 236 if OPT['LOOP'] == 2 else 220
vTR = NV
pREC, pRK, pAD = 76, 96, 116
pD, pA, pW = 136, 152, 168
sX, sE, sWS, sOUT = 8, 12, 16, 20
sW, sT, sTW, sNP, sNC, sNN, sD, sM0X, sM0E, sMASK, sTMP, sTMP2, sMODE, sSEG, sG0 = range(28, 43)
sONE = 44
sSAVE = 46
sOFP = 48
sB = 50
sXR = 51
sBAR = 43

def thr(s): return 8 * (s // 4) + s % 4

def mf(d, a, b, c): return f'v_mfma_f32_32x32x16_bf16 {r(d,16)}, {r(a,4)}, {r(b,4)}, {c}'
def zm(ft, af=None):
    if af is None: af = AF
    out = [mf(Z+16*ft, AF+16, WC+4*ft, r(XA+16*ft, 16))]
    for k in range(4): out.append(mf(Z+16*ft, af+4*k, WB+16*ft+4*k, r(Z+16*ft, 16)) if not OPT['NOZ'] else 'v_nop\nv_nop')
    return out
def hm(ft, af=None):
    if af is None: af = AF
    out = [mf(H, af, WV+16*ft, '0')]
    for k in range(1, 4): out.append(mf(H, af+4*k, WV+16*ft+4*k, r(H, 16)))
    if OPT['NOHV']: out = ['v_nop\nv_nop'] * 4
    return out
def exps(ft): return [f'v_exp_f32 v{Z+16*ft+i}, v{Z+16*ft+i}' if not OPT['NOTR'] else 'v_nop\nv_nop' for i in range(16)]
def rcps(ft): return [f'v_rcp_f32 v{Z+16*ft+i}, v{Z+16*ft+i}' if not OPT['NOTR'] else 'v_nop\nv_nop' for i in range(16)]
def pkadd(ft):
    if OPT['NOPK']: return ['v_nop'] * 8
    if not OPT['PKA']: return [f'v_add_f32 v{Z+16*ft+i}, 1.0, v{Z+16*ft+i}' for i in range(16)]
    return [f'v_pk_add_f32 {r(Z+16*ft+2*i,2)}, {r(Z+16*ft+2*i,2)}, {sr(sONE,2)}' for i in range(8)]
def pkf(ft):
    if OPT['NOPK']: return ['v_nop'] * 8
    if not OPT['PKF']: return [f'v_fmac_f32 v{ACC+8*ft+2*(i//4)+i%2}, v{Z+16*ft+i}, v{H+i}' for i in range(16)]
    return [f'v_pk_fma_f32 {r(ACC+8*ft+2*(i//2),2)}, {r(Z+16*ft+2*i,2)}, {r(H+2*i,2)}, {r(ACC+8*ft+2*(i//2),2)}' for i in range(8)]
def weave(main, ins):
    out = []
    for i, m in enumerate(main):
        out += ins.get(i, [])
        out.append(m)
    out += ins.get(len(main), [])
    return out

def lds_init():
    I(f'''v_lshlrev_b32 v{T0}, 4, v0
    v_add_u32 v{T0}, {LX}, v{T0}
    v_mov_b32 v{AF}, {XSENT}
    v_mov_b32 v{AF+1}, {XSENT}
    v_mov_b32 v{AF+2}, {XSENT}
    v_mov_b32 v{AF+3}, {XSENT}
    v_mov_b32 v{AF+4}, {ESENT}
    v_mov_b32 v{AF+5}, {ESENT}
    v_mov_b32 v{AF+6}, {ESENT}
    v_mov_b32 v{AF+7}, {ESENT}
    v_and_b32 v{T1}, 127, v0
    v_lshlrev_b32 v{T1}, 2, v{T1}
    v_mov_b32 v{T2}, 0
    ds_write_b128 v{T0}, {r(AF,4)}
    ds_write_b128 v{T0}, {r(AF,4)} offset:8192
    ds_write_b128 v{T0}, {r(AF+4,4)} offset:16384
    ds_write_b128 v{T0}, {r(AF+4,4)} offset:24576
    ds_write_b32 v{T1}, v{T2}''')

def pEO(s): return AF2 + s if s < 16 else 184 + s - 16
def sVM(s): return 76 + 2 * (s % 12)
def validate(lo, hi):
    for s in range(lo, hi): I(f'v_cmp_lt_i32 {sr(sVM(s),2)}, {thr(s)}, v{vC}')
def pass_a(lo, hi, estride, mid=None):
    for s in range(lo, hi):
        I(f'v_and_b32_sdwa v{pAD+s}, v{vFC}, v{pREC+s} dst_sel:DWORD dst_unused:UNUSED_PAD src0_sel:DWORD src1_sel:BYTE_3')
    for s in range(lo, hi):
        I(f'''s_mov_b64 exec, {sr(sVM(s),2)}
        ds_add_rtn_u32 v{pRK+s}, v{pAD+s}, v{vONE}''')
    I('s_mov_b64 exec, -1')
    if mid: mid()
    for s in range(lo, hi):
        if MOVE:
            I(f'v_add_u32 v{pEO(s)}, {estride(s)}, v{vEB}')
        else:
            I(f'''v_bfe_u32 v{pEO(s)}, v{pREC+s}, 14, 12
            v_lshl_add_u32 v{pEO(s)}, v{pEO(s)}, 5, v{vEB}''')
        I(f'v_alignbit_b32 v{pREC+s}, v{pREC+s}, v{pREC+s}, 25')

def scan():
    I(f'''v_lshlrev_b32 v{T0}, 2, v2
    ds_read_b32 v{T1}, v{T0}
    v_mov_b32 v{T2}, {FLAG}
    ds_read_b32 v{IDX}, v{T2}
    s_waitcnt lgkmcnt(0)
    v_add_u32 v{T1}, 7, v{T1}
    v_and_b32 v{T1}, -8, v{T1}
    v_readfirstlane_b32 s{sTMP2}, v{IDX}
    v_mov_b32 v{T2}, v{T1}''')
    dpp_scan(T2)
    I(f'''v_sub_u32 v{T1}, v{T2}, v{T1}
    v_readlane_b32 s{sTMP}, v{T2}, 63
    v_add_u32 v{T1}, {LX//4}, v{T1}
    ds_write_b32 v{T0}, v{T1} offset:{BASE}''')
def pass_b1(lo, hi):
    for s in range(lo, hi):
        I(f'''s_mov_b64 exec, {sr(sVM(s),2)}
        ds_read_b32 v{pAD+s}, v{pAD+s} offset:{BASE}''')
    I('s_mov_b64 exec, -1')
def pass_b2(lo, hi):
    for s in range(lo, hi): I(f'v_add_lshl_u32 v{pRK+s}, v{pRK+s}, v{pAD+s}, 2')
    for s in range(lo, hi):
        I(f'''s_mov_b64 exec, {sr(sVM(s),2)}
        ds_write2st64_b32 v{pRK+s}, v{pREC+s}, v{pEO(s)} offset1:64''')
    I('s_mov_b64 exec, -1')

def dma_tile(ix, xm0, em0, xoff, eoff):
    g = []
    for q in range(4):
        g.append([f's_add_u32 m0, s{xm0}, {xoff + q*1024}',
                  f'v_and_or_b32 v{ix+q}, v{ix+q}, s{sMASK}, v{vKX0 if q % 2 == 0 else vKX1}',
                  f'buffer_load_dwordx4 v{ix+q}, {sr(sX,4)}, 0 offen lds'])
    g.append([f's_add_u32 m0, s{em0}, {eoff}',
              f'v_add_u32 v{ix+4}, v{ix+4}, v{vKE}',
              f'buffer_load_dwordx4 v{ix+4}, {sr(sE,4)}, 0 offen {OPT["E_AUX"]} lds'])
    return g

def flush_j(j, sn):
    I(f'''v_add_f32 v{T1}, v{ACC+2*j}, v{ACC+2*j+1}
    v_add_f32 v{T2}, v{ACC+8+2*j}, v{ACC+8+2*j+1}
    s_bfe_u32 s{sTMP}, s{sn}, {(6 << 16) | (8*j)}
    s_lshl_b32 s{sTMP}, s{sTMP}, 9
    v_permlane32_swap_b32 v{T1}, v{T2}
    v_add_u32 v{T0}, s{sTMP}, v{vLA}
    v_mov_b64 {r(ACC+2*j,2)}, 0
    v_add_f32 v{T1}, v{T1}, v{T2}
    v_mov_b64 {r(ACC+8+2*j,2)}, 0
    v_cvt_f64_f32 {r(T4,2)}, v{T1}
    ds_add_f64 v{T0}, {r(T4,2)}''')
def xa_j(j, sn):
    I(f'''s_bfe_u32 s{sTMP}, s{sn}, {(6 << 16) | (8*j)}
    s_lshl_b32 s{sTMP}, s{sTMP}, 8
    v_add_u32 v{T0}, s{sTMP}, v{vLT}
    ds_read2_b32 {r(XA+4*j,2)}, v{T0}
    ds_read2_b32 {r(XA+4*j+2,2)}, v{T0}
    ds_read2_b32 {r(XA+16+4*j,2)}, v{T0} offset0:32 offset1:32
    ds_read2_b32 {r(XA+16+4*j+2,2)}, v{T0} offset0:32 offset1:32''')

def TR(k):
    if not OPT['TRACE']: return ''
    return f'''s_memtime s[76:77]
    s_memrealtime s[78:79]
    s_waitcnt lgkmcnt(0)
    s_mov_b32 m0, s{sT}
    s_nop 0
    v_writelane_b32 v{vTR+k}, s76, m0
    s_add_u32 m0, m0, 32
    s_nop 0
    v_writelane_b32 v{vTR+k}, s78, m0'''
def fstamp(i):
    if OPT['STAMP'] and OPT['FINE']: I(f's_memrealtime s[{60+2*i}:{61+2*i}]\ns_waitcnt lgkmcnt(0)')
def stamp(i):
    if OPT['AMP'] == 10 + i: I('s_memrealtime s[72:73]\ns_waitcnt lgkmcnt(0)')
    if OPT['FINE'] and i not in (0,): return
    if OPT['STAMP'] and OPT['CYC'] == 2:
        if i in (1, 2): return
        if i in (4, 5): I(f's_memtime s[{60+2*(i-3)}:{61+2*(i-3)}]')
        I(f's_memrealtime s[{60+2*i}:{61+2*i}]\ns_waitcnt lgkmcnt(0)')
    elif OPT['STAMP']:
        I(f'{"s_memtime" if OPT["CYC"] and i in (4,5) else "s_memrealtime"} s[{60+2*i}:{61+2*i}]\ns_waitcnt lgkmcnt(0)')

WBASE = XS + 32768
def frag_off(f):
    if f < 16: return (f // 4) * 8192 + 4096 + (f % 4) * 1024
    return ES + (4 + f - 16) * 2048 + 1024 - WBASE
def row_lds(k): return XS + (4 + k // 4) * 8192 + (k % 4) * 1024

def burn(pos):
    if not OPT['PRE'] or OPT['PREPOS'] != pos: return
    I(f's_mov_b32 s{sTW}, 0x9E3779B1')
    for k in range(8):
        I(f'v_add_u32 v{4+k}, {k*977+13}, v0\nv_mul_lo_u32 v{4+k}, v{4+k}, s{sTW}\nv_and_b32 v{4+k}, 0xbe7fbe7f, v{4+k}\nv_or_b32 v{4+k}, 0x3c003c00, v{4+k}')
    I(f's_mov_b32 s{sTW}, {OPT["PRE"]}\nM_BURN:')
    for k in range(4):
        I(mf(16, 4, 8, '0') if k % 2 == 0 else mf(32, 8, 4, '0'))
    I(f's_sub_u32 s{sTW}, s{sTW}, 1\ns_cmp_lg_u32 s{sTW}, 0\ns_cbranch_scc1 M_BURN')
def bvc():
    return f'''s_add_u32 m0, s{sNP}, {WBASE+4096}
    s_add_u32 s{sTMP}, s{sNC}, 8192
    buffer_load_dwordx4 v{IDX+1}, {sr(sWS,4)}, s{sNC} offen lds
    s_add_u32 m0, s{sNP}, {WBASE+4096+16384}
    s_cmp_ge_u32 s{sW}, 2
    buffer_load_dwordx4 v{IDX+1}, {sr(sWS,4)}, s{sTMP} offen lds
    s_cbranch_scc1 M_NOW4
    s_add_u32 m0, s{sM0E}, {4*2048+1024}
    s_add_u32 s{sTMP}, s{sNC}, {16*1024}
    buffer_load_dwordx4 v{IDX+1}, {sr(sWS,4)}, s{sTMP} offen lds
M_NOW4:'''
OUT = []
def init0():
    lds_init()
    I(f'''v_add_u32 v{T0}, {AGG-LX}, v{T0}
    v_mov_b64 {r(AF+8,2)}, 0
    v_mov_b64 {r(AF+10,2)}, 0
    s_cmp_lg_u32 s{sW}, 0
    ds_write_b128 v{T0}, {r(AF+8,4)}
    ds_write_b128 v{T0}, {r(AF+8,4)} offset:8192
    ds_write_b128 v{T0}, {r(AF+8,4)} offset:16384
    s_cbranch_scc1 M_NOZ3
    ds_write_b128 v{T0}, {r(AF+8,4)} offset:24576
M_NOZ3:''')
def evchk(kind, p, sn):
    if OPT['NOEV']: return ''
    return '\n'.join(f's_bitcmp1_b32 s{sn}, {8*j+6}\ns_cbranch_scc1 M_{kind}{p}{j}\nM_{kind}R{p}{j}:' for j in range(4))
def gen_main():
    header(MAIN)
    if OPT['AMP']: I('s_memrealtime s[74:75]')
    stamp(0)
    I(f"""
    s_cmp_ge_u32 s2, {NB}
    s_cbranch_scc1 M_END
    """)
    burn(0)
    I(f"""
    s_load_dwordx2 s[26:27], s[0:1], 72
    s_load_dwordx4 s[4:7], s[0:1], 0
    s_load_dwordx2 s[24:25], s[0:1], 56
    v_lshrrev_b32 v1, 6, v0
    v_and_b32 v2, 63, v0
    v_readfirstlane_b32 s{sW}, v1
    s_and_b32 s{sB}, s2, 7
    s_lshl_b32 s{sB}, s{sB}, 5
    s_lshr_b32 s{sTMP}, s2, 3
    s_add_u32 s{sB}, s{sB}, s{sTMP}
    v_lshrrev_b32 v3, 1, v0
    v_lshlrev_b32 v{IDX}, 4, v3
    v_lshlrev_b32 v{IDX+1}, 4, v2
    s_lshr_b32 s{sD}, s{sB}, 2
    s_lshl_b32 s{sD}, s{sD}, 10
    s_and_b32 s{sTMP}, s{sB}, 3
    s_add_u32 s{sD}, s{sD}, s{sTMP}
    s_lshl_b32 s{sD}, s{sD}, 2
    s_add_u32 s{sD}, s{sD}, {OFFS}
    s_mov_b32 s{sWS+2}, {WS_BYTES}
    s_mov_b32 s{sWS+3}, 0x20000
    s_lshr_b32 s{sTMP}, s{sW}, 2
    s_lshl_b32 s{sTMP}, s{sTMP}, 13
    s_and_b32 s{sTMP2}, s{sW}, 3
    s_lshl_b32 s{sTMP2}, s{sTMP2}, 10
    s_add_u32 s{sG0}, s{sTMP}, s{sTMP2}
    s_lshl_b32 s{sTMP2}, s{sW}, 10
    s_add_u32 s{sTMP2}, s{sTMP2}, {WF}
    s_waitcnt lgkmcnt(0)
    s_mov_b32 s{sWS}, s26
    s_mov_b32 s{sWS+1}, s27
    s_add_u32 m0, s{sG0}, {XS}
    buffer_load_dword v{vC}, v{IDX}, {sr(sWS,4)}, s{sD} offen
    s_add_u32 s{sTMP}, s{sTMP2}, {18*1024}
    buffer_load_dwordx4 v{IDX+1}, {sr(sWS,4)}, s{sTMP} offen lds
    s_add_u32 m0, s{sG0}, {XS+16384}
    s_add_u32 s{sTMP}, s{sTMP2}, {26*1024}
    buffer_load_dwordx4 v{IDX+1}, {sr(sWS,4)}, s{sTMP} offen lds
    s_mov_b32 s{sNP}, s{sG0}
    s_mov_b32 s{sNC}, s{sTMP2}
    {'' if OPT['WLATE'] else bvc()}
    v_lshrrev_b32 v{IDX+2}, 4, v2
    s_lshl_b32 s{sTMP}, s{sW}, 2
    v_add_u32 v{IDX+2}, s{sTMP}, v{IDX+2}
    v_xor_b32 v{IDX+2}, v{IDX+2}, v2
    v_and_b32 v{IDX+2}, 7, v{IDX+2}
    v_lshlrev_b32 v{IDX+2}, 4, v{IDX+2}
    v_lshrrev_b32 v{IDX+3}, 3, v2
    v_lshl_or_b32 v{IDX+2}, v{IDX+3}, 7, v{IDX+2}
    """)
    srd(sX, 4, N * 128)
    I(f"""
    s_cmp_ge_u32 s{sW}, 7
    s_cbranch_scc1 {'M_CPF' if OPT['CPF'] & 2 else 'M_NOROW'}
    s_lshl_b32 s{sTMP}, s{sW}, 10
    s_mul_i32 s{sTMP2}, s{sB}, {BN*128}
    s_add_u32 m0, s{sG0}, {XS+32768}
    s_add_u32 s{sTMP2}, s{sTMP2}, s{sTMP}
    buffer_load_dwordx4 v{IDX+2}, {sr(sX,4)}, s{sTMP2} offen lds
M_NOROW:
    """)
    if OPT['EARLY']: init0()
    I(f"""
    s_add_u32 s{sOFP}, s26, s{sD}
    s_addc_u32 s{sOFP+1}, s27, 0
    v_cmp_gt_u32 vcc, {NCH}, v3
    v_mul_u32_u24 v{T1}, {CH}, v3
    v_and_b32 v{T2}, 1, v0
    v_lshlrev_b32 v{T2}, 2, v{T2}
    s_lshr_b32 s{sTMP}, s2, 3
    s_mul_i32 s{sTMP}, s{sTMP}, {391*128}
    v_min_u32 v1, 390, v0
    v_lshlrev_b32 v1, 7, v1
    s_mov_b32 s{sNN}, s{sTMP}
    s_waitcnt vmcnt({2 if OPT['WLATE'] else 4})
    v_cndmask_b32 v{vC}, 0, v{vC}, vcc
    v_and_b32 v{T0}, 0xffff, v{vC}
    v_lshrrev_b32 v{vC}, 16, v{vC}
    v_add3_u32 v{T0}, v{T0}, v{T1}, v{T2}
    v_cmp_lt_u32 {sr(sSAVE,2)}, {2*NSLOT}, v{vC}
    v_sub_u32 v{vC}, v{vC}, v{T2}
    v_lshlrev_b32 v{vEB}, 5, v{T0 if MOVE else T1}
    v_lshlrev_b32 v{T0}, 2, v{T0}
    v_cmp_lt_i32 vcc, 16, v{vC}
    v_cmp_lt_i32 {sr(52,2)}, 24, v{vC}
    buffer_load_dwordx4 {r(pREC,4)}, v{T0}, {sr(sWS,4)}, 0 offen
    buffer_load_dwordx4 {r(pREC+4,4)}, v{T0}, {sr(sWS,4)}, 0 offen offset:32
    s_mov_b32 s{sXR}, 0
    s_cmp_eq_u64 {sr(52,2)}, 0
    s_cbranch_scc1 M_RL3
    s_mov_b32 s{sXR}, 1
    buffer_load_dwordx4 {r(pREC+12,4)}, v{T0}, {sr(sWS,4)}, 0 offen offset:96
    buffer_load_dwordx4 {r(pREC+16,4)}, v{T0}, {sr(sWS,4)}, 0 offen offset:128
M_RL3:
    s_or_b64 vcc, vcc, 1
    s_mov_b64 exec, vcc
    buffer_load_dwordx4 {r(pREC+8,4)}, v{T0}, {sr(sWS,4)}, 0 offen offset:64
    s_mov_b64 exec, -1
    """)
    stamp(1)
    burn(1)
    if not OPT['EARLY']: init0()
    if MOVE:
        I(f"""s_add_u32 s{sE}, s26, {PAY}
        s_addc_u32 s{sE+1}, s27, 0
        s_mov_b32 s{sE+2}, {E*32}
        s_mov_b32 s{sE+3}, 0x20000""")
    else:
        srd(sE, 6, E * 32)
    srd(sOUT, 24, N * 128)
    I(f"""
    v_lshlrev_b32 v{T0}, 4, v2
    s_lshr_b32 s{sTMP}, s{sW}, 2
    s_lshl_b32 s{sTMP}, s{sTMP}, 1
    s_and_b32 s{sTMP2}, s{sW}, 1
    s_add_u32 s{sTMP}, s{sTMP}, s{sTMP2}
    s_lshl_b32 s{sTMP}, s{sTMP}, 13
    s_add_u32 s{sTMP}, s{sTMP}, {XS}
    v_add_u32 v{IDX+2}, s{sTMP}, v{T0}
    v_and_b32 v{T1}, 31, v2
    v_lshlrev_b32 v{vLT}, 2, v{T1}
    v_add_u32 v{vLT}, {XAT}, v{vLT}
    v_lshrrev_b32 v{T2}, 5, v2
    v_bfe_u32 v{IDX}, v2, 1, 3
    v_xor_b32 v{IDX}, v{IDX}, v{T2}
    s_bfe_u32 s{sG0}, s{sW}, 0x10001
    s_lshl_b32 s{sTMP2}, s{sG0}, 13
    s_add_u32 s{sTMP}, s{sTMP2}, {row_lds(0)}
    v_lshlrev_b32 v{T1}, 7, v{T1}
    v_add_u32 v{T1}, s{sTMP}, v{T1}
    s_and_b32 s{sD}, s{sW}, 1
    s_lshl_b32 s{sD}, s{sD}, 7
    s_add_u32 s{sTMP2}, s{sTMP2}, s{sD}
    v_lshlrev_b32 v{T2}, 10, v{T2}
    v_add3_u32 v{T2}, v{T2}, v{vLT}, s{sTMP2}
    s_mov_b32 s{sD}, {NLOG2E}
    """)
    for s in range(4):
        I(f"""v_xor_b32 v{AF2+s}, {2*s}, v{IDX}
        v_lshl_add_u32 v{AF2+s}, v{AF2+s}, 4, v{T1}""")
    I(f"""
    v_mov_b32 v{vONE}, 1
    v_mov_b32 v{vFC}, 0xfc
    v_mov_b32 v{vINV}, v{T2}
    """)
    validate(0, 12)
    I('s_waitcnt vmcnt(3) lgkmcnt(0)\ns_barrier')
    if OPT['XPF'] == 2: I(f'buffer_load_dword v1, v1, {sr(sX,4)}, s{sNN} offen')
    for s in range(4):
        I(f'ds_read_b128 {r(pW+4*s,4)}, v{IDX+2} offset:{s*1024}\nds_read_b128 {r(pA+4*s,4)}, v{AF2+s}')
    for f in range(0 if OPT['WLATE'] else 18):
        I(f'ds_read_b128 {r(WB+4*f,4)}, v{IDX+1} offset:{frag_lds(f)}')
    I(f"""
    s_cmp_eq_u64 {sr(sSAVE,2)}, 0
    s_cbranch_scc1 M_NOFLAG
    v_mov_b32 v{T1}, {FLAG}
    ds_write_b32 v{T1}, v{vONE}
M_NOFLAG:
    s_mov_b32 s{sMASK}, {XSENT}
    s_mov_b32 s{sONE}, 1.0
    s_mov_b32 s{sONE+1}, 1.0
    s_mov_b32 s{sMODE}, 0
    s_lshl_b32 s{sM0X}, s{sW}, 13
    s_add_u32 s{sM0X}, s{sM0X}, {XS}
    s_lshl_b32 s{sM0E}, s{sW}, 11
    s_add_u32 s{sM0E}, s{sM0E}, {ES}
    s_waitcnt vmcnt({1 if OPT['XPF'] == 2 else 0}) lgkmcnt(0)
    """)
    stamp(2)
    fs = lambda s: thr(s) * 32
    fstamp(1)
    def mid():
        I(mf(pD, pA, pW, '0'))
        if OPT['WLATE']: I(bvc())
        if OPT['XPF'] == 1:
            I(f'buffer_load_dword v1, v1, {sr(sX,4)}, s{sNN} offen')
        for k in range(1, 4): I(mf(pD, pA+4*k, pW+4*k, r(pD, 16)))
    pass_a(0, 12, fs, mid)
    I(f's_cmp_ge_u32 s{sW}, 4\ns_cbranch_scc1 M_ADONE')
    for k in range(16):
        if k == 12: I(f's_cmp_lg_u32 s{sG0}, 0\ns_cbranch_scc1 M_ADONE')
        I(f'v_mul_f32 v{pD+k}, s{sD}, v{pD+k}\nds_write_b32 v{vINV}, v{pD+k} offset:{(8*(k//4)+k%4)*256}')
    I('M_ADONE:')
    fstamp(2)
    I(f's_cmp_eq_u32 s{sXR}, 0\ns_cbranch_scc0 M_RA\nM_RAR:')
    I('s_waitcnt lgkmcnt(0)\ns_barrier')
    fstamp(3)
    scan()
    fstamp(4)
    I(f"""
    s_cmp_gt_u32 s{sTMP}, {CAP}
    s_cbranch_scc1 M_SLOW
    s_cmp_lg_u32 s{sTMP2}, 0
    s_cbranch_scc1 M_SLOW
    s_cmp_eq_u32 s{sXR}, 0
    s_cbranch_scc0 M_RB
M_RBR:
    """)
    I(f'''
M_BATCH:
    ''')
    pass_b1(0, 12)
    I(f'''
    s_add_u32 s{sTMP}, s{sTMP}, 31
    s_lshr_b32 s52, s{sTMP}, 7
    s_bfe_u32 s53, s{sTMP}, 0x20005
    s_lshr_b32 s59, s2, 3
    s_and_b32 s59, s59, {OPT['SMASK']}
    s_mul_i32 s59, s59, {OPT['STEP']}
    s_add_u32 s{sBAR}, s59, {OPT['STAG']+1}
    s_add_u32 s59, s59, {OPT['DELTA']}
    s_max_u32 s54, s52, s59
    s_sub_u32 s54, s54, s59
    s_lshr_b32 s54, s54, 1
    s_add_u32 s55, s52, 1
    s_max_u32 s56, s55, s59
    s_sub_u32 s56, s56, s59
    s_lshr_b32 s56, s56, 1
    s_sub_u32 s52, s52, s54
    s_sub_u32 s55, s55, s56
    s_mul_i32 s57, s55, s53
    s_sub_u32 s58, 4, s53
    s_mul_i32 s58, s58, s52
    s_add_u32 s57, s57, s58
    s_cmp_ge_u32 s{sW}, 4
    s_cselect_b32 s52, s54, s52
    s_cselect_b32 s55, s56, s55
    s_cselect_b32 s57, s57, 0
    s_cselect_b32 s{sBAR}, 0, s{sBAR}
    s_and_b32 s58, s{sW}, 3
    s_cmp_lt_u32 s58, s53
    s_cselect_b32 s{sTW}, s55, s52
    s_min_u32 s53, s53, s58
    s_sub_u32 s58, s58, s53
    s_mul_i32 s53, s53, s55
    s_mul_i32 s58, s58, s52
    s_add_u32 s{sG0}, s57, s53
    s_add_u32 s{sG0}, s{sG0}, s58
    s_lshl_b32 s{sG0}, s{sG0}, 7
    s_add_u32 s{sG0}, s{sG0}, {LX}
    s_lshl_b32 s{sTMP2}, s{sTW}, 5
    v_lshrrev_b32 v{T0}, 4, v2
    v_mul_u32_u24 v{T0}, s{sTMP2}, v{T0}
    v_bfe_u32 v{T1}, v2, 3, 1
    v_lshl_add_u32 v{T0}, v{T1}, 4, v{T0}
    v_add_u32 v{vLX}, s{sG0}, v{T0}
    v_bfe_u32 v{T0}, v2, 3, 2
    v_mul_u32_u24 v{T0}, s{sTMP2}, v{T0}
    v_bfe_u32 v{T1}, v2, 2, 1
    v_lshl_add_u32 v{T0}, v{T1}, 4, v{T0}
    v_lshrrev_b32 v{T1}, 5, v2
    v_lshl_add_u32 v{T0}, v{T1}, 3, v{T0}
    v_bfe_u32 v{T1}, v2, 1, 1
    v_lshl_add_u32 v{T0}, v{T1}, 2, v{T0}
    v_add_u32 v{vLE}, s{sG0}, v{T0}
    s_sub_u32 s{sTMP}, s{sTW}, 1
    v_min_u32 v{T0}, s{sTMP}, v2
    v_lshlrev_b32 v{T0}, 5, v{T0}
    v_add_u32 v{T0}, s{sG0}, v{T0}
    v_add_u32 v{T1}, s{sTMP2}, v{T0}
    v_add_u32 v{T2}, s{sTMP2}, v{T1}
    v_add_u32 v{vSCH}, s{sTMP2}, v{T2}
    ''')
    I(f'''
    v_lshrrev_b32 v{vKE}, 4, v2
    v_xor_b32 v{vKE}, v{vKE}, v2
    v_and_b32 v{vKX0}, 7, v{vKE}
    v_lshlrev_b32 v{vKX0}, 4, v{vKX0}
    v_xor_b32 v{vKX1}, 64, v{vKX0}
    v_and_b32 v{vKE}, 1, v{vKE}
    v_lshlrev_b32 v{vKE}, 4, v{vKE}
    s_waitcnt lgkmcnt(0)''')
    pass_b2(0, 12)
    fstamp(5)
    I(f'''
    s_waitcnt vmcnt({1 if OPT['XPF'] == 1 else 0}) lgkmcnt(0)
    s_barrier
    ''')
    stamp(3)
    if OPT['NOX']: I(f's_mov_b32 s{sX+2}, 0')
    if OPT['NOE']: I(f's_mov_b32 s{sE+2}, 0')
    g0 = dma_tile(Z, sM0X, sM0E, 0, 0)
    g1 = dma_tile(Z+16, sM0X, sM0E, 4096, 1024)
    I(f"""
    ds_read_b128 {r(Z,4)}, v{vLX}
    ds_read_b32 v{Z+4}, v{vLE} offset:16384
    ds_read_b32 v{T0}, v{T0}
    ds_read_b32 v{T1}, v{T1}
    ds_read_b32 v{T2}, v{T2}
    ds_read_b32 v{vSCH}, v{vSCH}
    ds_read_b128 {r(Z+16,4)}, v{vLX} offset:32
    ds_read_b32 v{Z+20}, v{vLE} offset:{16384+32}
    ds_read_b128 {r(IDX,4)}, v{vLX} offset:64
    ds_read_b32 v{IDX+4}, v{vLE} offset:{16384+64}
    v_lshlrev_b32 v{vFC}, 4, v2
    v_add_u32 v{vFC}, {WBASE}, v{vFC}
    s_cmp_ge_u32 s{sW}, 4
    s_cbranch_scc1 M_NOT0
    s_setprio 1
    s_cmp_eq_u32 s{sTW}, 0
    s_waitcnt lgkmcnt(8)
    s_cbranch_scc1 M_NOT0
    """)
    for g in g0: I('\n'.join(g))
    I(f"""
M_NOT0:
    s_waitcnt lgkmcnt(0)
    v_bfe_u32 v{T0}, v{T0}, 1, 6
    v_bfe_u32 v{T1}, v{T1}, 1, 6
    v_bfe_u32 v{T2}, v{T2}, 1, 6
    v_bfe_u32 v{vSCH}, v{vSCH}, 1, 6
    v_lshl_or_b32 v{T0}, v{T1}, 8, v{T0}
    v_lshl_or_b32 v{T0}, v{T2}, 16, v{T0}
    v_lshl_or_b32 v{vSCH}, v{vSCH}, 24, v{T0}
    v_add_u32 v{vLX}, 96, v{vLX}
    v_mov_b32 v{T0}, v{vSCH}
    v_readfirstlane_b32 s{sNC}, v{vSCH}
    v_add_u32 v{vLE}, {16384+96}, v{vLE}
    v_mov_b32_dpp v{T0}, v{vSCH} wave_shr:1 row_mask:0xf bank_mask:0xf
    s_mov_b32 s{sT}, 1
    v_xor_b32 v{T0}, v{T0}, v{vSCH}
    v_add_u32 v{T0}, 0x3f3f3f3f, v{T0}
    v_and_b32 v{T0}, 0x40404040, v{T0}
    v_or_b32 v{vSCH}, v{vSCH}, v{T0}
    s_mov_b32 s{sNP}, s{sNC}
    """)
    for j in range(4):
        I(f"""s_bfe_u32 s{sTMP}, s{sNC}, {(6 << 16) | (8*j)}
        s_lshl_b32 s{sTMP}, s{sTMP}, 8
        v_add_u32 v{T0}, s{sTMP}, v{vLT}
        ds_read_b32 v{XA+4*j}, v{T0}
        ds_read_b32 v{XA+16+4*j}, v{T0} offset:128""")
    I(f"""
    s_cmp_eq_u32 s{sMODE}, 2
    s_cbranch_scc1 M_NOWT
    """)
    for f in (16, 0, 1, 2, 3, 8, 9, 10, 11, 17, 4, 5, 6, 7, 12, 13, 14, 15):
        I(f'ds_read_b128 {r(WB+4*f,4)}, v{vFC} offset:{frag_off(f)}')
    I(f"""s_cmp_lt_u32 s{sW}, 4
    s_cbranch_scc1 M_TDONE
    s_bfe_u32 s{sXR}, s{sW}, 0x10001
    v_subrev_u32 v{vINV}, {XAT}, v{vINV}
    v_lshlrev_b32 v{vINV}, 1, v{vINV}
    v_add_u32 v{vINV}, {AGG}, v{vINV}
    """)
    for k in range(16):
        if k == 12: I(f's_cmp_lg_u32 s{sXR}, 0\ns_cbranch_scc1 M_TDONE')
        I(f'v_cvt_f64_f32 {r(AF+2*(k%8),2)}, v{pD+k}\nds_add_f64 v{vINV}, {r(AF+2*(k%8),2)} offset:{(8*(k//4)+k%4)*512}')
    I('M_TDONE:')
    j_, i_, h_, g_, t_, u_ = AF2, AF2+1, AF2+2, AF2+3, AF2+4, AF2+5
    I(f"""
    s_lshl_b32 s{sMODE}, s{sMODE}, 1
    v_lshlrev_b32 v{vLA}, 3, v2
    v_add_u32 v{vLA}, {AGG}, v{vLA}
    v_bfe_u32 v{j_}, v2, 3, 2
    v_and_b32 v{i_}, 3, v2
    v_lshrrev_b32 v{h_}, 5, v2
    v_lshrrev_b32 v{t_}, 1, v{j_}
    v_xor_b32 v{g_}, v{t_}, v{j_}
    v_lshrrev_b32 v{u_}, 2, v2
    v_xor_b32 v{g_}, v{g_}, v{u_}
    v_and_b32 v{g_}, 1, v{g_}
    v_xor_b32 v{t_}, v{t_}, v{h_}
    v_lshlrev_b32 v{t_}, 4, v{t_}
    v_lshl_or_b32 v{u_}, v{j_}, 2, v{i_}
    v_lshl_or_b32 v{u_}, v{g_}, 4, v{u_}
    v_lshl_or_b32 v{t_}, v{u_}, 5, v{t_}
    v_add_u32 v{vRE}, s{sM0E}, v{t_}
    v_and_b32 v{t_}, 1, v{i_}
    v_lshl_or_b32 v{u_}, v{g_}, 1, v{t_}
    v_lshlrev_b32 v{u_}, 3, v{u_}
    v_lshl_or_b32 v{u_}, v{j_}, 1, v{u_}
    v_lshrrev_b32 v{i_}, 1, v{i_}
    v_or_b32 v{u_}, v{u_}, v{i_}
    v_lshlrev_b32 v{u_}, 7, v{u_}
    v_add_u32 v{u_}, s{sM0X}, v{u_}
    v_lshl_or_b32 v{t_}, v{t_}, 2, v{j_}
    v_xor_b32 v{t_}, v{t_}, v{h_}
    """)
    for s in range(4):
        I(f"""v_xor_b32 v{g_}, {2*s}, v{t_}
        v_lshl_add_u32 v{vRA+s}, v{g_}, 4, v{u_}""")
    I('M_NOWT:')
    for k in range(8): I(f'v_mov_b64 {r(ACC+2*k,2)}, 0')
    for g in g1: I(g[1])
    for g in dma_tile(IDX, sM0X, sM0E, 0, 0): I(g[1])
    I(f"""
    s_cmp_ge_u32 s{sW}, 4
    s_cbranch_scc1 M_YNG
    s_cmp_eq_u32 s{sTW}, 0
    s_cbranch_scc1 M_BDONE
    s_cmp_lt_u32 s{sTW}, 2
    s_cbranch_scc1 M_W0
    """)
    for g in g1: I(g[0] + '\ns_nop 0\n' + g[2])
    I(f"""s_waitcnt vmcnt(5) lgkmcnt(0)
M_W1:""")
    I(f'ds_read_b128 {r(AF+16,4)}, v{vRE}')
    for s in range(4): I(f'ds_read_b128 {r(AF+4*s,4)}, v{vRA+s}')
    for ft in range(2):
        for j in range(4):
            for i in range(1, 4): I(f'v_mov_b32 v{XA+16*ft+4*j+i}, v{XA+16*ft+4*j}')
    I('s_waitcnt lgkmcnt(0)')
    for m in zm(0): I(m)
    I(f"""s_cmp_eq_u32 s{sBAR}, 0
    s_cbranch_scc1 M_YNG2
    s_nop 7
    s_nop 1
M_GO:""")
    OUT.append(lambda: (
        I(f"""M_W0:
        s_waitcnt vmcnt(0) lgkmcnt(0)
        s_branch M_W1
M_YNG:
        s_cmp_eq_u32 s{sTW}, 0
        s_cbranch_scc1 M_YE"""),
        [I('\n'.join(g)) for g in g0],
        I(f"""s_branch M_W0
M_YE:
        s_waitcnt lgkmcnt(0)
        s_barrier
        s_branch M_BDONE2
M_YNG2:
        s_barrier
        s_cmp_lt_u32 s{sTW}, 2
        s_cbranch_scc1 M_YG"""),
        [I(g[0] + '\ns_nop 0\n' + g[2]) for g in g1],
        I('M_YG:\ns_nop 7\ns_branch M_GO')))
    if OPT['DLY'] == 1:
        I(f's_cmp_lt_u32 s{sW}, 4\ns_cbranch_scc1 M_NODLY\ns_sleep {OPT["DLYN"]}\nM_NODLY:')
    if OPT['DLY'] == 2:
        I(f'''s_bfe_u32 s{sTMP}, s2, 0x20003
M_DL:
        s_cmp_eq_u32 s{sTMP}, 0
        s_cbranch_scc1 M_NODLY
        s_sleep {OPT["DLYN"]}
        s_sub_u32 s{sTMP}, s{sTMP}, 1
        s_branch M_DL
M_NODLY:''')
    stamp(4)
    I('.p2align 6')
    for p in range(2 if OPT['LOOP'] == 2 else 0):
        nb = 1 - p
        afc, afn = (AF, AF2) if p == 0 else (AF2, AF)
        PB = OPT['PB']
        I(f'''
M_LOOP{p}:
    {TR(0)}
    {evchk('F', p, sNC)}
    s_cmp_eq_u32 s{sT}, s{sBAR}
    s_cbranch_scc1 M_SB{p}
M_SBR{p}:
    {'' if OPT['LATE0'] else 's_setprio 0'}
    s_add_u32 s{sTMP}, s{sT}, 1
    s_cmp_lt_u32 s{sTMP}, s{sTW}
    s_cbranch_scc0 M_ND{p}
        ''')
        g = dma_tile(IDX, sM0X, sM0E, p*4096, p*1024)
        I(g[0][0])
        for q in range(5):
            I('s_nop 0' if q == 0 else g[q][0])
            if q > 0: I('s_nop 0')
            I(g[q][2])
        I(f'M_ND{p}:')
        def eblk(ft, extra):
            if OPT['LATE0']: I('s_setprio 0')
            hv = hm(ft, afc)
            ES_, EF = OPT['ES'], OPT['EF']
            ins = {}
            for k in range(4): ins.setdefault(EF + ES_*k, []).append(hv[k])
            if OPT['PPOS'] == 0 and EF == 0: ins[0].append(f's_setprio {PB}')
            else: ins.setdefault(max(1, OPT['PPOS']), []).insert(0, f's_setprio {PB}')
            if OPT['PB2'] >= 0: ins.setdefault(OPT['P2POS'], []).insert(0, f's_setprio {OPT["PB2"]}')
            for k, v in extra.items(): ins.setdefault(k, []).extend(v)
            I('\n'.join(weave(exps(ft), ins)))
        eblk(0, {11: [f'v_readlane_b32 s{sNN}, v{vSCH}, s{sT}']})
        I('\n'.join(pkadd(0)))
        zz = zm(1, afc)
        I('\n'.join(weave(rcps(0), {0: [zz[0]], 3: [zz[1]], 6: [zz[2]], 9: [zz[3]], 12: [zz[4]]})))
        I('\n'.join(pkf(0)))
        I(f'''
    {evchk('X', p, sNN)}
    {'' if OPT['LATE0'] else 's_setprio 0'}
    s_add_u32 s{sTMP}, s{sT}, 1
    s_cmp_lt_u32 s{sTMP}, s{sTW}
    s_cbranch_scc0 M_WZ{p}
    s_waitcnt vmcnt(5)
M_WZR{p}:
        ''')
        I(f'ds_read_b128 {r(AF+16,4)}, v{vRE} offset:{nb*1024}')
        for s_ in range(4): I(f'ds_read_b128 {r(afn+4*s_,4)}, v{vRA+s_} offset:{nb*4096}')
        I(f'ds_read_b128 {r(IDX,4)}, v{vLX}\nds_read_b32 v{IDX+4}, v{vLE}')
        if OPT['WOUT']: I('s_waitcnt lgkmcnt(0)')
        eblk(1, {})
        I('\n'.join(pkadd(1)))
        zz = zm(0, afn)
        if not OPT['WOUT']: I('s_waitcnt lgkmcnt(0)')
        I('\n'.join(weave(rcps(1), {0: [zz[0]], 3: [zz[1]], 6: [zz[2]], 9: [zz[3]], 12: [zz[4]]})))
        I('\n'.join(pkf(1)))
        if OPT['IDLE']:
            I(f's_cmp_gt_u32 s{sT}, {OPT["IDLEK"]}\ns_cbranch_scc1 M_NOIDLE{p}')
            for _ in range(OPT['IDLE']): I(f'v_mov_b32 v{T4}, v{T4}')
            I(f'M_NOIDLE{p}:')
        for q in range(5): I(g[q][1])
        I(f'''
    v_add_u32 v{vLX}, 32, v{vLX}
    v_add_u32 v{vLE}, 32, v{vLE}
    s_mov_b32 s{sNP}, s{sNC}
    s_mov_b32 s{sNC}, s{sNN}
    s_add_u32 s{sT}, s{sT}, 1
    s_cmp_le_u32 s{sT}, s{sTW}''')
        I('s_cbranch_scc0 M_LEND' if p == 0 else 's_cbranch_scc1 M_LOOP0')
    I('M_LEND:')
    I(TR(0))
    I('s_setprio 0')
    for j in range(4): flush_j(j, sNP)
    I(f'''
M_BDONE:
    s_cmp_lt_u32 s{sTW}, s{sBAR}
    s_cbranch_scc0 M_BDONE2
    s_waitcnt lgkmcnt(0)
    s_barrier
M_BDONE2:
    s_setprio 0
    s_cmp_lg_u32 s{sMODE}, 0
    s_cbranch_scc1 M_SNEXT
M_EPI:
    ''')
    stamp(5)
    I(f'''
    s_waitcnt lgkmcnt(0)
    s_barrier
    v_cmp_gt_u32 vcc, {BN*8}, v0
    s_and_saveexec_b64 {sr(sSAVE,2)}, vcc
    s_cbranch_execz M_FIN
    v_lshlrev_b32 v{T0}, 6, v0
    v_add_u32 v{T0}, {AGG}, v{T0}
    ds_read_b128 {r(Z+16,4)}, v{T0}
    ds_read_b128 {r(Z+20,4)}, v{T0} offset:16
    ds_read_b128 {r(Z+24,4)}, v{T0} offset:32
    ds_read_b128 {r(Z+28,4)}, v{T0} offset:48
    s_mov_b32 s{sTMP}, {NLOG2E}
    s_mul_i32 s{sTMP2}, s{sB}, {BN*128}
    v_lshlrev_b32 v{T1}, 4, v0
    s_waitcnt lgkmcnt(0)
    ''')
    for k in range(8): I(f'v_cvt_f32_f64 v{Z+k}, {r(Z+16+2*k,2)}')
    for k in range(8): I(f'v_mul_f32 v{Z+8+k}, s{sTMP}, v{Z+k}')
    for k in range(8): I(f'v_exp_f32 v{Z+8+k}, v{Z+8+k}')
    for k in range(8): I(f'v_add_f32 v{Z+8+k}, 1.0, v{Z+8+k}')
    for k in range(8): I(f'v_rcp_f32 v{Z+8+k}, v{Z+8+k}')
    for k in range(8): I(f'v_mul_f32 v{Z+k}, v{Z+k}, v{Z+8+k}')
    for k in range(4): I(f'v_cvt_pk_bf16_f32 v{Z+16+k}, v{Z+2*k}, v{Z+2*k+1}')
    I(f'buffer_store_dwordx4 {r(Z+16,4)}, v{T1}, {sr(sOUT,4)}, s{sTMP2} offen')
    I('M_FIN:')
    if OPT['AMP']:
        I(f'''s_cmp_lg_u32 s2, 0
        s_cbranch_scc1 M_END
        s_cmp_lg_u32 s{sW}, 0
        s_cbranch_scc1 M_END
        s_waitcnt vmcnt(0)
        s_memrealtime s[60:61]
        s_add_u32 s56, s26, {WF + 0x10000}
        s_addc_u32 s57, s27, 0
        s_load_dword s58, s[56:57], 0
        s_waitcnt lgkmcnt(0)''')
        if OPT['AMP'] == 2: I('s_mov_b32 s60, s74')
        if OPT['AMP'] == 3: I('s_mov_b32 s58, s74')
        if OPT['AMP'] >= 10: I('s_mov_b32 s58, s74\ns_mov_b32 s60, s72')
        I(f'''s_sub_u32 s59, s60, s58
        s_min_u32 s59, s59, 20000
        s_mul_i32 s59, s59, 10
        s_memrealtime s[60:61]
        s_waitcnt lgkmcnt(0)
        s_mov_b32 s58, s60
M_SPIN:
        s_memrealtime s[60:61]
        s_waitcnt lgkmcnt(0)
        s_sub_u32 s62, s60, s58
        s_cmp_lt_u32 s62, s59
        s_cbranch_scc1 M_SPIN''')
    if OPT['DBG']: dbgdump(7, 6)
    elif OPT['STAMP']:
        I(f'''s_mov_b64 exec, 1
        s_memrealtime s[72:73]
        s_load_dwordx2 s[4:5], s[0:1], 72
        s_waitcnt lgkmcnt(0) vmcnt(0)
        s_add_u32 s52, s4, 0x8000000
        s_addc_u32 s53, s5, 0
        s_mov_b32 s54, 0x100000
        s_mov_b32 s55, 0x20000
        s_lshl_b32 s56, s2, 3
        s_add_u32 s56, s56, s{sW}
        s_lshl_b32 s56, s56, 5
        v_mov_b32 v1, 0''')
        for i in range(7): I(f'v_mov_b32 v{8+i}, s{60+2*i}')
        I(f'''v_mov_b32 v15, s{sTW}
        buffer_store_dwordx4 v[8:11], v1, s[52:55], s56 offen
        buffer_store_dwordx4 v[12:15], v1, s[52:55], s56 offen offset:16''')
        if OPT['TRACE']:
            I(f'''s_mov_b64 exec, -1
            s_lshl_b32 s56, s56, 3
            s_add_u32 s56, s56, 0x20000
            v_lshlrev_b32 v1, 2, v2
            buffer_store_dword v{vTR}, v1, s[52:55], s56 offen''')
    I('M_END:\ns_endpgm')
    for p in range(2):
        for j in range(4 if not OPT['NOEV'] else 0):
            I(f'M_F{p}{j}:\ns_setprio {OPT["PE"]}')
            flush_j(j, sNP)
            I(f's_branch M_FR{p}{j}')
            I(f'M_X{p}{j}:\ns_setprio {OPT["PE"]}')
            xa_j(j, sNN)
            I(f's_branch M_XR{p}{j}')
        I(f'M_WZ{p}:\ns_waitcnt vmcnt(0)\ns_branch M_WZR{p}')
        I(f'M_SB{p}:\ns_barrier\ns_branch M_SBR{p}')
    for f in OUT: f()
    if OPT['CPF'] & 2:
        I(f'''M_CPF:
        s_getpc_b64 s[52:53]
M_PC:
        s_sub_u32 s52, s52, M_PC-{MAIN}
        s_subb_u32 s53, s53, 0
        v_lshlrev_b32 v{AF}, 7, v2
        v_min_u32 v{AF+1}, M_SLOW-{MAIN}-8196, v{AF}
        v_add_u32 v{AF+1}, 8192, v{AF+1}
        global_load_dword v{AF+8}, v{AF}, s[52:53]
        global_load_dword v{AF+8}, v{AF+1}, s[52:53]
        s_branch M_NOROW''')
    I('M_RA:')
    validate(12, 20)
    pass_a(12, 20, fs)
    I('s_branch M_RAR')
    I('M_RB:')
    pass_b1(12, 20)
    I('s_waitcnt lgkmcnt(0)')
    pass_b2(12, 20)
    validate(0, 8)
    I('s_nop 3\ns_branch M_RBR')
    I(f'''
M_SLOW:
    s_mov_b32 s{sMODE}, 1
    s_mov_b32 s{sSEG}, -1
M_SNEXT:
    s_add_u32 s{sSEG}, s{sSEG}, 1
    s_cmp_ge_u32 s{sSEG}, {NCH}
    s_cbranch_scc1 M_EPI
    s_lshl_b32 s{sTMP}, s{sSEG}, 4
    s_load_dword s{sD}, {sr(sOFP,2)}, s{sTMP}
    s_waitcnt lgkmcnt(0)
    s_lshr_b32 s{sTMP2}, s{sD}, 16
    s_cmp_eq_u32 s{sTMP2}, 0
    s_cbranch_scc1 M_SNEXT
    s_barrier
    ''')
    lds_init()
    I(f'''
    s_and_b32 s{sD}, s{sD}, 0xffff
    s_mul_i32 s{sTMP}, s{sSEG}, {CH}
    s_add_u32 s{sD}, s{sD}, s{sTMP}
    v_add_u32 v{T0}, s{sD}, v0
    v_mov_b32 v{T1}, s{sTMP}
    v_lshlrev_b32 v{vEB}, 5, v{T0 if MOVE else T1}
    v_lshlrev_b32 v{T0}, 2, v{T0}
    v_sub_u32 v{vC}, s{sTMP2}, v0
    v_add_u32 v{vC}, 511, v{vC}
    v_ashrrev_i32 v{vC}, 9, v{vC}
    v_cmp_lt_i32 vcc, 4, v{vC}
    v_add_u32 v{T1}, 4, v{vC}
    s_nop 0
    v_cndmask_b32 v{vC}, v{vC}, v{T1}, vcc
    ''')
    for s in range(7):
        I(f'buffer_load_dword v{pREC+s}, v{T0}, {sr(sWS,4)}, 0 offen')
        if s < 6: I(f'v_add_u32 v{T0}, 2048, v{T0}')
    I('s_waitcnt vmcnt(0) lgkmcnt(0)\ns_barrier')
    validate(0, 12)
    I(f'v_mov_b32 v{vFC}, 0xfc')
    pass_a(0, 12, lambda s: s * 16384)
    I('s_waitcnt lgkmcnt(0)\ns_barrier')
    scan()
    I('s_branch M_BATCH')
    I('M_CODE_END:')

def kd(name, vgpr, sgpr):
    return f'''.amdhsa_kernel {name}
  .amdhsa_next_free_vgpr {vgpr}
  .amdhsa_next_free_sgpr {sgpr}
  .amdhsa_accum_offset {(vgpr+3)//4*4}
  .amdhsa_group_segment_fixed_size 0
  .amdhsa_kernarg_size 80
  .amdhsa_user_sgpr_count 2
  .amdhsa_user_sgpr_kernarg_segment_ptr 1
  .amdhsa_system_sgpr_workgroup_id_x 1
.end_amdhsa_kernel
'''

HEAD = open('gather_scatter__edge_featured_mpnn_egc__graph.s.ref').read().split('; Override')[0]
gen_part()
gen_main()
if OPT['EXTRA']:
    header('nop_kernel'); I('s_endpgm')
out = HEAD + f'''; Two launches: part_kernel bins the edges by destination bucket, the main kernel does the rest.
{'; @launch kernel=nop_kernel grid=(1,1,1) block=(64,1,1) lds=0'+chr(10) if OPT['EXTRA']==1 else ''}; @launch kernel=part_kernel grid=({NCH+5},1,1) block=(512,1,1) lds={K1_LDS}
{'; @launch kernel=nop_kernel grid=(1,1,1) block=(64,1,1) lds=0'+chr(10) if OPT['EXTRA']==2 else ''}; @launch kernel={MAIN} grid=({NB},1,1) block=(512,1,1) lds={M_LDS}
{'; @launch kernel=nop_kernel grid=(1,1,1) block=(64,1,1) lds=0'+chr(10) if OPT['EXTRA']==3 else ''}.amdgcn_target "amdgcn-amd-amdhsa--gfx950"
.text
''' + '\n'.join(L) + '''
.section .rodata,"a"
.p2align 6
''' + kd('part_kernel', 88, 80) + '.p2align 6\n' + kd(MAIN, NV+(8 if OPT['TRACE'] else 0), 102) + ('.p2align 6\n' + kd('nop_kernel', 8, 8) if OPT['EXTRA'] else '')
open(sys.argv[1], 'w').write(out)
```

```python
import sys, struct

OPT = dict(MOVE=0, E_AUX='', K1_LD_AUX='', K1_ST_AUX='sc1', PAY_ST_AUX='', STAMP=0, PRIO=0, NOX=0, NOE=0, CYC=0, PKA=1, PKF=1, NOEV=0, NODMA=0, NODS=0, NOVM=0, TRACE=0, XPF=1, K1SLEEP=0, EXTRA=0, DBG=0, NOHV=0, NOZ=0, NOTR=0, LOOP=2, PB=1, PE=3, PB2=2, WOUT=1, ES=3, EF=3, PPOS=0, P2POS=8, AMP=0, FINE=0, WLATE=1, CPF=1, OFF_ST_AUX='sc1', K1SPLIT=1, NOPK=0, LATE0=0, YP=0, DLY=0, DLYN=0, EPF=0, EPF_AUX='', IDLE=0, IDLEK=99, PRE=0, PREPOS=0, STAG=1, DELTA=3, INL=1, EARLY=1, STEP=0, SMASK=0, NREF=109, SLOPE=2, KMAX=8, WAITM=0, OUT_AUX='sc1', WF_AUX='sc1', B2FIRST=1, INC2=1, FL2=1, K1T=1, ONEB=0, XAE=1, PADW=1, R3=1)
for a in sys.argv[2:]:
    k, v = a.split('=')
    OPT[k] = int(v) if v.lstrip('-').isdigit() else v.replace('_', ' ')
MOVE = OPT['MOVE']

N, E = 12500, 800000
NB, BN = 256, 49
NCH, CH = 250, 3200
REC, OFFS, WF, PAY = 0, 0x400000, 0x480000, 0x800000
WS_BYTES = PAY + E * 32
NFRAG = 34
NLOG2E = struct.unpack('<I', struct.pack('<f', -1.4426950408889634))[0]
MAIN = 'gather_scatter__edge_featured_mpnn_egc__graph_kernel'

L = []
def I(s):
    for ln in s.strip('\n').split('\n'):
        ln = ln.strip()
        if ln:
            L.append(ln if ln.endswith(':') else '    ' + ln)
def r(a, n): return f'v[{a}:{a+n-1}]'
def sr(a, n): return f's[{a}:{a+n-1}]'
def srd(d, base, nbytes):
    I(f'''s_mov_b32 s{d}, s{base}
    s_mov_b32 s{d+1}, s{base+1}
    s_mov_b32 s{d+2}, {nbytes}
    s_mov_b32 s{d+3}, 0x20000''')
def dpp_scan(v):
    for ctl in ('row_shr:1', 'row_shr:2', 'row_shr:4', 'row_shr:8'):
        I(f's_nop 1\nv_add_u32_dpp v{v}, v{v}, v{v} {ctl} row_mask:0xf bank_mask:0xf bound_ctrl:1')
    I(f's_nop 1\nv_add_u32_dpp v{v}, v{v}, v{v} row_bcast:15 row_mask:0xa bank_mask:0xf')
    I(f's_nop 1\nv_add_u32_dpp v{v}, v{v}, v{v} row_bcast:31 row_mask:0xc bank_mask:0xf')
def header(name):
    I(f'.globl {name}\n.p2align 8\n.type {name},@function\n{name}:')

K1_HIST, K1_BASE, K1_SORT, K1_SORTE, K1_EIMG = 0, 1024, 2048, 14848, 27648
K1_LDS = (K1_EIMG + CH * 32) if MOVE else K1_SORTE

def kstamp(i):
    if OPT['STAMP']: I(f's_memrealtime s[{60+2*i}:{61+2*i}]\ns_waitcnt lgkmcnt(0)')
def dbgdump(n, last):
    I(f'''s_waitcnt vmcnt(0)
    s_memrealtime s[{60+2*last}:{61+2*last}]
    s_load_dwordx2 s[52:53], s[0:1], 64
    s_mov_b64 exec, 1
    s_waitcnt lgkmcnt(0)
    s_mov_b32 s54, 256
    s_mov_b32 s55, 0x20000
    v_mov_b32 v1, 0''')
    for i in range(n):
        I(f'''v_mov_b32 v8, s{60+2*i}
        buffer_atomic_umax v8, v1, s[52:55], 0 offen offset:{4*i}
        v_not_b32 v9, s{60+2*i}
        buffer_atomic_umax v9, v1, s[52:55], 0 offen offset:{32+4*i}
        s_waitcnt vmcnt(0)''')
def kdump():
    if OPT['DBG']:
        dbgdump(6, 5); return
    if OPT['STAMP']:
        I(f'''; K1STAMP
        s_waitcnt vmcnt(0)
        s_memrealtime s[70:71]
        s_mov_b64 exec, 1
        s_waitcnt lgkmcnt(0)
        s_add_u32 s52, s24, 0x8100000
        s_addc_u32 s53, s25, 0
        s_mov_b32 s54, 0x100000
        s_mov_b32 s55, 0x20000
        s_lshl_b32 s56, s2, 3
        s_add_u32 s56, s56, s28
        s_lshl_b32 s56, s56, 5
        v_mov_b32 v1, 0''')
        for i in range(8): I(f'v_mov_b32 v{8+i}, s{60+2*min(i,5)}')
        I('''buffer_store_dwordx4 v[8:11], v1, s[52:55], s56 offen
        buffer_store_dwordx4 v[12:15], v1, s[52:55], s56 offen offset:16''')
def gen_part():
    header('part_kernel')
    if OPT['AMP']: I('s_memrealtime s[74:75]')
    kstamp(0)
    D, S, B4, RK, RC, EL = 8, 16, 24, 32, 40, 48
    I(f'''
    s_cmp_ge_u32 s2, {NCH+5}
    s_cbranch_scc1 P_END
    s_load_dwordx4 s[4:7], s[0:1], 16
    s_load_dwordx2 s[24:25], s[0:1], 72
    s_load_dwordx2 s[26:27], s[0:1], 8
    v_lshrrev_b32 v3, 6, v0
    v_lshlrev_b32 v1, 2, v0
    v_readfirstlane_b32 s28, v3
    s_cmp_ge_u32 s2, {NCH}
    s_cbranch_scc1 P_PREP
    v_mov_b32 v2, 0
    ds_write_b32 v1, v2
    v_lshlrev_b32 v4, 4, v0
    v_lshlrev_b32 v5, 3, v0
    v_add_u32 v5, 8192, v5
    v_add_u32 v6, 12288, v1
    s_mul_i32 s29, s2, {CH*4}
    s_waitcnt lgkmcnt(0)
    ''')
    srd(8, 4, E * 4); srd(12, 6, E * 4); srd(16, 24, WS_BYTES)
    if OPT['AMP']:
        I(f'''s_cmp_lg_u32 s2, 0
        s_cbranch_scc1 P_NOAMP
        s_cmp_lg_u32 s28, 0
        s_cbranch_scc1 P_NOAMP
        v_mov_b32 v80, s74
        v_mov_b32 v81, {WF + 0x10000}
        buffer_store_dword v80, v81, s[16:19], 0 offen
P_NOAMP:''')
    ax = OPT['K1_LD_AUX']
    SPL = OPT['K1SPLIT'] and not MOVE
    srcld = f'''buffer_load_dwordx4 {r(S,4)}, v4, s[8:11], s29 offen {ax}
    buffer_load_dwordx2 {r(S+4,2)}, v5, s[8:11], s29 offen {ax}
    buffer_load_dword v{S+6}, v6, s[8:11], s29 offen {ax}'''
    I(f'''
    s_cmp_ge_u32 s28, 2
    s_cbranch_scc1 P_NO6A
    buffer_load_dword v{D+6}, v6, s[12:15], s29 offen {ax}
    {'' if SPL else f'buffer_load_dword v{S+6}, v6, s[8:11], s29 offen {ax}'}
P_NO6A:
    buffer_load_dwordx4 {r(D,4)}, v4, s[12:15], s29 offen {ax}
    buffer_load_dwordx2 {r(D+4,2)}, v5, s[12:15], s29 offen {ax}
    ''')
    if not SPL:
        I(f'''buffer_load_dwordx4 {r(S,4)}, v4, s[8:11], s29 offen {ax}
        buffer_load_dwordx2 {r(S+4,2)}, v5, s[8:11], s29 offen {ax}''')
    if MOVE:
        srd(20, 26, E * 32)
        I(f'''
        v_and_b32 v7, 63, v0
        v_lshlrev_b32 v7, 4, v7
        s_mul_i32 s30, s2, {CH*32}
        s_lshl_b32 s31, s28, 10
        s_add_u32 s30, s30, s31
        s_add_u32 s31, s31, {K1_EIMG}
        ''')
        for n in range(13):
            if n == 12:
                I('s_cmp_ge_u32 s28, 4\ns_cbranch_scc1 P_NO13')
            I(f'''s_mov_b32 m0, s31
            s_add_u32 s31, s31, 8192
            buffer_load_dwordx4 v7, s[20:23], s30 offen {ax} lds
            s_add_u32 s30, s30, 8192''')
        I('P_NO13:')
    sh = 14
    I(f'''
    v_lshlrev_b32 v56, {2+sh}, v0
    v_lshlrev_b32 v57, {1+sh}, v0
    v_add_u32 v57, {2048 << sh}, v57
    v_lshlrev_b32 v58, {sh}, v0
    v_add_u32 v58, {3072 << sh}, v58
    v_mov_b32 v59, 1
    s_mov_b32 s32, {-BN & 0xffffffff}
    s_mov_b32 s33, {1 << sh}
    s_mov_b32 s34, {2 << sh}
    s_mov_b32 s35, {3 << sh}
    s_barrier
    ''')
    if SPL:
        I(f's_cmp_ge_u32 s28, 2\ns_cselect_b32 s37, 0x40000000, 0\nv_or_b32 v6, s37, v6')
        I(srcld)
    kstamp(1)
    I(f's_waitcnt vmcnt({12 if MOVE else (3 if SPL else 0)})')
    kstamp(2)
    def slot(k):
        I(f'''v_mul_u32_u24 v{B4+k}, 21400, v{D+k}
        v_lshrrev_b32 v{B4+k}, 20, v{B4+k}
        v_mad_i32_i24 v{RC+k}, v{B4+k}, s32, v{D+k}
        v_lshlrev_b32 v{B4+k}, 2, v{B4+k}
        ds_add_rtn_u32 v{RK+k}, v{B4+k}, v59''')
    def rec(k):
        eb = 56 if k < 4 else (57 if k < 6 else 58)
        kk = k if k < 4 else (k - 4 if k < 6 else 0)
        ks = '0' if kk == 0 else f's{32+kk}'
        I(f'''v_lshl_or_b32 v{RC+k}, v{RC+k}, 26, v{S+k}
        v_add3_u32 v{RC+k}, v{RC+k}, v{eb}, {ks}''')
        if MOVE:
            I(f'''v_bfe_u32 v{EL+k}, v{RC+k}, 14, 12
            v_lshlrev_b32 v{EL+k}, 5, v{EL+k}''')
    if OPT['EPF'] == 1:
        srd(20, 26, E * 32)
        I(f'''v_lshlrev_b32 v80, 7, v0
        s_mul_i32 s30, s2, {CH*32}
        v_add_u32 v81, 65536, v80
        v_min_u32 v81, {CH*32-128}, v81
        buffer_load_dword v87, v80, s[20:23], s30 offen {OPT['EPF_AUX']}
        buffer_load_dword v87, v81, s[20:23], s30 offen {OPT['EPF_AUX']}''')
    for k in range(6): slot(k)
    I('s_cmp_ge_u32 s28, 2\ns_cbranch_scc1 P_NO6B')
    slot(6)
    I(f'''
P_NO6B:
    v_and_b32 v60, 63, v0
    v_lshlrev_b32 v60, 4, v60
    s_waitcnt lgkmcnt(0)
    s_barrier
    ds_read_b128 v[64:67], v60
    s_waitcnt lgkmcnt(0)
    v_add_u32 v69, v64, v65
    v_add_u32 v70, v69, v66
    v_add_u32 v71, v70, v67
    v_mov_b32 v72, v71
    ''')
    dpp_scan(72)
    I(f'''
    v_sub_u32 v68, v72, v71
    v_add_u32 v71, v68, v70
    v_add_u32 v70, v68, v69
    v_add_u32 v69, v68, v64
    ds_write_b128 v60, v[68:71] offset:{K1_BASE}
    {'' if OPT['K1T'] else 's_waitcnt lgkmcnt(0)'}
    ''')
    for k in range(6):
        I(f'ds_read_b32 v{D+k}, v{B4+k} offset:{K1_BASE}')
    if SPL: I(f's_waitcnt vmcnt({2 if OPT["EPF"] == 1 else 0})')
    I(f'''
    s_cmp_lg_u32 s28, 4
    s_cbranch_scc1 P_NOOFF
    v_lshl_or_b32 v64, v64, 16, v68
    v_lshl_or_b32 v65, v65, 16, v69
    v_lshl_or_b32 v66, v66, 16, v70
    v_lshl_or_b32 v67, v67, 16, v71
    v_lshlrev_b32 v61, 8, v60
    s_lshl_b32 s36, s2, 4
    s_add_u32 s36, s36, {OFFS}
    buffer_store_dwordx4 v[64:67], v61, s[16:19], s36 offen {OPT['OFF_ST_AUX']}
P_NOOFF:
    ''')
    for k in range(7): rec(k)
    if OPT['CPF'] & 1:
        I(f'''s_cmp_lg_u32 s28, 7
        s_cbranch_scc1 P_NOCPF
        s_cmp_ge_u32 s2, 32
        s_cbranch_scc1 P_NOCPF
        s_getpc_b64 s[40:41]
P_PC:
        s_add_u32 s40, s40, {MAIN}-P_PC
        s_addc_u32 s41, s41, 0
        v_and_b32 v82, 63, v0
        v_lshlrev_b32 v82, 7, v82
        v_min_u32 v83, M_CODE_END-{MAIN}-8196, v82
        v_add_u32 v83, 8192, v83
        global_load_dword v86, v82, s[40:41]
        global_load_dword v86, v83, s[40:41]''')
        if OPT['CPF'] & 4:
            I(f'''s_load_dwordx2 s[42:43], s[0:1], 0
            s_load_dwordx2 s[44:45], s[0:1], 56
            v_lshlrev_b32 v82, 12, v82
            v_min_u32 v82, {E*32-4}, v82
            v_mov_b32 v83, 0
            global_load_dword v86, v82, s[26:27]
            s_waitcnt lgkmcnt(0)
            global_load_dword v86, v83, s[42:43]
            global_load_dword v86, v83, s[44:45]''')
        I('P_NOCPF:')
    I(f'''
    s_cmp_ge_u32 s28, 2
    s_cbranch_scc1 P_NO6C
    ds_read_b32 v{D+6}, v{B4+6} offset:{K1_BASE}
    s_waitcnt lgkmcnt(0)
    v_add_lshl_u32 v{RK+6}, v{RK+6}, v{D+6}, 2
    ds_write_b32 v{RK+6}, v{RC+6} offset:{K1_SORT}
    ''')
    if MOVE: I(f'ds_write_b32 v{RK+6}, v{EL+6} offset:{K1_SORTE}')
    I('P_NO6C:\ns_waitcnt lgkmcnt(0)')
    for k in range(6):
        I(f'''v_add_lshl_u32 v{RK+k}, v{RK+k}, v{D+k}, 2
        ds_write_b32 v{RK+k}, v{RC+k} offset:{K1_SORT}''')
        if MOVE: I(f'ds_write_b32 v{RK+k}, v{EL+k} offset:{K1_SORTE}')
    I(f'''
    s_waitcnt lgkmcnt(0)
    ''')
    kstamp(3)
    I(f'''
    {"s_waitcnt vmcnt(0)" if MOVE else ""}
    s_barrier
    ''')
    kstamp(4)
    I(f'''
    ds_read_b128 v[8:11], v4 offset:{K1_SORT}
    v_cmp_gt_u32 vcc, 288, v0
    s_and_saveexec_b64 s[38:39], vcc
    ds_read_b128 v[12:15], v4 offset:{K1_SORT+8192}
    s_mov_b64 exec, s[38:39]
    ''')
    if MOVE:
        I(f'''v_lshrrev_b32 v84, 1, v0
        v_lshlrev_b32 v84, 2, v84
        v_and_b32 v85, 1, v0
        v_lshlrev_b32 v85, 4, v85
        v_add_u32 v85, {K1_EIMG}, v85''')
        for n in range(13):
            I(f'ds_read_b32 v{16+n}, v84 offset:{K1_SORTE + n*1024}')
    I(f'''
    s_waitcnt lgkmcnt({13 if MOVE else 0})
    buffer_store_dwordx4 v[8:11], v4, s[16:19], s29 offen {OPT['K1_ST_AUX']}
    s_add_u32 s36, s29, 8192
    s_and_saveexec_b64 s[38:39], vcc
    s_cbranch_execz P_NOST2
    buffer_store_dwordx4 v[12:15], v4, s[16:19], s36 offen {OPT['K1_ST_AUX']}
P_NOST2:
    s_mov_b64 exec, s[38:39]
    ''')
    if MOVE:
        I(f'''s_mul_i32 s30, s2, {CH*32}
        s_add_u32 s30, s30, {PAY}
        s_waitcnt lgkmcnt(0)''')
        for n in range(12):
            I(f'v_add_u32 v{16+n}, v{16+n}, v85\nds_read_b128 {r(32+4*n,4)}, v{16+n}')
        for n in range(12):
            I(f'''s_waitcnt lgkmcnt({min(15, 11-n)})
            buffer_store_dwordx4 {r(32+4*n,4)}, v4, s[16:19], s30 offen {OPT['PAY_ST_AUX']}
            s_add_u32 s30, s30, 8192''')
        I(f'''s_cmp_ge_u32 s28, 4
        s_cbranch_scc1 P_FIN
        v_add_u32 v28, v28, v85
        ds_read_b128 v[8:11], v28
        s_waitcnt lgkmcnt(0)
        buffer_store_dwordx4 v[8:11], v4, s[16:19], s30 offen {OPT['PAY_ST_AUX']}''')
    I('P_FIN:')
    for _ in range(OPT['K1SLEEP']): I('s_sleep 64')
    kdump()
    I('s_endpgm')
    I(f'''
P_PREP:
    s_load_dwordx4 s[8:11], s[0:1], 32
    s_load_dwordx2 s[12:13], s[0:1], 48
    s_sub_u32 s30, s2, {NCH}
    s_lshl_b32 s30, s30, 3
    s_add_u32 s30, s30, s28
    s_cmp_ge_u32 s30, {NFRAG}
    s_cbranch_scc1 P_END
    s_waitcnt lgkmcnt(0)
    s_mov_b32 s20, s12
    s_mov_b32 s21, s13
    s_mov_b32 s22, {144*128}
    s_mov_b32 s23, 0x20000
    s_mov_b32 s33, {NLOG2E}
    s_mov_b32 s31, s30
    s_mov_b32 s32, 64
    s_cmp_lt_u32 s30, 8
    s_cbranch_scc1 P_GO
    s_cmp_lt_u32 s30, 16
    s_cbranch_scc0 P_C1
    s_sub_u32 s31, s30, 8
    s_mov_b32 s32, 0
    s_mov_b32 s33, 1.0
    s_mov_b32 s20, s10
    s_mov_b32 s21, s11
    s_mov_b32 s22, {64*128}
    s_branch P_GO
P_C1:
    s_cmp_lt_u32 s30, 18
    s_cbranch_scc0 P_C2
    s_sub_u32 s31, s30, 16
    s_lshl_b32 s31, s31, 2
    s_mov_b32 s32, 128
    s_branch P_GO
P_C2:
    s_mov_b32 s33, 1.0
    s_mov_b32 s32, 0
    s_sub_u32 s31, s30, 18
    s_cmp_lt_u32 s30, 26
    s_cbranch_scc1 P_GO
    s_sub_u32 s31, s30, 26
    s_mov_b32 s20, s8
    s_mov_b32 s21, s9
    s_mov_b32 s22, {64*128}
P_GO:
    s_and_b32 s34, s31, 3
    s_lshl_b32 s34, s34, 4
    s_add_u32 s34, s34, s32
    s_lshl_b32 s34, s34, 7
    s_lshr_b32 s35, s31, 2
    s_lshl_b32 s35, s35, 6
    s_add_u32 s34, s34, s35
    v_and_b32 v1, 31, v0
    v_lshlrev_b32 v1, 1, v1
    v_bfe_u32 v2, v0, 5, 1
    v_lshl_or_b32 v1, v2, 10, v1
    ''')
    for t in range(8):
        I(f'buffer_load_ushort v{8+t}, v1, s[20:23], s34 offen offset:{t*128}')
    srd(16, 24, WS_BYTES)
    I(f'''
    v_and_b32 v3, 63, v0
    v_lshlrev_b32 v3, 4, v3
    s_lshl_b32 s36, s30, 10
    s_add_u32 s36, s36, {WF}
    s_waitcnt vmcnt(0)
    ''')
    for t in range(8):
        I(f'v_lshlrev_b32 v{8+t}, 16, v{8+t}\nv_mul_f32 v{8+t}, s33, v{8+t}')
    for t in range(4):
        I(f'v_cvt_pk_bf16_f32 v{16+t}, v{8+2*t}, v{9+2*t}')
    I(f'''buffer_store_dwordx4 v[16:19], v3, s[16:19], s36 offen {OPT['WF_AUX']}
P_END:
    s_endpgm''')

CNT, FLAG, BASE = 0, 256, 512
XS = 1024
ES = XS + 65536
LX = ES + 16384
LE = LX + 16384
XAT = LE + 16384
AGG = XAT + 14336
M_LDS = AGG + 2*14336
ROWS = XS + 36864
XSENT, ESENT = 0x1FFF80, 0x7FFFFF00
CAP = 4096
NSLOT = 20

WB, WV, WC = 4, 36, 68
XA = 76
Z = 108
H = 140
AF = 156
ACC = 176
IDX = 192
vLX, vLE, vKX0, vKX1, vKE = 197, 198, 199, 200, 201
vRA, vRE = 202, 206
vSCH, vLT = 207, 208
T0, T1, T2 = 209, 210, 211
vC, vEB = 212, 213
vONE = 214
vLA = 215
vINV, vFC = 218, 219
T4 = 216
AF2 = 220
AFE2 = 236
NV = 240
vTR = NV
pREC, pRK, pAD = 76, 96, 116
pD, pA, pW = 136, 152, 168
sX, sE, sWS, sOUT = 8, 12, 16, 20
sW, sT, sTW, sNP, sNC, sNN, sD, sM0X, sM0E, sMASK, sTMP, sTMP2, sMODE, sSEG, sG0 = range(28, 43)
sONE = 44
sSAVE = 46
sOFP = 48
sB = 50
sXR = 51
sBAR = 43

def thr(s): return 8 * (s // 4) + s % 4

def mf(d, a, b, c): return f'v_mfma_f32_32x32x16_bf16 {r(d,16)}, {r(a,4)}, {r(b,4)}, {c}'
def zm(ft, af=None, ae=None):
    if af is None: af = AF
    if ae is None: ae = AF + 16
    out = [mf(Z+16*ft, ae, WC+4*ft, r(XA+16*ft, 16))]
    for k in range(4): out.append(mf(Z+16*ft, af+4*k, WB+16*ft+4*k, r(Z+16*ft, 16)) if not OPT['NOZ'] else 'v_nop\nv_nop')
    return out
def hm(ft, af=None):
    if af is None: af = AF
    out = [mf(H, af, WV+16*ft, '0')]
    for k in range(1, 4): out.append(mf(H, af+4*k, WV+16*ft+4*k, r(H, 16)))
    if OPT['NOHV']: out = ['v_nop\nv_nop'] * 4
    return out
def exps(ft): return [f'v_exp_f32 v{Z+16*ft+i}, v{Z+16*ft+i}' if not OPT['NOTR'] else 'v_nop\nv_nop' for i in range(16)]
def rcps(ft): return [f'v_rcp_f32 v{Z+16*ft+i}, v{Z+16*ft+i}' if not OPT['NOTR'] else 'v_nop\nv_nop' for i in range(16)]
def pkadd(ft):
    if OPT['NOPK']: return ['v_nop'] * 8
    if not OPT['PKA']: return [f'v_add_f32 v{Z+16*ft+i}, 1.0, v{Z+16*ft+i}' for i in range(16)]
    return [f'v_pk_add_f32 {r(Z+16*ft+2*i,2)}, {r(Z+16*ft+2*i,2)}, {sr(sONE,2)}' for i in range(8)]
def pkf(ft):
    if OPT['NOPK']: return ['v_nop'] * 8
    if not OPT['PKF']: return [f'v_fmac_f32 v{ACC+8*ft+2*(i//4)+i%2}, v{Z+16*ft+i}, v{H+i}' for i in range(16)]
    return [f'v_pk_fma_f32 {r(ACC+8*ft+2*(i//2),2)}, {r(Z+16*ft+2*i,2)}, {r(H+2*i,2)}, {r(ACC+8*ft+2*(i//2),2)}' for i in range(8)]
def weave(main, ins):
    out = []
    for i, m in enumerate(main):
        out += ins.get(i, [])
        out.append(m)
    out += ins.get(len(main), [])
    return out

def lds_init():
    I(f'''v_lshlrev_b32 v{T0}, 4, v0
    v_add_u32 v{T0}, {LX}, v{T0}
    v_mov_b32 v{AF}, {XSENT}
    v_mov_b32 v{AF+1}, {XSENT}
    v_mov_b32 v{AF+2}, {XSENT}
    v_mov_b32 v{AF+3}, {XSENT}
    v_mov_b32 v{AF+4}, {ESENT}
    v_mov_b32 v{AF+5}, {ESENT}
    v_mov_b32 v{AF+6}, {ESENT}
    v_mov_b32 v{AF+7}, {ESENT}
    v_and_b32 v{T1}, 127, v0
    v_lshlrev_b32 v{T1}, 2, v{T1}
    v_mov_b32 v{T2}, 0
    ds_write_b128 v{T0}, {r(AF,4)}
    ds_write_b128 v{T0}, {r(AF,4)} offset:8192
    ds_write_b128 v{T0}, {r(AF+4,4)} offset:16384
    ds_write_b128 v{T0}, {r(AF+4,4)} offset:24576
    ds_write_b32 v{T1}, v{T2}''')

def pEO(s): return AF2 + s if s < 16 else 184 + s - 16
def sVM(s): return 68 + 2 * (s % 16)
def validate(lo, hi):
    for s in range(lo, hi): I(f'v_cmp_lt_i32 {sr(sVM(s),2)}, {thr(s)}, v{vC}')
def pass_a(lo, hi, estride, mid=None):
    for s in range(lo, hi):
        I(f'v_and_b32_sdwa v{pAD+s}, v{vFC}, v{pREC+s} dst_sel:DWORD dst_unused:UNUSED_PAD src0_sel:DWORD src1_sel:BYTE_3')
    for s in range(lo, hi):
        I(f'''s_mov_b64 exec, {sr(sVM(s),2)}
        ds_add_rtn_u32 v{pRK+s}, v{pAD+s}, v{vONE}''')
    I('s_mov_b64 exec, -1')
    if mid: mid()
    for s in range(lo, hi):
        if MOVE:
            I(f'v_add_u32 v{pEO(s)}, {estride(s)}, v{vEB}')
        else:
            I(f'''v_bfe_u32 v{pEO(s)}, v{pREC+s}, 14, 12
            v_lshl_add_u32 v{pEO(s)}, v{pEO(s)}, 5, v{vEB}''')
        I(f'v_alignbit_b32 v{pREC+s}, v{pREC+s}, v{pREC+s}, 25')

def scan():
    I(f'''v_lshlrev_b32 v{T0}, 2, v2
    ds_read_b32 v{T1}, v{T0}
    v_mov_b32 v{T2}, {FLAG}
    ds_read_b32 v{IDX}, v{T2}
    s_waitcnt lgkmcnt(0)
    v_add_u32 v{IDX+2}, s{sW}, v{T1}
    v_add_u32 v{T1}, 7, v{T1}
    v_and_b32 v{T1}, -8, v{T1}
    v_readfirstlane_b32 s{sTMP2}, v{IDX}
    v_mov_b32 v{T2}, v{T1}''')
    dpp_scan(T2)
    I(f'''v_sub_u32 v{T1}, v{T2}, v{T1}
    v_readlane_b32 s{sTMP}, v{T2}, 63
    v_add_u32 v{IDX+3}, {LX//4}, v{T1}
    ds_write_b32 v{T0}, v{IDX+3} offset:{BASE}''')
def pad_write():
    I(f'''v_add_u32 v{IDX+4}, v{T1}, v{IDX+2}
    v_add_u32 v{T0}, s{sTMP}, v2
    s_add_u32 s52, s{sTMP}, 31
    s_and_b32 s52, s52, -32
    s_cmp_eq_u32 s{sW}, 7
    s_cselect_b64 vcc, -1, 0
    v_mov_b32 v{IDX+2}, s52
    v_cndmask_b32 v{IDX+4}, v{IDX+4}, v{T0}, vcc
    v_cndmask_b32 v{T2}, v{T2}, v{IDX+2}, vcc
    v_mov_b32 v{T0}, {XSENT}
    v_cmp_lt_u32 vcc, v{IDX+4}, v{T2}
    v_mov_b32 v{T1}, {ESENT}
    v_lshlrev_b32 v{IDX+4}, 2, v{IDX+4}
    v_add_u32 v{IDX+4}, {LX}, v{IDX+4}
    s_mov_b64 exec, vcc
    ds_write2st64_b32 v{IDX+4}, v{T0}, v{T1} offset1:64
    s_mov_b64 exec, -1''')
def pass_b1(lo, hi):
    for s in range(lo, hi):
        I(f'''s_mov_b64 exec, {sr(sVM(s),2)}
        ds_read_b32 v{pAD+s}, v{pAD+s} offset:{BASE}''')
    I('s_mov_b64 exec, -1')
def pass_b2(lo, hi):
    for s in range(lo, hi): I(f'v_add_lshl_u32 v{pRK+s}, v{pRK+s}, v{pAD+s}, 2')
    for s in range(lo, hi):
        I(f'''s_mov_b64 exec, {sr(sVM(s),2)}
        ds_write2st64_b32 v{pRK+s}, v{pREC+s}, v{pEO(s)} offset1:64''')
    I('s_mov_b64 exec, -1')

def dma_tile(ix, xm0, em0, xoff, eoff):
    g = []
    for q in range(4):
        g.append([f's_add_u32 m0, s{xm0}, {xoff + q*1024}',
                  f'v_and_or_b32 v{ix+q}, v{ix+q}, s{sMASK}, v{vKX0 if q % 2 == 0 else vKX1}',
                  f'buffer_load_dwordx4 v{ix+q}, {sr(sX,4)}, 0 offen lds'])
    g.append([f's_add_u32 m0, s{em0}, {eoff}',
              f'v_add_u32 v{ix+4}, v{ix+4}, v{vKE}',
              f'buffer_load_dwordx4 v{ix+4}, {sr(sE,4)}, 0 offen {OPT["E_AUX"]} lds'])
    return g

def flush_j(j, sn):
    I(f'''v_add_f32 v{T1}, v{ACC+2*j}, v{ACC+2*j+1}
    v_add_f32 v{T2}, v{ACC+8+2*j}, v{ACC+8+2*j+1}
    s_bfe_u32 s{sTMP}, s{sn}, {(6 << 16) | (8*j)}
    s_lshl_b32 s{sTMP}, s{sTMP}, 9
    v_permlane32_swap_b32 v{T1}, v{T2}
    v_add_u32 v{T0}, s{sTMP}, v{vLA}
    v_mov_b64 {r(ACC+2*j,2)}, 0
    v_add_f32 v{T1}, v{T1}, v{T2}
    v_mov_b64 {r(ACC+8+2*j,2)}, 0
    v_cvt_f64_f32 {r(T4,2)}, v{T1}
    ds_add_f64 v{T0}, {r(T4,2)}''')
def xa_half(j, sn, ft):
    I(f'''s_bfe_u32 s{sTMP}, s{sn}, {(6 << 16) | (8*j)}
    s_lshl_b32 s{sTMP}, s{sTMP}, 8
    v_add_u32 v{T0}, s{sTMP}, v{vLT}
    ds_read2_b32 {r(XA+16*ft+4*j,2)}, v{T0} offset0:{32*ft} offset1:{32*ft}
    ds_read2_b32 {r(XA+16*ft+4*j+2,2)}, v{T0} offset0:{32*ft} offset1:{32*ft}''')
def xa_j(j, sn):
    I(f'''s_bfe_u32 s{sTMP}, s{sn}, {(6 << 16) | (8*j)}
    s_lshl_b32 s{sTMP}, s{sTMP}, 8
    v_add_u32 v{T0}, s{sTMP}, v{vLT}
    ds_read2_b32 {r(XA+4*j,2)}, v{T0}
    ds_read2_b32 {r(XA+4*j+2,2)}, v{T0}
    ds_read2_b32 {r(XA+16+4*j,2)}, v{T0} offset0:32 offset1:32
    ds_read2_b32 {r(XA+16+4*j+2,2)}, v{T0} offset0:32 offset1:32''')

def TR(k):
    if not OPT['TRACE']: return ''
    return f'''s_memtime s[76:77]
    s_memrealtime s[78:79]
    s_waitcnt lgkmcnt(0)
    s_mov_b32 m0, s{sT}
    s_nop 0
    v_writelane_b32 v{vTR+k}, s76, m0
    s_add_u32 m0, m0, 32
    s_nop 0
    v_writelane_b32 v{vTR+k}, s78, m0'''
vST = 244
def putstamp(i, ins='s_memrealtime'):
    I(f'{ins} s[100:101]\ns_waitcnt lgkmcnt(0)\nv_writelane_b32 v{vST}, s100, {i}')
def fstamp(i):
    if OPT['STAMP'] and OPT['FINE']: putstamp(i)
def stamp(i):
    if OPT['AMP'] == 10 + i: I('s_memrealtime s[100:101]\ns_waitcnt lgkmcnt(0)')
    if not OPT['STAMP']: return
    if OPT['FINE'] and i not in (0,): return
    if OPT['CYC'] == 2:
        if i in (1, 2): return
        if i in (4, 5): putstamp(i - 3, 's_memtime')
    putstamp(i)

WBASE = XS + 32768
def frag_off(f):
    if f < 16: return (f // 4) * 8192 + 4096 + (f % 4) * 1024
    return ES + (4 + f - 16) * 2048 + 1024 - WBASE
def row_lds(k): return XS + (4 + k // 4) * 8192 + (k % 4) * 1024

def burn(pos):
    if not OPT['PRE'] or OPT['PREPOS'] != pos: return
    I(f's_mov_b32 s{sTW}, 0x9E3779B1')
    for k in range(8):
        I(f'v_add_u32 v{4+k}, {k*977+13}, v0\nv_mul_lo_u32 v{4+k}, v{4+k}, s{sTW}\nv_and_b32 v{4+k}, 0xbe7fbe7f, v{4+k}\nv_or_b32 v{4+k}, 0x3c003c00, v{4+k}')
    I(f's_mov_b32 s{sTW}, {OPT["PRE"]}\nM_BURN:')
    for k in range(4):
        I(mf(16, 4, 8, '0') if k % 2 == 0 else mf(32, 8, 4, '0'))
    I(f's_sub_u32 s{sTW}, s{sTW}, 1\ns_cmp_lg_u32 s{sTW}, 0\ns_cbranch_scc1 M_BURN')
def bvc():
    return f'''s_add_u32 m0, s{sNP}, {WBASE+4096}
    s_add_u32 s{sTMP}, s{sNC}, 8192
    buffer_load_dwordx4 v{IDX+1}, {sr(sWS,4)}, s{sNC} offen lds
    s_add_u32 m0, s{sNP}, {WBASE+4096+16384}
    s_cmp_ge_u32 s{sW}, 2
    buffer_load_dwordx4 v{IDX+1}, {sr(sWS,4)}, s{sTMP} offen lds
    s_cbranch_scc1 M_NOW4
    s_add_u32 m0, s{sM0E}, {4*2048+1024}
    s_add_u32 s{sTMP}, s{sNC}, {16*1024}
    buffer_load_dwordx4 v{IDX+1}, {sr(sWS,4)}, s{sTMP} offen lds
M_NOW4:'''
OUT = []
def xa_table():
    I(f's_cmp_ge_u32 s{sW}, 4\ns_cbranch_scc1 M_ADONE')
    for k in range(16):
        if k == 12: I(f's_cmp_lg_u32 s{sG0}, 0\ns_cbranch_scc1 M_ADONE')
        I(f'v_mul_f32 v{pD+k}, s{sD}, v{pD+k}\nds_write_b32 v{vINV}, v{pD+k} offset:{(8*(k//4)+k%4)*256}')
    I('M_ADONE:')
def kcalc():
    if not OPT['NREF']:
        return f'''s_lshr_b32 s59, s2, 3
    s_and_b32 s59, s59, {OPT['SMASK']}
    s_mul_i32 s59, s59, {OPT['STEP']}'''
    return f'''s_lshr_b32 s59, s{sTMP}, 5
    s_min_u32 s59, s59, {OPT['NREF']}
    s_sub_u32 s59, {OPT['NREF']}, s59
    s_mul_i32 s59, s59, {OPT['SLOPE']}
    s_lshr_b32 s59, s59, 2
    s_min_u32 s59, s59, {OPT['KMAX']}'''
def init0():
    lds_init()
    I(f'''v_add_u32 v{T0}, {AGG-LX}, v{T0}
    v_mov_b64 {r(AF+8,2)}, 0
    v_mov_b64 {r(AF+10,2)}, 0
    s_cmp_lg_u32 s{sW}, 0
    ds_write_b128 v{T0}, {r(AF+8,4)}
    ds_write_b128 v{T0}, {r(AF+8,4)} offset:8192
    ds_write_b128 v{T0}, {r(AF+8,4)} offset:16384
    s_cbranch_scc1 M_NOZ3
    ds_write_b128 v{T0}, {r(AF+8,4)} offset:24576
M_NOZ3:''')
def cnt_zero():
    I(f'''v_and_b32 v{T1}, 127, v0
    v_lshlrev_b32 v{T1}, 2, v{T1}
    v_mov_b32 v{T2}, 0
    ds_write_b32 v{T1}, v{T2}''')
def init_first():
    I(f'''v_lshlrev_b32 v{T0}, 4, v0
    v_add_u32 v{T0}, {AGG}, v{T0}
    v_mov_b64 {r(AF+8,2)}, 0
    v_mov_b64 {r(AF+10,2)}, 0
    s_cmp_lg_u32 s{sW}, 0
    ds_write_b128 v{T0}, {r(AF+8,4)}
    ds_write_b128 v{T0}, {r(AF+8,4)} offset:8192
    ds_write_b128 v{T0}, {r(AF+8,4)} offset:16384
    s_cbranch_scc1 M_NOZ3
    ds_write_b128 v{T0}, {r(AF+8,4)} offset:24576
M_NOZ3:''')
    cnt_zero()
def evchk(kind, p, sn):
    if OPT['NOEV']: return ''
    return '\n'.join(f's_bitcmp1_b32 s{sn}, {8*j+6}\ns_cbranch_scc1 M_{kind}{p}{j}\nM_{kind}R{p}{j}:' for j in range(4))
def gen_main():
    header(MAIN)
    if OPT['AMP']: I('s_memrealtime s[74:75]\ns_waitcnt lgkmcnt(0)\ns_mov_b32 s3, s74')
    stamp(0)
    I(f"""
    s_cmp_ge_u32 s2, {NB}
    s_cbranch_scc1 M_END
    """)
    burn(0)
    I(f"""
    s_load_dwordx2 s[26:27], s[0:1], 72
    s_load_dwordx4 s[4:7], s[0:1], 0
    s_load_dwordx2 s[24:25], s[0:1], 56
    v_lshrrev_b32 v1, 6, v0
    v_and_b32 v2, 63, v0
    v_readfirstlane_b32 s{sW}, v1
    s_and_b32 s{sB}, s2, 7
    s_lshl_b32 s{sB}, s{sB}, 5
    s_lshr_b32 s{sTMP}, s2, 3
    s_add_u32 s{sB}, s{sB}, s{sTMP}
    v_lshrrev_b32 v3, 1, v0
    v_lshlrev_b32 v{IDX}, 4, v3
    v_lshlrev_b32 v{IDX+1}, 4, v2
    s_lshr_b32 s{sD}, s{sB}, 2
    s_lshl_b32 s{sD}, s{sD}, 10
    s_and_b32 s{sTMP}, s{sB}, 3
    s_add_u32 s{sD}, s{sD}, s{sTMP}
    s_lshl_b32 s{sD}, s{sD}, 2
    s_add_u32 s{sD}, s{sD}, {OFFS}
    s_mov_b32 s{sWS+2}, {WS_BYTES}
    s_mov_b32 s{sWS+3}, 0x20000
    s_lshr_b32 s{sTMP}, s{sW}, 2
    s_lshl_b32 s{sTMP}, s{sTMP}, 13
    s_and_b32 s{sTMP2}, s{sW}, 3
    s_lshl_b32 s{sTMP2}, s{sTMP2}, 10
    s_add_u32 s{sG0}, s{sTMP}, s{sTMP2}
    s_lshl_b32 s{sTMP2}, s{sW}, 10
    s_add_u32 s{sTMP2}, s{sTMP2}, {WF}
    """)
    if OPT['PADW']: init_first()
    I(f"""
    s_waitcnt lgkmcnt(0)
    s_mov_b32 s{sWS}, s26
    s_mov_b32 s{sWS+1}, s27
    s_add_u32 m0, s{sG0}, {XS}
    buffer_load_dword v{vC}, v{IDX}, {sr(sWS,4)}, s{sD} offen
    s_add_u32 s{sTMP}, s{sTMP2}, {18*1024}
    buffer_load_dwordx4 v{IDX+1}, {sr(sWS,4)}, s{sTMP} offen lds
    s_add_u32 m0, s{sG0}, {XS+16384}
    s_add_u32 s{sTMP}, s{sTMP2}, {26*1024}
    buffer_load_dwordx4 v{IDX+1}, {sr(sWS,4)}, s{sTMP} offen lds
    s_mov_b32 s{sNP}, s{sG0}
    s_mov_b32 s{sNC}, s{sTMP2}
    {'' if OPT['WLATE'] else bvc()}
    v_lshrrev_b32 v{IDX+2}, 4, v2
    s_lshl_b32 s{sTMP}, s{sW}, 2
    v_add_u32 v{IDX+2}, s{sTMP}, v{IDX+2}
    v_xor_b32 v{IDX+2}, v{IDX+2}, v2
    v_and_b32 v{IDX+2}, 7, v{IDX+2}
    v_lshlrev_b32 v{IDX+2}, 4, v{IDX+2}
    v_lshrrev_b32 v{IDX+3}, 3, v2
    v_lshl_or_b32 v{IDX+2}, v{IDX+3}, 7, v{IDX+2}
    """)
    srd(sX, 4, N * 128)
    I(f"""
    s_cmp_ge_u32 s{sW}, 7
    s_cbranch_scc1 {'M_CPF' if OPT['CPF'] & 2 else 'M_NOROW'}
    s_lshl_b32 s{sTMP}, s{sW}, 10
    s_mul_i32 s{sTMP2}, s{sB}, {BN*128}
    s_add_u32 m0, s{sG0}, {XS+32768}
    s_add_u32 s{sTMP2}, s{sTMP2}, s{sTMP}
    buffer_load_dwordx4 v{IDX+2}, {sr(sX,4)}, s{sTMP2} offen lds
M_NOROW:
    """)
    if OPT['EARLY'] and not OPT['PADW']: init0()
    I(f"""
    s_add_u32 s{sOFP}, s26, s{sD}
    s_addc_u32 s{sOFP+1}, s27, 0
    v_cmp_gt_u32 vcc, {NCH}, v3
    v_mul_u32_u24 v{T1}, {CH}, v3
    v_and_b32 v{T2}, 1, v0
    v_lshlrev_b32 v{T2}, 2, v{T2}
    s_lshr_b32 s{sTMP}, s2, 3
    s_mul_i32 s{sTMP}, s{sTMP}, {391*128}
    v_min_u32 v1, 390, v0
    v_lshlrev_b32 v1, 7, v1
    s_mov_b32 s{sNN}, s{sTMP}
    s_waitcnt vmcnt({2 if OPT['WLATE'] else 4})
    v_cndmask_b32 v{vC}, 0, v{vC}, vcc
    v_and_b32 v{T0}, 0xffff, v{vC}
    v_lshrrev_b32 v{vC}, 16, v{vC}
    v_add3_u32 v{T0}, v{T0}, v{T1}, v{T2}
    v_cmp_lt_u32 {sr(sSAVE,2)}, {2*NSLOT}, v{vC}
    v_sub_u32 v{vC}, v{vC}, v{T2}
    v_lshlrev_b32 v{vEB}, 5, v{T0 if MOVE else T1}
    v_lshlrev_b32 v{T0}, 2, v{T0}
    v_cmp_lt_i32 vcc, 16, v{vC}
    v_cmp_lt_i32 {sr(52,2)}, 24, v{vC}
    v_cmp_lt_i32 {sr(54,2)}, 32, v{vC}
    buffer_load_dwordx4 {r(pREC,4)}, v{T0}, {sr(sWS,4)}, 0 offen
    buffer_load_dwordx4 {r(pREC+4,4)}, v{T0}, {sr(sWS,4)}, 0 offen offset:32
    s_cmp_lg_u64 {sr(54,2)}, 0
    s_cselect_b32 s{sXR}, 2, 0
    s_cmp_eq_u64 {sr(52,2)}, 0
    s_cbranch_scc1 M_RL3
    s_or_b32 s{sXR}, s{sXR}, 1
    buffer_load_dwordx4 {r(pREC+12,4)}, v{T0}, {sr(sWS,4)}, 0 offen offset:96
    buffer_load_dwordx4 {r(pREC+16,4)}, v{T0}, {sr(sWS,4)}, 0 offen offset:128
M_RL3:
    s_or_b64 vcc, vcc, 1
    s_mov_b64 exec, vcc
    buffer_load_dwordx4 {r(pREC+8,4)}, v{T0}, {sr(sWS,4)}, 0 offen offset:64
    s_mov_b64 exec, -1
    """)
    stamp(1)
    burn(1)
    if not OPT['EARLY'] and not OPT['PADW']: init0()
    if MOVE:
        I(f"""s_add_u32 s{sE}, s26, {PAY}
        s_addc_u32 s{sE+1}, s27, 0
        s_mov_b32 s{sE+2}, {E*32}
        s_mov_b32 s{sE+3}, 0x20000""")
    else:
        srd(sE, 6, E * 32)
    srd(sOUT, 24, N * 128)
    I(f"""
    v_lshlrev_b32 v{T0}, 4, v2
    s_lshr_b32 s{sTMP}, s{sW}, 2
    s_lshl_b32 s{sTMP}, s{sTMP}, 1
    s_and_b32 s{sTMP2}, s{sW}, 1
    s_add_u32 s{sTMP}, s{sTMP}, s{sTMP2}
    s_lshl_b32 s{sTMP}, s{sTMP}, 13
    s_add_u32 s{sTMP}, s{sTMP}, {XS}
    v_add_u32 v{IDX+2}, s{sTMP}, v{T0}
    v_and_b32 v{T1}, 31, v2
    v_lshlrev_b32 v{vLT}, 2, v{T1}
    v_add_u32 v{vLT}, {XAT}, v{vLT}
    v_lshrrev_b32 v{T2}, 5, v2
    v_bfe_u32 v{IDX}, v2, 1, 3
    v_xor_b32 v{IDX}, v{IDX}, v{T2}
    s_bfe_u32 s{sG0}, s{sW}, 0x10001
    s_lshl_b32 s{sTMP2}, s{sG0}, 13
    s_add_u32 s{sTMP}, s{sTMP2}, {row_lds(0)}
    v_lshlrev_b32 v{T1}, 7, v{T1}
    v_add_u32 v{T1}, s{sTMP}, v{T1}
    s_and_b32 s{sD}, s{sW}, 1
    s_lshl_b32 s{sD}, s{sD}, 7
    s_add_u32 s{sTMP2}, s{sTMP2}, s{sD}
    v_lshlrev_b32 v{T2}, 10, v{T2}
    v_add3_u32 v{T2}, v{T2}, v{vLT}, s{sTMP2}
    s_mov_b32 s{sD}, {NLOG2E}
    """)
    for s in range(4):
        I(f"""v_xor_b32 v{AF2+s}, {2*s}, v{IDX}
        v_lshl_add_u32 v{AF2+s}, v{AF2+s}, 4, v{T1}""")
    I(f"""
    v_mov_b32 v{vONE}, 1
    v_mov_b32 v{vFC}, 0xfc
    v_mov_b32 v{vINV}, v{T2}
    """)
    validate(0, 12)
    I('s_waitcnt vmcnt(3) lgkmcnt(0)\ns_barrier')
    if OPT['XPF'] == 2: I(f'buffer_load_dword v1, v1, {sr(sX,4)}, s{sNN} offen')
    for s in range(4):
        I(f'ds_read_b128 {r(pW+4*s,4)}, v{IDX+2} offset:{s*1024}\nds_read_b128 {r(pA+4*s,4)}, v{AF2+s}')
    for f in range(0 if OPT['WLATE'] else 18):
        I(f'ds_read_b128 {r(WB+4*f,4)}, v{IDX+1} offset:{frag_lds(f)}')
    I(f"""
    s_cmp_eq_u64 {sr(sSAVE,2)}, 0
    s_cbranch_scc1 M_NOFLAG
    v_mov_b32 v{T1}, {FLAG}
    ds_write_b32 v{T1}, v{vONE}
M_NOFLAG:
    """)
    if OPT['XAE']:
        I('s_waitcnt lgkmcnt(0)')
        I(mf(pD, pA, pW, '0'))
        for k in range(1, 4): I(mf(pD, pA+4*k, pW+4*k, r(pD, 16)))
    I(f"""
    s_mov_b32 s{sMASK}, {XSENT}
    s_mov_b32 s{sONE}, 1.0
    s_mov_b32 s{sONE+1}, 1.0
    s_mov_b32 s{sMODE}, 0
    s_lshl_b32 s{sM0X}, s{sW}, 13
    s_add_u32 s{sM0X}, s{sM0X}, {XS}
    s_lshl_b32 s{sM0E}, s{sW}, 11
    s_add_u32 s{sM0E}, s{sM0E}, {ES}
    """)
    if OPT['XAE']:
        I('s_nop 3')
        xa_table()
        I('s_waitcnt vmcnt(0)')
    else: I(f"s_waitcnt vmcnt({1 if OPT['XPF'] == 2 else 0}) lgkmcnt(0)")
    stamp(2)
    fs = lambda s: thr(s) * 32
    fstamp(1)
    def mid():
        if not OPT['XAE']: I(mf(pD, pA, pW, '0'))
        if OPT['WLATE']: I(bvc())
        if OPT['XPF'] == 1:
            I(f'buffer_load_dword v1, v1, {sr(sX,4)}, s{sNN} offen')
        for k in range(1, 4 if not OPT['XAE'] else 0): I(mf(pD, pA+4*k, pW+4*k, r(pD, 16)))
    pass_a(0, 12, fs, mid)
    if not OPT['XAE']: xa_table()
    fstamp(2)
    I(f's_cmp_eq_u32 s{sXR}, 0\ns_cbranch_scc1 M_RAR')
    validate(12, 16)
    pass_a(12, 16, fs)
    I(f's_cmp_ge_u32 s{sXR}, 2\ns_cbranch_scc1 M_RA\nM_RAR:')
    I('s_waitcnt lgkmcnt(0)\ns_barrier')
    fstamp(3)
    scan()
    fstamp(4)
    I(f"""
    s_cmp_gt_u32 s{sTMP}, {CAP}
    s_cbranch_scc1 M_SLOW
    s_cmp_lg_u32 s{sTMP2}, 0
    s_cbranch_scc1 M_SLOW
    s_cmp_eq_u32 s{sXR}, 0
    s_cbranch_scc1 M_BATCH
    s_cmp_ge_u32 s{sXR}, 2
    s_cbranch_scc1 M_RB
M_RBR:
    """)
    pass_b1(12, 16)
    I('s_waitcnt lgkmcnt(0)')
    pass_b2(12, 16)
    I(f'''
M_BATCH:
    ''')
    pass_b1(0, 12)
    if OPT['PADW'] == 1: pad_write()
    if OPT['B2FIRST']:
        I(f'''
    v_lshrrev_b32 v{vKE}, 4, v2
    v_xor_b32 v{vKE}, v{vKE}, v2
    v_and_b32 v{vKX0}, 7, v{vKE}
    v_lshlrev_b32 v{vKX0}, 4, v{vKX0}
    v_xor_b32 v{vKX1}, 64, v{vKX0}
    v_and_b32 v{vKE}, 1, v{vKE}
    v_lshlrev_b32 v{vKE}, 4, v{vKE}
    s_waitcnt lgkmcnt(0)''')
        pass_b2(0, 12)
        if OPT['PADW'] == 2: pad_write()
    I(f'''
    s_add_u32 s{sTMP}, s{sTMP}, 31
    s_lshr_b32 s52, s{sTMP}, 7
    s_bfe_u32 s53, s{sTMP}, 0x20005
    {kcalc()}
    s_add_u32 s{sBAR}, s59, {OPT['STAG']+1}
    s_add_u32 s59, s59, {OPT['DELTA']}
    s_max_u32 s54, s52, s59
    s_sub_u32 s54, s54, s59
    s_lshr_b32 s54, s54, 1
    s_add_u32 s55, s52, 1
    s_max_u32 s56, s55, s59
    s_sub_u32 s56, s56, s59
    s_lshr_b32 s56, s56, 1
    s_sub_u32 s52, s52, s54
    s_sub_u32 s55, s55, s56
    s_mul_i32 s57, s55, s53
    s_sub_u32 s58, 4, s53
    s_mul_i32 s58, s58, s52
    s_add_u32 s57, s57, s58
    s_cmp_ge_u32 s{sW}, 4
    s_cselect_b32 s52, s54, s52
    s_cselect_b32 s55, s56, s55
    s_cselect_b32 s57, s57, 0
    s_cselect_b32 s{sBAR}, 0, s{sBAR}
    s_and_b32 s58, s{sW}, 3
    s_cmp_lt_u32 s58, s53
    s_cselect_b32 s{sTW}, s55, s52
    s_min_u32 s53, s53, s58
    s_sub_u32 s58, s58, s53
    s_mul_i32 s53, s53, s55
    s_mul_i32 s58, s58, s52
    s_add_u32 s{sG0}, s57, s53
    s_add_u32 s{sG0}, s{sG0}, s58
    s_lshl_b32 s{sG0}, s{sG0}, 7
    s_add_u32 s{sG0}, s{sG0}, {LX}
    s_lshl_b32 s{sTMP2}, s{sTW}, 5
    v_lshrrev_b32 v{T0}, 4, v2
    v_mul_u32_u24 v{T0}, s{sTMP2}, v{T0}
    v_bfe_u32 v{T1}, v2, 3, 1
    v_lshl_add_u32 v{T0}, v{T1}, 4, v{T0}
    v_add_u32 v{vLX}, s{sG0}, v{T0}
    v_bfe_u32 v{T0}, v2, 3, 2
    v_mul_u32_u24 v{T0}, s{sTMP2}, v{T0}
    v_bfe_u32 v{T1}, v2, 2, 1
    v_lshl_add_u32 v{T0}, v{T1}, 4, v{T0}
    v_lshrrev_b32 v{T1}, 5, v2
    v_lshl_add_u32 v{T0}, v{T1}, 3, v{T0}
    v_bfe_u32 v{T1}, v2, 1, 1
    v_lshl_add_u32 v{T0}, v{T1}, 2, v{T0}
    v_add_u32 v{vLE}, s{sG0}, v{T0}
    s_sub_u32 s{sTMP}, s{sTW}, 1
    v_min_u32 v{T0}, s{sTMP}, v2
    v_lshlrev_b32 v{T0}, 5, v{T0}
    v_add_u32 v{T0}, s{sG0}, v{T0}
    v_add_u32 v{T1}, s{sTMP2}, v{T0}
    v_add_u32 v{T2}, s{sTMP2}, v{T1}
    v_add_u32 v{vSCH}, s{sTMP2}, v{T2}
    ''')
    if not OPT['B2FIRST']:
        I(f'''
    v_lshrrev_b32 v{vKE}, 4, v2
    v_xor_b32 v{vKE}, v{vKE}, v2
    v_and_b32 v{vKX0}, 7, v{vKE}
    v_lshlrev_b32 v{vKX0}, 4, v{vKX0}
    v_xor_b32 v{vKX1}, 64, v{vKX0}
    v_and_b32 v{vKE}, 1, v{vKE}
    v_lshlrev_b32 v{vKE}, 4, v{vKE}
    s_waitcnt lgkmcnt(0)''')
        pass_b2(0, 12)
    fstamp(5)
    I(f'''
    s_waitcnt vmcnt({1 if OPT['XPF'] == 1 else 0}) lgkmcnt(0)
    s_barrier
    ''')
    stamp(3)
    if OPT['NOX']: I(f's_mov_b32 s{sX+2}, 0')
    if OPT['NOE']: I(f's_mov_b32 s{sE+2}, 0')
    g0 = dma_tile(Z, sM0X, sM0E, 0, 0)
    g1 = dma_tile(Z+16, sM0X, sM0E, 4096, 1024)
    g1_idx = dma_tile(IDX, sM0X, sM0E, 0, 0)
    I(f"""
    ds_read_b128 {r(Z,4)}, v{vLX}
    ds_read_b32 v{Z+4}, v{vLE} offset:16384
    ds_read_b32 v{T0}, v{T0}
    ds_read_b32 v{T1}, v{T1}
    ds_read_b32 v{T2}, v{T2}
    ds_read_b32 v{vSCH}, v{vSCH}
    ds_read_b128 {r(Z+16,4)}, v{vLX} offset:32
    ds_read_b32 v{Z+20}, v{vLE} offset:{16384+32}
    ds_read_b128 {r(IDX,4)}, v{vLX} offset:64
    ds_read_b32 v{IDX+4}, v{vLE} offset:{16384+64}
    v_lshlrev_b32 v{vFC}, 4, v2
    v_add_u32 v{vFC}, {WBASE}, v{vFC}
    s_cmp_ge_u32 s{sW}, 4
    s_cbranch_scc1 M_NOT0
    s_setprio 1
    s_cmp_eq_u32 s{sTW}, 0
    s_waitcnt lgkmcnt(8)
    s_cbranch_scc1 M_NOT0
    """)
    for g in g0: I('\n'.join(g))
    I(f"""
M_NOT0:
    s_waitcnt lgkmcnt(0)
    v_bfe_u32 v{T0}, v{T0}, 1, 6
    v_bfe_u32 v{T1}, v{T1}, 1, 6
    v_bfe_u32 v{T2}, v{T2}, 1, 6
    v_bfe_u32 v{vSCH}, v{vSCH}, 1, 6
    v_lshl_or_b32 v{T0}, v{T1}, 8, v{T0}
    v_lshl_or_b32 v{T0}, v{T2}, 16, v{T0}
    v_lshl_or_b32 v{vSCH}, v{vSCH}, 24, v{T0}
    v_add_u32 v{vLX}, 96, v{vLX}
    v_mov_b32 v{T0}, v{vSCH}
    v_readfirstlane_b32 s{sNC}, v{vSCH}
    v_add_u32 v{vLE}, {16384+96}, v{vLE}
    v_mov_b32_dpp v{T0}, v{vSCH} wave_shr:1 row_mask:0xf bank_mask:0xf
    s_mov_b32 s{sT}, 1
    v_xor_b32 v{T0}, v{T0}, v{vSCH}
    v_add_u32 v{T0}, 0x3f3f3f3f, v{T0}
    v_and_b32 v{T0}, 0x40404040, v{T0}
    v_or_b32 v{vSCH}, v{vSCH}, v{T0}
    s_mov_b32 s{sNP}, s{sNC}
    """)
    for j in range(4):
        I(f"""s_bfe_u32 s{sTMP}, s{sNC}, {(6 << 16) | (8*j)}
        s_lshl_b32 s{sTMP}, s{sTMP}, 8
        v_add_u32 v{T0}, s{sTMP}, v{vLT}
        ds_read_b32 v{XA+4*j}, v{T0}
        ds_read_b32 v{XA+16+4*j}, v{T0} offset:128""")
    I(f"""
    s_cmp_eq_u32 s{sMODE}, 2
    s_cbranch_scc1 M_NOWT
    """)
    for f in (16, 0, 1, 2, 3, 8, 9, 10, 11, 17, 4, 5, 6, 7, 12, 13, 14, 15):
        I(f'ds_read_b128 {r(WB+4*f,4)}, v{vFC} offset:{frag_off(f)}')
    I(f"""s_cmp_lt_u32 s{sW}, 4
    s_cbranch_scc1 M_TDONE
    s_bfe_u32 s{sXR}, s{sW}, 0x10001
    v_subrev_u32 v{vINV}, {XAT}, v{vINV}
    v_lshlrev_b32 v{vINV}, 1, v{vINV}
    v_add_u32 v{vINV}, {AGG}, v{vINV}
    """)
    for k in range(16):
        if k == 12: I(f's_cmp_lg_u32 s{sXR}, 0\ns_cbranch_scc1 M_TDONE')
        I(f'v_cvt_f64_f32 {r(AF+2*(k%8),2)}, v{pD+k}\nds_add_f64 v{vINV}, {r(AF+2*(k%8),2)} offset:{(8*(k//4)+k%4)*512}')
    I('M_TDONE:')
    j_, i_, h_, g_, t_, u_ = AF2, AF2+1, AF2+2, AF2+3, AF2+4, AF2+5
    I(f"""
    s_lshl_b32 s{sMODE}, s{sMODE}, 1
    v_lshlrev_b32 v{vLA}, 3, v2
    v_add_u32 v{vLA}, {AGG}, v{vLA}
    v_bfe_u32 v{j_}, v2, 3, 2
    v_and_b32 v{i_}, 3, v2
    v_lshrrev_b32 v{h_}, 5, v2
    v_lshrrev_b32 v{t_}, 1, v{j_}
    v_xor_b32 v{g_}, v{t_}, v{j_}
    v_lshrrev_b32 v{u_}, 2, v2
    v_xor_b32 v{g_}, v{g_}, v{u_}
    v_and_b32 v{g_}, 1, v{g_}
    v_xor_b32 v{t_}, v{t_}, v{h_}
    v_lshlrev_b32 v{t_}, 4, v{t_}
    v_lshl_or_b32 v{u_}, v{j_}, 2, v{i_}
    v_lshl_or_b32 v{u_}, v{g_}, 4, v{u_}
    v_lshl_or_b32 v{t_}, v{u_}, 5, v{t_}
    v_add_u32 v{vRE}, s{sM0E}, v{t_}
    v_and_b32 v{t_}, 1, v{i_}
    v_lshl_or_b32 v{u_}, v{g_}, 1, v{t_}
    v_lshlrev_b32 v{u_}, 3, v{u_}
    v_lshl_or_b32 v{u_}, v{j_}, 1, v{u_}
    v_lshrrev_b32 v{i_}, 1, v{i_}
    v_or_b32 v{u_}, v{u_}, v{i_}
    v_lshlrev_b32 v{u_}, 7, v{u_}
    v_add_u32 v{u_}, s{sM0X}, v{u_}
    v_lshl_or_b32 v{t_}, v{t_}, 2, v{j_}
    v_xor_b32 v{t_}, v{t_}, v{h_}
    """)
    for s in range(4):
        I(f"""v_xor_b32 v{g_}, {2*s}, v{t_}
        v_lshl_add_u32 v{vRA+s}, v{g_}, 4, v{u_}""")
    I('M_NOWT:')
    for k in range(8): I(f'v_mov_b64 {r(ACC+2*k,2)}, 0')
    for g in g1: I(g[1])
    for g in dma_tile(IDX, sM0X, sM0E, 0, 0): I(g[1])
    I(f"""
    s_cmp_ge_u32 s{sW}, 4
    s_cbranch_scc1 M_YNG
    s_cmp_eq_u32 s{sTW}, 0
    s_cbranch_scc1 M_BDONE
    s_cmp_lt_u32 s{sTW}, 2
    s_cbranch_scc1 M_W0
    """)
    for g in g1: I(g[0] + '\ns_nop 0\n' + g[2])
    I(f"""s_waitcnt vmcnt(5) lgkmcnt(0)
M_W1:""")
    I(f'ds_read_b128 {r(AF+16,4)}, v{vRE}')
    for s in range(4): I(f'ds_read_b128 {r(AF+4*s,4)}, v{vRA+s}')
    for ft in range(2):
        for j in range(4):
            for i in range(1, 4): I(f'v_mov_b32 v{XA+16*ft+4*j+i}, v{XA+16*ft+4*j}')
    I('s_waitcnt lgkmcnt(0)')
    for m in zm(0): I(m)
    if OPT['ONEB']:
        I(f's_cmp_lt_u32 s{sW}, 4\ns_cbranch_scc1 M_OB1\ns_cmp_lt_u32 s{sTW}, 2\ns_cbranch_scc1 M_OB1')
        for g in g1: I(g[0] + '\ns_nop 0\n' + g[2])
        I(f'M_OB1:\ns_cmp_lt_u32 s{sTW}, 3\ns_cbranch_scc1 M_OB2')
        for g in dma_tile(IDX, sM0X, sM0E, 0, 0): I(g[0] + '\ns_nop 0\n' + g[2])
        I(f'''M_OB2:
        ds_read_b128 {r(IDX,4)}, v{vLX}
        ds_read_b32 v{IDX+4}, v{vLE}
        v_add_u32 v{vLX}, 32, v{vLX}
        v_add_u32 v{vLE}, 32, v{vLE}
        v_readlane_b32 s{sNN}, v{vSCH}, 1
        s_waitcnt lgkmcnt(0)''')
        for g in g1_idx: I(g[1])
    I(f"""s_cmp_eq_u32 s{sBAR}, 0
    s_cbranch_scc1 M_YNG2
    s_nop 7
    s_nop 1
M_GO:""")
    if OPT['WAITM']: I('s_mov_b32 s62, 0')
    OUT.append(lambda: (
        I(f"""M_W0:
        s_waitcnt vmcnt(0) lgkmcnt(0)
        s_branch M_W1
M_YNG:
        s_cmp_eq_u32 s{sTW}, 0
        s_cbranch_scc1 M_YE"""),
        [I('\n'.join(g)) for g in g0],
        I(f"""s_branch M_W0
M_YE:
        s_waitcnt lgkmcnt(0)
        s_barrier
        s_branch M_BDONE2
M_YNG2:
        s_barrier
        s_cmp_lt_u32 s{sTW}, 2
        s_cbranch_scc1 M_YG"""),
        [I(g[0] + '\ns_nop 0\n' + g[2]) for g in (g1 if not OPT['ONEB'] else [])],
        I('M_YG:\ns_nop 7\ns_branch M_GO')))
    if OPT['DLY'] == 1:
        I(f's_cmp_lt_u32 s{sW}, 4\ns_cbranch_scc1 M_NODLY\ns_sleep {OPT["DLYN"]}\nM_NODLY:')
    if OPT['DLY'] == 2:
        I(f'''s_bfe_u32 s{sTMP}, s2, 0x20003
M_DL:
        s_cmp_eq_u32 s{sTMP}, 0
        s_cbranch_scc1 M_NODLY
        s_sleep {OPT["DLYN"]}
        s_sub_u32 s{sTMP}, s{sTMP}, 1
        s_branch M_DL
M_NODLY:''')
    stamp(4)
    I('.p2align 6')
    for p in range(2 if OPT['ONEB'] else 0):
        nb = 1 - p
        afc, afn = (AF, AF2) if p == 0 else (AF2, AF)
        aec, aen = (AF+16, AFE2) if p == 0 else (AFE2, AF+16)
        PB = OPT['PB']
        g = dma_tile(IDX, sM0X, sM0E, nb*4096, nb*1024)
        I(f'''
M_LOOP{p}:
    {TR(0)}
    {evchk('F', p, sNC)}
    {evchk('X', p, sNN)}
    s_cmp_eq_u32 s{sT}, s{sBAR}
    s_cbranch_scc1 M_SB{p}
M_SBR{p}:
    s_setprio 0
    s_add_u32 s{sTMP}, s{sT}, 1
    s_cmp_lt_u32 s{sTMP}, s{sTW}
    s_cbranch_scc0 M_WZ{p}
    s_waitcnt vmcnt(5)
M_WZR{p}:
        ''')
        I(f'ds_read_b128 {r(aen,4)}, v{vRE} offset:{nb*1024}')
        for s_ in range(4): I(f'ds_read_b128 {r(afn+4*s_,4)}, v{vRA+s_} offset:{nb*4096}')
        I(f'''s_add_u32 s{sTMP}, s{sT}, 2
    s_cmp_lt_u32 s{sTMP}, s{sTW}
    s_waitcnt lgkmcnt(0)
    s_cbranch_scc0 M_ND{p}''')
        for q in range(5): I(g[q][0] + '\ns_nop 0\n' + g[q][2])
        I(f'M_ND{p}:')
        I(f'ds_read_b128 {r(IDX,4)}, v{vLX} offset:{32*p}\nds_read_b32 v{IDX+4}, v{vLE} offset:{32*p}')
        hv = hm(0, afc)
        EF = OPT['EF']
        ins = {1: [f's_setprio {PB}']}
        for k in range(4): ins.setdefault(EF + 3*k, []).append(hv[k])
        ins.setdefault(OPT['P2POS'], []).insert(0, f's_setprio {OPT["PB2"]}')
        I('\n'.join(weave(exps(0), ins)))
        I('\n'.join(pkadd(0)))
        zz = zm(1, afc, aec)
        I('\n'.join(weave(rcps(0), {0: [zz[0]], 3: [zz[1]], 6: [zz[2]], 9: [zz[3]], 12: [zz[4]]})))
        I('\n'.join(pkf(0)))
        hv = hm(1, afc)
        I('\n'.join(weave(exps(1), {0: [hv[0]], 3: [hv[1]], 6: [hv[2]], 9: [hv[3]]})))
        I('\n'.join(pkadd(1)))
        zz = zm(0, afn, aen)
        I('\n'.join(weave(rcps(1), {0: [zz[0]], 3: [zz[1]], 6: [zz[2]], 9: [zz[3]], 12: [zz[4]]})))
        I('\n'.join(pkf(1)))
        I(f'''s_add_u32 s{sT}, s{sT}, 1
    s_mov_b32 s{sNP}, s{sNC}
    s_mov_b32 s{sNC}, s{sNN}
    s_waitcnt lgkmcnt(0)
    v_readlane_b32 s{sNN}, v{vSCH}, s{sT}''')
        for q in range(5): I(g[q][1])
        if p == 1: I(f'v_add_u32 v{vLX}, 64, v{vLX}\nv_add_u32 v{vLE}, 64, v{vLE}')
        I(f's_cmp_le_u32 s{sT}, s{sTW}')
        I('s_cbranch_scc0 M_LEND' if p == 0 else 's_cbranch_scc1 M_LOOP0')
    for p in range(0 if OPT['ONEB'] else 2):
        nb = 1 - p
        afc, afn = (AF, AF2) if p == 0 else (AF2, AF)
        PB = OPT['PB']
        I(f'''
M_LOOP{p}:
    {TR(0)}
    {evchk('F', p, sNC)}
    s_cmp_eq_u32 s{sT}, s{sBAR}
    s_cbranch_scc1 M_SB{p}
M_SBR{p}:
    {'' if OPT['LATE0'] else 's_setprio 0'}
    s_add_u32 s{sTMP}, s{sT}, 1
    s_cmp_lt_u32 s{sTMP}, s{sTW}
    s_cbranch_scc0 M_ND{p}
        ''')
        g = dma_tile(IDX, sM0X, sM0E, p*4096, p*1024)
        I(g[0][0])
        for q in range(5):
            I('s_nop 0' if q == 0 else g[q][0])
            if q > 0: I('s_nop 0')
            I(g[q][2])
        I(f'M_ND{p}:')
        def eblk(ft, extra):
            if OPT['LATE0']: I('s_setprio 0')
            hv = hm(ft, afc)
            ES_, EF = OPT['ES'], OPT['EF']
            ins = {}
            for k in range(4): ins.setdefault(EF + ES_*k, []).append(hv[k])
            if OPT['PPOS'] == 0 and EF == 0: ins[0].append(f's_setprio {PB}')
            else: ins.setdefault(max(1, OPT['PPOS']), []).insert(0, f's_setprio {PB}')
            if OPT['PB2'] >= 0: ins.setdefault(OPT['P2POS'], []).insert(0, f's_setprio {OPT["PB2"]}')
            for k, v in extra.items(): ins.setdefault(k, []).extend(v)
            I('\n'.join(weave(exps(ft), ins)))
        eblk(0, {11: [f'v_readlane_b32 s{sNN}, v{vSCH}, s{sT}']})
        I('\n'.join(pkadd(0)))
        zz = zm(1, afc)
        I('\n'.join(weave(rcps(0), {0: [zz[0]], 3: [zz[1]], 6: [zz[2]], 9: [zz[3]], 12: [zz[4]]})))
        I('\n'.join(pkf(0)))
        I(f'''
    {evchk('X', p, sNN)}
    {'' if OPT['LATE0'] else 's_setprio 0'}
    s_add_u32 s{sTMP}, s{sT}, 1
    s_cmp_lt_u32 s{sTMP}, s{sTW}
    {'s_memtime s[76:77]' if OPT['WAITM'] else ''}
    s_cbranch_scc0 M_WZ{p}
    s_waitcnt vmcnt(5)
M_WZR{p}:
        ''')
        if OPT['WAITM']:
            I('''s_memtime s[78:79]
            s_waitcnt lgkmcnt(0)
            s_sub_u32 s78, s78, s76
            s_add_u32 s62, s62, s78''')
        I(f'ds_read_b128 {r(AF+16,4)}, v{vRE} offset:{nb*1024}')
        for s_ in range(4): I(f'ds_read_b128 {r(afn+4*s_,4)}, v{vRA+s_} offset:{nb*4096}')
        io = 32 * p if OPT['INC2'] else 0
        I(f'ds_read_b128 {r(IDX,4)}, v{vLX} offset:{io}\nds_read_b32 v{IDX+4}, v{vLE} offset:{io}')
        if OPT['WOUT']: I('s_waitcnt lgkmcnt(0)')
        eblk(1, {})
        I('\n'.join(pkadd(1)))
        zz = zm(0, afn)
        if not OPT['WOUT']: I('s_waitcnt lgkmcnt(0)')
        I('\n'.join(weave(rcps(1), {0: [zz[0]], 3: [zz[1]], 6: [zz[2]], 9: [zz[3]], 12: [zz[4]]})))
        I('\n'.join(pkf(1)))
        if OPT['IDLE']:
            I(f's_cmp_gt_u32 s{sT}, {OPT["IDLEK"]}\ns_cbranch_scc1 M_NOIDLE{p}')
            for _ in range(OPT['IDLE']): I(f'v_mov_b32 v{T4}, v{T4}')
            I(f'M_NOIDLE{p}:')
        for q in range(5): I(g[q][1])
        if not OPT['INC2']: I(f'v_add_u32 v{vLX}, 32, v{vLX}\nv_add_u32 v{vLE}, 32, v{vLE}')
        elif p == 1: I(f'v_add_u32 v{vLX}, 64, v{vLX}\nv_add_u32 v{vLE}, 64, v{vLE}')
        I(f'''
    s_mov_b32 s{sNP}, s{sNC}
    s_mov_b32 s{sNC}, s{sNN}
    s_add_u32 s{sT}, s{sT}, 1
    s_cmp_le_u32 s{sT}, s{sTW}''')
        I('s_cbranch_scc0 M_LEND' if p == 0 else 's_cbranch_scc1 M_LOOP0')
    I('M_LEND:')
    I(TR(0))
    I('s_setprio 0')
    if OPT['FL2']:
        for j in range(4):
            I(f'''v_add_f32 v{Z+j}, v{ACC+2*j}, v{ACC+2*j+1}
            v_add_f32 v{Z+4+j}, v{ACC+8+2*j}, v{ACC+8+2*j+1}
            s_bfe_u32 s{52+j}, s{sNP}, {(6 << 16) | (8*j)}
            s_lshl_b32 s{52+j}, s{52+j}, 9''')
        for j in range(4): I(f'v_permlane32_swap_b32 v{Z+j}, v{Z+4+j}\nv_add_u32 v{Z+8+j}, s{52+j}, v{vLA}')
        for j in range(4): I(f'v_add_f32 v{Z+j}, v{Z+j}, v{Z+4+j}')
        for j in range(4): I(f'v_cvt_f64_f32 {r(Z+16+2*j,2)}, v{Z+j}\nds_add_f64 v{Z+8+j}, {r(Z+16+2*j,2)}')
    else:
        for j in range(4): flush_j(j, sNP)
    I(f'''
M_BDONE:
    s_cmp_lt_u32 s{sTW}, s{sBAR}
    s_cbranch_scc0 M_BDONE2
    s_waitcnt lgkmcnt(0)
    s_barrier
M_BDONE2:
    s_setprio 0
    s_cmp_lg_u32 s{sMODE}, 0
    s_cbranch_scc1 M_SNEXT
M_EPI:
    ''')
    stamp(5)
    I(f'''
    s_waitcnt lgkmcnt(0)
    s_barrier
    v_cmp_gt_u32 vcc, {BN*8}, v0
    s_and_saveexec_b64 {sr(sSAVE,2)}, vcc
    s_cbranch_execz M_FIN
    v_lshlrev_b32 v{T0}, 6, v0
    v_add_u32 v{T0}, {AGG}, v{T0}
    ds_read_b128 {r(Z+16,4)}, v{T0}
    ds_read_b128 {r(Z+20,4)}, v{T0} offset:16
    ds_read_b128 {r(Z+24,4)}, v{T0} offset:32
    ds_read_b128 {r(Z+28,4)}, v{T0} offset:48
    s_mov_b32 s{sTMP}, {NLOG2E}
    s_mul_i32 s{sTMP2}, s{sB}, {BN*128}
    v_lshlrev_b32 v{T1}, 4, v0
    s_waitcnt lgkmcnt(0)
    ''')
    for k in range(8): I(f'v_cvt_f32_f64 v{Z+k}, {r(Z+16+2*k,2)}')
    for k in range(8): I(f'v_mul_f32 v{Z+8+k}, s{sTMP}, v{Z+k}')
    for k in range(8): I(f'v_exp_f32 v{Z+8+k}, v{Z+8+k}')
    for k in range(8): I(f'v_add_f32 v{Z+8+k}, 1.0, v{Z+8+k}')
    for k in range(8): I(f'v_rcp_f32 v{Z+8+k}, v{Z+8+k}')
    for k in range(8): I(f'v_mul_f32 v{Z+k}, v{Z+k}, v{Z+8+k}')
    for k in range(4): I(f'v_cvt_pk_bf16_f32 v{Z+16+k}, v{Z+2*k}, v{Z+2*k+1}')
    I(f'buffer_store_dwordx4 {r(Z+16,4)}, v{T1}, {sr(sOUT,4)}, s{sTMP2} offen {OPT["OUT_AUX"]}')
    I('M_FIN:')
    if OPT['AMP']:
        I(f'''s_cmp_lg_u32 s2, 0
        s_cbranch_scc1 M_END
        s_cmp_lg_u32 s{sW}, 0
        s_cbranch_scc1 M_END
        s_waitcnt vmcnt(0)
        s_memrealtime s[60:61]
        s_add_u32 s56, s26, {WF + 0x10000}
        s_addc_u32 s57, s27, 0
        s_load_dword s58, s[56:57], 0
        s_waitcnt lgkmcnt(0)''')
        if OPT['AMP'] == 2: I('s_mov_b32 s60, s3')
        if OPT['AMP'] == 3: I('s_mov_b32 s58, s3')
        if OPT['AMP'] >= 10: I('s_mov_b32 s58, s3\ns_mov_b32 s60, s100')
        I(f'''s_sub_u32 s59, s60, s58
        s_min_u32 s59, s59, 20000
        s_mul_i32 s59, s59, 10
        s_memrealtime s[60:61]
        s_waitcnt lgkmcnt(0)
        s_mov_b32 s58, s60
M_SPIN:
        s_memrealtime s[60:61]
        s_waitcnt lgkmcnt(0)
        s_sub_u32 s62, s60, s58
        s_cmp_lt_u32 s62, s59
        s_cbranch_scc1 M_SPIN''')
    if OPT['DBG']: dbgdump(7, 6)
    elif OPT['STAMP']:
        I('s_mov_b64 exec, -1\ns_waitcnt vmcnt(0)')
        putstamp(6)
        I(f'''v_writelane_b32 v{vST}, s{sTW}, 7
        s_add_u32 s52, s26, 0x8000000
        s_addc_u32 s53, s27, 0
        s_mov_b32 s54, 0x100000
        s_mov_b32 s55, 0x20000
        s_lshl_b32 s56, s2, 3
        s_add_u32 s56, s56, s{sW}
        s_lshl_b32 s56, s56, 5
        v_lshlrev_b32 v1, 2, v2
        s_mov_b64 exec, 0xff
        buffer_store_dword v{vST}, v1, s[52:55], s56 offen''')
        if OPT['TRACE']:
            I(f'''s_mov_b64 exec, -1
            s_lshl_b32 s56, s56, 3
            s_add_u32 s56, s56, 0x20000
            v_lshlrev_b32 v1, 2, v2
            buffer_store_dword v{vTR}, v1, s[52:55], s56 offen''')
    I('M_END:\ns_endpgm')
    for p in range(2):
        for j in range(4 if not OPT['NOEV'] else 0):
            I(f'M_F{p}{j}:\ns_setprio {OPT["PE"]}')
            if OPT['ONEB']: xa_half(j, sNC, 1)
            flush_j(j, sNP)
            I(f's_branch M_FR{p}{j}')
            I(f'M_X{p}{j}:\ns_setprio {OPT["PE"]}')
            if OPT['ONEB']: xa_half(j, sNN, 0)
            else: xa_j(j, sNN)
            I(f's_branch M_XR{p}{j}')
        I(f'M_WZ{p}:\ns_waitcnt vmcnt(0)\ns_branch M_WZR{p}')
        I(f'M_SB{p}:\ns_barrier\ns_branch M_SBR{p}')
    for f in OUT: f()
    if OPT['CPF'] & 2:
        I(f'''M_CPF:
        s_getpc_b64 s[52:53]
M_PC:
        s_sub_u32 s52, s52, M_PC-{MAIN}
        s_subb_u32 s53, s53, 0
        v_lshlrev_b32 v{AF}, 7, v2
        v_min_u32 v{AF+1}, M_SLOW-{MAIN}-8196, v{AF}
        v_add_u32 v{AF+1}, 8192, v{AF+1}
        global_load_dword v{AF+8}, v{AF}, s[52:53]
        global_load_dword v{AF+8}, v{AF+1}, s[52:53]
        s_branch M_NOROW''')
    I('M_RA:')
    validate(16, 20)
    pass_a(16, 20, fs)
    I('s_branch M_RAR')
    I('M_RB:')
    pass_b1(16, 20)
    I('s_waitcnt lgkmcnt(0)')
    pass_b2(16, 20)
    validate(0, 4)
    I('s_nop 3\ns_branch M_RBR')
    I(f'''
M_SLOW:
    s_mov_b32 s{sMODE}, 1
    s_mov_b32 s{sSEG}, -1
M_SNEXT:
    s_add_u32 s{sSEG}, s{sSEG}, 1
    s_cmp_ge_u32 s{sSEG}, {NCH}
    s_cbranch_scc1 M_EPI
    s_lshl_b32 s{sTMP}, s{sSEG}, 4
    s_load_dword s{sD}, {sr(sOFP,2)}, s{sTMP}
    s_waitcnt lgkmcnt(0)
    s_lshr_b32 s{sTMP2}, s{sD}, 16
    s_cmp_eq_u32 s{sTMP2}, 0
    s_cbranch_scc1 M_SNEXT
    s_barrier
    ''')
    if OPT['PADW']: cnt_zero()
    else: lds_init()
    I(f'''
    s_and_b32 s{sD}, s{sD}, 0xffff
    s_mul_i32 s{sTMP}, s{sSEG}, {CH}
    s_add_u32 s{sD}, s{sD}, s{sTMP}
    v_add_u32 v{T0}, s{sD}, v0
    v_mov_b32 v{T1}, s{sTMP}
    v_lshlrev_b32 v{vEB}, 5, v{T0 if MOVE else T1}
    v_lshlrev_b32 v{T0}, 2, v{T0}
    v_sub_u32 v{vC}, s{sTMP2}, v0
    v_add_u32 v{vC}, 511, v{vC}
    v_ashrrev_i32 v{vC}, 9, v{vC}
    v_cmp_lt_i32 vcc, 4, v{vC}
    v_add_u32 v{T1}, 4, v{vC}
    s_nop 0
    v_cndmask_b32 v{vC}, v{vC}, v{T1}, vcc
    ''')
    for s in range(7):
        I(f'buffer_load_dword v{pREC+s}, v{T0}, {sr(sWS,4)}, 0 offen')
        if s < 6: I(f'v_add_u32 v{T0}, 2048, v{T0}')
    I('s_waitcnt vmcnt(0) lgkmcnt(0)\ns_barrier')
    validate(0, 12)
    I(f'v_mov_b32 v{vFC}, 0xfc')
    pass_a(0, 12, lambda s: s * 16384)
    I('s_waitcnt lgkmcnt(0)\ns_barrier')
    scan()
    I('s_branch M_BATCH')
    I('M_CODE_END:')

def kd(name, vgpr, sgpr):
    return f'''.amdhsa_kernel {name}
  .amdhsa_next_free_vgpr {vgpr}
  .amdhsa_next_free_sgpr {sgpr}
  .amdhsa_accum_offset {(vgpr+3)//4*4}
  .amdhsa_group_segment_fixed_size 0
  .amdhsa_kernarg_size 80
  .amdhsa_user_sgpr_count 2
  .amdhsa_user_sgpr_kernarg_segment_ptr 1
  .amdhsa_system_sgpr_workgroup_id_x 1
.end_amdhsa_kernel
'''

HEAD = open('gather_scatter__edge_featured_mpnn_egc__graph.s.ref').read().split('; Override')[0]
gen_part()
gen_main()
if OPT['EXTRA']:
    header('nop_kernel'); I('s_endpgm')
out = HEAD + f'''; Two launches: part_kernel bins the edges by destination bucket, the main kernel does the rest.
{'; @launch kernel=nop_kernel grid=(1,1,1) block=(64,1,1) lds=0'+chr(10) if OPT['EXTRA']==1 else ''}; @launch kernel=part_kernel grid=({NCH+5},1,1) block=(512,1,1) lds={K1_LDS}
{'; @launch kernel=nop_kernel grid=(1,1,1) block=(64,1,1) lds=0'+chr(10) if OPT['EXTRA']==2 else ''}; @launch kernel={MAIN} grid=({NB},1,1) block=(512,1,1) lds={M_LDS}
{'; @launch kernel=nop_kernel grid=(1,1,1) block=(64,1,1) lds=0'+chr(10) if OPT['EXTRA']==3 else ''}.amdgcn_target "amdgcn-amd-amdhsa--gfx950"
.text
''' + '\n'.join(L) + '''
.section .rodata,"a"
.p2align 6
''' + kd('part_kernel', 88, 80) + '.p2align 6\n' + kd(MAIN, 248 if (OPT['TRACE'] or OPT['STAMP']) else NV, 102) + ('.p2align 6\n' + kd('nop_kernel', 8, 8) if OPT['EXTRA'] else '')
open(sys.argv[1], 'w').write(out)
```

```python
import sys, struct

OPT = dict(MOVE=0, E_AUX='', K1_LD_AUX='', K1_ST_AUX='sc1', PAY_ST_AUX='', STAMP=0, PRIO=0, NOX=0, NOE=0, CYC=0, PKA=1, PKF=1, NOEV=0, NODMA=0, NODS=0, NOVM=0, TRACE=0, XPF=1, K1SLEEP=0, EXTRA=0, DBG=0, NOHV=0, NOZ=0, NOTR=0, LOOP=2, PB=1, PE=3, PB2=2, WOUT=1, ES=3, EF=3, PPOS=0, P2POS=8, AMP=0, FINE=0, WLATE=1, CPF=1, OFF_ST_AUX='sc1', K1SPLIT=1, NOPK=0, LATE0=0, YP=0, DLY=0, DLYN=0, EPF=0, EPF_AUX='', IDLE=0, IDLEK=99, PRE=0, PREPOS=0, STAG=1, DELTA=3, INL=1, EARLY=1, STEP=0, SMASK=0, NREF=107, SLOPE=3, KMAX=8, WAITM=0, OUT_AUX='sc1', WF_AUX='sc1', B2FIRST=1, INC2=1, FL2=1, K1T=1, ONEB=0, XAE=1, PADW=1, R3=1, FORD=1, K1M=0, YT0=0)
for a in sys.argv[2:]:
    k, v = a.split('=')
    OPT[k] = int(v) if v.lstrip('-').isdigit() else v.replace('_', ' ')
MOVE = OPT['MOVE']

N, E = 12500, 800000
NB, BN = 256, 49
NCH, CH = 250, 3200
REC, OFFS, WF, PAY = 0, 0x400000, 0x480000, 0x800000
WS_BYTES = PAY + E * 32
NFRAG = 34
NLOG2E = struct.unpack('<I', struct.pack('<f', -1.4426950408889634))[0]
MAIN = 'gather_scatter__edge_featured_mpnn_egc__graph_kernel'

L = []
def I(s):
    for ln in s.strip('\n').split('\n'):
        ln = ln.strip()
        if ln:
            L.append(ln if ln.endswith(':') else '    ' + ln)
def r(a, n): return f'v[{a}:{a+n-1}]'
def sr(a, n): return f's[{a}:{a+n-1}]'
def srd(d, base, nbytes):
    I(f'''s_mov_b32 s{d}, s{base}
    s_mov_b32 s{d+1}, s{base+1}
    s_mov_b32 s{d+2}, {nbytes}
    s_mov_b32 s{d+3}, 0x20000''')
def dpp_scan(v):
    for ctl in ('row_shr:1', 'row_shr:2', 'row_shr:4', 'row_shr:8'):
        I(f's_nop 1\nv_add_u32_dpp v{v}, v{v}, v{v} {ctl} row_mask:0xf bank_mask:0xf bound_ctrl:1')
    I(f's_nop 1\nv_add_u32_dpp v{v}, v{v}, v{v} row_bcast:15 row_mask:0xa bank_mask:0xf')
    I(f's_nop 1\nv_add_u32_dpp v{v}, v{v}, v{v} row_bcast:31 row_mask:0xc bank_mask:0xf')
def header(name):
    I(f'.globl {name}\n.p2align 8\n.type {name},@function\n{name}:')

K1_HIST, K1_BASE, K1_SORT, K1_SORTE, K1_EIMG = 0, 1024, 2048, 14848, 27648
K1_LDS = (K1_EIMG + CH * 32) if MOVE else K1_SORTE

def kstamp(i):
    if OPT['STAMP']: I(f's_memrealtime s[{60+2*i}:{61+2*i}]\ns_waitcnt lgkmcnt(0)')
def dbgdump(n, last):
    I(f'''s_waitcnt vmcnt(0)
    s_memrealtime s[{60+2*last}:{61+2*last}]
    s_load_dwordx2 s[52:53], s[0:1], 64
    s_mov_b64 exec, 1
    s_waitcnt lgkmcnt(0)
    s_mov_b32 s54, 256
    s_mov_b32 s55, 0x20000
    v_mov_b32 v1, 0''')
    for i in range(n):
        I(f'''v_mov_b32 v8, s{60+2*i}
        buffer_atomic_umax v8, v1, s[52:55], 0 offen offset:{4*i}
        v_not_b32 v9, s{60+2*i}
        buffer_atomic_umax v9, v1, s[52:55], 0 offen offset:{32+4*i}
        s_waitcnt vmcnt(0)''')
def kdump():
    if OPT['DBG']:
        dbgdump(6, 5); return
    if OPT['STAMP']:
        I(f'''; K1STAMP
        s_waitcnt vmcnt(0)
        s_memrealtime s[70:71]
        s_mov_b64 exec, 1
        s_waitcnt lgkmcnt(0)
        s_add_u32 s52, s24, 0x8100000
        s_addc_u32 s53, s25, 0
        s_mov_b32 s54, 0x100000
        s_mov_b32 s55, 0x20000
        s_lshl_b32 s56, s2, 3
        s_add_u32 s56, s56, s28
        s_lshl_b32 s56, s56, 5
        v_mov_b32 v1, 0''')
        for i in range(8): I(f'v_mov_b32 v{8+i}, s{60+2*min(i,5)}')
        I('''buffer_store_dwordx4 v[8:11], v1, s[52:55], s56 offen
        buffer_store_dwordx4 v[12:15], v1, s[52:55], s56 offen offset:16''')
def gen_part():
    header('part_kernel')
    if OPT['AMP']: I('s_memrealtime s[74:75]')
    kstamp(0)
    D, S, B4, RK, RC, EL = 8, 16, 24, 32, 40, 48
    I(f'''
    s_cmp_ge_u32 s2, {NCH+5}
    s_cbranch_scc1 P_END
    s_load_dwordx4 s[4:7], s[0:1], 16
    s_load_dwordx2 s[24:25], s[0:1], 72
    s_load_dwordx2 s[26:27], s[0:1], 8
    v_lshrrev_b32 v3, 6, v0
    v_lshlrev_b32 v1, 2, v0
    v_readfirstlane_b32 s28, v3
    s_cmp_ge_u32 s2, {NCH}
    s_cbranch_scc1 P_PREP
    v_mov_b32 v2, 0
    ds_write_b32 v1, v2
    v_lshlrev_b32 v4, 4, v0
    v_lshlrev_b32 v5, 3, v0
    v_add_u32 v5, 8192, v5
    v_add_u32 v6, 12288, v1
    s_mul_i32 s29, s2, {CH*4}
    s_waitcnt lgkmcnt(0)
    ''')
    srd(8, 4, E * 4); srd(12, 6, E * 4); srd(16, 24, WS_BYTES)
    if OPT['AMP']:
        I(f'''s_cmp_lg_u32 s2, 0
        s_cbranch_scc1 P_NOAMP
        s_cmp_lg_u32 s28, 0
        s_cbranch_scc1 P_NOAMP
        v_mov_b32 v80, s74
        v_mov_b32 v81, {WF + 0x10000}
        buffer_store_dword v80, v81, s[16:19], 0 offen
P_NOAMP:''')
    ax = OPT['K1_LD_AUX']
    SPL = OPT['K1SPLIT'] and not MOVE
    srcld = f'''buffer_load_dwordx4 {r(S,4)}, v4, s[8:11], s29 offen {ax}
    buffer_load_dwordx2 {r(S+4,2)}, v5, s[8:11], s29 offen {ax}
    buffer_load_dword v{S+6}, v6, s[8:11], s29 offen {ax}'''
    I(f'''
    s_cmp_ge_u32 s28, 2
    s_cbranch_scc1 P_NO6A
    buffer_load_dword v{D+6}, v6, s[12:15], s29 offen {ax}
    {'' if SPL else f'buffer_load_dword v{S+6}, v6, s[8:11], s29 offen {ax}'}
P_NO6A:
    buffer_load_dwordx4 {r(D,4)}, v4, s[12:15], s29 offen {ax}
    buffer_load_dwordx2 {r(D+4,2)}, v5, s[12:15], s29 offen {ax}
    ''')
    if not SPL:
        I(f'''buffer_load_dwordx4 {r(S,4)}, v4, s[8:11], s29 offen {ax}
        buffer_load_dwordx2 {r(S+4,2)}, v5, s[8:11], s29 offen {ax}''')
    if MOVE:
        srd(20, 26, E * 32)
        I(f'''
        v_and_b32 v7, 63, v0
        v_lshlrev_b32 v7, 4, v7
        s_mul_i32 s30, s2, {CH*32}
        s_lshl_b32 s31, s28, 10
        s_add_u32 s30, s30, s31
        s_add_u32 s31, s31, {K1_EIMG}
        ''')
        for n in range(13):
            if n == 12:
                I('s_cmp_ge_u32 s28, 4\ns_cbranch_scc1 P_NO13')
            I(f'''s_mov_b32 m0, s31
            s_add_u32 s31, s31, 8192
            buffer_load_dwordx4 v7, s[20:23], s30 offen {ax} lds
            s_add_u32 s30, s30, 8192''')
        I('P_NO13:')
    sh = 14
    I(f'''
    v_lshlrev_b32 v56, {2+sh}, v0
    v_lshlrev_b32 v57, {1+sh}, v0
    v_add_u32 v57, {2048 << sh}, v57
    v_lshlrev_b32 v58, {sh}, v0
    v_add_u32 v58, {3072 << sh}, v58
    v_mov_b32 v59, 1
    s_mov_b32 s32, {-BN & 0xffffffff}
    s_mov_b32 s33, {1 << sh}
    s_mov_b32 s34, {2 << sh}
    s_mov_b32 s35, {3 << sh}
    s_barrier
    ''')
    if SPL:
        I(f's_cmp_ge_u32 s28, 2\ns_cselect_b32 s37, 0x40000000, 0\nv_or_b32 v6, s37, v6')
        I(srcld)
    kstamp(1)
    I(f's_waitcnt vmcnt({12 if MOVE else (3 if SPL else 0)})')
    kstamp(2)
    def slot(k):
        I(f'''v_mul_u32_u24 v{B4+k}, 21400, v{D+k}
        v_lshrrev_b32 v{B4+k}, 20, v{B4+k}
        v_mad_i32_i24 v{RC+k}, v{B4+k}, s32, v{D+k}
        v_lshlrev_b32 v{B4+k}, 2, v{B4+k}
        ds_add_rtn_u32 v{RK+k}, v{B4+k}, v59''')
    def rec(k):
        eb = 56 if k < 4 else (57 if k < 6 else 58)
        kk = k if k < 4 else (k - 4 if k < 6 else 0)
        ks = '0' if kk == 0 else f's{32+kk}'
        I(f'''v_lshl_or_b32 v{RC+k}, v{RC+k}, 26, v{S+k}
        v_add3_u32 v{RC+k}, v{RC+k}, v{eb}, {ks}''')
        if MOVE:
            I(f'''v_bfe_u32 v{EL+k}, v{RC+k}, 14, 12
            v_lshlrev_b32 v{EL+k}, 5, v{EL+k}''')
    if OPT['EPF'] == 1:
        srd(20, 26, E * 32)
        I(f'''v_lshlrev_b32 v80, 7, v0
        s_mul_i32 s30, s2, {CH*32}
        v_add_u32 v81, 65536, v80
        v_min_u32 v81, {CH*32-128}, v81
        buffer_load_dword v87, v80, s[20:23], s30 offen {OPT['EPF_AUX']}
        buffer_load_dword v87, v81, s[20:23], s30 offen {OPT['EPF_AUX']}''')
    for k in range(6): slot(k)
    I('s_cmp_ge_u32 s28, 2\ns_cbranch_scc1 P_NO6B')
    slot(6)
    I(f'''
P_NO6B:
    v_and_b32 v60, 63, v0
    v_lshlrev_b32 v60, 4, v60
    s_waitcnt lgkmcnt(0)
    s_barrier
    ds_read_b128 v[64:67], v60
    s_waitcnt lgkmcnt(0)
    v_add_u32 v69, v64, v65
    v_add_u32 v70, v69, v66
    v_add_u32 v71, v70, v67
    v_mov_b32 v72, v71
    ''')
    dpp_scan(72)
    I(f'''
    v_sub_u32 v68, v72, v71
    v_add_u32 v71, v68, v70
    v_add_u32 v70, v68, v69
    v_add_u32 v69, v68, v64
    ds_write_b128 v60, v[68:71] offset:{K1_BASE}
    {'' if OPT['K1T'] else 's_waitcnt lgkmcnt(0)'}
    ''')
    for k in range(6):
        I(f'ds_read_b32 v{D+k}, v{B4+k} offset:{K1_BASE}')
    if OPT['K1M']:
        I(f'''s_cmp_lt_u32 s28, 2
        s_cselect_b64 s[44:45], -1, 0
        s_mov_b64 exec, s[44:45]
        ds_read_b32 v{D+6}, v{B4+6} offset:{K1_BASE}
        s_mov_b64 exec, -1''')
    if SPL: I(f's_waitcnt vmcnt({2 if OPT["EPF"] == 1 else 0})')
    I(f'''
    s_cmp_lg_u32 s28, 4
    s_cbranch_scc1 P_NOOFF
    v_lshl_or_b32 v64, v64, 16, v68
    v_lshl_or_b32 v65, v65, 16, v69
    v_lshl_or_b32 v66, v66, 16, v70
    v_lshl_or_b32 v67, v67, 16, v71
    v_lshlrev_b32 v61, 8, v60
    s_lshl_b32 s36, s2, 4
    s_add_u32 s36, s36, {OFFS}
    buffer_store_dwordx4 v[64:67], v61, s[16:19], s36 offen {OPT['OFF_ST_AUX']}
P_NOOFF:
    ''')
    for k in range(7): rec(k)
    if OPT['CPF'] & 1:
        I(f'''s_cmp_lg_u32 s28, 7
        s_cbranch_scc1 P_NOCPF
        s_cmp_ge_u32 s2, 32
        s_cbranch_scc1 P_NOCPF
        s_getpc_b64 s[40:41]
P_PC:
        s_add_u32 s40, s40, {MAIN}-P_PC
        s_addc_u32 s41, s41, 0
        v_and_b32 v82, 63, v0
        v_lshlrev_b32 v82, 7, v82
        v_min_u32 v83, M_CODE_END-{MAIN}-8196, v82
        v_add_u32 v83, 8192, v83
        global_load_dword v86, v82, s[40:41]
        global_load_dword v86, v83, s[40:41]''')
        if OPT['CPF'] & 4:
            I(f'''s_load_dwordx2 s[42:43], s[0:1], 0
            s_load_dwordx2 s[44:45], s[0:1], 56
            v_lshlrev_b32 v82, 12, v82
            v_min_u32 v82, {E*32-4}, v82
            v_mov_b32 v83, 0
            global_load_dword v86, v82, s[26:27]
            s_waitcnt lgkmcnt(0)
            global_load_dword v86, v83, s[42:43]
            global_load_dword v86, v83, s[44:45]''')
        I('P_NOCPF:')
    if OPT['K1M']:
        I('s_waitcnt lgkmcnt(0)')
        for k in range(7):
            if k == 6: I('s_mov_b64 exec, s[44:45]')
            I(f'''v_add_lshl_u32 v{RK+k}, v{RK+k}, v{D+k}, 2
            ds_write_b32 v{RK+k}, v{RC+k} offset:{K1_SORT}''')
        I('s_mov_b64 exec, -1')
    else:
        I(f'''
    s_cmp_ge_u32 s28, 2
    s_cbranch_scc1 P_NO6C
    ds_read_b32 v{D+6}, v{B4+6} offset:{K1_BASE}
    s_waitcnt lgkmcnt(0)
    v_add_lshl_u32 v{RK+6}, v{RK+6}, v{D+6}, 2
    ds_write_b32 v{RK+6}, v{RC+6} offset:{K1_SORT}
    ''')
        if MOVE: I(f'ds_write_b32 v{RK+6}, v{EL+6} offset:{K1_SORTE}')
        I('P_NO6C:\ns_waitcnt lgkmcnt(0)')
        for k in range(6):
            I(f'''v_add_lshl_u32 v{RK+k}, v{RK+k}, v{D+k}, 2
        ds_write_b32 v{RK+k}, v{RC+k} offset:{K1_SORT}''')
            if MOVE: I(f'ds_write_b32 v{RK+k}, v{EL+k} offset:{K1_SORTE}')
    I(f'''
    s_waitcnt lgkmcnt(0)
    ''')
    kstamp(3)
    I(f'''
    {"s_waitcnt vmcnt(0)" if MOVE else ""}
    s_barrier
    ''')
    kstamp(4)
    I(f'''
    ds_read_b128 v[8:11], v4 offset:{K1_SORT}
    v_cmp_gt_u32 vcc, 288, v0
    s_and_saveexec_b64 s[38:39], vcc
    ds_read_b128 v[12:15], v4 offset:{K1_SORT+8192}
    s_mov_b64 exec, s[38:39]
    ''')
    if MOVE:
        I(f'''v_lshrrev_b32 v84, 1, v0
        v_lshlrev_b32 v84, 2, v84
        v_and_b32 v85, 1, v0
        v_lshlrev_b32 v85, 4, v85
        v_add_u32 v85, {K1_EIMG}, v85''')
        for n in range(13):
            I(f'ds_read_b32 v{16+n}, v84 offset:{K1_SORTE + n*1024}')
    I(f'''
    s_waitcnt lgkmcnt({13 if MOVE else 0})
    buffer_store_dwordx4 v[8:11], v4, s[16:19], s29 offen {OPT['K1_ST_AUX']}
    s_add_u32 s36, s29, 8192
    s_and_saveexec_b64 s[38:39], vcc
    s_cbranch_execz P_NOST2
    buffer_store_dwordx4 v[12:15], v4, s[16:19], s36 offen {OPT['K1_ST_AUX']}
P_NOST2:
    s_mov_b64 exec, s[38:39]
    ''')
    if MOVE:
        I(f'''s_mul_i32 s30, s2, {CH*32}
        s_add_u32 s30, s30, {PAY}
        s_waitcnt lgkmcnt(0)''')
        for n in range(12):
            I(f'v_add_u32 v{16+n}, v{16+n}, v85\nds_read_b128 {r(32+4*n,4)}, v{16+n}')
        for n in range(12):
            I(f'''s_waitcnt lgkmcnt({min(15, 11-n)})
            buffer_store_dwordx4 {r(32+4*n,4)}, v4, s[16:19], s30 offen {OPT['PAY_ST_AUX']}
            s_add_u32 s30, s30, 8192''')
        I(f'''s_cmp_ge_u32 s28, 4
        s_cbranch_scc1 P_FIN
        v_add_u32 v28, v28, v85
        ds_read_b128 v[8:11], v28
        s_waitcnt lgkmcnt(0)
        buffer_store_dwordx4 v[8:11], v4, s[16:19], s30 offen {OPT['PAY_ST_AUX']}''')
    I('P_FIN:')
    for _ in range(OPT['K1SLEEP']): I('s_sleep 64')
    kdump()
    I('s_endpgm')
    I(f'''
P_PREP:
    s_load_dwordx4 s[8:11], s[0:1], 32
    s_load_dwordx2 s[12:13], s[0:1], 48
    s_sub_u32 s30, s2, {NCH}
    s_lshl_b32 s30, s30, 3
    s_add_u32 s30, s30, s28
    s_cmp_ge_u32 s30, {NFRAG}
    s_cbranch_scc1 P_END
    s_waitcnt lgkmcnt(0)
    s_mov_b32 s20, s12
    s_mov_b32 s21, s13
    s_mov_b32 s22, {144*128}
    s_mov_b32 s23, 0x20000
    s_mov_b32 s33, {NLOG2E}
    s_mov_b32 s31, s30
    s_mov_b32 s32, 64
    s_cmp_lt_u32 s30, 8
    s_cbranch_scc1 P_GO
    s_cmp_lt_u32 s30, 16
    s_cbranch_scc0 P_C1
    s_sub_u32 s31, s30, 8
    s_mov_b32 s32, 0
    s_mov_b32 s33, 1.0
    s_mov_b32 s20, s10
    s_mov_b32 s21, s11
    s_mov_b32 s22, {64*128}
    s_branch P_GO
P_C1:
    s_cmp_lt_u32 s30, 18
    s_cbranch_scc0 P_C2
    s_sub_u32 s31, s30, 16
    s_lshl_b32 s31, s31, 2
    s_mov_b32 s32, 128
    s_branch P_GO
P_C2:
    s_mov_b32 s33, 1.0
    s_mov_b32 s32, 0
    s_sub_u32 s31, s30, 18
    s_cmp_lt_u32 s30, 26
    s_cbranch_scc1 P_GO
    s_sub_u32 s31, s30, 26
    s_mov_b32 s20, s8
    s_mov_b32 s21, s9
    s_mov_b32 s22, {64*128}
P_GO:
    s_and_b32 s34, s31, 3
    s_lshl_b32 s34, s34, 4
    s_add_u32 s34, s34, s32
    s_lshl_b32 s34, s34, 7
    s_lshr_b32 s35, s31, 2
    s_lshl_b32 s35, s35, 6
    s_add_u32 s34, s34, s35
    v_and_b32 v1, 31, v0
    v_lshlrev_b32 v1, 1, v1
    v_bfe_u32 v2, v0, 5, 1
    v_lshl_or_b32 v1, v2, 10, v1
    ''')
    for t in range(8):
        I(f'buffer_load_ushort v{8+t}, v1, s[20:23], s34 offen offset:{t*128}')
    srd(16, 24, WS_BYTES)
    I(f'''
    v_and_b32 v3, 63, v0
    v_lshlrev_b32 v3, 4, v3
    s_lshl_b32 s36, s30, 10
    s_add_u32 s36, s36, {WF}
    s_waitcnt vmcnt(0)
    ''')
    for t in range(8):
        I(f'v_lshlrev_b32 v{8+t}, 16, v{8+t}\nv_mul_f32 v{8+t}, s33, v{8+t}')
    for t in range(4):
        I(f'v_cvt_pk_bf16_f32 v{16+t}, v{8+2*t}, v{9+2*t}')
    I(f'''buffer_store_dwordx4 v[16:19], v3, s[16:19], s36 offen {OPT['WF_AUX']}
P_END:
    s_endpgm''')

CNT, FLAG, BASE = 0, 256, 512
XS = 1024
ES = XS + 65536
LX = ES + 16384
LE = LX + 16384
XAT = LE + 16384
AGG = XAT + 14336
M_LDS = AGG + 2*14336
ROWS = XS + 36864
XSENT, ESENT = 0x1FFF80, 0x7FFFFF00
CAP = 4096
NSLOT = 20

WB, WV, WC = 4, 36, 68
XA = 76
Z = 108
H = 140
AF = 156
ACC = 176
IDX = 192
vLX, vLE, vKX0, vKX1, vKE = 197, 198, 199, 200, 201
vRA, vRE = 202, 206
vSCH, vLT = 207, 208
T0, T1, T2 = 209, 210, 211
vC, vEB = 212, 213
vONE = 214
vLA = 215
vINV, vFC = 218, 219
T4 = 216
AF2 = 220
AFE2 = 236
NV = 240
vTR = NV
pREC, pRK, pAD = 76, 96, 116
pD, pA, pW = 136, 152, 168
sX, sE, sWS, sOUT = 8, 12, 16, 20
sW, sT, sTW, sNP, sNC, sNN, sD, sM0X, sM0E, sMASK, sTMP, sTMP2, sMODE, sSEG, sG0 = range(28, 43)
sONE = 44
sSAVE = 46
sOFP = 48
sB = 50
sXR = 51
sBAR = 43

def thr(s): return 8 * (s // 4) + s % 4

def mf(d, a, b, c): return f'v_mfma_f32_32x32x16_bf16 {r(d,16)}, {r(a,4)}, {r(b,4)}, {c}'
def zm(ft, af=None, ae=None):
    if af is None: af = AF
    if ae is None: ae = AF + 16
    out = [mf(Z+16*ft, ae, WC+4*ft, r(XA+16*ft, 16))]
    for k in range(4): out.append(mf(Z+16*ft, af+4*k, WB+16*ft+4*k, r(Z+16*ft, 16)) if not OPT['NOZ'] else 'v_nop\nv_nop')
    return out
def hm(ft, af=None):
    if af is None: af = AF
    out = [mf(H, af, WV+16*ft, '0')]
    for k in range(1, 4): out.append(mf(H, af+4*k, WV+16*ft+4*k, r(H, 16)))
    if OPT['NOHV']: out = ['v_nop\nv_nop'] * 4
    return out
def exps(ft): return [f'v_exp_f32 v{Z+16*ft+i}, v{Z+16*ft+i}' if not OPT['NOTR'] else 'v_nop\nv_nop' for i in range(16)]
def rcps(ft): return [f'v_rcp_f32 v{Z+16*ft+i}, v{Z+16*ft+i}' if not OPT['NOTR'] else 'v_nop\nv_nop' for i in range(16)]
def pkadd(ft):
    if OPT['NOPK']: return ['v_nop'] * 8
    if not OPT['PKA']: return [f'v_add_f32 v{Z+16*ft+i}, 1.0, v{Z+16*ft+i}' for i in range(16)]
    return [f'v_pk_add_f32 {r(Z+16*ft+2*i,2)}, {r(Z+16*ft+2*i,2)}, {sr(sONE,2)}' for i in range(8)]
def pkf(ft):
    if OPT['NOPK']: return ['v_nop'] * 8
    if not OPT['PKF']: return [f'v_fmac_f32 v{ACC+8*ft+2*(i//4)+i%2}, v{Z+16*ft+i}, v{H+i}' for i in range(16)]
    return [f'v_pk_fma_f32 {r(ACC+8*ft+2*(i//2),2)}, {r(Z+16*ft+2*i,2)}, {r(H+2*i,2)}, {r(ACC+8*ft+2*(i//2),2)}' for i in ((0, 2, 4, 6, 1, 3, 5, 7) if OPT['FORD'] else range(8))]
def weave(main, ins):
    out = []
    for i, m in enumerate(main):
        out += ins.get(i, [])
        out.append(m)
    out += ins.get(len(main), [])
    return out

def lds_init():
    I(f'''v_lshlrev_b32 v{T0}, 4, v0
    v_add_u32 v{T0}, {LX}, v{T0}
    v_mov_b32 v{AF}, {XSENT}
    v_mov_b32 v{AF+1}, {XSENT}
    v_mov_b32 v{AF+2}, {XSENT}
    v_mov_b32 v{AF+3}, {XSENT}
    v_mov_b32 v{AF+4}, {ESENT}
    v_mov_b32 v{AF+5}, {ESENT}
    v_mov_b32 v{AF+6}, {ESENT}
    v_mov_b32 v{AF+7}, {ESENT}
    v_and_b32 v{T1}, 127, v0
    v_lshlrev_b32 v{T1}, 2, v{T1}
    v_mov_b32 v{T2}, 0
    ds_write_b128 v{T0}, {r(AF,4)}
    ds_write_b128 v{T0}, {r(AF,4)} offset:8192
    ds_write_b128 v{T0}, {r(AF+4,4)} offset:16384
    ds_write_b128 v{T0}, {r(AF+4,4)} offset:24576
    ds_write_b32 v{T1}, v{T2}''')

def pEO(s): return AF2 + s if s < 16 else 184 + s - 16
def sVM(s): return 68 + 2 * (s % 16)
def validate(lo, hi):
    for s in range(lo, hi): I(f'v_cmp_lt_i32 {sr(sVM(s),2)}, {thr(s)}, v{vC}')
def pass_a(lo, hi, estride, mid=None):
    for s in range(lo, hi):
        I(f'v_and_b32_sdwa v{pAD+s}, v{vFC}, v{pREC+s} dst_sel:DWORD dst_unused:UNUSED_PAD src0_sel:DWORD src1_sel:BYTE_3')
    for s in range(lo, hi):
        I(f'''s_mov_b64 exec, {sr(sVM(s),2)}
        ds_add_rtn_u32 v{pRK+s}, v{pAD+s}, v{vONE}''')
    I('s_mov_b64 exec, -1')
    if mid: mid()
    for s in range(lo, hi):
        if MOVE:
            I(f'v_add_u32 v{pEO(s)}, {estride(s)}, v{vEB}')
        else:
            I(f'''v_bfe_u32 v{pEO(s)}, v{pREC+s}, 14, 12
            v_lshl_add_u32 v{pEO(s)}, v{pEO(s)}, 5, v{vEB}''')
        I(f'v_alignbit_b32 v{pREC+s}, v{pREC+s}, v{pREC+s}, 25')

def scan():
    I(f'''v_lshlrev_b32 v{T0}, 2, v2
    ds_read_b32 v{T1}, v{T0}
    v_mov_b32 v{T2}, {FLAG}
    ds_read_b32 v{IDX}, v{T2}
    s_waitcnt lgkmcnt(0)
    v_add_u32 v{IDX+2}, s{sW}, v{T1}
    v_add_u32 v{T1}, 7, v{T1}
    v_and_b32 v{T1}, -8, v{T1}
    v_readfirstlane_b32 s{sTMP2}, v{IDX}
    v_mov_b32 v{T2}, v{T1}''')
    dpp_scan(T2)
    I(f'''v_sub_u32 v{T1}, v{T2}, v{T1}
    v_readlane_b32 s{sTMP}, v{T2}, 63
    v_add_u32 v{IDX+3}, {LX//4}, v{T1}
    ds_write_b32 v{T0}, v{IDX+3} offset:{BASE}''')
def pad_write():
    I(f'''v_add_u32 v{IDX+4}, v{T1}, v{IDX+2}
    v_add_u32 v{T0}, s{sTMP}, v2
    s_add_u32 s52, s{sTMP}, 31
    s_and_b32 s52, s52, -32
    s_cmp_eq_u32 s{sW}, 7
    s_cselect_b64 vcc, -1, 0
    v_mov_b32 v{IDX+2}, s52
    v_cndmask_b32 v{IDX+4}, v{IDX+4}, v{T0}, vcc
    v_cndmask_b32 v{T2}, v{T2}, v{IDX+2}, vcc
    v_mov_b32 v{T0}, {XSENT}
    v_cmp_lt_u32 vcc, v{IDX+4}, v{T2}
    v_mov_b32 v{T1}, {ESENT}
    v_lshlrev_b32 v{IDX+4}, 2, v{IDX+4}
    v_add_u32 v{IDX+4}, {LX}, v{IDX+4}
    s_mov_b64 exec, vcc
    ds_write2st64_b32 v{IDX+4}, v{T0}, v{T1} offset1:64
    s_mov_b64 exec, -1''')
def pass_b1(lo, hi):
    for s in range(lo, hi):
        I(f'''s_mov_b64 exec, {sr(sVM(s),2)}
        ds_read_b32 v{pAD+s}, v{pAD+s} offset:{BASE}''')
    I('s_mov_b64 exec, -1')
def pass_b2(lo, hi):
    for s in range(lo, hi): I(f'v_add_lshl_u32 v{pRK+s}, v{pRK+s}, v{pAD+s}, 2')
    for s in range(lo, hi):
        I(f'''s_mov_b64 exec, {sr(sVM(s),2)}
        ds_write2st64_b32 v{pRK+s}, v{pREC+s}, v{pEO(s)} offset1:64''')
    I('s_mov_b64 exec, -1')

def dma_tile(ix, xm0, em0, xoff, eoff):
    g = []
    for q in range(4):
        g.append([f's_add_u32 m0, s{xm0}, {xoff + q*1024}',
                  f'v_and_or_b32 v{ix+q}, v{ix+q}, s{sMASK}, v{vKX0 if q % 2 == 0 else vKX1}',
                  f'buffer_load_dwordx4 v{ix+q}, {sr(sX,4)}, 0 offen lds'])
    g.append([f's_add_u32 m0, s{em0}, {eoff}',
              f'v_add_u32 v{ix+4}, v{ix+4}, v{vKE}',
              f'buffer_load_dwordx4 v{ix+4}, {sr(sE,4)}, 0 offen {OPT["E_AUX"]} lds'])
    return g

def flush_j(j, sn):
    I(f'''v_add_f32 v{T1}, v{ACC+2*j}, v{ACC+2*j+1}
    v_add_f32 v{T2}, v{ACC+8+2*j}, v{ACC+8+2*j+1}
    s_bfe_u32 s{sTMP}, s{sn}, {(6 << 16) | (8*j)}
    s_lshl_b32 s{sTMP}, s{sTMP}, 9
    v_permlane32_swap_b32 v{T1}, v{T2}
    v_add_u32 v{T0}, s{sTMP}, v{vLA}
    v_mov_b64 {r(ACC+2*j,2)}, 0
    v_add_f32 v{T1}, v{T1}, v{T2}
    v_mov_b64 {r(ACC+8+2*j,2)}, 0
    v_cvt_f64_f32 {r(T4,2)}, v{T1}
    ds_add_f64 v{T0}, {r(T4,2)}''')
def xa_half(j, sn, ft):
    I(f'''s_bfe_u32 s{sTMP}, s{sn}, {(6 << 16) | (8*j)}
    s_lshl_b32 s{sTMP}, s{sTMP}, 8
    v_add_u32 v{T0}, s{sTMP}, v{vLT}
    ds_read2_b32 {r(XA+16*ft+4*j,2)}, v{T0} offset0:{32*ft} offset1:{32*ft}
    ds_read2_b32 {r(XA+16*ft+4*j+2,2)}, v{T0} offset0:{32*ft} offset1:{32*ft}''')
def xa_j(j, sn):
    I(f'''s_bfe_u32 s{sTMP}, s{sn}, {(6 << 16) | (8*j)}
    s_lshl_b32 s{sTMP}, s{sTMP}, 8
    v_add_u32 v{T0}, s{sTMP}, v{vLT}
    ds_read2_b32 {r(XA+4*j,2)}, v{T0}
    ds_read2_b32 {r(XA+4*j+2,2)}, v{T0}
    ds_read2_b32 {r(XA+16+4*j,2)}, v{T0} offset0:32 offset1:32
    ds_read2_b32 {r(XA+16+4*j+2,2)}, v{T0} offset0:32 offset1:32''')

def TR(k):
    if not OPT['TRACE']: return ''
    return f'''s_memtime s[76:77]
    s_memrealtime s[78:79]
    s_waitcnt lgkmcnt(0)
    s_mov_b32 m0, s{sT}
    s_nop 0
    v_writelane_b32 v{vTR+k}, s76, m0
    s_add_u32 m0, m0, 32
    s_nop 0
    v_writelane_b32 v{vTR+k}, s78, m0'''
vST = 244
def putstamp(i, ins='s_memrealtime'):
    I(f'{ins} s[100:101]\ns_waitcnt lgkmcnt(0)\nv_writelane_b32 v{vST}, s100, {i}')
def fstamp(i):
    if OPT['STAMP'] and OPT['FINE']: putstamp(i)
def stamp(i):
    if OPT['AMP'] == 10 + i: I('s_memrealtime s[100:101]\ns_waitcnt lgkmcnt(0)')
    if not OPT['STAMP']: return
    if OPT['FINE'] and i not in (0,): return
    if OPT['CYC'] == 2:
        if i in (1, 2): return
        if i in (4, 5): putstamp(i - 3, 's_memtime')
    putstamp(i)

WBASE = XS + 32768
def frag_off(f):
    if f < 16: return (f // 4) * 8192 + 4096 + (f % 4) * 1024
    return ES + (4 + f - 16) * 2048 + 1024 - WBASE
def row_lds(k): return XS + (4 + k // 4) * 8192 + (k % 4) * 1024

def burn(pos):
    if not OPT['PRE'] or OPT['PREPOS'] != pos: return
    I(f's_mov_b32 s{sTW}, 0x9E3779B1')
    for k in range(8):
        I(f'v_add_u32 v{4+k}, {k*977+13}, v0\nv_mul_lo_u32 v{4+k}, v{4+k}, s{sTW}\nv_and_b32 v{4+k}, 0xbe7fbe7f, v{4+k}\nv_or_b32 v{4+k}, 0x3c003c00, v{4+k}')
    I(f's_mov_b32 s{sTW}, {OPT["PRE"]}\nM_BURN:')
    for k in range(4):
        I(mf(16, 4, 8, '0') if k % 2 == 0 else mf(32, 8, 4, '0'))
    I(f's_sub_u32 s{sTW}, s{sTW}, 1\ns_cmp_lg_u32 s{sTW}, 0\ns_cbranch_scc1 M_BURN')
def bvc():
    return f'''s_add_u32 m0, s{sNP}, {WBASE+4096}
    s_add_u32 s{sTMP}, s{sNC}, 8192
    buffer_load_dwordx4 v{IDX+1}, {sr(sWS,4)}, s{sNC} offen lds
    s_add_u32 m0, s{sNP}, {WBASE+4096+16384}
    s_cmp_ge_u32 s{sW}, 2
    buffer_load_dwordx4 v{IDX+1}, {sr(sWS,4)}, s{sTMP} offen lds
    s_cbranch_scc1 M_NOW4
    s_add_u32 m0, s{sM0E}, {4*2048+1024}
    s_add_u32 s{sTMP}, s{sNC}, {16*1024}
    buffer_load_dwordx4 v{IDX+1}, {sr(sWS,4)}, s{sTMP} offen lds
M_NOW4:'''
OUT = []
def xa_table():
    I(f's_cmp_ge_u32 s{sW}, 4\ns_cbranch_scc1 M_ADONE')
    for k in range(16):
        if k == 12: I(f's_cmp_lg_u32 s{sG0}, 0\ns_cbranch_scc1 M_ADONE')
        I(f'v_mul_f32 v{pD+k}, s{sD}, v{pD+k}\nds_write_b32 v{vINV}, v{pD+k} offset:{(8*(k//4)+k%4)*256}')
    I('M_ADONE:')
def kcalc():
    if not OPT['NREF']:
        return f'''s_lshr_b32 s59, s2, 3
    s_and_b32 s59, s59, {OPT['SMASK']}
    s_mul_i32 s59, s59, {OPT['STEP']}'''
    return f'''s_lshr_b32 s59, s{sTMP}, 5
    s_min_u32 s59, s59, {OPT['NREF']}
    s_sub_u32 s59, {OPT['NREF']}, s59
    s_mul_i32 s59, s59, {OPT['SLOPE']}
    s_lshr_b32 s59, s59, 2
    s_min_u32 s59, s59, {OPT['KMAX']}'''
def init0():
    lds_init()
    I(f'''v_add_u32 v{T0}, {AGG-LX}, v{T0}
    v_mov_b64 {r(AF+8,2)}, 0
    v_mov_b64 {r(AF+10,2)}, 0
    s_cmp_lg_u32 s{sW}, 0
    ds_write_b128 v{T0}, {r(AF+8,4)}
    ds_write_b128 v{T0}, {r(AF+8,4)} offset:8192
    ds_write_b128 v{T0}, {r(AF+8,4)} offset:16384
    s_cbranch_scc1 M_NOZ3
    ds_write_b128 v{T0}, {r(AF+8,4)} offset:24576
M_NOZ3:''')
def cnt_zero():
    I(f'''v_and_b32 v{T1}, 127, v0
    v_lshlrev_b32 v{T1}, 2, v{T1}
    v_mov_b32 v{T2}, 0
    ds_write_b32 v{T1}, v{T2}''')
def init_first():
    I(f'''v_lshlrev_b32 v{T0}, 4, v0
    v_add_u32 v{T0}, {AGG}, v{T0}
    v_mov_b64 {r(AF+8,2)}, 0
    v_mov_b64 {r(AF+10,2)}, 0
    s_cmp_lg_u32 s{sW}, 0
    ds_write_b128 v{T0}, {r(AF+8,4)}
    ds_write_b128 v{T0}, {r(AF+8,4)} offset:8192
    ds_write_b128 v{T0}, {r(AF+8,4)} offset:16384
    s_cbranch_scc1 M_NOZ3
    ds_write_b128 v{T0}, {r(AF+8,4)} offset:24576
M_NOZ3:''')
    cnt_zero()
def evchk(kind, p, sn):
    if OPT['NOEV']: return ''
    return '\n'.join(f's_bitcmp1_b32 s{sn}, {8*j+6}\ns_cbranch_scc1 M_{kind}{p}{j}\nM_{kind}R{p}{j}:' for j in range(4))
def gen_main():
    header(MAIN)
    if OPT['AMP']: I('s_memrealtime s[74:75]\ns_waitcnt lgkmcnt(0)\ns_mov_b32 s3, s74')
    stamp(0)
    I(f"""
    s_cmp_ge_u32 s2, {NB}
    s_cbranch_scc1 M_END
    """)
    burn(0)
    I(f"""
    s_load_dwordx2 s[26:27], s[0:1], 72
    s_load_dwordx4 s[4:7], s[0:1], 0
    s_load_dwordx2 s[24:25], s[0:1], 56
    v_lshrrev_b32 v1, 6, v0
    v_and_b32 v2, 63, v0
    v_readfirstlane_b32 s{sW}, v1
    s_and_b32 s{sB}, s2, 7
    s_lshl_b32 s{sB}, s{sB}, 5
    s_lshr_b32 s{sTMP}, s2, 3
    s_add_u32 s{sB}, s{sB}, s{sTMP}
    v_lshrrev_b32 v3, 1, v0
    v_lshlrev_b32 v{IDX}, 4, v3
    v_lshlrev_b32 v{IDX+1}, 4, v2
    s_lshr_b32 s{sD}, s{sB}, 2
    s_lshl_b32 s{sD}, s{sD}, 10
    s_and_b32 s{sTMP}, s{sB}, 3
    s_add_u32 s{sD}, s{sD}, s{sTMP}
    s_lshl_b32 s{sD}, s{sD}, 2
    s_add_u32 s{sD}, s{sD}, {OFFS}
    s_mov_b32 s{sWS+2}, {WS_BYTES}
    s_mov_b32 s{sWS+3}, 0x20000
    s_lshr_b32 s{sTMP}, s{sW}, 2
    s_lshl_b32 s{sTMP}, s{sTMP}, 13
    s_and_b32 s{sTMP2}, s{sW}, 3
    s_lshl_b32 s{sTMP2}, s{sTMP2}, 10
    s_add_u32 s{sG0}, s{sTMP}, s{sTMP2}
    s_lshl_b32 s{sTMP2}, s{sW}, 10
    s_add_u32 s{sTMP2}, s{sTMP2}, {WF}
    """)
    if OPT['PADW']: init_first()
    I(f"""
    s_waitcnt lgkmcnt(0)
    s_mov_b32 s{sWS}, s26
    s_mov_b32 s{sWS+1}, s27
    s_add_u32 m0, s{sG0}, {XS}
    buffer_load_dword v{vC}, v{IDX}, {sr(sWS,4)}, s{sD} offen
    s_add_u32 s{sTMP}, s{sTMP2}, {18*1024}
    buffer_load_dwordx4 v{IDX+1}, {sr(sWS,4)}, s{sTMP} offen lds
    s_add_u32 m0, s{sG0}, {XS+16384}
    s_add_u32 s{sTMP}, s{sTMP2}, {26*1024}
    buffer_load_dwordx4 v{IDX+1}, {sr(sWS,4)}, s{sTMP} offen lds
    s_mov_b32 s{sNP}, s{sG0}
    s_mov_b32 s{sNC}, s{sTMP2}
    {'' if OPT['WLATE'] else bvc()}
    v_lshrrev_b32 v{IDX+2}, 4, v2
    s_lshl_b32 s{sTMP}, s{sW}, 2
    v_add_u32 v{IDX+2}, s{sTMP}, v{IDX+2}
    v_xor_b32 v{IDX+2}, v{IDX+2}, v2
    v_and_b32 v{IDX+2}, 7, v{IDX+2}
    v_lshlrev_b32 v{IDX+2}, 4, v{IDX+2}
    v_lshrrev_b32 v{IDX+3}, 3, v2
    v_lshl_or_b32 v{IDX+2}, v{IDX+3}, 7, v{IDX+2}
    """)
    srd(sX, 4, N * 128)
    I(f"""
    s_cmp_ge_u32 s{sW}, 7
    s_cbranch_scc1 {'M_CPF' if OPT['CPF'] & 2 else 'M_NOROW'}
    s_lshl_b32 s{sTMP}, s{sW}, 10
    s_mul_i32 s{sTMP2}, s{sB}, {BN*128}
    s_add_u32 m0, s{sG0}, {XS+32768}
    s_add_u32 s{sTMP2}, s{sTMP2}, s{sTMP}
    buffer_load_dwordx4 v{IDX+2}, {sr(sX,4)}, s{sTMP2} offen lds
M_NOROW:
    """)
    if OPT['EARLY'] and not OPT['PADW']: init0()
    I(f"""
    s_add_u32 s{sOFP}, s26, s{sD}
    s_addc_u32 s{sOFP+1}, s27, 0
    v_cmp_gt_u32 vcc, {NCH}, v3
    v_mul_u32_u24 v{T1}, {CH}, v3
    v_and_b32 v{T2}, 1, v0
    v_lshlrev_b32 v{T2}, 2, v{T2}
    s_lshr_b32 s{sTMP}, s2, 3
    s_mul_i32 s{sTMP}, s{sTMP}, {391*128}
    v_min_u32 v1, 390, v0
    v_lshlrev_b32 v1, 7, v1
    s_mov_b32 s{sNN}, s{sTMP}
    s_waitcnt vmcnt({2 if OPT['WLATE'] else 4})
    v_cndmask_b32 v{vC}, 0, v{vC}, vcc
    v_and_b32 v{T0}, 0xffff, v{vC}
    v_lshrrev_b32 v{vC}, 16, v{vC}
    v_add3_u32 v{T0}, v{T0}, v{T1}, v{T2}
    v_cmp_lt_u32 {sr(sSAVE,2)}, {2*NSLOT}, v{vC}
    v_sub_u32 v{vC}, v{vC}, v{T2}
    v_lshlrev_b32 v{vEB}, 5, v{T0 if MOVE else T1}
    v_lshlrev_b32 v{T0}, 2, v{T0}
    v_cmp_lt_i32 vcc, 16, v{vC}
    v_cmp_lt_i32 {sr(52,2)}, 24, v{vC}
    v_cmp_lt_i32 {sr(54,2)}, 32, v{vC}
    buffer_load_dwordx4 {r(pREC,4)}, v{T0}, {sr(sWS,4)}, 0 offen
    buffer_load_dwordx4 {r(pREC+4,4)}, v{T0}, {sr(sWS,4)}, 0 offen offset:32
    s_cmp_lg_u64 {sr(54,2)}, 0
    s_cselect_b32 s{sXR}, 2, 0
    s_cmp_eq_u64 {sr(52,2)}, 0
    s_cbranch_scc1 M_RL3
    s_or_b32 s{sXR}, s{sXR}, 1
    buffer_load_dwordx4 {r(pREC+12,4)}, v{T0}, {sr(sWS,4)}, 0 offen offset:96
    buffer_load_dwordx4 {r(pREC+16,4)}, v{T0}, {sr(sWS,4)}, 0 offen offset:128
M_RL3:
    s_or_b64 vcc, vcc, 1
    s_mov_b64 exec, vcc
    buffer_load_dwordx4 {r(pREC+8,4)}, v{T0}, {sr(sWS,4)}, 0 offen offset:64
    s_mov_b64 exec, -1
    """)
    stamp(1)
    burn(1)
    if not OPT['EARLY'] and not OPT['PADW']: init0()
    if MOVE:
        I(f"""s_add_u32 s{sE}, s26, {PAY}
        s_addc_u32 s{sE+1}, s27, 0
        s_mov_b32 s{sE+2}, {E*32}
        s_mov_b32 s{sE+3}, 0x20000""")
    else:
        srd(sE, 6, E * 32)
    srd(sOUT, 24, N * 128)
    I(f"""
    v_lshlrev_b32 v{T0}, 4, v2
    s_lshr_b32 s{sTMP}, s{sW}, 2
    s_lshl_b32 s{sTMP}, s{sTMP}, 1
    s_and_b32 s{sTMP2}, s{sW}, 1
    s_add_u32 s{sTMP}, s{sTMP}, s{sTMP2}
    s_lshl_b32 s{sTMP}, s{sTMP}, 13
    s_add_u32 s{sTMP}, s{sTMP}, {XS}
    v_add_u32 v{IDX+2}, s{sTMP}, v{T0}
    v_and_b32 v{T1}, 31, v2
    v_lshlrev_b32 v{vLT}, 2, v{T1}
    v_add_u32 v{vLT}, {XAT}, v{vLT}
    v_lshrrev_b32 v{T2}, 5, v2
    v_bfe_u32 v{IDX}, v2, 1, 3
    v_xor_b32 v{IDX}, v{IDX}, v{T2}
    s_bfe_u32 s{sG0}, s{sW}, 0x10001
    s_lshl_b32 s{sTMP2}, s{sG0}, 13
    s_add_u32 s{sTMP}, s{sTMP2}, {row_lds(0)}
    v_lshlrev_b32 v{T1}, 7, v{T1}
    v_add_u32 v{T1}, s{sTMP}, v{T1}
    s_and_b32 s{sD}, s{sW}, 1
    s_lshl_b32 s{sD}, s{sD}, 7
    s_add_u32 s{sTMP2}, s{sTMP2}, s{sD}
    v_lshlrev_b32 v{T2}, 10, v{T2}
    v_add3_u32 v{T2}, v{T2}, v{vLT}, s{sTMP2}
    s_mov_b32 s{sD}, {NLOG2E}
    """)
    for s in range(4):
        I(f"""v_xor_b32 v{AF2+s}, {2*s}, v{IDX}
        v_lshl_add_u32 v{AF2+s}, v{AF2+s}, 4, v{T1}""")
    I(f"""
    v_mov_b32 v{vONE}, 1
    v_mov_b32 v{vFC}, 0xfc
    v_mov_b32 v{vINV}, v{T2}
    """)
    validate(0, 12)
    I('s_waitcnt vmcnt(3) lgkmcnt(0)\ns_barrier')
    if OPT['XPF'] == 2: I(f'buffer_load_dword v1, v1, {sr(sX,4)}, s{sNN} offen')
    for s in range(4):
        I(f'ds_read_b128 {r(pW+4*s,4)}, v{IDX+2} offset:{s*1024}\nds_read_b128 {r(pA+4*s,4)}, v{AF2+s}')
    for f in range(0 if OPT['WLATE'] else 18):
        I(f'ds_read_b128 {r(WB+4*f,4)}, v{IDX+1} offset:{frag_lds(f)}')
    I(f"""
    s_cmp_eq_u64 {sr(sSAVE,2)}, 0
    s_cbranch_scc1 M_NOFLAG
    v_mov_b32 v{T1}, {FLAG}
    ds_write_b32 v{T1}, v{vONE}
M_NOFLAG:
    """)
    if OPT['XAE']:
        I('s_waitcnt lgkmcnt(0)')
        I(mf(pD, pA, pW, '0'))
        for k in range(1, 4): I(mf(pD, pA+4*k, pW+4*k, r(pD, 16)))
    I(f"""
    s_mov_b32 s{sMASK}, {XSENT}
    s_mov_b32 s{sONE}, 1.0
    s_mov_b32 s{sONE+1}, 1.0
    s_mov_b32 s{sMODE}, 0
    s_lshl_b32 s{sM0X}, s{sW}, 13
    s_add_u32 s{sM0X}, s{sM0X}, {XS}
    s_lshl_b32 s{sM0E}, s{sW}, 11
    s_add_u32 s{sM0E}, s{sM0E}, {ES}
    """)
    if OPT['XAE']:
        I('s_nop 3')
        xa_table()
        I('s_waitcnt vmcnt(0)')
    else: I(f"s_waitcnt vmcnt({1 if OPT['XPF'] == 2 else 0}) lgkmcnt(0)")
    stamp(2)
    fs = lambda s: thr(s) * 32
    fstamp(1)
    def mid():
        if not OPT['XAE']: I(mf(pD, pA, pW, '0'))
        if OPT['WLATE']: I(bvc())
        if OPT['XPF'] == 1:
            I(f'buffer_load_dword v1, v1, {sr(sX,4)}, s{sNN} offen')
        for k in range(1, 4 if not OPT['XAE'] else 0): I(mf(pD, pA+4*k, pW+4*k, r(pD, 16)))
    pass_a(0, 12, fs, mid)
    if not OPT['XAE']: xa_table()
    fstamp(2)
    I(f's_cmp_eq_u32 s{sXR}, 0\ns_cbranch_scc1 M_RAR')
    validate(12, 16)
    pass_a(12, 16, fs)
    I(f's_cmp_ge_u32 s{sXR}, 2\ns_cbranch_scc1 M_RA\nM_RAR:')
    I('s_waitcnt lgkmcnt(0)\ns_barrier')
    fstamp(3)
    scan()
    fstamp(4)
    I(f"""
    s_cmp_gt_u32 s{sTMP}, {CAP}
    s_cbranch_scc1 M_SLOW
    s_cmp_lg_u32 s{sTMP2}, 0
    s_cbranch_scc1 M_SLOW
    s_cmp_eq_u32 s{sXR}, 0
    s_cbranch_scc1 M_BATCH
    s_cmp_ge_u32 s{sXR}, 2
    s_cbranch_scc1 M_RB
M_RBR:
    """)
    pass_b1(12, 16)
    I('s_waitcnt lgkmcnt(0)')
    pass_b2(12, 16)
    I(f'''
M_BATCH:
    ''')
    pass_b1(0, 12)
    if OPT['PADW'] == 1: pad_write()
    if OPT['B2FIRST']:
        I(f'''
    v_lshrrev_b32 v{vKE}, 4, v2
    v_xor_b32 v{vKE}, v{vKE}, v2
    v_and_b32 v{vKX0}, 7, v{vKE}
    v_lshlrev_b32 v{vKX0}, 4, v{vKX0}
    v_xor_b32 v{vKX1}, 64, v{vKX0}
    v_and_b32 v{vKE}, 1, v{vKE}
    v_lshlrev_b32 v{vKE}, 4, v{vKE}
    s_waitcnt lgkmcnt(0)''')
        pass_b2(0, 12)
        if OPT['PADW'] == 2: pad_write()
    I(f'''
    s_add_u32 s{sTMP}, s{sTMP}, 31
    s_lshr_b32 s52, s{sTMP}, 7
    s_bfe_u32 s53, s{sTMP}, 0x20005
    {kcalc()}
    s_add_u32 s{sBAR}, s59, {OPT['STAG']+1}
    s_add_u32 s59, s59, {OPT['DELTA']}
    s_max_u32 s54, s52, s59
    s_sub_u32 s54, s54, s59
    s_lshr_b32 s54, s54, 1
    s_add_u32 s55, s52, 1
    s_max_u32 s56, s55, s59
    s_sub_u32 s56, s56, s59
    s_lshr_b32 s56, s56, 1
    s_sub_u32 s52, s52, s54
    s_sub_u32 s55, s55, s56
    s_mul_i32 s57, s55, s53
    s_sub_u32 s58, 4, s53
    s_mul_i32 s58, s58, s52
    s_add_u32 s57, s57, s58
    s_cmp_ge_u32 s{sW}, 4
    s_cselect_b32 s52, s54, s52
    s_cselect_b32 s55, s56, s55
    s_cselect_b32 s57, s57, 0
    s_cselect_b32 s{sBAR}, 0, s{sBAR}
    s_and_b32 s58, s{sW}, 3
    s_cmp_lt_u32 s58, s53
    s_cselect_b32 s{sTW}, s55, s52
    s_min_u32 s53, s53, s58
    s_sub_u32 s58, s58, s53
    s_mul_i32 s53, s53, s55
    s_mul_i32 s58, s58, s52
    s_add_u32 s{sG0}, s57, s53
    s_add_u32 s{sG0}, s{sG0}, s58
    s_lshl_b32 s{sG0}, s{sG0}, 7
    s_add_u32 s{sG0}, s{sG0}, {LX}
    s_lshl_b32 s{sTMP2}, s{sTW}, 5
    v_lshrrev_b32 v{T0}, 4, v2
    v_mul_u32_u24 v{T0}, s{sTMP2}, v{T0}
    v_bfe_u32 v{T1}, v2, 3, 1
    v_lshl_add_u32 v{T0}, v{T1}, 4, v{T0}
    v_add_u32 v{vLX}, s{sG0}, v{T0}
    v_bfe_u32 v{T0}, v2, 3, 2
    v_mul_u32_u24 v{T0}, s{sTMP2}, v{T0}
    v_bfe_u32 v{T1}, v2, 2, 1
    v_lshl_add_u32 v{T0}, v{T1}, 4, v{T0}
    v_lshrrev_b32 v{T1}, 5, v2
    v_lshl_add_u32 v{T0}, v{T1}, 3, v{T0}
    v_bfe_u32 v{T1}, v2, 1, 1
    v_lshl_add_u32 v{T0}, v{T1}, 2, v{T0}
    v_add_u32 v{vLE}, s{sG0}, v{T0}
    s_sub_u32 s{sTMP}, s{sTW}, 1
    v_min_u32 v{T0}, s{sTMP}, v2
    v_lshlrev_b32 v{T0}, 5, v{T0}
    v_add_u32 v{T0}, s{sG0}, v{T0}
    v_add_u32 v{T1}, s{sTMP2}, v{T0}
    v_add_u32 v{T2}, s{sTMP2}, v{T1}
    v_add_u32 v{vSCH}, s{sTMP2}, v{T2}
    ''')
    if not OPT['B2FIRST']:
        I(f'''
    v_lshrrev_b32 v{vKE}, 4, v2
    v_xor_b32 v{vKE}, v{vKE}, v2
    v_and_b32 v{vKX0}, 7, v{vKE}
    v_lshlrev_b32 v{vKX0}, 4, v{vKX0}
    v_xor_b32 v{vKX1}, 64, v{vKX0}
    v_and_b32 v{vKE}, 1, v{vKE}
    v_lshlrev_b32 v{vKE}, 4, v{vKE}
    s_waitcnt lgkmcnt(0)''')
        pass_b2(0, 12)
    fstamp(5)
    I(f'''
    s_waitcnt vmcnt({1 if OPT['XPF'] == 1 else 0}) lgkmcnt(0)
    s_barrier
    ''')
    stamp(3)
    if OPT['NOX']: I(f's_mov_b32 s{sX+2}, 0')
    if OPT['NOE']: I(f's_mov_b32 s{sE+2}, 0')
    g0 = dma_tile(Z, sM0X, sM0E, 0, 0)
    g1 = dma_tile(Z+16, sM0X, sM0E, 4096, 1024)
    g1_idx = dma_tile(IDX, sM0X, sM0E, 0, 0)
    I(f"""
    ds_read_b128 {r(Z,4)}, v{vLX}
    ds_read_b32 v{Z+4}, v{vLE} offset:16384
    ds_read_b32 v{T0}, v{T0}
    ds_read_b32 v{T1}, v{T1}
    ds_read_b32 v{T2}, v{T2}
    ds_read_b32 v{vSCH}, v{vSCH}
    ds_read_b128 {r(Z+16,4)}, v{vLX} offset:32
    ds_read_b32 v{Z+20}, v{vLE} offset:{16384+32}
    ds_read_b128 {r(IDX,4)}, v{vLX} offset:64
    ds_read_b32 v{IDX+4}, v{vLE} offset:{16384+64}
    v_lshlrev_b32 v{vFC}, 4, v2
    v_add_u32 v{vFC}, {WBASE}, v{vFC}
    s_cmp_ge_u32 s{sW}, 4
    s_cbranch_scc1 M_NOT0
    s_setprio 1
    s_cmp_eq_u32 s{sTW}, 0
    s_waitcnt lgkmcnt(8)
    s_cbranch_scc1 M_NOT0
    """)
    for g in g0: I('\n'.join(g))
    I(f"""
M_NOT0:
    s_waitcnt lgkmcnt(0)
    v_bfe_u32 v{T0}, v{T0}, 1, 6
    v_bfe_u32 v{T1}, v{T1}, 1, 6
    v_bfe_u32 v{T2}, v{T2}, 1, 6
    v_bfe_u32 v{vSCH}, v{vSCH}, 1, 6
    v_lshl_or_b32 v{T0}, v{T1}, 8, v{T0}
    v_lshl_or_b32 v{T0}, v{T2}, 16, v{T0}
    v_lshl_or_b32 v{vSCH}, v{vSCH}, 24, v{T0}
    v_add_u32 v{vLX}, 96, v{vLX}
    v_mov_b32 v{T0}, v{vSCH}
    v_readfirstlane_b32 s{sNC}, v{vSCH}
    v_add_u32 v{vLE}, {16384+96}, v{vLE}
    v_mov_b32_dpp v{T0}, v{vSCH} wave_shr:1 row_mask:0xf bank_mask:0xf
    s_mov_b32 s{sT}, 1
    v_xor_b32 v{T0}, v{T0}, v{vSCH}
    v_add_u32 v{T0}, 0x3f3f3f3f, v{T0}
    v_and_b32 v{T0}, 0x40404040, v{T0}
    v_or_b32 v{vSCH}, v{vSCH}, v{T0}
    s_mov_b32 s{sNP}, s{sNC}
    """)
    for j in range(4):
        I(f"""s_bfe_u32 s{sTMP}, s{sNC}, {(6 << 16) | (8*j)}
        s_lshl_b32 s{sTMP}, s{sTMP}, 8
        v_add_u32 v{T0}, s{sTMP}, v{vLT}
        ds_read_b32 v{XA+4*j}, v{T0}
        ds_read_b32 v{XA+16+4*j}, v{T0} offset:128""")
    I(f"""
    s_cmp_eq_u32 s{sMODE}, 2
    s_cbranch_scc1 M_NOWT
    """)
    for f in (16, 0, 1, 2, 3, 8, 9, 10, 11, 17, 4, 5, 6, 7, 12, 13, 14, 15):
        I(f'ds_read_b128 {r(WB+4*f,4)}, v{vFC} offset:{frag_off(f)}')
    I(f"""s_cmp_lt_u32 s{sW}, 4
    s_cbranch_scc1 M_TDONE
    s_bfe_u32 s{sXR}, s{sW}, 0x10001
    v_subrev_u32 v{vINV}, {XAT}, v{vINV}
    v_lshlrev_b32 v{vINV}, 1, v{vINV}
    v_add_u32 v{vINV}, {AGG}, v{vINV}
    """)
    for k in range(16):
        if k == 12: I(f's_cmp_lg_u32 s{sXR}, 0\ns_cbranch_scc1 M_TDONE')
        I(f'v_cvt_f64_f32 {r(AF+2*(k%8),2)}, v{pD+k}\nds_add_f64 v{vINV}, {r(AF+2*(k%8),2)} offset:{(8*(k//4)+k%4)*512}')
    I('M_TDONE:')
    j_, i_, h_, g_, t_, u_ = AF2, AF2+1, AF2+2, AF2+3, AF2+4, AF2+5
    I(f"""
    s_lshl_b32 s{sMODE}, s{sMODE}, 1
    v_lshlrev_b32 v{vLA}, 3, v2
    v_add_u32 v{vLA}, {AGG}, v{vLA}
    v_bfe_u32 v{j_}, v2, 3, 2
    v_and_b32 v{i_}, 3, v2
    v_lshrrev_b32 v{h_}, 5, v2
    v_lshrrev_b32 v{t_}, 1, v{j_}
    v_xor_b32 v{g_}, v{t_}, v{j_}
    v_lshrrev_b32 v{u_}, 2, v2
    v_xor_b32 v{g_}, v{g_}, v{u_}
    v_and_b32 v{g_}, 1, v{g_}
    v_xor_b32 v{t_}, v{t_}, v{h_}
    v_lshlrev_b32 v{t_}, 4, v{t_}
    v_lshl_or_b32 v{u_}, v{j_}, 2, v{i_}
    v_lshl_or_b32 v{u_}, v{g_}, 4, v{u_}
    v_lshl_or_b32 v{t_}, v{u_}, 5, v{t_}
    v_add_u32 v{vRE}, s{sM0E}, v{t_}
    v_and_b32 v{t_}, 1, v{i_}
    v_lshl_or_b32 v{u_}, v{g_}, 1, v{t_}
    v_lshlrev_b32 v{u_}, 3, v{u_}
    v_lshl_or_b32 v{u_}, v{j_}, 1, v{u_}
    v_lshrrev_b32 v{i_}, 1, v{i_}
    v_or_b32 v{u_}, v{u_}, v{i_}
    v_lshlrev_b32 v{u_}, 7, v{u_}
    v_add_u32 v{u_}, s{sM0X}, v{u_}
    v_lshl_or_b32 v{t_}, v{t_}, 2, v{j_}
    v_xor_b32 v{t_}, v{t_}, v{h_}
    """)
    for s in range(4):
        I(f"""v_xor_b32 v{g_}, {2*s}, v{t_}
        v_lshl_add_u32 v{vRA+s}, v{g_}, 4, v{u_}""")
    I('M_NOWT:')
    for k in range(8): I(f'v_mov_b64 {r(ACC+2*k,2)}, 0')
    for g in g1: I(g[1])
    for g in dma_tile(IDX, sM0X, sM0E, 0, 0): I(g[1])
    I(f"""
    s_cmp_ge_u32 s{sW}, 4
    s_cbranch_scc1 M_YNG
    s_cmp_eq_u32 s{sTW}, 0
    s_cbranch_scc1 M_BDONE
    s_cmp_lt_u32 s{sTW}, 2
    s_cbranch_scc1 M_W0
    """)
    for g in g1: I(g[0] + '\ns_nop 0\n' + g[2])
    I(f"""s_waitcnt vmcnt(5) lgkmcnt(0)
M_W1:""")
    I(f'ds_read_b128 {r(AF+16,4)}, v{vRE}')
    for s in range(4): I(f'ds_read_b128 {r(AF+4*s,4)}, v{vRA+s}')
    for ft in range(2):
        for j in range(4):
            for i in range(1, 4): I(f'v_mov_b32 v{XA+16*ft+4*j+i}, v{XA+16*ft+4*j}')
    I('s_waitcnt lgkmcnt(0)')
    for m in zm(0): I(m)
    if OPT['ONEB']:
        I(f's_cmp_lt_u32 s{sW}, 4\ns_cbranch_scc1 M_OB1\ns_cmp_lt_u32 s{sTW}, 2\ns_cbranch_scc1 M_OB1')
        for g in g1: I(g[0] + '\ns_nop 0\n' + g[2])
        I(f'M_OB1:\ns_cmp_lt_u32 s{sTW}, 3\ns_cbranch_scc1 M_OB2')
        for g in dma_tile(IDX, sM0X, sM0E, 0, 0): I(g[0] + '\ns_nop 0\n' + g[2])
        I(f'''M_OB2:
        ds_read_b128 {r(IDX,4)}, v{vLX}
        ds_read_b32 v{IDX+4}, v{vLE}
        v_add_u32 v{vLX}, 32, v{vLX}
        v_add_u32 v{vLE}, 32, v{vLE}
        v_readlane_b32 s{sNN}, v{vSCH}, 1
        s_waitcnt lgkmcnt(0)''')
        for g in g1_idx: I(g[1])
    I(f"""s_cmp_eq_u32 s{sBAR}, 0
    s_cbranch_scc1 M_YNG2
    s_nop 7
    s_nop 1
M_GO:""")
    if OPT['WAITM']: I('s_mov_b32 s62, 0')
    OUT.append(lambda: (
        I(f"""M_W0:
        s_waitcnt vmcnt(0) lgkmcnt(0)
        s_branch M_W1
M_YNG:
        s_cmp_eq_u32 s{sTW}, 0
        s_cbranch_scc1 M_YE
        {'s_waitcnt lgkmcnt(0)' + chr(10) + 's_barrier' if OPT['YT0'] else ''}"""),
        [I('\n'.join(g)) for g in g0],
        I(f"""s_branch M_W0
M_YE:
        s_waitcnt lgkmcnt(0)
        s_barrier
        s_branch M_BDONE2
M_YNG2:
        {'' if OPT['YT0'] else 's_barrier'}
        s_cmp_lt_u32 s{sTW}, 2
        s_cbranch_scc1 M_YG"""),
        [I(g[0] + '\ns_nop 0\n' + g[2]) for g in (g1 if not OPT['ONEB'] else [])],
        I('M_YG:\ns_nop 7\ns_branch M_GO')))
    if OPT['DLY'] == 1:
        I(f's_cmp_lt_u32 s{sW}, 4\ns_cbranch_scc1 M_NODLY\ns_sleep {OPT["DLYN"]}\nM_NODLY:')
    if OPT['DLY'] == 2:
        I(f'''s_bfe_u32 s{sTMP}, s2, 0x20003
M_DL:
        s_cmp_eq_u32 s{sTMP}, 0
        s_cbranch_scc1 M_NODLY
        s_sleep {OPT["DLYN"]}
        s_sub_u32 s{sTMP}, s{sTMP}, 1
        s_branch M_DL
M_NODLY:''')
    stamp(4)
    I('.p2align 6')
    for p in range(2 if OPT['ONEB'] else 0):
        nb = 1 - p
        afc, afn = (AF, AF2) if p == 0 else (AF2, AF)
        aec, aen = (AF+16, AFE2) if p == 0 else (AFE2, AF+16)
        PB = OPT['PB']
        g = dma_tile(IDX, sM0X, sM0E, nb*4096, nb*1024)
        I(f'''
M_LOOP{p}:
    {TR(0)}
    {evchk('F', p, sNC)}
    {evchk('X', p, sNN)}
    s_cmp_eq_u32 s{sT}, s{sBAR}
    s_cbranch_scc1 M_SB{p}
M_SBR{p}:
    s_setprio 0
    s_add_u32 s{sTMP}, s{sT}, 1
    s_cmp_lt_u32 s{sTMP}, s{sTW}
    s_cbranch_scc0 M_WZ{p}
    s_waitcnt vmcnt(5)
M_WZR{p}:
        ''')
        I(f'ds_read_b128 {r(aen,4)}, v{vRE} offset:{nb*1024}')
        for s_ in range(4): I(f'ds_read_b128 {r(afn+4*s_,4)}, v{vRA+s_} offset:{nb*4096}')
        I(f'''s_add_u32 s{sTMP}, s{sT}, 2
    s_cmp_lt_u32 s{sTMP}, s{sTW}
    s_waitcnt lgkmcnt(0)
    s_cbranch_scc0 M_ND{p}''')
        for q in range(5): I(g[q][0] + '\ns_nop 0\n' + g[q][2])
        I(f'M_ND{p}:')
        I(f'ds_read_b128 {r(IDX,4)}, v{vLX} offset:{32*p}\nds_read_b32 v{IDX+4}, v{vLE} offset:{32*p}')
        hv = hm(0, afc)
        EF = OPT['EF']
        ins = {1: [f's_setprio {PB}']}
        for k in range(4): ins.setdefault(EF + 3*k, []).append(hv[k])
        ins.setdefault(OPT['P2POS'], []).insert(0, f's_setprio {OPT["PB2"]}')
        I('\n'.join(weave(exps(0), ins)))
        I('\n'.join(pkadd(0)))
        zz = zm(1, afc, aec)
        I('\n'.join(weave(rcps(0), {0: [zz[0]], 3: [zz[1]], 6: [zz[2]], 9: [zz[3]], 12: [zz[4]]})))
        I('\n'.join(pkf(0)))
        hv = hm(1, afc)
        I('\n'.join(weave(exps(1), {0: [hv[0]], 3: [hv[1]], 6: [hv[2]], 9: [hv[3]]})))
        I('\n'.join(pkadd(1)))
        zz = zm(0, afn, aen)
        I('\n'.join(weave(rcps(1), {0: [zz[0]], 3: [zz[1]], 6: [zz[2]], 9: [zz[3]], 12: [zz[4]]})))
        I('\n'.join(pkf(1)))
        I(f'''s_add_u32 s{sT}, s{sT}, 1
    s_mov_b32 s{sNP}, s{sNC}
    s_mov_b32 s{sNC}, s{sNN}
    s_waitcnt lgkmcnt(0)
    v_readlane_b32 s{sNN}, v{vSCH}, s{sT}''')
        for q in range(5): I(g[q][1])
        if p == 1: I(f'v_add_u32 v{vLX}, 64, v{vLX}\nv_add_u32 v{vLE}, 64, v{vLE}')
        I(f's_cmp_le_u32 s{sT}, s{sTW}')
        I('s_cbranch_scc0 M_LEND' if p == 0 else 's_cbranch_scc1 M_LOOP0')
    for p in range(0 if OPT['ONEB'] else 2):
        nb = 1 - p
        afc, afn = (AF, AF2) if p == 0 else (AF2, AF)
        PB = OPT['PB']
        I(f'''
M_LOOP{p}:
    {TR(0)}
    {evchk('F', p, sNC)}
    s_cmp_eq_u32 s{sT}, s{sBAR}
    s_cbranch_scc1 M_SB{p}
M_SBR{p}:
    {'' if OPT['LATE0'] else 's_setprio 0'}
    s_add_u32 s{sTMP}, s{sT}, 1
    s_cmp_lt_u32 s{sTMP}, s{sTW}
    s_cbranch_scc0 M_ND{p}
        ''')
        g = dma_tile(IDX, sM0X, sM0E, p*4096, p*1024)
        I(g[0][0])
        for q in range(5):
            I('s_nop 0' if q == 0 else g[q][0])
            if q > 0: I('s_nop 0')
            I(g[q][2])
        I(f'M_ND{p}:')
        def eblk(ft, extra):
            if OPT['LATE0']: I('s_setprio 0')
            hv = hm(ft, afc)
            ES_, EF = OPT['ES'], OPT['EF']
            ins = {}
            for k in range(4): ins.setdefault(EF + ES_*k, []).append(hv[k])
            if OPT['PPOS'] == 0 and EF == 0: ins[0].append(f's_setprio {PB}')
            else: ins.setdefault(max(1, OPT['PPOS']), []).insert(0, f's_setprio {PB}')
            if OPT['PB2'] >= 0: ins.setdefault(OPT['P2POS'], []).insert(0, f's_setprio {OPT["PB2"]}')
            for k, v in extra.items(): ins.setdefault(k, []).extend(v)
            I('\n'.join(weave(exps(ft), ins)))
        eblk(0, {11: [f'v_readlane_b32 s{sNN}, v{vSCH}, s{sT}']})
        I('\n'.join(pkadd(0)))
        zz = zm(1, afc)
        I('\n'.join(weave(rcps(0), {0: [zz[0]], 3: [zz[1]], 6: [zz[2]], 9: [zz[3]], 12: [zz[4]]})))
        I('\n'.join(pkf(0)))
        I(f'''
    {evchk('X', p, sNN)}
    {'' if OPT['LATE0'] else 's_setprio 0'}
    s_add_u32 s{sTMP}, s{sT}, 1
    s_cmp_lt_u32 s{sTMP}, s{sTW}
    {'s_memtime s[76:77]' if OPT['WAITM'] else ''}
    s_cbranch_scc0 M_WZ{p}
    s_waitcnt vmcnt(5)
M_WZR{p}:
        ''')
        if OPT['WAITM']:
            I('''s_memtime s[78:79]
            s_waitcnt lgkmcnt(0)
            s_sub_u32 s78, s78, s76
            s_add_u32 s62, s62, s78''')
        I(f'ds_read_b128 {r(AF+16,4)}, v{vRE} offset:{nb*1024}')
        for s_ in range(4): I(f'ds_read_b128 {r(afn+4*s_,4)}, v{vRA+s_} offset:{nb*4096}')
        io = 32 * p if OPT['INC2'] else 0
        I(f'ds_read_b128 {r(IDX,4)}, v{vLX} offset:{io}\nds_read_b32 v{IDX+4}, v{vLE} offset:{io}')
        if OPT['WOUT']: I('s_waitcnt lgkmcnt(0)')
        eblk(1, {})
        I('\n'.join(pkadd(1)))
        zz = zm(0, afn)
        if not OPT['WOUT']: I('s_waitcnt lgkmcnt(0)')
        I('\n'.join(weave(rcps(1), {0: [zz[0]], 3: [zz[1]], 6: [zz[2]], 9: [zz[3]], 12: [zz[4]]})))
        I('\n'.join(pkf(1)))
        if OPT['IDLE']:
            I(f's_cmp_gt_u32 s{sT}, {OPT["IDLEK"]}\ns_cbranch_scc1 M_NOIDLE{p}')
            for _ in range(OPT['IDLE']): I(f'v_mov_b32 v{T4}, v{T4}')
            I(f'M_NOIDLE{p}:')
        for q in range(5): I(g[q][1])
        if not OPT['INC2']: I(f'v_add_u32 v{vLX}, 32, v{vLX}\nv_add_u32 v{vLE}, 32, v{vLE}')
        elif p == 1: I(f'v_add_u32 v{vLX}, 64, v{vLX}\nv_add_u32 v{vLE}, 64, v{vLE}')
        I(f'''
    s_mov_b32 s{sNP}, s{sNC}
    s_mov_b32 s{sNC}, s{sNN}
    s_add_u32 s{sT}, s{sT}, 1
    s_cmp_le_u32 s{sT}, s{sTW}''')
        I('s_cbranch_scc0 M_LEND' if p == 0 else 's_cbranch_scc1 M_LOOP0')
    I('M_LEND:')
    I(TR(0))
    I('s_setprio 0')
    if OPT['FL2']:
        for j in range(4):
            I(f'''v_add_f32 v{Z+j}, v{ACC+2*j}, v{ACC+2*j+1}
            v_add_f32 v{Z+4+j}, v{ACC+8+2*j}, v{ACC+8+2*j+1}
            s_bfe_u32 s{52+j}, s{sNP}, {(6 << 16) | (8*j)}
            s_lshl_b32 s{52+j}, s{52+j}, 9''')
        for j in range(4): I(f'v_permlane32_swap_b32 v{Z+j}, v{Z+4+j}\nv_add_u32 v{Z+8+j}, s{52+j}, v{vLA}')
        for j in range(4): I(f'v_add_f32 v{Z+j}, v{Z+j}, v{Z+4+j}')
        for j in range(4): I(f'v_cvt_f64_f32 {r(Z+16+2*j,2)}, v{Z+j}\nds_add_f64 v{Z+8+j}, {r(Z+16+2*j,2)}')
    else:
        for j in range(4): flush_j(j, sNP)
    I(f'''
M_BDONE:
    s_cmp_lt_u32 s{sTW}, s{sBAR}
    s_cbranch_scc0 M_BDONE2
    s_waitcnt lgkmcnt(0)
    s_barrier
M_BDONE2:
    s_setprio 0
    s_cmp_lg_u32 s{sMODE}, 0
    s_cbranch_scc1 M_SNEXT
M_EPI:
    ''')
    stamp(5)
    I(f'''
    s_waitcnt lgkmcnt(0)
    s_barrier
    v_cmp_gt_u32 vcc, {BN*8}, v0
    s_and_saveexec_b64 {sr(sSAVE,2)}, vcc
    s_cbranch_execz M_FIN
    v_lshlrev_b32 v{T0}, 6, v0
    v_add_u32 v{T0}, {AGG}, v{T0}
    ds_read_b128 {r(Z+16,4)}, v{T0}
    ds_read_b128 {r(Z+20,4)}, v{T0} offset:16
    ds_read_b128 {r(Z+24,4)}, v{T0} offset:32
    ds_read_b128 {r(Z+28,4)}, v{T0} offset:48
    s_mov_b32 s{sTMP}, {NLOG2E}
    s_mul_i32 s{sTMP2}, s{sB}, {BN*128}
    v_lshlrev_b32 v{T1}, 4, v0
    s_waitcnt lgkmcnt(0)
    ''')
    for k in range(8): I(f'v_cvt_f32_f64 v{Z+k}, {r(Z+16+2*k,2)}')
    for k in range(8): I(f'v_mul_f32 v{Z+8+k}, s{sTMP}, v{Z+k}')
    for k in range(8): I(f'v_exp_f32 v{Z+8+k}, v{Z+8+k}')
    for k in range(8): I(f'v_add_f32 v{Z+8+k}, 1.0, v{Z+8+k}')
    for k in range(8): I(f'v_rcp_f32 v{Z+8+k}, v{Z+8+k}')
    for k in range(8): I(f'v_mul_f32 v{Z+k}, v{Z+k}, v{Z+8+k}')
    for k in range(4): I(f'v_cvt_pk_bf16_f32 v{Z+16+k}, v{Z+2*k}, v{Z+2*k+1}')
    I(f'buffer_store_dwordx4 {r(Z+16,4)}, v{T1}, {sr(sOUT,4)}, s{sTMP2} offen {OPT["OUT_AUX"]}')
    I('M_FIN:')
    if OPT['AMP']:
        I(f'''s_cmp_lg_u32 s2, 0
        s_cbranch_scc1 M_END
        s_cmp_lg_u32 s{sW}, 0
        s_cbranch_scc1 M_END
        s_waitcnt vmcnt(0)
        s_memrealtime s[60:61]
        s_add_u32 s56, s26, {WF + 0x10000}
        s_addc_u32 s57, s27, 0
        s_load_dword s58, s[56:57], 0
        s_waitcnt lgkmcnt(0)''')
        if OPT['AMP'] == 2: I('s_mov_b32 s60, s3')
        if OPT['AMP'] == 3: I('s_mov_b32 s58, s3')
        if OPT['AMP'] >= 10: I('s_mov_b32 s58, s3\ns_mov_b32 s60, s100')
        I(f'''s_sub_u32 s59, s60, s58
        s_min_u32 s59, s59, 20000
        s_mul_i32 s59, s59, 10
        s_memrealtime s[60:61]
        s_waitcnt lgkmcnt(0)
        s_mov_b32 s58, s60
M_SPIN:
        s_memrealtime s[60:61]
        s_waitcnt lgkmcnt(0)
        s_sub_u32 s62, s60, s58
        s_cmp_lt_u32 s62, s59
        s_cbranch_scc1 M_SPIN''')
    if OPT['DBG']: dbgdump(7, 6)
    elif OPT['STAMP']:
        I('s_mov_b64 exec, -1\ns_waitcnt vmcnt(0)')
        putstamp(6)
        I(f'''v_writelane_b32 v{vST}, s{sTW}, 7
        s_add_u32 s52, s26, 0x8000000
        s_addc_u32 s53, s27, 0
        s_mov_b32 s54, 0x100000
        s_mov_b32 s55, 0x20000
        s_lshl_b32 s56, s2, 3
        s_add_u32 s56, s56, s{sW}
        s_lshl_b32 s56, s56, 5
        v_lshlrev_b32 v1, 2, v2
        s_mov_b64 exec, 0xff
        buffer_store_dword v{vST}, v1, s[52:55], s56 offen''')
        if OPT['TRACE']:
            I(f'''s_mov_b64 exec, -1
            s_lshl_b32 s56, s56, 3
            s_add_u32 s56, s56, 0x20000
            v_lshlrev_b32 v1, 2, v2
            buffer_store_dword v{vTR}, v1, s[52:55], s56 offen''')
    I('M_END:\ns_endpgm')
    for p in range(2):
        for j in range(4 if not OPT['NOEV'] else 0):
            I(f'M_F{p}{j}:\ns_setprio {OPT["PE"]}')
            if OPT['ONEB']: xa_half(j, sNC, 1)
            flush_j(j, sNP)
            I(f's_branch M_FR{p}{j}')
            I(f'M_X{p}{j}:\ns_setprio {OPT["PE"]}')
            if OPT['ONEB']: xa_half(j, sNN, 0)
            else: xa_j(j, sNN)
            I(f's_branch M_XR{p}{j}')
        I(f'M_WZ{p}:\ns_waitcnt vmcnt(0)\ns_branch M_WZR{p}')
        I(f'M_SB{p}:\ns_barrier\ns_branch M_SBR{p}')
    for f in OUT: f()
    if OPT['CPF'] & 2:
        I(f'''M_CPF:
        s_getpc_b64 s[52:53]
M_PC:
        s_sub_u32 s52, s52, M_PC-{MAIN}
        s_subb_u32 s53, s53, 0
        v_lshlrev_b32 v{AF}, 7, v2
        v_min_u32 v{AF+1}, M_SLOW-{MAIN}-8196, v{AF}
        v_add_u32 v{AF+1}, 8192, v{AF+1}
        global_load_dword v{AF+8}, v{AF}, s[52:53]
        global_load_dword v{AF+8}, v{AF+1}, s[52:53]
        s_branch M_NOROW''')
    I('M_RA:')
    validate(16, 20)
    pass_a(16, 20, fs)
    I('s_branch M_RAR')
    I('M_RB:')
    pass_b1(16, 20)
    I('s_waitcnt lgkmcnt(0)')
    pass_b2(16, 20)
    validate(0, 4)
    I('s_nop 3\ns_branch M_RBR')
    I(f'''
M_SLOW:
    s_mov_b32 s{sMODE}, 1
    s_mov_b32 s{sSEG}, -1
M_SNEXT:
    s_add_u32 s{sSEG}, s{sSEG}, 1
    s_cmp_ge_u32 s{sSEG}, {NCH}
    s_cbranch_scc1 M_EPI
    s_lshl_b32 s{sTMP}, s{sSEG}, 4
    s_load_dword s{sD}, {sr(sOFP,2)}, s{sTMP}
    s_waitcnt lgkmcnt(0)
    s_lshr_b32 s{sTMP2}, s{sD}, 16
    s_cmp_eq_u32 s{sTMP2}, 0
    s_cbranch_scc1 M_SNEXT
    s_barrier
    ''')
    if OPT['PADW']: cnt_zero()
    else: lds_init()
    I(f'''
    s_and_b32 s{sD}, s{sD}, 0xffff
    s_mul_i32 s{sTMP}, s{sSEG}, {CH}
    s_add_u32 s{sD}, s{sD}, s{sTMP}
    v_add_u32 v{T0}, s{sD}, v0
    v_mov_b32 v{T1}, s{sTMP}
    v_lshlrev_b32 v{vEB}, 5, v{T0 if MOVE else T1}
    v_lshlrev_b32 v{T0}, 2, v{T0}
    v_sub_u32 v{vC}, s{sTMP2}, v0
    v_add_u32 v{vC}, 511, v{vC}
    v_ashrrev_i32 v{vC}, 9, v{vC}
    v_cmp_lt_i32 vcc, 4, v{vC}
    v_add_u32 v{T1}, 4, v{vC}
    s_nop 0
    v_cndmask_b32 v{vC}, v{vC}, v{T1}, vcc
    ''')
    for s in range(7):
        I(f'buffer_load_dword v{pREC+s}, v{T0}, {sr(sWS,4)}, 0 offen')
        if s < 6: I(f'v_add_u32 v{T0}, 2048, v{T0}')
    I('s_waitcnt vmcnt(0) lgkmcnt(0)\ns_barrier')
    validate(0, 12)
    I(f'v_mov_b32 v{vFC}, 0xfc')
    pass_a(0, 12, lambda s: s * 16384)
    I('s_waitcnt lgkmcnt(0)\ns_barrier')
    scan()
    I('s_branch M_BATCH')
    I('M_CODE_END:')

def kd(name, vgpr, sgpr):
    return f'''.amdhsa_kernel {name}
  .amdhsa_next_free_vgpr {vgpr}
  .amdhsa_next_free_sgpr {sgpr}
  .amdhsa_accum_offset {(vgpr+3)//4*4}
  .amdhsa_group_segment_fixed_size 0
  .amdhsa_kernarg_size 80
  .amdhsa_user_sgpr_count 2
  .amdhsa_user_sgpr_kernarg_segment_ptr 1
  .amdhsa_system_sgpr_workgroup_id_x 1
.end_amdhsa_kernel
'''

HEAD = open('gather_scatter__edge_featured_mpnn_egc__graph.s.ref').read().split('; Override')[0]
gen_part()
gen_main()
if OPT['EXTRA']:
    header('nop_kernel'); I('s_endpgm')
out = HEAD + f'''; Two launches: part_kernel bins the edges by destination bucket, the main kernel does the rest.
{'; @launch kernel=nop_kernel grid=(1,1,1) block=(64,1,1) lds=0'+chr(10) if OPT['EXTRA']==1 else ''}; @launch kernel=part_kernel grid=({NCH+5},1,1) block=(512,1,1) lds={K1_LDS}
{'; @launch kernel=nop_kernel grid=(1,1,1) block=(64,1,1) lds=0'+chr(10) if OPT['EXTRA']==2 else ''}; @launch kernel={MAIN} grid=({NB},1,1) block=(512,1,1) lds={M_LDS}
{'; @launch kernel=nop_kernel grid=(1,1,1) block=(64,1,1) lds=0'+chr(10) if OPT['EXTRA']==3 else ''}.amdgcn_target "amdgcn-amd-amdhsa--gfx950"
.text
''' + '\n'.join(L) + '''
.section .rodata,"a"
.p2align 6
''' + kd('part_kernel', 88, 80) + '.p2align 6\n' + kd(MAIN, 248 if (OPT['TRACE'] or OPT['STAMP']) else NV, 102) + ('.p2align 6\n' + kd('nop_kernel', 8, 8) if OPT['EXTRA'] else '')
open(sys.argv[1], 'w').write(out)
```

```python
import sys, struct

OPT = dict(MOVE=0, E_AUX='', K1_LD_AUX='', K1_ST_AUX='sc1', PAY_ST_AUX='', STAMP=0, PRIO=0, NOX=0, NOE=0, CYC=0, PKA=1, PKF=1, NOEV=0, NODMA=0, NODS=0, NOVM=0, TRACE=0, XPF=1, K1SLEEP=0, EXTRA=0, DBG=0, NOHV=0, NOZ=0, NOTR=0, LOOP=2, PB=1, PE=3, PB2=2, WOUT=1, ES=3, EF=3, PPOS=0, P2POS=8, AMP=0, FINE=0, WLATE=1, CPF=0, OFF_ST_AUX='sc1', K1SPLIT=1, NOPK=0, LATE0=0, YP=0, DLY=0, DLYN=0, EPF=0, EPF_AUX='', IDLE=0, IDLEK=99, PRE=0, PREPOS=0, STAG=1, DELTA=3, INL=1, EARLY=1, STEP=0, SMASK=0, NREF=108, SLOPE=3, KMAX=8, WAITM=0, OUT_AUX='sc1', WF_AUX='sc1', B2FIRST=1, INC2=1, FL2=1, K1T=1, ONEB=0, XAE=1, PADW=1, R3=1, FORD=1, K1M=0, YT0=0, X_AUX='', OFG=16, CPW=8, XK1=0)
for a in sys.argv[2:]:
    k, v = a.split('=')
    OPT[k] = int(v) if v.lstrip('-').isdigit() else v.replace('_', ' ')
MOVE = OPT['MOVE']

N, E = 12500, 800000
NB, BN = 256, 49
NCH, CH = 250, 3200
REC, OFFS, WF, PAY = 0, 0x400000, 0x480000, 0x800000
WS_BYTES = PAY + E * 32
NFRAG = 34
NLOG2E = struct.unpack('<I', struct.pack('<f', -1.4426950408889634))[0]
MAIN = 'gather_scatter__edge_featured_mpnn_egc__graph_kernel'

L = []
def I(s):
    for ln in s.strip('\n').split('\n'):
        ln = ln.strip()
        if ln:
            L.append(ln if ln.endswith(':') else '    ' + ln)
def r(a, n): return f'v[{a}:{a+n-1}]'
def sr(a, n): return f's[{a}:{a+n-1}]'
def srd(d, base, nbytes):
    I(f'''s_mov_b32 s{d}, s{base}
    s_mov_b32 s{d+1}, s{base+1}
    s_mov_b32 s{d+2}, {nbytes}
    s_mov_b32 s{d+3}, 0x20000''')
def dpp_scan(v):
    for ctl in ('row_shr:1', 'row_shr:2', 'row_shr:4', 'row_shr:8'):
        I(f's_nop 1\nv_add_u32_dpp v{v}, v{v}, v{v} {ctl} row_mask:0xf bank_mask:0xf bound_ctrl:1')
    I(f's_nop 1\nv_add_u32_dpp v{v}, v{v}, v{v} row_bcast:15 row_mask:0xa bank_mask:0xf')
    I(f's_nop 1\nv_add_u32_dpp v{v}, v{v}, v{v} row_bcast:31 row_mask:0xc bank_mask:0xf')
def header(name):
    I(f'.globl {name}\n.p2align 8\n.type {name},@function\n{name}:')

K1_HIST, K1_BASE, K1_SORT, K1_SORTE, K1_EIMG = 0, 1024, 2048, 14848, 27648
K1_LDS = (K1_EIMG + CH * 32) if MOVE else K1_SORTE

def kstamp(i):
    if OPT['STAMP']: I(f's_memrealtime s[{60+2*i}:{61+2*i}]\ns_waitcnt lgkmcnt(0)')
def dbgdump(n, last):
    I(f'''s_waitcnt vmcnt(0)
    s_memrealtime s[{60+2*last}:{61+2*last}]
    s_load_dwordx2 s[52:53], s[0:1], 64
    s_mov_b64 exec, 1
    s_waitcnt lgkmcnt(0)
    s_mov_b32 s54, 256
    s_mov_b32 s55, 0x20000
    v_mov_b32 v1, 0''')
    for i in range(n):
        I(f'''v_mov_b32 v8, s{60+2*i}
        buffer_atomic_umax v8, v1, s[52:55], 0 offen offset:{4*i}
        v_not_b32 v9, s{60+2*i}
        buffer_atomic_umax v9, v1, s[52:55], 0 offen offset:{32+4*i}
        s_waitcnt vmcnt(0)''')
def kdump():
    if OPT['DBG']:
        dbgdump(6, 5); return
    if OPT['STAMP']:
        I(f'''; K1STAMP
        s_waitcnt vmcnt(0)
        s_memrealtime s[70:71]
        s_mov_b64 exec, 1
        s_waitcnt lgkmcnt(0)
        s_add_u32 s52, s24, 0x8100000
        s_addc_u32 s53, s25, 0
        s_mov_b32 s54, 0x100000
        s_mov_b32 s55, 0x20000
        s_lshl_b32 s56, s2, 3
        s_add_u32 s56, s56, s28
        s_lshl_b32 s56, s56, 5
        v_mov_b32 v1, 0''')
        for i in range(8): I(f'v_mov_b32 v{8+i}, s{60+2*min(i,5)}')
        I('''buffer_store_dwordx4 v[8:11], v1, s[52:55], s56 offen
        buffer_store_dwordx4 v[12:15], v1, s[52:55], s56 offen offset:16''')
def ofg_k1():
    G = OPT['OFG']; lg = G.bit_length() - 1
    if G == 4: return 'v_lshlrev_b32 v61, 8, v60\ns_lshl_b32 s36, s2, 4'
    return f'''v_lshrrev_b32 v61, {lg+2}, v60
    v_lshlrev_b32 v61, {lg+10}, v61
    v_and_b32 v62, {G*4-1}, v60
    v_or_b32 v61, v61, v62
    s_lshl_b32 s36, s2, {lg+2}'''
def xk1():
    srd(20, 26, N * 128)
    I(f'''s_lshr_b32 s30, s2, 3
    s_mul_i32 s30, s30, {400*128}
    v_min_u32 v80, 399, v0
    v_lshlrev_b32 v80, 7, v80
    buffer_load_dword v81, v80, s[20:23], s30 offen''')
def gen_part():
    header('part_kernel')
    if OPT['AMP']: I('s_memrealtime s[74:75]')
    kstamp(0)
    D, S, B4, RK, RC, EL = 8, 16, 24, 32, 40, 48
    I(f'''
    s_cmp_ge_u32 s2, {NCH+5}
    s_cbranch_scc1 {'P_CPW' if OPT['CPW'] else 'P_END'}
    s_load_dwordx4 s[4:7], s[0:1], 16
    s_load_dwordx2 s[24:25], s[0:1], 72
    s_load_dwordx2 s[26:27], s[0:1], {0 if OPT['XK1'] else 8}
    v_lshrrev_b32 v3, 6, v0
    v_lshlrev_b32 v1, 2, v0
    v_readfirstlane_b32 s28, v3
    s_cmp_ge_u32 s2, {NCH}
    s_cbranch_scc1 P_PREP
    v_mov_b32 v2, 0
    ds_write_b32 v1, v2
    v_lshlrev_b32 v4, 4, v0
    v_lshlrev_b32 v5, 3, v0
    v_add_u32 v5, 8192, v5
    v_add_u32 v6, 12288, v1
    s_mul_i32 s29, s2, {CH*4}
    s_waitcnt lgkmcnt(0)
    ''')
    srd(8, 4, E * 4); srd(12, 6, E * 4); srd(16, 24, WS_BYTES)
    if OPT['AMP']:
        I(f'''s_cmp_lg_u32 s2, 0
        s_cbranch_scc1 P_NOAMP
        s_cmp_lg_u32 s28, 0
        s_cbranch_scc1 P_NOAMP
        v_mov_b32 v80, s74
        v_mov_b32 v81, {WF + 0x10000}
        buffer_store_dword v80, v81, s[16:19], 0 offen
P_NOAMP:''')
    ax = OPT['K1_LD_AUX']
    SPL = OPT['K1SPLIT'] and not MOVE
    srcld = f'''buffer_load_dwordx4 {r(S,4)}, v4, s[8:11], s29 offen {ax}
    buffer_load_dwordx2 {r(S+4,2)}, v5, s[8:11], s29 offen {ax}
    buffer_load_dword v{S+6}, v6, s[8:11], s29 offen {ax}'''
    I(f'''
    s_cmp_ge_u32 s28, 2
    s_cbranch_scc1 P_NO6A
    buffer_load_dword v{D+6}, v6, s[12:15], s29 offen {ax}
    {'' if SPL else f'buffer_load_dword v{S+6}, v6, s[8:11], s29 offen {ax}'}
P_NO6A:
    buffer_load_dwordx4 {r(D,4)}, v4, s[12:15], s29 offen {ax}
    buffer_load_dwordx2 {r(D+4,2)}, v5, s[12:15], s29 offen {ax}
    ''')
    if not SPL:
        I(f'''buffer_load_dwordx4 {r(S,4)}, v4, s[8:11], s29 offen {ax}
        buffer_load_dwordx2 {r(S+4,2)}, v5, s[8:11], s29 offen {ax}''')
    if MOVE:
        srd(20, 26, E * 32)
        I(f'''
        v_and_b32 v7, 63, v0
        v_lshlrev_b32 v7, 4, v7
        s_mul_i32 s30, s2, {CH*32}
        s_lshl_b32 s31, s28, 10
        s_add_u32 s30, s30, s31
        s_add_u32 s31, s31, {K1_EIMG}
        ''')
        for n in range(13):
            if n == 12:
                I('s_cmp_ge_u32 s28, 4\ns_cbranch_scc1 P_NO13')
            I(f'''s_mov_b32 m0, s31
            s_add_u32 s31, s31, 8192
            buffer_load_dwordx4 v7, s[20:23], s30 offen {ax} lds
            s_add_u32 s30, s30, 8192''')
        I('P_NO13:')
    sh = 14
    I(f'''
    v_lshlrev_b32 v56, {2+sh}, v0
    v_lshlrev_b32 v57, {1+sh}, v0
    v_add_u32 v57, {2048 << sh}, v57
    v_lshlrev_b32 v58, {sh}, v0
    v_add_u32 v58, {3072 << sh}, v58
    v_mov_b32 v59, 1
    s_mov_b32 s32, {-BN & 0xffffffff}
    s_mov_b32 s33, {1 << sh}
    s_mov_b32 s34, {2 << sh}
    s_mov_b32 s35, {3 << sh}
    s_barrier
    ''')
    if SPL:
        I(f's_cmp_ge_u32 s28, 2\ns_cselect_b32 s37, 0x40000000, 0\nv_or_b32 v6, s37, v6')
        I(srcld)
    kstamp(1)
    I(f's_waitcnt vmcnt({12 if MOVE else (3 if SPL else 0)})')
    kstamp(2)
    def slot(k):
        I(f'''v_mul_u32_u24 v{B4+k}, 21400, v{D+k}
        v_lshrrev_b32 v{B4+k}, 20, v{B4+k}
        v_mad_i32_i24 v{RC+k}, v{B4+k}, s32, v{D+k}
        v_lshlrev_b32 v{B4+k}, 2, v{B4+k}
        ds_add_rtn_u32 v{RK+k}, v{B4+k}, v59''')
    def rec(k):
        eb = 56 if k < 4 else (57 if k < 6 else 58)
        kk = k if k < 4 else (k - 4 if k < 6 else 0)
        ks = '0' if kk == 0 else f's{32+kk}'
        I(f'''v_lshl_or_b32 v{RC+k}, v{RC+k}, 26, v{S+k}
        v_add3_u32 v{RC+k}, v{RC+k}, v{eb}, {ks}''')
        if MOVE:
            I(f'''v_bfe_u32 v{EL+k}, v{RC+k}, 14, 12
            v_lshlrev_b32 v{EL+k}, 5, v{EL+k}''')
    if OPT['EPF'] == 1:
        srd(20, 26, E * 32)
        I(f'''v_lshlrev_b32 v80, 7, v0
        s_mul_i32 s30, s2, {CH*32}
        v_add_u32 v81, 65536, v80
        v_min_u32 v81, {CH*32-128}, v81
        buffer_load_dword v87, v80, s[20:23], s30 offen {OPT['EPF_AUX']}
        buffer_load_dword v87, v81, s[20:23], s30 offen {OPT['EPF_AUX']}''')
    if OPT['XK1'] == 2: xk1()
    for k in range(6): slot(k)
    I('s_cmp_ge_u32 s28, 2\ns_cbranch_scc1 P_NO6B')
    slot(6)
    I(f'''
P_NO6B:
    v_and_b32 v60, 63, v0
    v_lshlrev_b32 v60, 4, v60
    s_waitcnt lgkmcnt(0)
    s_barrier
    ds_read_b128 v[64:67], v60
    s_waitcnt lgkmcnt(0)
    v_add_u32 v69, v64, v65
    v_add_u32 v70, v69, v66
    v_add_u32 v71, v70, v67
    v_mov_b32 v72, v71
    ''')
    dpp_scan(72)
    I(f'''
    v_sub_u32 v68, v72, v71
    v_add_u32 v71, v68, v70
    v_add_u32 v70, v68, v69
    v_add_u32 v69, v68, v64
    ds_write_b128 v60, v[68:71] offset:{K1_BASE}
    {'' if OPT['K1T'] else 's_waitcnt lgkmcnt(0)'}
    ''')
    for k in range(6):
        I(f'ds_read_b32 v{D+k}, v{B4+k} offset:{K1_BASE}')
    if OPT['K1M']:
        I(f'''s_cmp_lt_u32 s28, 2
        s_cselect_b64 s[44:45], -1, 0
        s_mov_b64 exec, s[44:45]
        ds_read_b32 v{D+6}, v{B4+6} offset:{K1_BASE}
        s_mov_b64 exec, -1''')
    if SPL: I(f's_waitcnt vmcnt({2 if OPT["EPF"] == 1 else (1 if OPT["XK1"] == 2 else 0)})')
    I(f'''
    s_cmp_lg_u32 s28, 4
    s_cbranch_scc1 P_NOOFF
    v_lshl_or_b32 v64, v64, 16, v68
    v_lshl_or_b32 v65, v65, 16, v69
    v_lshl_or_b32 v66, v66, 16, v70
    v_lshl_or_b32 v67, v67, 16, v71
    {ofg_k1()}
    s_add_u32 s36, s36, {OFFS}
    buffer_store_dwordx4 v[64:67], v61, s[16:19], s36 offen {OPT['OFF_ST_AUX']}
P_NOOFF:
    ''')
    if OPT['XK1'] == 1: xk1()
    for k in range(7): rec(k)
    if OPT['CPF'] & 1:
        I(f'''s_cmp_lg_u32 s28, 7
        s_cbranch_scc1 P_NOCPF
        s_cmp_ge_u32 s2, 32
        s_cbranch_scc1 P_NOCPF
        s_getpc_b64 s[40:41]
P_PC:
        s_add_u32 s40, s40, {MAIN}-P_PC
        s_addc_u32 s41, s41, 0
        v_and_b32 v82, 63, v0
        v_lshlrev_b32 v82, 7, v82
        v_min_u32 v83, M_CODE_END-{MAIN}-8196, v82
        v_add_u32 v83, 8192, v83
        global_load_dword v86, v82, s[40:41]
        global_load_dword v86, v83, s[40:41]''')
        if OPT['CPF'] & 4:
            I(f'''s_load_dwordx2 s[42:43], s[0:1], 0
            s_load_dwordx2 s[44:45], s[0:1], 56
            v_lshlrev_b32 v82, 12, v82
            v_min_u32 v82, {E*32-4}, v82
            v_mov_b32 v83, 0
            global_load_dword v86, v82, s[26:27]
            s_waitcnt lgkmcnt(0)
            global_load_dword v86, v83, s[42:43]
            global_load_dword v86, v83, s[44:45]''')
        I('P_NOCPF:')
    if OPT['K1M']:
        I('s_waitcnt lgkmcnt(0)')
        for k in range(7):
            if k == 6: I('s_mov_b64 exec, s[44:45]')
            I(f'''v_add_lshl_u32 v{RK+k}, v{RK+k}, v{D+k}, 2
            ds_write_b32 v{RK+k}, v{RC+k} offset:{K1_SORT}''')
        I('s_mov_b64 exec, -1')
    else:
        I(f'''
    s_cmp_ge_u32 s28, 2
    s_cbranch_scc1 P_NO6C
    ds_read_b32 v{D+6}, v{B4+6} offset:{K1_BASE}
    s_waitcnt lgkmcnt(0)
    v_add_lshl_u32 v{RK+6}, v{RK+6}, v{D+6}, 2
    ds_write_b32 v{RK+6}, v{RC+6} offset:{K1_SORT}
    ''')
        if MOVE: I(f'ds_write_b32 v{RK+6}, v{EL+6} offset:{K1_SORTE}')
        I('P_NO6C:\ns_waitcnt lgkmcnt(0)')
        for k in range(6):
            I(f'''v_add_lshl_u32 v{RK+k}, v{RK+k}, v{D+k}, 2
        ds_write_b32 v{RK+k}, v{RC+k} offset:{K1_SORT}''')
            if MOVE: I(f'ds_write_b32 v{RK+k}, v{EL+k} offset:{K1_SORTE}')
    I(f'''
    s_waitcnt lgkmcnt(0)
    ''')
    kstamp(3)
    I(f'''
    {"s_waitcnt vmcnt(0)" if MOVE else ""}
    s_barrier
    ''')
    kstamp(4)
    I(f'''
    ds_read_b128 v[8:11], v4 offset:{K1_SORT}
    v_cmp_gt_u32 vcc, 288, v0
    s_and_saveexec_b64 s[38:39], vcc
    ds_read_b128 v[12:15], v4 offset:{K1_SORT+8192}
    s_mov_b64 exec, s[38:39]
    ''')
    if MOVE:
        I(f'''v_lshrrev_b32 v84, 1, v0
        v_lshlrev_b32 v84, 2, v84
        v_and_b32 v85, 1, v0
        v_lshlrev_b32 v85, 4, v85
        v_add_u32 v85, {K1_EIMG}, v85''')
        for n in range(13):
            I(f'ds_read_b32 v{16+n}, v84 offset:{K1_SORTE + n*1024}')
    I(f'''
    s_waitcnt lgkmcnt({13 if MOVE else 0})
    buffer_store_dwordx4 v[8:11], v4, s[16:19], s29 offen {OPT['K1_ST_AUX']}
    s_add_u32 s36, s29, 8192
    s_and_saveexec_b64 s[38:39], vcc
    s_cbranch_execz P_NOST2
    buffer_store_dwordx4 v[12:15], v4, s[16:19], s36 offen {OPT['K1_ST_AUX']}
P_NOST2:
    s_mov_b64 exec, s[38:39]
    ''')
    if MOVE:
        I(f'''s_mul_i32 s30, s2, {CH*32}
        s_add_u32 s30, s30, {PAY}
        s_waitcnt lgkmcnt(0)''')
        for n in range(12):
            I(f'v_add_u32 v{16+n}, v{16+n}, v85\nds_read_b128 {r(32+4*n,4)}, v{16+n}')
        for n in range(12):
            I(f'''s_waitcnt lgkmcnt({min(15, 11-n)})
            buffer_store_dwordx4 {r(32+4*n,4)}, v4, s[16:19], s30 offen {OPT['PAY_ST_AUX']}
            s_add_u32 s30, s30, 8192''')
        I(f'''s_cmp_ge_u32 s28, 4
        s_cbranch_scc1 P_FIN
        v_add_u32 v28, v28, v85
        ds_read_b128 v[8:11], v28
        s_waitcnt lgkmcnt(0)
        buffer_store_dwordx4 v[8:11], v4, s[16:19], s30 offen {OPT['PAY_ST_AUX']}''')
    I('P_FIN:')
    for _ in range(OPT['K1SLEEP']): I('s_sleep 64')
    kdump()
    I('s_endpgm')
    I(f'''
P_PREP:
    s_load_dwordx4 s[8:11], s[0:1], 32
    s_load_dwordx2 s[12:13], s[0:1], 48
    s_sub_u32 s30, s2, {NCH}
    s_lshl_b32 s30, s30, 3
    s_add_u32 s30, s30, s28
    s_cmp_ge_u32 s30, {NFRAG}
    s_cbranch_scc1 P_END
    s_waitcnt lgkmcnt(0)
    s_mov_b32 s20, s12
    s_mov_b32 s21, s13
    s_mov_b32 s22, {144*128}
    s_mov_b32 s23, 0x20000
    s_mov_b32 s33, {NLOG2E}
    s_mov_b32 s31, s30
    s_mov_b32 s32, 64
    s_cmp_lt_u32 s30, 8
    s_cbranch_scc1 P_GO
    s_cmp_lt_u32 s30, 16
    s_cbranch_scc0 P_C1
    s_sub_u32 s31, s30, 8
    s_mov_b32 s32, 0
    s_mov_b32 s33, 1.0
    s_mov_b32 s20, s10
    s_mov_b32 s21, s11
    s_mov_b32 s22, {64*128}
    s_branch P_GO
P_C1:
    s_cmp_lt_u32 s30, 18
    s_cbranch_scc0 P_C2
    s_sub_u32 s31, s30, 16
    s_lshl_b32 s31, s31, 2
    s_mov_b32 s32, 128
    s_branch P_GO
P_C2:
    s_mov_b32 s33, 1.0
    s_mov_b32 s32, 0
    s_sub_u32 s31, s30, 18
    s_cmp_lt_u32 s30, 26
    s_cbranch_scc1 P_GO
    s_sub_u32 s31, s30, 26
    s_mov_b32 s20, s8
    s_mov_b32 s21, s9
    s_mov_b32 s22, {64*128}
P_GO:
    s_and_b32 s34, s31, 3
    s_lshl_b32 s34, s34, 4
    s_add_u32 s34, s34, s32
    s_lshl_b32 s34, s34, 7
    s_lshr_b32 s35, s31, 2
    s_lshl_b32 s35, s35, 6
    s_add_u32 s34, s34, s35
    v_and_b32 v1, 31, v0
    v_lshlrev_b32 v1, 1, v1
    v_bfe_u32 v2, v0, 5, 1
    v_lshl_or_b32 v1, v2, 10, v1
    ''')
    for t in range(8):
        I(f'buffer_load_ushort v{8+t}, v1, s[20:23], s34 offen offset:{t*128}')
    srd(16, 24, WS_BYTES)
    I(f'''
    v_and_b32 v3, 63, v0
    v_lshlrev_b32 v3, 4, v3
    s_lshl_b32 s36, s30, 10
    s_add_u32 s36, s36, {WF}
    s_waitcnt vmcnt(0)
    ''')
    for t in range(8):
        I(f'v_lshlrev_b32 v{8+t}, 16, v{8+t}\nv_mul_f32 v{8+t}, s33, v{8+t}')
    for t in range(4):
        I(f'v_cvt_pk_bf16_f32 v{16+t}, v{8+2*t}, v{9+2*t}')
    I(f'''buffer_store_dwordx4 v[16:19], v3, s[16:19], s36 offen {OPT['WF_AUX']}
P_END:
    s_endpgm''')
    if OPT['CPW']:
        I(f'''P_CPW:
        s_cmp_ge_u32 s2, {NCH+5+OPT['CPW']}
        s_cbranch_scc1 P_END
        s_getpc_b64 s[40:41]
P_PC2:
        s_add_u32 s40, s40, {MAIN}-P_PC2
        s_addc_u32 s41, s41, 0
        v_lshlrev_b32 v2, 7, v0
        v_cmp_gt_u32 vcc, M_CODE_END-{MAIN}, v2
        s_and_saveexec_b64 s[42:43], vcc
        s_cbranch_execz P_END
        global_load_dword v3, v2, s[40:41]
        s_endpgm''')

CNT, FLAG, BASE = 0, 256, 512
XS = 1024
ES = XS + 65536
LX = ES + 16384
LE = LX + 16384
XAT = LE + 16384
AGG = XAT + 14336
M_LDS = AGG + 2*14336
ROWS = XS + 36864
XSENT, ESENT = 0x1FFF80, 0x7FFFFF00
CAP = 4096
NSLOT = 20

WB, WV, WC = 4, 36, 68
XA = 76
Z = 108
H = 140
AF = 156
ACC = 176
IDX = 192
vLX, vLE, vKX0, vKX1, vKE = 197, 198, 199, 200, 201
vRA, vRE = 202, 206
vSCH, vLT = 207, 208
T0, T1, T2 = 209, 210, 211
vC, vEB = 212, 213
vONE = 214
vLA = 215
vINV, vFC = 218, 219
T4 = 216
AF2 = 220
AFE2 = 236
NV = 240
vTR = NV
pREC, pRK, pAD = 76, 96, 116
pD, pA, pW = 136, 152, 168
sX, sE, sWS, sOUT = 8, 12, 16, 20
sW, sT, sTW, sNP, sNC, sNN, sD, sM0X, sM0E, sMASK, sTMP, sTMP2, sMODE, sSEG, sG0 = range(28, 43)
sONE = 44
sSAVE = 46
sOFP = 48
sB = 50
sXR = 51
sBAR = 43

def thr(s): return 8 * (s // 4) + s % 4

def mf(d, a, b, c): return f'v_mfma_f32_32x32x16_bf16 {r(d,16)}, {r(a,4)}, {r(b,4)}, {c}'
def zm(ft, af=None, ae=None):
    if af is None: af = AF
    if ae is None: ae = AF + 16
    out = [mf(Z+16*ft, ae, WC+4*ft, r(XA+16*ft, 16))]
    for k in range(4): out.append(mf(Z+16*ft, af+4*k, WB+16*ft+4*k, r(Z+16*ft, 16)) if not OPT['NOZ'] else 'v_nop\nv_nop')
    return out
def hm(ft, af=None):
    if af is None: af = AF
    out = [mf(H, af, WV+16*ft, '0')]
    for k in range(1, 4): out.append(mf(H, af+4*k, WV+16*ft+4*k, r(H, 16)))
    if OPT['NOHV']: out = ['v_nop\nv_nop'] * 4
    return out
def exps(ft): return [f'v_exp_f32 v{Z+16*ft+i}, v{Z+16*ft+i}' if not OPT['NOTR'] else 'v_nop\nv_nop' for i in range(16)]
def rcps(ft): return [f'v_rcp_f32 v{Z+16*ft+i}, v{Z+16*ft+i}' if not OPT['NOTR'] else 'v_nop\nv_nop' for i in range(16)]
def pkadd(ft):
    if OPT['NOPK']: return ['v_nop'] * 8
    if not OPT['PKA']: return [f'v_add_f32 v{Z+16*ft+i}, 1.0, v{Z+16*ft+i}' for i in range(16)]
    return [f'v_pk_add_f32 {r(Z+16*ft+2*i,2)}, {r(Z+16*ft+2*i,2)}, {sr(sONE,2)}' for i in range(8)]
def pkf(ft):
    if OPT['NOPK']: return ['v_nop'] * 8
    if not OPT['PKF']: return [f'v_fmac_f32 v{ACC+8*ft+2*(i//4)+i%2}, v{Z+16*ft+i}, v{H+i}' for i in range(16)]
    return [f'v_pk_fma_f32 {r(ACC+8*ft+2*(i//2),2)}, {r(Z+16*ft+2*i,2)}, {r(H+2*i,2)}, {r(ACC+8*ft+2*(i//2),2)}' for i in ((0, 2, 4, 6, 1, 3, 5, 7) if OPT['FORD'] else range(8))]
def weave(main, ins):
    out = []
    for i, m in enumerate(main):
        out += ins.get(i, [])
        out.append(m)
    out += ins.get(len(main), [])
    return out

def lds_init():
    I(f'''v_lshlrev_b32 v{T0}, 4, v0
    v_add_u32 v{T0}, {LX}, v{T0}
    v_mov_b32 v{AF}, {XSENT}
    v_mov_b32 v{AF+1}, {XSENT}
    v_mov_b32 v{AF+2}, {XSENT}
    v_mov_b32 v{AF+3}, {XSENT}
    v_mov_b32 v{AF+4}, {ESENT}
    v_mov_b32 v{AF+5}, {ESENT}
    v_mov_b32 v{AF+6}, {ESENT}
    v_mov_b32 v{AF+7}, {ESENT}
    v_and_b32 v{T1}, 127, v0
    v_lshlrev_b32 v{T1}, 2, v{T1}
    v_mov_b32 v{T2}, 0
    ds_write_b128 v{T0}, {r(AF,4)}
    ds_write_b128 v{T0}, {r(AF,4)} offset:8192
    ds_write_b128 v{T0}, {r(AF+4,4)} offset:16384
    ds_write_b128 v{T0}, {r(AF+4,4)} offset:24576
    ds_write_b32 v{T1}, v{T2}''')

def pEO(s): return AF2 + s if s < 16 else 184 + s - 16
def sVM(s): return 68 + 2 * (s % 16)
def validate(lo, hi):
    for s in range(lo, hi): I(f'v_cmp_lt_i32 {sr(sVM(s),2)}, {thr(s)}, v{vC}')
def pass_a(lo, hi, estride, mid=None):
    for s in range(lo, hi):
        I(f'v_and_b32_sdwa v{pAD+s}, v{vFC}, v{pREC+s} dst_sel:DWORD dst_unused:UNUSED_PAD src0_sel:DWORD src1_sel:BYTE_3')
    for s in range(lo, hi):
        I(f'''s_mov_b64 exec, {sr(sVM(s),2)}
        ds_add_rtn_u32 v{pRK+s}, v{pAD+s}, v{vONE}''')
    I('s_mov_b64 exec, -1')
    if mid: mid()
    for s in range(lo, hi):
        if MOVE:
            I(f'v_add_u32 v{pEO(s)}, {estride(s)}, v{vEB}')
        else:
            I(f'''v_bfe_u32 v{pEO(s)}, v{pREC+s}, 14, 12
            v_lshl_add_u32 v{pEO(s)}, v{pEO(s)}, 5, v{vEB}''')
        I(f'v_alignbit_b32 v{pREC+s}, v{pREC+s}, v{pREC+s}, 25')

def scan():
    I(f'''v_lshlrev_b32 v{T0}, 2, v2
    ds_read_b32 v{T1}, v{T0}
    v_mov_b32 v{T2}, {FLAG}
    ds_read_b32 v{IDX}, v{T2}
    s_waitcnt lgkmcnt(0)
    v_add_u32 v{IDX+2}, s{sW}, v{T1}
    v_add_u32 v{T1}, 7, v{T1}
    v_and_b32 v{T1}, -8, v{T1}
    v_readfirstlane_b32 s{sTMP2}, v{IDX}
    v_mov_b32 v{T2}, v{T1}''')
    dpp_scan(T2)
    I(f'''v_sub_u32 v{T1}, v{T2}, v{T1}
    v_readlane_b32 s{sTMP}, v{T2}, 63
    v_add_u32 v{IDX+3}, {LX//4}, v{T1}
    ds_write_b32 v{T0}, v{IDX+3} offset:{BASE}''')
def pad_write():
    I(f'''v_add_u32 v{IDX+4}, v{T1}, v{IDX+2}
    v_add_u32 v{T0}, s{sTMP}, v2
    s_add_u32 s52, s{sTMP}, 31
    s_and_b32 s52, s52, -32
    s_cmp_eq_u32 s{sW}, 7
    s_cselect_b64 vcc, -1, 0
    v_mov_b32 v{IDX+2}, s52
    v_cndmask_b32 v{IDX+4}, v{IDX+4}, v{T0}, vcc
    v_cndmask_b32 v{T2}, v{T2}, v{IDX+2}, vcc
    v_mov_b32 v{T0}, {XSENT}
    v_cmp_lt_u32 vcc, v{IDX+4}, v{T2}
    v_mov_b32 v{T1}, {ESENT}
    v_lshlrev_b32 v{IDX+4}, 2, v{IDX+4}
    v_add_u32 v{IDX+4}, {LX}, v{IDX+4}
    s_mov_b64 exec, vcc
    ds_write2st64_b32 v{IDX+4}, v{T0}, v{T1} offset1:64
    s_mov_b64 exec, -1''')
def pass_b1(lo, hi):
    for s in range(lo, hi):
        I(f'''s_mov_b64 exec, {sr(sVM(s),2)}
        ds_read_b32 v{pAD+s}, v{pAD+s} offset:{BASE}''')
    I('s_mov_b64 exec, -1')
def pass_b2(lo, hi):
    for s in range(lo, hi): I(f'v_add_lshl_u32 v{pRK+s}, v{pRK+s}, v{pAD+s}, 2')
    for s in range(lo, hi):
        I(f'''s_mov_b64 exec, {sr(sVM(s),2)}
        ds_write2st64_b32 v{pRK+s}, v{pREC+s}, v{pEO(s)} offset1:64''')
    I('s_mov_b64 exec, -1')

def dma_tile(ix, xm0, em0, xoff, eoff):
    g = []
    for q in range(4):
        g.append([f's_add_u32 m0, s{xm0}, {xoff + q*1024}',
                  f'v_and_or_b32 v{ix+q}, v{ix+q}, s{sMASK}, v{vKX0 if q % 2 == 0 else vKX1}',
                  f'buffer_load_dwordx4 v{ix+q}, {sr(sX,4)}, 0 offen {OPT["X_AUX"]} lds'])
    g.append([f's_add_u32 m0, s{em0}, {eoff}',
              f'v_add_u32 v{ix+4}, v{ix+4}, v{vKE}',
              f'buffer_load_dwordx4 v{ix+4}, {sr(sE,4)}, 0 offen {OPT["E_AUX"]} lds'])
    return g

def flush_j(j, sn):
    I(f'''v_add_f32 v{T1}, v{ACC+2*j}, v{ACC+2*j+1}
    v_add_f32 v{T2}, v{ACC+8+2*j}, v{ACC+8+2*j+1}
    s_bfe_u32 s{sTMP}, s{sn}, {(6 << 16) | (8*j)}
    s_lshl_b32 s{sTMP}, s{sTMP}, 9
    v_permlane32_swap_b32 v{T1}, v{T2}
    v_add_u32 v{T0}, s{sTMP}, v{vLA}
    v_mov_b64 {r(ACC+2*j,2)}, 0
    v_add_f32 v{T1}, v{T1}, v{T2}
    v_mov_b64 {r(ACC+8+2*j,2)}, 0
    v_cvt_f64_f32 {r(T4,2)}, v{T1}
    ds_add_f64 v{T0}, {r(T4,2)}''')
def xa_half(j, sn, ft):
    I(f'''s_bfe_u32 s{sTMP}, s{sn}, {(6 << 16) | (8*j)}
    s_lshl_b32 s{sTMP}, s{sTMP}, 8
    v_add_u32 v{T0}, s{sTMP}, v{vLT}
    ds_read2_b32 {r(XA+16*ft+4*j,2)}, v{T0} offset0:{32*ft} offset1:{32*ft}
    ds_read2_b32 {r(XA+16*ft+4*j+2,2)}, v{T0} offset0:{32*ft} offset1:{32*ft}''')
def xa_j(j, sn):
    I(f'''s_bfe_u32 s{sTMP}, s{sn}, {(6 << 16) | (8*j)}
    s_lshl_b32 s{sTMP}, s{sTMP}, 8
    v_add_u32 v{T0}, s{sTMP}, v{vLT}
    ds_read2_b32 {r(XA+4*j,2)}, v{T0}
    ds_read2_b32 {r(XA+4*j+2,2)}, v{T0}
    ds_read2_b32 {r(XA+16+4*j,2)}, v{T0} offset0:32 offset1:32
    ds_read2_b32 {r(XA+16+4*j+2,2)}, v{T0} offset0:32 offset1:32''')

def TR(k):
    if not OPT['TRACE']: return ''
    return f'''s_memtime s[76:77]
    s_memrealtime s[78:79]
    s_waitcnt lgkmcnt(0)
    s_mov_b32 m0, s{sT}
    s_nop 0
    v_writelane_b32 v{vTR+k}, s76, m0
    s_add_u32 m0, m0, 32
    s_nop 0
    v_writelane_b32 v{vTR+k}, s78, m0'''
vST = 244
def putstamp(i, ins='s_memrealtime'):
    I(f'{ins} s[100:101]\ns_waitcnt lgkmcnt(0)\nv_writelane_b32 v{vST}, s100, {i}')
def fstamp(i):
    if OPT['STAMP'] and OPT['FINE']: putstamp(i)
def stamp(i):
    if OPT['AMP'] == 10 + i: I('s_memrealtime s[100:101]\ns_waitcnt lgkmcnt(0)')
    if not OPT['STAMP']: return
    if OPT['FINE'] and i not in (0,): return
    if OPT['CYC'] == 2:
        if i in (1, 2): return
        if i in (4, 5): putstamp(i - 3, 's_memtime')
    putstamp(i)

WBASE = XS + 32768
def frag_off(f):
    if f < 16: return (f // 4) * 8192 + 4096 + (f % 4) * 1024
    return ES + (4 + f - 16) * 2048 + 1024 - WBASE
def row_lds(k): return XS + (4 + k // 4) * 8192 + (k % 4) * 1024

def burn(pos):
    if not OPT['PRE'] or OPT['PREPOS'] != pos: return
    I(f's_mov_b32 s{sTW}, 0x9E3779B1')
    for k in range(8):
        I(f'v_add_u32 v{4+k}, {k*977+13}, v0\nv_mul_lo_u32 v{4+k}, v{4+k}, s{sTW}\nv_and_b32 v{4+k}, 0xbe7fbe7f, v{4+k}\nv_or_b32 v{4+k}, 0x3c003c00, v{4+k}')
    I(f's_mov_b32 s{sTW}, {OPT["PRE"]}\nM_BURN:')
    for k in range(4):
        I(mf(16, 4, 8, '0') if k % 2 == 0 else mf(32, 8, 4, '0'))
    I(f's_sub_u32 s{sTW}, s{sTW}, 1\ns_cmp_lg_u32 s{sTW}, 0\ns_cbranch_scc1 M_BURN')
def bvc():
    return f'''s_add_u32 m0, s{sNP}, {WBASE+4096}
    s_add_u32 s{sTMP}, s{sNC}, 8192
    buffer_load_dwordx4 v{IDX+1}, {sr(sWS,4)}, s{sNC} offen lds
    s_add_u32 m0, s{sNP}, {WBASE+4096+16384}
    s_cmp_ge_u32 s{sW}, 2
    buffer_load_dwordx4 v{IDX+1}, {sr(sWS,4)}, s{sTMP} offen lds
    s_cbranch_scc1 M_NOW4
    s_add_u32 m0, s{sM0E}, {4*2048+1024}
    s_add_u32 s{sTMP}, s{sNC}, {16*1024}
    buffer_load_dwordx4 v{IDX+1}, {sr(sWS,4)}, s{sTMP} offen lds
M_NOW4:'''
OUT = []
def xa_table():
    I(f's_cmp_ge_u32 s{sW}, 4\ns_cbranch_scc1 M_ADONE')
    for k in range(16):
        if k == 12: I(f's_cmp_lg_u32 s{sG0}, 0\ns_cbranch_scc1 M_ADONE')
        I(f'v_mul_f32 v{pD+k}, s{sD}, v{pD+k}\nds_write_b32 v{vINV}, v{pD+k} offset:{(8*(k//4)+k%4)*256}')
    I('M_ADONE:')
def kcalc():
    if not OPT['NREF']:
        return f'''s_lshr_b32 s59, s2, 3
    s_and_b32 s59, s59, {OPT['SMASK']}
    s_mul_i32 s59, s59, {OPT['STEP']}'''
    return f'''s_lshr_b32 s59, s{sTMP}, 5
    s_min_u32 s59, s59, {OPT['NREF']}
    s_sub_u32 s59, {OPT['NREF']}, s59
    s_mul_i32 s59, s59, {OPT['SLOPE']}
    s_lshr_b32 s59, s59, 2
    s_min_u32 s59, s59, {OPT['KMAX']}'''
def init0():
    lds_init()
    I(f'''v_add_u32 v{T0}, {AGG-LX}, v{T0}
    v_mov_b64 {r(AF+8,2)}, 0
    v_mov_b64 {r(AF+10,2)}, 0
    s_cmp_lg_u32 s{sW}, 0
    ds_write_b128 v{T0}, {r(AF+8,4)}
    ds_write_b128 v{T0}, {r(AF+8,4)} offset:8192
    ds_write_b128 v{T0}, {r(AF+8,4)} offset:16384
    s_cbranch_scc1 M_NOZ3
    ds_write_b128 v{T0}, {r(AF+8,4)} offset:24576
M_NOZ3:''')
def cnt_zero():
    I(f'''v_and_b32 v{T1}, 127, v0
    v_lshlrev_b32 v{T1}, 2, v{T1}
    v_mov_b32 v{T2}, 0
    ds_write_b32 v{T1}, v{T2}''')
def init_first():
    I(f'''v_lshlrev_b32 v{T0}, 4, v0
    v_add_u32 v{T0}, {AGG}, v{T0}
    v_mov_b64 {r(AF+8,2)}, 0
    v_mov_b64 {r(AF+10,2)}, 0
    s_cmp_lg_u32 s{sW}, 0
    ds_write_b128 v{T0}, {r(AF+8,4)}
    ds_write_b128 v{T0}, {r(AF+8,4)} offset:8192
    ds_write_b128 v{T0}, {r(AF+8,4)} offset:16384
    s_cbranch_scc1 M_NOZ3
    ds_write_b128 v{T0}, {r(AF+8,4)} offset:24576
M_NOZ3:''')
    cnt_zero()
def evchk(kind, p, sn):
    if OPT['NOEV']: return ''
    return '\n'.join(f's_bitcmp1_b32 s{sn}, {8*j+6}\ns_cbranch_scc1 M_{kind}{p}{j}\nM_{kind}R{p}{j}:' for j in range(4))
def gen_main():
    header(MAIN)
    if OPT['AMP']: I('s_memrealtime s[74:75]\ns_waitcnt lgkmcnt(0)\ns_mov_b32 s3, s74')
    stamp(0)
    I(f"""
    s_cmp_ge_u32 s2, {NB}
    s_cbranch_scc1 M_END
    """)
    burn(0)
    I(f"""
    s_load_dwordx2 s[26:27], s[0:1], 72
    s_load_dwordx4 s[4:7], s[0:1], 0
    s_load_dwordx2 s[24:25], s[0:1], 56
    v_lshrrev_b32 v1, 6, v0
    v_and_b32 v2, 63, v0
    v_readfirstlane_b32 s{sW}, v1
    s_and_b32 s{sB}, s2, 7
    s_lshl_b32 s{sB}, s{sB}, 5
    s_lshr_b32 s{sTMP}, s2, 3
    s_add_u32 s{sB}, s{sB}, s{sTMP}
    v_lshrrev_b32 v3, 1, v0
    v_lshlrev_b32 v{IDX}, {OPT['OFG'].bit_length()+1}, v3
    v_lshlrev_b32 v{IDX+1}, 4, v2
    s_lshr_b32 s{sD}, s{sB}, {OPT['OFG'].bit_length()-1}
    s_lshl_b32 s{sD}, s{sD}, {OPT['OFG'].bit_length()+7}
    s_and_b32 s{sTMP}, s{sB}, {OPT['OFG']-1}
    s_add_u32 s{sD}, s{sD}, s{sTMP}
    s_lshl_b32 s{sD}, s{sD}, 2
    s_add_u32 s{sD}, s{sD}, {OFFS}
    s_mov_b32 s{sWS+2}, {WS_BYTES}
    s_mov_b32 s{sWS+3}, 0x20000
    s_lshr_b32 s{sTMP}, s{sW}, 2
    s_lshl_b32 s{sTMP}, s{sTMP}, 13
    s_and_b32 s{sTMP2}, s{sW}, 3
    s_lshl_b32 s{sTMP2}, s{sTMP2}, 10
    s_add_u32 s{sG0}, s{sTMP}, s{sTMP2}
    s_lshl_b32 s{sTMP2}, s{sW}, 10
    s_add_u32 s{sTMP2}, s{sTMP2}, {WF}
    """)
    if OPT['PADW']: init_first()
    I(f"""
    s_waitcnt lgkmcnt(0)
    s_mov_b32 s{sWS}, s26
    s_mov_b32 s{sWS+1}, s27
    s_add_u32 m0, s{sG0}, {XS}
    buffer_load_dword v{vC}, v{IDX}, {sr(sWS,4)}, s{sD} offen
    s_add_u32 s{sTMP}, s{sTMP2}, {18*1024}
    buffer_load_dwordx4 v{IDX+1}, {sr(sWS,4)}, s{sTMP} offen lds
    s_add_u32 m0, s{sG0}, {XS+16384}
    s_add_u32 s{sTMP}, s{sTMP2}, {26*1024}
    buffer_load_dwordx4 v{IDX+1}, {sr(sWS,4)}, s{sTMP} offen lds
    s_mov_b32 s{sNP}, s{sG0}
    s_mov_b32 s{sNC}, s{sTMP2}
    {'' if OPT['WLATE'] else bvc()}
    v_lshrrev_b32 v{IDX+2}, 4, v2
    s_lshl_b32 s{sTMP}, s{sW}, 2
    v_add_u32 v{IDX+2}, s{sTMP}, v{IDX+2}
    v_xor_b32 v{IDX+2}, v{IDX+2}, v2
    v_and_b32 v{IDX+2}, 7, v{IDX+2}
    v_lshlrev_b32 v{IDX+2}, 4, v{IDX+2}
    v_lshrrev_b32 v{IDX+3}, 3, v2
    v_lshl_or_b32 v{IDX+2}, v{IDX+3}, 7, v{IDX+2}
    """)
    srd(sX, 4, N * 128)
    I(f"""
    s_cmp_ge_u32 s{sW}, 7
    s_cbranch_scc1 {'M_CPF' if OPT['CPF'] & 2 else 'M_NOROW'}
    s_lshl_b32 s{sTMP}, s{sW}, 10
    s_mul_i32 s{sTMP2}, s{sB}, {BN*128}
    s_add_u32 m0, s{sG0}, {XS+32768}
    s_add_u32 s{sTMP2}, s{sTMP2}, s{sTMP}
    buffer_load_dwordx4 v{IDX+2}, {sr(sX,4)}, s{sTMP2} offen lds
M_NOROW:
    """)
    if OPT['EARLY'] and not OPT['PADW']: init0()
    I(f"""
    s_add_u32 s{sOFP}, s26, s{sD}
    s_addc_u32 s{sOFP+1}, s27, 0
    v_cmp_gt_u32 vcc, {NCH}, v3
    v_mul_u32_u24 v{T1}, {CH}, v3
    v_and_b32 v{T2}, 1, v0
    v_lshlrev_b32 v{T2}, 2, v{T2}
    s_lshr_b32 s{sTMP}, s2, 3
    s_mul_i32 s{sTMP}, s{sTMP}, {391*128}
    v_min_u32 v1, 390, v0
    v_lshlrev_b32 v1, 7, v1
    s_mov_b32 s{sNN}, s{sTMP}
    s_waitcnt vmcnt({2 if OPT['WLATE'] else 4})
    v_cndmask_b32 v{vC}, 0, v{vC}, vcc
    v_and_b32 v{T0}, 0xffff, v{vC}
    v_lshrrev_b32 v{vC}, 16, v{vC}
    v_add3_u32 v{T0}, v{T0}, v{T1}, v{T2}
    v_cmp_lt_u32 {sr(sSAVE,2)}, {2*NSLOT}, v{vC}
    v_sub_u32 v{vC}, v{vC}, v{T2}
    v_lshlrev_b32 v{vEB}, 5, v{T0 if MOVE else T1}
    v_lshlrev_b32 v{T0}, 2, v{T0}
    v_cmp_lt_i32 vcc, 16, v{vC}
    v_cmp_lt_i32 {sr(52,2)}, 24, v{vC}
    v_cmp_lt_i32 {sr(54,2)}, 32, v{vC}
    buffer_load_dwordx4 {r(pREC,4)}, v{T0}, {sr(sWS,4)}, 0 offen
    buffer_load_dwordx4 {r(pREC+4,4)}, v{T0}, {sr(sWS,4)}, 0 offen offset:32
    s_cmp_lg_u64 {sr(54,2)}, 0
    s_cselect_b32 s{sXR}, 2, 0
    s_cmp_eq_u64 {sr(52,2)}, 0
    s_cbranch_scc1 M_RL3
    s_or_b32 s{sXR}, s{sXR}, 1
    buffer_load_dwordx4 {r(pREC+12,4)}, v{T0}, {sr(sWS,4)}, 0 offen offset:96
    buffer_load_dwordx4 {r(pREC+16,4)}, v{T0}, {sr(sWS,4)}, 0 offen offset:128
M_RL3:
    s_or_b64 vcc, vcc, 1
    s_mov_b64 exec, vcc
    buffer_load_dwordx4 {r(pREC+8,4)}, v{T0}, {sr(sWS,4)}, 0 offen offset:64
    s_mov_b64 exec, -1
    """)
    stamp(1)
    burn(1)
    if not OPT['EARLY'] and not OPT['PADW']: init0()
    if MOVE:
        I(f"""s_add_u32 s{sE}, s26, {PAY}
        s_addc_u32 s{sE+1}, s27, 0
        s_mov_b32 s{sE+2}, {E*32}
        s_mov_b32 s{sE+3}, 0x20000""")
    else:
        srd(sE, 6, E * 32)
    srd(sOUT, 24, N * 128)
    I(f"""
    v_lshlrev_b32 v{T0}, 4, v2
    s_lshr_b32 s{sTMP}, s{sW}, 2
    s_lshl_b32 s{sTMP}, s{sTMP}, 1
    s_and_b32 s{sTMP2}, s{sW}, 1
    s_add_u32 s{sTMP}, s{sTMP}, s{sTMP2}
    s_lshl_b32 s{sTMP}, s{sTMP}, 13
    s_add_u32 s{sTMP}, s{sTMP}, {XS}
    v_add_u32 v{IDX+2}, s{sTMP}, v{T0}
    v_and_b32 v{T1}, 31, v2
    v_lshlrev_b32 v{vLT}, 2, v{T1}
    v_add_u32 v{vLT}, {XAT}, v{vLT}
    v_lshrrev_b32 v{T2}, 5, v2
    v_bfe_u32 v{IDX}, v2, 1, 3
    v_xor_b32 v{IDX}, v{IDX}, v{T2}
    s_bfe_u32 s{sG0}, s{sW}, 0x10001
    s_lshl_b32 s{sTMP2}, s{sG0}, 13
    s_add_u32 s{sTMP}, s{sTMP2}, {row_lds(0)}
    v_lshlrev_b32 v{T1}, 7, v{T1}
    v_add_u32 v{T1}, s{sTMP}, v{T1}
    s_and_b32 s{sD}, s{sW}, 1
    s_lshl_b32 s{sD}, s{sD}, 7
    s_add_u32 s{sTMP2}, s{sTMP2}, s{sD}
    v_lshlrev_b32 v{T2}, 10, v{T2}
    v_add3_u32 v{T2}, v{T2}, v{vLT}, s{sTMP2}
    s_mov_b32 s{sD}, {NLOG2E}
    """)
    for s in range(4):
        I(f"""v_xor_b32 v{AF2+s}, {2*s}, v{IDX}
        v_lshl_add_u32 v{AF2+s}, v{AF2+s}, 4, v{T1}""")
    I(f"""
    v_mov_b32 v{vONE}, 1
    v_mov_b32 v{vFC}, 0xfc
    v_mov_b32 v{vINV}, v{T2}
    """)
    validate(0, 12)
    I('s_waitcnt vmcnt(3) lgkmcnt(0)\ns_barrier')
    if OPT['XPF'] == 2: I(f'buffer_load_dword v1, v1, {sr(sX,4)}, s{sNN} offen')
    for s in range(4):
        I(f'ds_read_b128 {r(pW+4*s,4)}, v{IDX+2} offset:{s*1024}\nds_read_b128 {r(pA+4*s,4)}, v{AF2+s}')
    for f in range(0 if OPT['WLATE'] else 18):
        I(f'ds_read_b128 {r(WB+4*f,4)}, v{IDX+1} offset:{frag_lds(f)}')
    I(f"""
    s_cmp_eq_u64 {sr(sSAVE,2)}, 0
    s_cbranch_scc1 M_NOFLAG
    v_mov_b32 v{T1}, {FLAG}
    ds_write_b32 v{T1}, v{vONE}
M_NOFLAG:
    """)
    if OPT['XAE']:
        I('s_waitcnt lgkmcnt(0)')
        I(mf(pD, pA, pW, '0'))
        for k in range(1, 4): I(mf(pD, pA+4*k, pW+4*k, r(pD, 16)))
    I(f"""
    s_mov_b32 s{sMASK}, {XSENT}
    s_mov_b32 s{sONE}, 1.0
    s_mov_b32 s{sONE+1}, 1.0
    s_mov_b32 s{sMODE}, 0
    s_lshl_b32 s{sM0X}, s{sW}, 13
    s_add_u32 s{sM0X}, s{sM0X}, {XS}
    s_lshl_b32 s{sM0E}, s{sW}, 11
    s_add_u32 s{sM0E}, s{sM0E}, {ES}
    """)
    if OPT['XAE']:
        I('s_nop 3')
        xa_table()
        I(f"s_waitcnt vmcnt({1 if OPT['XPF'] == 2 else 0})")
    else: I(f"s_waitcnt vmcnt({1 if OPT['XPF'] == 2 else 0}) lgkmcnt(0)")
    stamp(2)
    fs = lambda s: thr(s) * 32
    fstamp(1)
    def mid():
        if not OPT['XAE']: I(mf(pD, pA, pW, '0'))
        if OPT['WLATE']: I(bvc())
        if OPT['XPF'] == 1:
            I(f'buffer_load_dword v1, v1, {sr(sX,4)}, s{sNN} offen')
        for k in range(1, 4 if not OPT['XAE'] else 0): I(mf(pD, pA+4*k, pW+4*k, r(pD, 16)))
    pass_a(0, 12, fs, mid)
    if not OPT['XAE']: xa_table()
    fstamp(2)
    I(f's_cmp_eq_u32 s{sXR}, 0\ns_cbranch_scc1 M_RAR')
    validate(12, 16)
    pass_a(12, 16, fs)
    I(f's_cmp_ge_u32 s{sXR}, 2\ns_cbranch_scc1 M_RA\nM_RAR:')
    I('s_waitcnt lgkmcnt(0)\ns_barrier')
    fstamp(3)
    scan()
    fstamp(4)
    I(f"""
    s_cmp_gt_u32 s{sTMP}, {CAP}
    s_cbranch_scc1 M_SLOW
    s_cmp_lg_u32 s{sTMP2}, 0
    s_cbranch_scc1 M_SLOW
    s_cmp_eq_u32 s{sXR}, 0
    s_cbranch_scc1 M_BATCH
    s_cmp_ge_u32 s{sXR}, 2
    s_cbranch_scc1 M_RB
M_RBR:
    """)
    pass_b1(12, 16)
    I('s_waitcnt lgkmcnt(0)')
    pass_b2(12, 16)
    I(f'''
M_BATCH:
    ''')
    pass_b1(0, 12)
    if OPT['PADW'] == 1: pad_write()
    if OPT['B2FIRST']:
        I(f'''
    v_lshrrev_b32 v{vKE}, 4, v2
    v_xor_b32 v{vKE}, v{vKE}, v2
    v_and_b32 v{vKX0}, 7, v{vKE}
    v_lshlrev_b32 v{vKX0}, 4, v{vKX0}
    v_xor_b32 v{vKX1}, 64, v{vKX0}
    v_and_b32 v{vKE}, 1, v{vKE}
    v_lshlrev_b32 v{vKE}, 4, v{vKE}
    s_waitcnt lgkmcnt(0)''')
        pass_b2(0, 12)
        if OPT['PADW'] == 2: pad_write()
    I(f'''
    s_add_u32 s{sTMP}, s{sTMP}, 31
    s_lshr_b32 s52, s{sTMP}, 7
    s_bfe_u32 s53, s{sTMP}, 0x20005
    {kcalc()}
    s_add_u32 s{sBAR}, s59, {OPT['STAG']+1}
    s_add_u32 s59, s59, {OPT['DELTA']}
    s_max_u32 s54, s52, s59
    s_sub_u32 s54, s54, s59
    s_lshr_b32 s54, s54, 1
    s_add_u32 s55, s52, 1
    s_max_u32 s56, s55, s59
    s_sub_u32 s56, s56, s59
    s_lshr_b32 s56, s56, 1
    s_sub_u32 s52, s52, s54
    s_sub_u32 s55, s55, s56
    s_mul_i32 s57, s55, s53
    s_sub_u32 s58, 4, s53
    s_mul_i32 s58, s58, s52
    s_add_u32 s57, s57, s58
    s_cmp_ge_u32 s{sW}, 4
    s_cselect_b32 s52, s54, s52
    s_cselect_b32 s55, s56, s55
    s_cselect_b32 s57, s57, 0
    s_cselect_b32 s{sBAR}, 0, s{sBAR}
    s_and_b32 s58, s{sW}, 3
    s_cmp_lt_u32 s58, s53
    s_cselect_b32 s{sTW}, s55, s52
    s_min_u32 s53, s53, s58
    s_sub_u32 s58, s58, s53
    s_mul_i32 s53, s53, s55
    s_mul_i32 s58, s58, s52
    s_add_u32 s{sG0}, s57, s53
    s_add_u32 s{sG0}, s{sG0}, s58
    s_lshl_b32 s{sG0}, s{sG0}, 7
    s_add_u32 s{sG0}, s{sG0}, {LX}
    s_lshl_b32 s{sTMP2}, s{sTW}, 5
    v_lshrrev_b32 v{T0}, 4, v2
    v_mul_u32_u24 v{T0}, s{sTMP2}, v{T0}
    v_bfe_u32 v{T1}, v2, 3, 1
    v_lshl_add_u32 v{T0}, v{T1}, 4, v{T0}
    v_add_u32 v{vLX}, s{sG0}, v{T0}
    v_bfe_u32 v{T0}, v2, 3, 2
    v_mul_u32_u24 v{T0}, s{sTMP2}, v{T0}
    v_bfe_u32 v{T1}, v2, 2, 1
    v_lshl_add_u32 v{T0}, v{T1}, 4, v{T0}
    v_lshrrev_b32 v{T1}, 5, v2
    v_lshl_add_u32 v{T0}, v{T1}, 3, v{T0}
    v_bfe_u32 v{T1}, v2, 1, 1
    v_lshl_add_u32 v{T0}, v{T1}, 2, v{T0}
    v_add_u32 v{vLE}, s{sG0}, v{T0}
    s_sub_u32 s{sTMP}, s{sTW}, 1
    v_min_u32 v{T0}, s{sTMP}, v2
    v_lshlrev_b32 v{T0}, 5, v{T0}
    v_add_u32 v{T0}, s{sG0}, v{T0}
    v_add_u32 v{T1}, s{sTMP2}, v{T0}
    v_add_u32 v{T2}, s{sTMP2}, v{T1}
    v_add_u32 v{vSCH}, s{sTMP2}, v{T2}
    ''')
    if not OPT['B2FIRST']:
        I(f'''
    v_lshrrev_b32 v{vKE}, 4, v2
    v_xor_b32 v{vKE}, v{vKE}, v2
    v_and_b32 v{vKX0}, 7, v{vKE}
    v_lshlrev_b32 v{vKX0}, 4, v{vKX0}
    v_xor_b32 v{vKX1}, 64, v{vKX0}
    v_and_b32 v{vKE}, 1, v{vKE}
    v_lshlrev_b32 v{vKE}, 4, v{vKE}
    s_waitcnt lgkmcnt(0)''')
        pass_b2(0, 12)
    fstamp(5)
    I(f'''
    s_waitcnt vmcnt({1 if OPT['XPF'] == 1 else 0}) lgkmcnt(0)
    s_barrier
    ''')
    stamp(3)
    if OPT['NOX']: I(f's_mov_b32 s{sX+2}, 0')
    if OPT['NOE']: I(f's_mov_b32 s{sE+2}, 0')
    g0 = dma_tile(Z, sM0X, sM0E, 0, 0)
    g1 = dma_tile(Z+16, sM0X, sM0E, 4096, 1024)
    g1_idx = dma_tile(IDX, sM0X, sM0E, 0, 0)
    I(f"""
    ds_read_b128 {r(Z,4)}, v{vLX}
    ds_read_b32 v{Z+4}, v{vLE} offset:16384
    ds_read_b32 v{T0}, v{T0}
    ds_read_b32 v{T1}, v{T1}
    ds_read_b32 v{T2}, v{T2}
    ds_read_b32 v{vSCH}, v{vSCH}
    ds_read_b128 {r(Z+16,4)}, v{vLX} offset:32
    ds_read_b32 v{Z+20}, v{vLE} offset:{16384+32}
    ds_read_b128 {r(IDX,4)}, v{vLX} offset:64
    ds_read_b32 v{IDX+4}, v{vLE} offset:{16384+64}
    v_lshlrev_b32 v{vFC}, 4, v2
    v_add_u32 v{vFC}, {WBASE}, v{vFC}
    s_cmp_ge_u32 s{sW}, 4
    s_cbranch_scc1 M_NOT0
    s_setprio 1
    s_cmp_eq_u32 s{sTW}, 0
    s_waitcnt lgkmcnt(8)
    s_cbranch_scc1 M_NOT0
    """)
    for g in g0: I('\n'.join(g))
    I(f"""
M_NOT0:
    s_waitcnt lgkmcnt(0)
    v_bfe_u32 v{T0}, v{T0}, 1, 6
    v_bfe_u32 v{T1}, v{T1}, 1, 6
    v_bfe_u32 v{T2}, v{T2}, 1, 6
    v_bfe_u32 v{vSCH}, v{vSCH}, 1, 6
    v_lshl_or_b32 v{T0}, v{T1}, 8, v{T0}
    v_lshl_or_b32 v{T0}, v{T2}, 16, v{T0}
    v_lshl_or_b32 v{vSCH}, v{vSCH}, 24, v{T0}
    v_add_u32 v{vLX}, 96, v{vLX}
    v_mov_b32 v{T0}, v{vSCH}
    v_readfirstlane_b32 s{sNC}, v{vSCH}
    v_add_u32 v{vLE}, {16384+96}, v{vLE}
    v_mov_b32_dpp v{T0}, v{vSCH} wave_shr:1 row_mask:0xf bank_mask:0xf
    s_mov_b32 s{sT}, 1
    v_xor_b32 v{T0}, v{T0}, v{vSCH}
    v_add_u32 v{T0}, 0x3f3f3f3f, v{T0}
    v_and_b32 v{T0}, 0x40404040, v{T0}
    v_or_b32 v{vSCH}, v{vSCH}, v{T0}
    s_mov_b32 s{sNP}, s{sNC}
    """)
    for j in range(4):
        I(f"""s_bfe_u32 s{sTMP}, s{sNC}, {(6 << 16) | (8*j)}
        s_lshl_b32 s{sTMP}, s{sTMP}, 8
        v_add_u32 v{T0}, s{sTMP}, v{vLT}
        ds_read_b32 v{XA+4*j}, v{T0}
        ds_read_b32 v{XA+16+4*j}, v{T0} offset:128""")
    I(f"""
    s_cmp_eq_u32 s{sMODE}, 2
    s_cbranch_scc1 M_NOWT
    """)
    for f in (16, 0, 1, 2, 3, 8, 9, 10, 11, 17, 4, 5, 6, 7, 12, 13, 14, 15):
        I(f'ds_read_b128 {r(WB+4*f,4)}, v{vFC} offset:{frag_off(f)}')
    I(f"""s_cmp_lt_u32 s{sW}, 4
    s_cbranch_scc1 M_TDONE
    s_bfe_u32 s{sXR}, s{sW}, 0x10001
    v_subrev_u32 v{vINV}, {XAT}, v{vINV}
    v_lshlrev_b32 v{vINV}, 1, v{vINV}
    v_add_u32 v{vINV}, {AGG}, v{vINV}
    """)
    for k in range(16):
        if k == 12: I(f's_cmp_lg_u32 s{sXR}, 0\ns_cbranch_scc1 M_TDONE')
        I(f'v_cvt_f64_f32 {r(AF+2*(k%8),2)}, v{pD+k}\nds_add_f64 v{vINV}, {r(AF+2*(k%8),2)} offset:{(8*(k//4)+k%4)*512}')
    I('M_TDONE:')
    j_, i_, h_, g_, t_, u_ = AF2, AF2+1, AF2+2, AF2+3, AF2+4, AF2+5
    I(f"""
    s_lshl_b32 s{sMODE}, s{sMODE}, 1
    v_lshlrev_b32 v{vLA}, 3, v2
    v_add_u32 v{vLA}, {AGG}, v{vLA}
    v_bfe_u32 v{j_}, v2, 3, 2
    v_and_b32 v{i_}, 3, v2
    v_lshrrev_b32 v{h_}, 5, v2
    v_lshrrev_b32 v{t_}, 1, v{j_}
    v_xor_b32 v{g_}, v{t_}, v{j_}
    v_lshrrev_b32 v{u_}, 2, v2
    v_xor_b32 v{g_}, v{g_}, v{u_}
    v_and_b32 v{g_}, 1, v{g_}
    v_xor_b32 v{t_}, v{t_}, v{h_}
    v_lshlrev_b32 v{t_}, 4, v{t_}
    v_lshl_or_b32 v{u_}, v{j_}, 2, v{i_}
    v_lshl_or_b32 v{u_}, v{g_}, 4, v{u_}
    v_lshl_or_b32 v{t_}, v{u_}, 5, v{t_}
    v_add_u32 v{vRE}, s{sM0E}, v{t_}
    v_and_b32 v{t_}, 1, v{i_}
    v_lshl_or_b32 v{u_}, v{g_}, 1, v{t_}
    v_lshlrev_b32 v{u_}, 3, v{u_}
    v_lshl_or_b32 v{u_}, v{j_}, 1, v{u_}
    v_lshrrev_b32 v{i_}, 1, v{i_}
    v_or_b32 v{u_}, v{u_}, v{i_}
    v_lshlrev_b32 v{u_}, 7, v{u_}
    v_add_u32 v{u_}, s{sM0X}, v{u_}
    v_lshl_or_b32 v{t_}, v{t_}, 2, v{j_}
    v_xor_b32 v{t_}, v{t_}, v{h_}
    """)
    for s in range(4):
        I(f"""v_xor_b32 v{g_}, {2*s}, v{t_}
        v_lshl_add_u32 v{vRA+s}, v{g_}, 4, v{u_}""")
    I('M_NOWT:')
    for k in range(8): I(f'v_mov_b64 {r(ACC+2*k,2)}, 0')
    for g in g1: I(g[1])
    for g in dma_tile(IDX, sM0X, sM0E, 0, 0): I(g[1])
    I(f"""
    s_cmp_ge_u32 s{sW}, 4
    s_cbranch_scc1 M_YNG
    s_cmp_eq_u32 s{sTW}, 0
    s_cbranch_scc1 M_BDONE
    s_cmp_lt_u32 s{sTW}, 2
    s_cbranch_scc1 M_W0
    """)
    for g in g1: I(g[0] + '\ns_nop 0\n' + g[2])
    I(f"""s_waitcnt vmcnt(5) lgkmcnt(0)
M_W1:""")
    I(f'ds_read_b128 {r(AF+16,4)}, v{vRE}')
    for s in range(4): I(f'ds_read_b128 {r(AF+4*s,4)}, v{vRA+s}')
    for ft in range(2):
        for j in range(4):
            for i in range(1, 4): I(f'v_mov_b32 v{XA+16*ft+4*j+i}, v{XA+16*ft+4*j}')
    I('s_waitcnt lgkmcnt(0)')
    for m in zm(0): I(m)
    if OPT['ONEB']:
        I(f's_cmp_lt_u32 s{sW}, 4\ns_cbranch_scc1 M_OB1\ns_cmp_lt_u32 s{sTW}, 2\ns_cbranch_scc1 M_OB1')
        for g in g1: I(g[0] + '\ns_nop 0\n' + g[2])
        I(f'M_OB1:\ns_cmp_lt_u32 s{sTW}, 3\ns_cbranch_scc1 M_OB2')
        for g in dma_tile(IDX, sM0X, sM0E, 0, 0): I(g[0] + '\ns_nop 0\n' + g[2])
        I(f'''M_OB2:
        ds_read_b128 {r(IDX,4)}, v{vLX}
        ds_read_b32 v{IDX+4}, v{vLE}
        v_add_u32 v{vLX}, 32, v{vLX}
        v_add_u32 v{vLE}, 32, v{vLE}
        v_readlane_b32 s{sNN}, v{vSCH}, 1
        s_waitcnt lgkmcnt(0)''')
        for g in g1_idx: I(g[1])
    I(f"""s_cmp_eq_u32 s{sBAR}, 0
    s_cbranch_scc1 M_YNG2
    s_nop 7
    s_nop 1
M_GO:""")
    if OPT['WAITM']: I('s_mov_b32 s62, 0')
    OUT.append(lambda: (
        I(f"""M_W0:
        s_waitcnt vmcnt(0) lgkmcnt(0)
        s_branch M_W1
M_YNG:
        s_cmp_eq_u32 s{sTW}, 0
        s_cbranch_scc1 M_YE
        {'s_waitcnt lgkmcnt(0)' + chr(10) + 's_barrier' if OPT['YT0'] else ''}"""),
        [I('\n'.join(g)) for g in g0],
        I(f"""s_branch M_W0
M_YE:
        s_waitcnt lgkmcnt(0)
        s_barrier
        s_branch M_BDONE2
M_YNG2:
        {'' if OPT['YT0'] else 's_barrier'}
        s_cmp_lt_u32 s{sTW}, 2
        s_cbranch_scc1 M_YG"""),
        [I(g[0] + '\ns_nop 0\n' + g[2]) for g in (g1 if not OPT['ONEB'] else [])],
        I('M_YG:\ns_nop 7\ns_branch M_GO')))
    if OPT['DLY'] == 1:
        I(f's_cmp_lt_u32 s{sW}, 4\ns_cbranch_scc1 M_NODLY\ns_sleep {OPT["DLYN"]}\nM_NODLY:')
    if OPT['DLY'] == 2:
        I(f'''s_bfe_u32 s{sTMP}, s2, 0x20003
M_DL:
        s_cmp_eq_u32 s{sTMP}, 0
        s_cbranch_scc1 M_NODLY
        s_sleep {OPT["DLYN"]}
        s_sub_u32 s{sTMP}, s{sTMP}, 1
        s_branch M_DL
M_NODLY:''')
    stamp(4)
    I('.p2align 6')
    for p in range(2 if OPT['ONEB'] else 0):
        nb = 1 - p
        afc, afn = (AF, AF2) if p == 0 else (AF2, AF)
        aec, aen = (AF+16, AFE2) if p == 0 else (AFE2, AF+16)
        PB = OPT['PB']
        g = dma_tile(IDX, sM0X, sM0E, nb*4096, nb*1024)
        I(f'''
M_LOOP{p}:
    {TR(0)}
    {evchk('F', p, sNC)}
    {evchk('X', p, sNN)}
    s_cmp_eq_u32 s{sT}, s{sBAR}
    s_cbranch_scc1 M_SB{p}
M_SBR{p}:
    s_setprio 0
    s_add_u32 s{sTMP}, s{sT}, 1
    s_cmp_lt_u32 s{sTMP}, s{sTW}
    s_cbranch_scc0 M_WZ{p}
    s_waitcnt vmcnt(5)
M_WZR{p}:
        ''')
        I(f'ds_read_b128 {r(aen,4)}, v{vRE} offset:{nb*1024}')
        for s_ in range(4): I(f'ds_read_b128 {r(afn+4*s_,4)}, v{vRA+s_} offset:{nb*4096}')
        I(f'''s_add_u32 s{sTMP}, s{sT}, 2
    s_cmp_lt_u32 s{sTMP}, s{sTW}
    s_waitcnt lgkmcnt(0)
    s_cbranch_scc0 M_ND{p}''')
        for q in range(5): I(g[q][0] + '\ns_nop 0\n' + g[q][2])
        I(f'M_ND{p}:')
        I(f'ds_read_b128 {r(IDX,4)}, v{vLX} offset:{32*p}\nds_read_b32 v{IDX+4}, v{vLE} offset:{32*p}')
        hv = hm(0, afc)
        EF = OPT['EF']
        ins = {1: [f's_setprio {PB}']}
        for k in range(4): ins.setdefault(EF + 3*k, []).append(hv[k])
        ins.setdefault(OPT['P2POS'], []).insert(0, f's_setprio {OPT["PB2"]}')
        I('\n'.join(weave(exps(0), ins)))
        I('\n'.join(pkadd(0)))
        zz = zm(1, afc, aec)
        I('\n'.join(weave(rcps(0), {0: [zz[0]], 3: [zz[1]], 6: [zz[2]], 9: [zz[3]], 12: [zz[4]]})))
        I('\n'.join(pkf(0)))
        hv = hm(1, afc)
        I('\n'.join(weave(exps(1), {0: [hv[0]], 3: [hv[1]], 6: [hv[2]], 9: [hv[3]]})))
        I('\n'.join(pkadd(1)))
        zz = zm(0, afn, aen)
        I('\n'.join(weave(rcps(1), {0: [zz[0]], 3: [zz[1]], 6: [zz[2]], 9: [zz[3]], 12: [zz[4]]})))
        I('\n'.join(pkf(1)))
        I(f'''s_add_u32 s{sT}, s{sT}, 1
    s_mov_b32 s{sNP}, s{sNC}
    s_mov_b32 s{sNC}, s{sNN}
    s_waitcnt lgkmcnt(0)
    v_readlane_b32 s{sNN}, v{vSCH}, s{sT}''')
        for q in range(5): I(g[q][1])
        if p == 1: I(f'v_add_u32 v{vLX}, 64, v{vLX}\nv_add_u32 v{vLE}, 64, v{vLE}')
        I(f's_cmp_le_u32 s{sT}, s{sTW}')
        I('s_cbranch_scc0 M_LEND' if p == 0 else 's_cbranch_scc1 M_LOOP0')
    for p in range(0 if OPT['ONEB'] else 2):
        nb = 1 - p
        afc, afn = (AF, AF2) if p == 0 else (AF2, AF)
        PB = OPT['PB']
        I(f'''
M_LOOP{p}:
    {TR(0)}
    {evchk('F', p, sNC)}
    s_cmp_eq_u32 s{sT}, s{sBAR}
    s_cbranch_scc1 M_SB{p}
M_SBR{p}:
    {'' if OPT['LATE0'] else 's_setprio 0'}
    s_add_u32 s{sTMP}, s{sT}, 1
    s_cmp_lt_u32 s{sTMP}, s{sTW}
    s_cbranch_scc0 M_ND{p}
        ''')
        g = dma_tile(IDX, sM0X, sM0E, p*4096, p*1024)
        I(g[0][0])
        for q in range(5):
            I('s_nop 0' if q == 0 else g[q][0])
            if q > 0: I('s_nop 0')
            I(g[q][2])
        I(f'M_ND{p}:')
        def eblk(ft, extra):
            if OPT['LATE0']: I('s_setprio 0')
            hv = hm(ft, afc)
            ES_, EF = OPT['ES'], OPT['EF']
            ins = {}
            for k in range(4): ins.setdefault(EF + ES_*k, []).append(hv[k])
            if OPT['PPOS'] == 0 and EF == 0: ins[0].append(f's_setprio {PB}')
            else: ins.setdefault(max(1, OPT['PPOS']), []).insert(0, f's_setprio {PB}')
            if OPT['PB2'] >= 0: ins.setdefault(OPT['P2POS'], []).insert(0, f's_setprio {OPT["PB2"]}')
            for k, v in extra.items(): ins.setdefault(k, []).extend(v)
            I('\n'.join(weave(exps(ft), ins)))
        eblk(0, {11: [f'v_readlane_b32 s{sNN}, v{vSCH}, s{sT}']})
        I('\n'.join(pkadd(0)))
        zz = zm(1, afc)
        I('\n'.join(weave(rcps(0), {0: [zz[0]], 3: [zz[1]], 6: [zz[2]], 9: [zz[3]], 12: [zz[4]]})))
        I('\n'.join(pkf(0)))
        I(f'''
    {evchk('X', p, sNN)}
    {'' if OPT['LATE0'] else 's_setprio 0'}
    s_add_u32 s{sTMP}, s{sT}, 1
    s_cmp_lt_u32 s{sTMP}, s{sTW}
    {'s_memtime s[76:77]' if OPT['WAITM'] else ''}
    s_cbranch_scc0 M_WZ{p}
    s_waitcnt vmcnt(5)
M_WZR{p}:
        ''')
        if OPT['WAITM']:
            I('''s_memtime s[78:79]
            s_waitcnt lgkmcnt(0)
            s_sub_u32 s78, s78, s76
            s_add_u32 s62, s62, s78''')
        I(f'ds_read_b128 {r(AF+16,4)}, v{vRE} offset:{nb*1024}')
        for s_ in range(4): I(f'ds_read_b128 {r(afn+4*s_,4)}, v{vRA+s_} offset:{nb*4096}')
        io = 32 * p if OPT['INC2'] else 0
        I(f'ds_read_b128 {r(IDX,4)}, v{vLX} offset:{io}\nds_read_b32 v{IDX+4}, v{vLE} offset:{io}')
        if OPT['WOUT']: I('s_waitcnt lgkmcnt(0)')
        eblk(1, {})
        I('\n'.join(pkadd(1)))
        zz = zm(0, afn)
        if not OPT['WOUT']: I('s_waitcnt lgkmcnt(0)')
        I('\n'.join(weave(rcps(1), {0: [zz[0]], 3: [zz[1]], 6: [zz[2]], 9: [zz[3]], 12: [zz[4]]})))
        I('\n'.join(pkf(1)))
        if OPT['IDLE']:
            I(f's_cmp_gt_u32 s{sT}, {OPT["IDLEK"]}\ns_cbranch_scc1 M_NOIDLE{p}')
            for _ in range(OPT['IDLE']): I(f'v_mov_b32 v{T4}, v{T4}')
            I(f'M_NOIDLE{p}:')
        for q in range(5): I(g[q][1])
        if not OPT['INC2']: I(f'v_add_u32 v{vLX}, 32, v{vLX}\nv_add_u32 v{vLE}, 32, v{vLE}')
        elif p == 1: I(f'v_add_u32 v{vLX}, 64, v{vLX}\nv_add_u32 v{vLE}, 64, v{vLE}')
        I(f'''
    s_mov_b32 s{sNP}, s{sNC}
    s_mov_b32 s{sNC}, s{sNN}
    s_add_u32 s{sT}, s{sT}, 1
    s_cmp_le_u32 s{sT}, s{sTW}''')
        I('s_cbranch_scc0 M_LEND' if p == 0 else 's_cbranch_scc1 M_LOOP0')
    I('M_LEND:')
    I(TR(0))
    I('s_setprio 0')
    if OPT['FL2']:
        for j in range(4):
            I(f'''v_add_f32 v{Z+j}, v{ACC+2*j}, v{ACC+2*j+1}
            v_add_f32 v{Z+4+j}, v{ACC+8+2*j}, v{ACC+8+2*j+1}
            s_bfe_u32 s{52+j}, s{sNP}, {(6 << 16) | (8*j)}
            s_lshl_b32 s{52+j}, s{52+j}, 9''')
        for j in range(4): I(f'v_permlane32_swap_b32 v{Z+j}, v{Z+4+j}\nv_add_u32 v{Z+8+j}, s{52+j}, v{vLA}')
        for j in range(4): I(f'v_add_f32 v{Z+j}, v{Z+j}, v{Z+4+j}')
        for j in range(4): I(f'v_cvt_f64_f32 {r(Z+16+2*j,2)}, v{Z+j}\nds_add_f64 v{Z+8+j}, {r(Z+16+2*j,2)}')
    else:
        for j in range(4): flush_j(j, sNP)
    I(f'''
M_BDONE:
    s_cmp_lt_u32 s{sTW}, s{sBAR}
    s_cbranch_scc0 M_BDONE2
    s_waitcnt lgkmcnt(0)
    s_barrier
M_BDONE2:
    s_setprio 0
    s_cmp_lg_u32 s{sMODE}, 0
    s_cbranch_scc1 M_SNEXT
M_EPI:
    ''')
    stamp(5)
    I(f'''
    s_waitcnt lgkmcnt(0)
    s_barrier
    v_cmp_gt_u32 vcc, {BN*8}, v0
    s_and_saveexec_b64 {sr(sSAVE,2)}, vcc
    s_cbranch_execz M_FIN
    v_lshlrev_b32 v{T0}, 6, v0
    v_add_u32 v{T0}, {AGG}, v{T0}
    ds_read_b128 {r(Z+16,4)}, v{T0}
    ds_read_b128 {r(Z+20,4)}, v{T0} offset:16
    ds_read_b128 {r(Z+24,4)}, v{T0} offset:32
    ds_read_b128 {r(Z+28,4)}, v{T0} offset:48
    s_mov_b32 s{sTMP}, {NLOG2E}
    s_mul_i32 s{sTMP2}, s{sB}, {BN*128}
    v_lshlrev_b32 v{T1}, 4, v0
    s_waitcnt lgkmcnt(0)
    ''')
    for k in range(8): I(f'v_cvt_f32_f64 v{Z+k}, {r(Z+16+2*k,2)}')
    for k in range(8): I(f'v_mul_f32 v{Z+8+k}, s{sTMP}, v{Z+k}')
    for k in range(8): I(f'v_exp_f32 v{Z+8+k}, v{Z+8+k}')
    for k in range(8): I(f'v_add_f32 v{Z+8+k}, 1.0, v{Z+8+k}')
    for k in range(8): I(f'v_rcp_f32 v{Z+8+k}, v{Z+8+k}')
    for k in range(8): I(f'v_mul_f32 v{Z+k}, v{Z+k}, v{Z+8+k}')
    for k in range(4): I(f'v_cvt_pk_bf16_f32 v{Z+16+k}, v{Z+2*k}, v{Z+2*k+1}')
    I(f'buffer_store_dwordx4 {r(Z+16,4)}, v{T1}, {sr(sOUT,4)}, s{sTMP2} offen {OPT["OUT_AUX"]}')
    I('M_FIN:')
    if OPT['AMP']:
        I(f'''s_cmp_lg_u32 s2, 0
        s_cbranch_scc1 M_END
        s_cmp_lg_u32 s{sW}, 0
        s_cbranch_scc1 M_END
        s_waitcnt vmcnt(0)
        s_memrealtime s[60:61]
        s_add_u32 s56, s26, {WF + 0x10000}
        s_addc_u32 s57, s27, 0
        s_load_dword s58, s[56:57], 0
        s_waitcnt lgkmcnt(0)''')
        if OPT['AMP'] == 2: I('s_mov_b32 s60, s3')
        if OPT['AMP'] == 3: I('s_mov_b32 s58, s3')
        if OPT['AMP'] >= 10: I('s_mov_b32 s58, s3\ns_mov_b32 s60, s100')
        I(f'''s_sub_u32 s59, s60, s58
        s_min_u32 s59, s59, 20000
        s_mul_i32 s59, s59, 10
        s_memrealtime s[60:61]
        s_waitcnt lgkmcnt(0)
        s_mov_b32 s58, s60
M_SPIN:
        s_memrealtime s[60:61]
        s_waitcnt lgkmcnt(0)
        s_sub_u32 s62, s60, s58
        s_cmp_lt_u32 s62, s59
        s_cbranch_scc1 M_SPIN''')
    if OPT['DBG']: dbgdump(7, 6)
    elif OPT['STAMP']:
        I('s_mov_b64 exec, -1\ns_waitcnt vmcnt(0)')
        putstamp(6)
        I(f'''v_writelane_b32 v{vST}, s{sTW}, 7
        s_add_u32 s52, s26, 0x8000000
        s_addc_u32 s53, s27, 0
        s_mov_b32 s54, 0x100000
        s_mov_b32 s55, 0x20000
        s_lshl_b32 s56, s2, 3
        s_add_u32 s56, s56, s{sW}
        s_lshl_b32 s56, s56, 5
        v_lshlrev_b32 v1, 2, v2
        s_mov_b64 exec, 0xff
        buffer_store_dword v{vST}, v1, s[52:55], s56 offen''')
        if OPT['TRACE']:
            I(f'''s_mov_b64 exec, -1
            s_lshl_b32 s56, s56, 3
            s_add_u32 s56, s56, 0x20000
            v_lshlrev_b32 v1, 2, v2
            buffer_store_dword v{vTR}, v1, s[52:55], s56 offen''')
    I('M_END:\ns_endpgm')
    for p in range(2):
        for j in range(4 if not OPT['NOEV'] else 0):
            I(f'M_F{p}{j}:\ns_setprio {OPT["PE"]}')
            if OPT['ONEB']: xa_half(j, sNC, 1)
            flush_j(j, sNP)
            I(f's_branch M_FR{p}{j}')
            I(f'M_X{p}{j}:\ns_setprio {OPT["PE"]}')
            if OPT['ONEB']: xa_half(j, sNN, 0)
            else: xa_j(j, sNN)
            I(f's_branch M_XR{p}{j}')
        I(f'M_WZ{p}:\ns_waitcnt vmcnt(0)\ns_branch M_WZR{p}')
        I(f'M_SB{p}:\ns_barrier\ns_branch M_SBR{p}')
    for f in OUT: f()
    if OPT['CPF'] & 2:
        I(f'''M_CPF:
        s_getpc_b64 s[52:53]
M_PC:
        s_sub_u32 s52, s52, M_PC-{MAIN}
        s_subb_u32 s53, s53, 0
        v_lshlrev_b32 v{AF}, 7, v2
        v_min_u32 v{AF+1}, M_SLOW-{MAIN}-8196, v{AF}
        v_add_u32 v{AF+1}, 8192, v{AF+1}
        global_load_dword v{AF+8}, v{AF}, s[52:53]
        global_load_dword v{AF+8}, v{AF+1}, s[52:53]
        s_branch M_NOROW''')
    I('M_RA:')
    validate(16, 20)
    pass_a(16, 20, fs)
    I('s_branch M_RAR')
    I('M_RB:')
    pass_b1(16, 20)
    I('s_waitcnt lgkmcnt(0)')
    pass_b2(16, 20)
    validate(0, 4)
    I('s_nop 3\ns_branch M_RBR')
    I(f'''
M_SLOW:
    s_mov_b32 s{sMODE}, 1
    s_mov_b32 s{sSEG}, -1
M_SNEXT:
    s_add_u32 s{sSEG}, s{sSEG}, 1
    s_cmp_ge_u32 s{sSEG}, {NCH}
    s_cbranch_scc1 M_EPI
    s_lshl_b32 s{sTMP}, s{sSEG}, {OPT['OFG'].bit_length()+1}
    s_load_dword s{sD}, {sr(sOFP,2)}, s{sTMP}
    s_waitcnt lgkmcnt(0)
    s_lshr_b32 s{sTMP2}, s{sD}, 16
    s_cmp_eq_u32 s{sTMP2}, 0
    s_cbranch_scc1 M_SNEXT
    s_barrier
    ''')
    if OPT['PADW']: cnt_zero()
    else: lds_init()
    I(f'''
    s_and_b32 s{sD}, s{sD}, 0xffff
    s_mul_i32 s{sTMP}, s{sSEG}, {CH}
    s_add_u32 s{sD}, s{sD}, s{sTMP}
    v_add_u32 v{T0}, s{sD}, v0
    v_mov_b32 v{T1}, s{sTMP}
    v_lshlrev_b32 v{vEB}, 5, v{T0 if MOVE else T1}
    v_lshlrev_b32 v{T0}, 2, v{T0}
    v_sub_u32 v{vC}, s{sTMP2}, v0
    v_add_u32 v{vC}, 511, v{vC}
    v_ashrrev_i32 v{vC}, 9, v{vC}
    v_cmp_lt_i32 vcc, 4, v{vC}
    v_add_u32 v{T1}, 4, v{vC}
    s_nop 0
    v_cndmask_b32 v{vC}, v{vC}, v{T1}, vcc
    ''')
    for s in range(7):
        I(f'buffer_load_dword v{pREC+s}, v{T0}, {sr(sWS,4)}, 0 offen')
        if s < 6: I(f'v_add_u32 v{T0}, 2048, v{T0}')
    I('s_waitcnt vmcnt(0) lgkmcnt(0)\ns_barrier')
    validate(0, 12)
    I(f'v_mov_b32 v{vFC}, 0xfc')
    pass_a(0, 12, lambda s: s * 16384)
    I('s_waitcnt lgkmcnt(0)\ns_barrier')
    scan()
    I('s_branch M_BATCH')
    I('M_CODE_END:')

def kd(name, vgpr, sgpr):
    return f'''.amdhsa_kernel {name}
  .amdhsa_next_free_vgpr {vgpr}
  .amdhsa_next_free_sgpr {sgpr}
  .amdhsa_accum_offset {(vgpr+3)//4*4}
  .amdhsa_group_segment_fixed_size 0
  .amdhsa_kernarg_size 80
  .amdhsa_user_sgpr_count 2
  .amdhsa_user_sgpr_kernarg_segment_ptr 1
  .amdhsa_system_sgpr_workgroup_id_x 1
.end_amdhsa_kernel
'''

HEAD = open('gather_scatter__edge_featured_mpnn_egc__graph.s.ref').read().split('; Override')[0]
gen_part()
gen_main()
if OPT['EXTRA']:
    header('nop_kernel'); I('s_endpgm')
out = HEAD + f'''; Two launches: part_kernel bins the edges by destination bucket, the main kernel does the rest.
{'; @launch kernel=nop_kernel grid=(1,1,1) block=(64,1,1) lds=0'+chr(10) if OPT['EXTRA']==1 else ''}; @launch kernel=part_kernel grid=({NCH+5+OPT['CPW']},1,1) block=(512,1,1) lds={K1_LDS}
{'; @launch kernel=nop_kernel grid=(1,1,1) block=(64,1,1) lds=0'+chr(10) if OPT['EXTRA']==2 else ''}; @launch kernel={MAIN} grid=({NB},1,1) block=(512,1,1) lds={M_LDS}
{'; @launch kernel=nop_kernel grid=(1,1,1) block=(64,1,1) lds=0'+chr(10) if OPT['EXTRA']==3 else ''}.amdgcn_target "amdgcn-amd-amdhsa--gfx950"
.text
''' + '\n'.join(L) + '''
.section .rodata,"a"
.p2align 6
''' + kd('part_kernel', 88, 80) + '.p2align 6\n' + kd(MAIN, 248 if (OPT['TRACE'] or OPT['STAMP']) else NV, 102) + ('.p2align 6\n' + kd('nop_kernel', 8, 8) if OPT['EXTRA'] else '')
open(sys.argv[1], 'w').write(out)
```

```python
import sys, struct

OPT = dict(STAMP=0, FINE=0, CYC=0, TRACE=0, AMP=0, NOX=0, NOE=0,
           STAG=0, DELTA=4, NREF=0, SLOPE=2, KMAX=8, G4=0, SCH=2, AG=0, EFIRST=0, YT0=1, EPI=1,
           PB=1, PB2=2, PE=3, EF=3, P2POS=8, XPF=1)
for a in sys.argv[2:]:
    k, v = a.split('=')
    assert k in OPT, k
    OPT[k] = int(v) if v.lstrip('-').isdigit() else v.replace('_', ' ')

N, E = 12500, 800000
NB, BN = 256, 49
NCH, CH = 250, 3200
REC, OFFS, WF = 0, 0x400000, 0x480000
WS_BYTES = 0x500000
NFRAG = 34
NCPW = 8
G4 = OPT['G4']
GR = 4 if G4 else 8
if not OPT['NREF']: OPT['NREF'] = 107 if G4 else 110
NLOG2E = struct.unpack('<I', struct.pack('<f', -1.4426950408889634))[0]
MAIN = 'gather_scatter__edge_featured_mpnn_egc__graph_kernel'

L = []
def I(s):
    for ln in s.strip('\n').split('\n'):
        ln = ln.strip()
        if ln:
            L.append(ln if ln.endswith(':') else '    ' + ln)
def C(s):
    for ln in s.strip('\n').split('\n'): L.append('    ; ' + ln.strip())
def r(a, n): return f'v[{a}:{a+n-1}]'
def sr(a, n): return f's[{a}:{a+n-1}]'
def srd(d, base, nbytes):
    I(f'''s_mov_b32 s{d}, s{base}
    s_mov_b32 s{d+1}, s{base+1}
    s_mov_b32 s{d+2}, {nbytes}
    s_mov_b32 s{d+3}, 0x20000''')
def dpp_scan(v):
    for ctl in ('row_shr:1', 'row_shr:2', 'row_shr:4', 'row_shr:8'):
        I(f's_nop 1\nv_add_u32_dpp v{v}, v{v}, v{v} {ctl} row_mask:0xf bank_mask:0xf bound_ctrl:1')
    I(f's_nop 1\nv_add_u32_dpp v{v}, v{v}, v{v} row_bcast:15 row_mask:0xa bank_mask:0xf')
    I(f's_nop 1\nv_add_u32_dpp v{v}, v{v}, v{v} row_bcast:31 row_mask:0xc bank_mask:0xf')
def header(name):
    I(f'.globl {name}\n.p2align 8\n.type {name},@function\n{name}:')

K1_BASE, K1_SORT = 1024, 2048
K1_LDS = K1_SORT + CH * 4

def kstamp(i):
    if OPT['STAMP']: I(f's_memrealtime s[{60+2*i}:{61+2*i}]\ns_waitcnt lgkmcnt(0)')
def kdump():
    if not OPT['STAMP']: return
    I(f'''; K1STAMP
    s_waitcnt vmcnt(0)
    s_memrealtime s[70:71]
    s_mov_b64 exec, 1
    s_waitcnt lgkmcnt(0)
    s_add_u32 s52, s24, 0x8100000
    s_addc_u32 s53, s25, 0
    s_mov_b32 s54, 0x100000
    s_mov_b32 s55, 0x20000
    s_lshl_b32 s56, s2, 3
    s_add_u32 s56, s56, s28
    s_lshl_b32 s56, s56, 5
    v_mov_b32 v1, 0''')
    for i in range(8): I(f'v_mov_b32 v{8+i}, s{60+2*min(i,5)}')
    I('''buffer_store_dwordx4 v[8:11], v1, s[52:55], s56 offen
    buffer_store_dwordx4 v[12:15], v1, s[52:55], s56 offen offset:16''')

def gen_part():
    header('part_kernel')
    if OPT['AMP']: I('s_memrealtime s[74:75]')
    kstamp(0)
    D, S, B4, RK, RC = 8, 16, 24, 32, 40
    C('workgroups 0..249: one chunk of 3200 edges each; 250..254: weight fragments; 255..262: code prefetch')
    I(f"""
    s_load_dwordx4 s[4:7], s[0:1], 16
    s_load_dwordx2 s[24:25], s[0:1], 72
    s_cmp_ge_u32 s2, {NCH+5}
    s_cbranch_scc1 P_CPW
    v_lshrrev_b32 v3, 6, v0
    v_lshlrev_b32 v1, 2, v0
    v_readfirstlane_b32 s28, v3
    s_cmp_ge_u32 s2, {NCH}
    s_cbranch_scc1 P_PREP
    v_mov_b32 v2, 0
    ds_write_b32 v1, v2
    v_lshlrev_b32 v4, 4, v0
    v_lshlrev_b32 v5, 3, v0
    v_add_u32 v5, 8192, v5
    v_add_u32 v6, 12288, v1
    s_mul_i32 s29, s2, {CH*4}
    s_waitcnt lgkmcnt(0)
    """)
    srd(12, 6, E * 4)
    C('edge slots per thread: 4*tid+{0..3}, 2048+2*tid+{0,1}, 3072+tid (waves 0,1 only)')
    I(f"""
    s_cmp_ge_u32 s28, 2
    s_cbranch_scc1 P_NO6A
    buffer_load_dword v{D+6}, v6, s[12:15], s29 offen
P_NO6A:
    buffer_load_dwordx4 {r(D,4)}, v4, s[12:15], s29 offen
    buffer_load_dwordx2 {r(D+4,2)}, v5, s[12:15], s29 offen
    """)
    srd(8, 4, E * 4); srd(16, 24, WS_BYTES)
    if OPT['AMP']:
        I(f"""s_cmp_lg_u32 s2, 0
        s_cbranch_scc1 P_NOAMP
        s_cmp_lg_u32 s28, 0
        s_cbranch_scc1 P_NOAMP
        v_mov_b32 v80, s74
        v_mov_b32 v81, {WF + 0x10000}
        buffer_store_dword v80, v81, s[16:19], 0 offen
        s_waitcnt vmcnt(0)
P_NOAMP:""")
    I(f"""
    v_lshlrev_b32 v56, 16, v0
    v_lshlrev_b32 v57, 15, v0
    v_add_u32 v57, {2048 << 14}, v57
    v_lshlrev_b32 v58, 14, v0
    v_add_u32 v58, {3072 << 14}, v58
    v_mov_b32 v59, 1
    s_mov_b32 s32, {-BN & 0xffffffff}
    s_mov_b32 s33, {1 << 14}
    s_mov_b32 s34, {2 << 14}
    s_mov_b32 s35, {3 << 14}
    s_barrier
    s_cmp_ge_u32 s28, 2
    s_cselect_b32 s37, 0x40000000, 0
    v_or_b32 v6, s37, v6
    buffer_load_dwordx4 {r(S,4)}, v4, s[8:11], s29 offen
    buffer_load_dwordx2 {r(S+4,2)}, v5, s[8:11], s29 offen
    buffer_load_dword v{S+6}, v6, s[8:11], s29 offen
    """)
    kstamp(1)
    I('s_waitcnt vmcnt(3)')
    kstamp(2)
    C('bucket = dst/49, rank inside (chunk, bucket) from an LDS counter')
    for k in range(7):
        if k == 6: I('s_cmp_ge_u32 s28, 2\ns_cbranch_scc1 P_NO6B')
        I(f"""v_mul_u32_u24 v{B4+k}, 21400, v{D+k}
        v_lshrrev_b32 v{B4+k}, 20, v{B4+k}
        v_mad_i32_i24 v{RC+k}, v{B4+k}, s32, v{D+k}
        v_lshlrev_b32 v{B4+k}, 2, v{B4+k}
        ds_add_rtn_u32 v{RK+k}, v{B4+k}, v59""")
    I(f"""
P_NO6B:
    v_and_b32 v60, 63, v0
    v_lshlrev_b32 v60, 4, v60
    s_waitcnt lgkmcnt(0)
    s_barrier""")
    C('bucket bases: every wave scans the 256 counters (four per lane)')
    I(f"""
    ds_read_b128 v[64:67], v60
    s_waitcnt lgkmcnt(0)
    v_add_u32 v69, v64, v65
    v_add_u32 v70, v69, v66
    v_add_u32 v71, v70, v67
    v_mov_b32 v72, v71""")
    dpp_scan(72)
    I(f"""
    v_sub_u32 v68, v72, v71
    v_add_u32 v71, v68, v70
    v_add_u32 v70, v68, v69
    v_add_u32 v69, v68, v64
    ds_write_b128 v60, v[68:71] offset:{K1_BASE}""")
    for k in range(6):
        I(f'ds_read_b32 v{D+k}, v{B4+k} offset:{K1_BASE}')
    C('segment table entry (bucket b, chunk w) = start | count<<16 at (b>>4)*16384 + w*64 + (b&15)*4')
    I(f"""s_waitcnt vmcnt(0)
    s_cmp_lg_u32 s28, 4
    s_cbranch_scc1 P_NOOFF
    v_lshl_or_b32 v64, v64, 16, v68
    v_lshl_or_b32 v65, v65, 16, v69
    v_lshl_or_b32 v66, v66, 16, v70
    v_lshl_or_b32 v67, v67, 16, v71
    v_lshrrev_b32 v61, 6, v60
    v_lshlrev_b32 v61, 14, v61
    v_and_b32 v62, 63, v60
    v_or_b32 v61, v61, v62
    s_lshl_b32 s36, s2, 6
    s_add_u32 s36, s36, {OFFS}
    buffer_store_dwordx4 v[64:67], v61, s[16:19], s36 offen sc1
P_NOOFF:""")
    C('record = dlocal<<26 | elocal<<14 | src, placed in bucket order')
    for k in range(7):
        eb = 56 if k < 4 else (57 if k < 6 else 58)
        kk = k if k < 4 else (k - 4 if k < 6 else 0)
        ks = '0' if kk == 0 else f's{32+kk}'
        I(f"""v_lshl_or_b32 v{RC+k}, v{RC+k}, 26, v{S+k}
        v_add3_u32 v{RC+k}, v{RC+k}, v{eb}, {ks}""")
    I(f"""
    s_cmp_ge_u32 s28, 2
    s_cbranch_scc1 P_NO6C
    ds_read_b32 v{D+6}, v{B4+6} offset:{K1_BASE}
    s_waitcnt lgkmcnt(0)
    v_add_lshl_u32 v{RK+6}, v{RK+6}, v{D+6}, 2
    ds_write_b32 v{RK+6}, v{RC+6} offset:{K1_SORT}
P_NO6C:
    s_waitcnt lgkmcnt(0)""")
    for k in range(6):
        I(f"""v_add_lshl_u32 v{RK+k}, v{RK+k}, v{D+k}, 2
        ds_write_b32 v{RK+k}, v{RC+k} offset:{K1_SORT}""")
    I('s_waitcnt lgkmcnt(0)')
    kstamp(3)
    I('s_barrier')
    kstamp(4)
    I(f"""
    ds_read_b128 v[8:11], v4 offset:{K1_SORT}
    v_cmp_gt_u32 vcc, 288, v0
    s_and_saveexec_b64 s[38:39], vcc
    ds_read_b128 v[12:15], v4 offset:{K1_SORT+8192}
    s_mov_b64 exec, s[38:39]
    s_waitcnt lgkmcnt(0)
    buffer_store_dwordx4 v[8:11], v4, s[16:19], s29 offen sc1
    s_add_u32 s36, s29, 8192
    s_and_saveexec_b64 s[38:39], vcc
    s_cbranch_execz P_FIN
    buffer_store_dwordx4 v[12:15], v4, s[16:19], s36 offen sc1
P_FIN:""")
    kdump()
    I('s_endpgm')
    C('''B-operand fragments (1 KiB each): 0-7 g_w[64:128], 8-15 v_w, 16-17 g_w[128:144], 18-25 g_w[0:64], 26-33 u_w.
    The two per-edge gate matrices carry the factor -log2(e) of the sigmoid's exponential.''')
    I(f'''
P_PREP:
    s_load_dwordx4 s[8:11], s[0:1], 32
    s_load_dwordx2 s[12:13], s[0:1], 48
    s_sub_u32 s30, s2, {NCH}
    s_lshl_b32 s30, s30, 3
    s_add_u32 s30, s30, s28
    s_waitcnt lgkmcnt(0)
    s_cmp_ge_u32 s30, {NFRAG}
    s_cbranch_scc1 P_END
    s_mov_b32 s20, s12
    s_mov_b32 s21, s13
    s_mov_b32 s22, {144*128}
    s_mov_b32 s23, 0x20000
    s_mov_b32 s33, {NLOG2E}
    s_mov_b32 s31, s30
    s_mov_b32 s32, 64
    s_cmp_lt_u32 s30, 8
    s_cbranch_scc1 P_GO
    s_cmp_lt_u32 s30, 16
    s_cbranch_scc0 P_C1
    s_sub_u32 s31, s30, 8
    s_mov_b32 s32, 0
    s_mov_b32 s33, 1.0
    s_mov_b32 s20, s10
    s_mov_b32 s21, s11
    s_mov_b32 s22, {64*128}
    s_branch P_GO
P_C1:
    s_cmp_lt_u32 s30, 18
    s_cbranch_scc0 P_C2
    s_sub_u32 s31, s30, 16
    s_lshl_b32 s31, s31, 2
    s_mov_b32 s32, 128
    s_branch P_GO
P_C2:
    s_mov_b32 s33, 1.0
    s_mov_b32 s32, 0
    s_sub_u32 s31, s30, 18
    s_cmp_lt_u32 s30, 26
    s_cbranch_scc1 P_GO
    s_sub_u32 s31, s30, 26
    s_mov_b32 s20, s8
    s_mov_b32 s21, s9
    s_mov_b32 s22, {64*128}
P_GO:
    s_and_b32 s34, s31, 3
    s_lshl_b32 s34, s34, 4
    s_add_u32 s34, s34, s32
    s_lshl_b32 s34, s34, 7
    s_lshr_b32 s35, s31, 2
    s_lshl_b32 s35, s35, 6
    s_add_u32 s34, s34, s35
    v_and_b32 v1, 31, v0
    v_lshlrev_b32 v1, 1, v1
    v_bfe_u32 v2, v0, 5, 1
    v_lshl_or_b32 v1, v2, 10, v1
    ''')
    for t in range(8):
        I(f'buffer_load_ushort v{8+t}, v1, s[20:23], s34 offen offset:{t*128}')
    srd(16, 24, WS_BYTES)
    I(f'''
    v_and_b32 v3, 63, v0
    v_lshlrev_b32 v3, 4, v3
    s_lshl_b32 s36, s30, 10
    s_add_u32 s36, s36, {WF}
    s_waitcnt vmcnt(0)
    ''')
    for t in range(8):
        I(f'v_lshlrev_b32 v{8+t}, 16, v{8+t}\nv_mul_f32 v{8+t}, s33, v{8+t}')
    for t in range(4):
        I(f'v_cvt_pk_bf16_f32 v{16+t}, v{8+2*t}, v{9+2*t}')
    I('''buffer_store_dwordx4 v[16:19], v3, s[16:19], s36 offen sc1
P_END:
    s_endpgm''')
    C("one workgroup per die reads the second kernel's code so that it is in the caches when that kernel starts")
    I(f'''P_CPW:
    s_cmp_ge_u32 s2, {NCH+5+NCPW}
    s_cbranch_scc1 P_END
    s_getpc_b64 s[40:41]
P_PC:
    s_add_u32 s40, s40, {MAIN}-P_PC
    s_addc_u32 s41, s41, 0
    v_lshlrev_b32 v2, 7, v0
    v_cmp_gt_u32 vcc, M_CODE_END-{MAIN}, v2
    s_and_saveexec_b64 s[42:43], vcc
    s_cbranch_execz P_END
    global_load_dword v3, v2, s[40:41]
    s_endpgm''')

CNT, FLAG, BASE = 0, 256, 512
XS = 1024
ES = XS + 65536
LX = ES + 16384
LE = LX + 16384
XAT = LE + 16384
AGG = XAT + 14336
M_LDS = AGG + 2*14336
WBASE = XS + 32768
XSENT, ESENT = 0x1FFF80, 0x7FFFFF00
CAP = 4096

WB, WV, WC = 4, 36, 68
XA = 76
Z = 108
H = 140
AF = 156
ACC = 176
IDX = 192
vLX, vLE, vKX0, vKX1, vKE = 197, 198, 199, 200, 201
vRA, vRE = 202, 206
vSCH, vLT = 207, 208
T0, T1, T2 = 209, 210, 211
vC, vEB = 212, 213
vONE, vLA = 214, 215
T4 = 216
vTA, vFC = 218, 219
AF2 = 220
NV = 240
vKX2, vKX3, vLC = 236, 237, 238
vTR, vST = 240, 244
pREC, pRK, pAD = 76, 96, 116
pD, pA, pW = 136, 152, 168
sX, sE, sWS, sOUT = 8, 12, 16, 20
sW, sT, sTW, sT2, sEV, _u, sD, sM0X, sM0E, sMASK, sTMP, sTMP2, sMODE, sSEG, sG0, sBAR = range(28, 44)
sNP, sNC, sNN = 60, 62, 64
sONE, sSAVE, sOFP = 44, 46, 48
sB, sXR = 50, 51

def mf(d, a, b, c): return f'v_mfma_f32_32x32x16_bf16 {r(d,16)}, {r(a,4)}, {r(b,4)}, {c}'
def zm(ft, af):
    return [mf(Z+16*ft, AF+16, WC+4*ft, r(XA+16*ft, 16))] + [mf(Z+16*ft, af+4*k, WB+16*ft+4*k, r(Z+16*ft, 16)) for k in range(4)]
def hm(ft, af):
    return [mf(H, af, WV+16*ft, '0')] + [mf(H, af+4*k, WV+16*ft+4*k, r(H, 16)) for k in range(1, 4)]
def exps(ft): return [f'v_exp_f32 v{Z+16*ft+i}, v{Z+16*ft+i}' for i in range(16)]
def rcps(ft): return [f'v_rcp_f32 v{Z+16*ft+i}, v{Z+16*ft+i}' for i in range(16)]
def pkadd(ft): return [f'v_pk_add_f32 {r(Z+16*ft+2*i,2)}, {r(Z+16*ft+2*i,2)}, {sr(sONE,2)}' for i in range(8)]
def pkf(ft): return [f'v_pk_fma_f32 {r(ACC+8*ft+2*(i//2),2)}, {r(Z+16*ft+2*i,2)}, {r(H+2*i,2)}, {r(ACC+8*ft+2*(i//2),2)}' for i in (0, 2, 4, 6, 1, 3, 5, 7)]
def weave(main, ins):
    out = []
    for i, m in enumerate(main):
        out += ins.get(i, [])
        out.append(m)
    return out

def pEO(s): return AF2 + s if s < 16 else 184 + s - 16
def sVM(s): return 68 + 2 * (s % 16)
def thr(s): return 8 * (s // 4) + s % 4
def validate(lo, hi):
    for s in range(lo, hi): I(f'v_cmp_lt_i32 {sr(sVM(s),2)}, {thr(s)}, v{vC}')
def pass_a(lo, hi, mid=None):
    for s in range(lo, hi):
        I(f'v_and_b32_sdwa v{pAD+s}, v{vFC}, v{pREC+s} dst_sel:DWORD dst_unused:UNUSED_PAD src0_sel:DWORD src1_sel:BYTE_3')
    for s in range(lo, hi):
        I(f'''s_mov_b64 exec, {sr(sVM(s),2)}
        ds_add_rtn_u32 v{pRK+s}, v{pAD+s}, v{vONE}''')
    I('s_mov_b64 exec, -1')
    if mid: mid()
    for s in range(lo, hi):
        I(f'''v_bfe_u32 v{pEO(s)}, v{pREC+s}, 14, 12
        v_lshl_add_u32 v{pEO(s)}, v{pEO(s)}, 5, v{vEB}
        v_alignbit_b32 v{pREC+s}, v{pREC+s}, v{pREC+s}, 25''')
def scan():
    I(f'''v_lshlrev_b32 v{T0}, 2, v2
    ds_read_b32 v{T1}, v{T0}
    v_mov_b32 v{T2}, {FLAG}
    ds_read_b32 v{IDX}, v{T2}
    s_waitcnt lgkmcnt(0)
    v_add_u32 v{IDX+2}, s{sW}, v{T1}
    v_add_u32 v{T1}, {GR-1}, v{T1}
    v_and_b32 v{T1}, {-GR}, v{T1}
    v_readfirstlane_b32 s{sTMP2}, v{IDX}
    v_mov_b32 v{T2}, v{T1}''')
    dpp_scan(T2)
    I(f'''v_sub_u32 v{T1}, v{T2}, v{T1}
    v_readlane_b32 s{sTMP}, v{T2}, 63
    v_add_u32 v{IDX+3}, {LX//4}, v{T1}
    ds_write_b32 v{T0}, v{IDX+3} offset:{BASE}''')
def pad_write():
    C('wave k < 7 fills pad slot k of every node, wave 7 the tail of the last tile (out-of-range offsets read as zero)')
    I(f'''v_add_u32 v{IDX+4}, v{T1}, v{IDX+2}
    v_add_u32 v{T0}, s{sTMP}, v2
    s_add_u32 s52, s{sTMP}, 31
    s_and_b32 s52, s52, -32
    s_cmp_eq_u32 s{sW}, 7
    s_cselect_b64 vcc, -1, 0
    v_mov_b32 v{IDX+2}, s52
    v_cndmask_b32 v{IDX+4}, v{IDX+4}, v{T0}, vcc
    v_cndmask_b32 v{T2}, v{T2}, v{IDX+2}, vcc
    v_mov_b32 v{T0}, {XSENT}
    v_cmp_lt_u32 vcc, v{IDX+4}, v{T2}
    v_mov_b32 v{T1}, {ESENT}
    v_lshlrev_b32 v{IDX+4}, 2, v{IDX+4}
    v_add_u32 v{IDX+4}, {LX}, v{IDX+4}
    s_mov_b64 exec, vcc
    ds_write2st64_b32 v{IDX+4}, v{T0}, v{T1} offset1:64
    s_mov_b64 exec, -1''')
def pass_b1(lo, hi):
    for s in range(lo, hi):
        I(f'''s_mov_b64 exec, {sr(sVM(s),2)}
        ds_read_b32 v{pAD+s}, v{pAD+s} offset:{BASE}''')
    I('s_mov_b64 exec, -1')
def pass_b2(lo, hi):
    for s in range(lo, hi): I(f'v_add_lshl_u32 v{pRK+s}, v{pRK+s}, v{pAD+s}, 2')
    for s in range(lo, hi):
        I(f'''s_mov_b64 exec, {sr(sVM(s),2)}
        ds_write2st64_b32 v{pRK+s}, v{pREC+s}, v{pEO(s)} offset1:64''')
    I('s_mov_b64 exec, -1')
def cnt_zero():
    I(f'''v_and_b32 v{T1}, 127, v0
    v_lshlrev_b32 v{T1}, 2, v{T1}
    v_mov_b32 v{T2}, 0
    ds_write_b32 v{T1}, v{T2}''')

def dma_tile(ix, xoff, eoff):
    g = []
    for q in range(4):
        g.append([f's_add_u32 m0, s{sM0X}, {xoff + q*1024}',
                  f'v_and_or_b32 v{ix+q}, v{ix+q}, s{sMASK}, v{(vKX0, vKX1, vKX2, vKX3)[q if G4 else q % 2]}',
                  f'buffer_load_dwordx4 v{ix+q}, {sr(sX,4)}, 0 offen lds'])
    g.append([f's_add_u32 m0, s{sM0E}, {eoff}',
              f'v_add_u32 v{ix+4}, v{ix+4}, v{vKE}',
              f'buffer_load_dwordx4 v{ix+4}, {sr(sE,4)}, 0 offen lds'])
    return g
def dma_issue(g):
    for x in g: I(x[0] + '\ns_nop 0\n' + x[2])

def half_addr(j, se, sn, sh, vbase):
    I(f'''s_bfe_u32 s{sTMP}, s{sn}, {(6 << 16) | (8*j)}
    s_bfe_u32 s{sTMP2}, s{sn+1}, {(6 << 16) | (8*j)}
    s_lshl_b32 s{sTMP}, s{sTMP}, {sh}
    s_lshl_b32 s{sTMP2}, s{sTMP2}, {sh}
    v_add_u32 v{T0}, s{sTMP}, v{vbase}
    s_mov_b32 exec_lo, 0
    v_add_u32 v{T0}, s{sTMP2}, v{vbase}
    s_bitcmp1_b32 s{se}, {8*j+6}
    s_cselect_b32 exec_lo, -1, 0
    s_bitcmp1_b32 s{se+1}, {8*j+6}
    s_cselect_b32 exec_hi, -1, 0''')
def flush_j(j):
    if G4:
        I(f'''v_add_f32 v{T1}, v{ACC+2*j}, v{ACC+2*j+1}
        v_add_f32 v{T2}, v{ACC+8+2*j}, v{ACC+8+2*j+1}''')
        half_addr(j, sNC, sNP, 9, vLA)
        I(f'''v_cvt_f64_f32 {r(T4,2)}, v{T1}
        v_mov_b64 {r(ACC+2*j,2)}, 0
        ds_add_f64 v{T0}, {r(T4,2)}
        v_cvt_f64_f32 {r(T1,2)}, v{T2}
        v_mov_b64 {r(ACC+8+2*j,2)}, 0
        ds_add_f64 v{T0}, {r(T1,2)} offset:256
        s_mov_b64 exec, -1''')
        return
    I(f'''v_add_f32 v{T1}, v{ACC+2*j}, v{ACC+2*j+1}
    v_add_f32 v{T2}, v{ACC+8+2*j}, v{ACC+8+2*j+1}
    s_bfe_u32 s{sTMP}, s{sNP}, {(6 << 16) | (8*j)}
    s_lshl_b32 s{sTMP}, s{sTMP}, 9
    v_permlane32_swap_b32 v{T1}, v{T2}
    v_add_u32 v{T0}, s{sTMP}, v{vLA}
    v_mov_b64 {r(ACC+2*j,2)}, 0
    v_add_f32 v{T1}, v{T1}, v{T2}
    v_mov_b64 {r(ACC+8+2*j,2)}, 0
    v_cvt_f64_f32 {r(T4,2)}, v{T1}
    ds_add_f64 v{T0}, {r(T4,2)}''')
def xa_j(j):
    if G4: half_addr(j, sNN, sNN, 8, vLT)
    else:
        I(f'''s_bfe_u32 s{sTMP}, s{sNN}, {(6 << 16) | (8*j)}
        s_lshl_b32 s{sTMP}, s{sTMP}, 8
        v_add_u32 v{T0}, s{sTMP}, v{vLT}''')
    I(f'''ds_read2_b32 {r(XA+4*j,2)}, v{T0}
    ds_read2_b32 {r(XA+4*j+2,2)}, v{T0}
    ds_read2_b32 {r(XA+16+4*j,2)}, v{T0} offset0:32 offset1:32
    ds_read2_b32 {r(XA+16+4*j+2,2)}, v{T0} offset0:32 offset1:32''')
    if G4: I('s_mov_b64 exec, -1')
def evchk(kind, p, sn):
    if G4:
        I(f's_or_b32 s{sEV}, s{sn}, s{sn+1}')
        sn = sEV
    for j in range(4): I(f's_bitcmp1_b32 s{sn}, {8*j+6}\ns_cbranch_scc1 M_{kind}{p}{j}\nM_{kind}R{p}{j}:')

def frag_off(f):
    if f < 16: return (f // 4) * 8192 + 4096 + (f % 4) * 1024
    return ES + (4 + f - 16) * 2048 + 1024 - WBASE

def putstamp(i, ins='s_memrealtime'):
    I(f'{ins} s[100:101]\ns_waitcnt lgkmcnt(0)\nv_writelane_b32 v{vST}, s100, {i}')
def fstamp(i):
    if OPT['STAMP'] and OPT['FINE']: putstamp(i)
def stamp(i):
    if OPT['AMP'] == 10 + i: I('s_memrealtime s[100:101]\ns_waitcnt lgkmcnt(0)')
    if not OPT['STAMP']: return
    if OPT['FINE'] and i not in (0,): return
    if OPT['CYC'] == 2:
        if i in (1, 2): return
        if i in (4, 5): putstamp(i - 3, 's_memtime')
    putstamp(i)
def trace():
    if OPT['TRACE']:
        I(f'''s_memtime s[76:77]
        s_memrealtime s[78:79]
        s_waitcnt lgkmcnt(0)
        s_mov_b32 m0, s{sT}
        s_nop 0
        v_writelane_b32 v{vTR}, s76, m0
        s_add_u32 m0, m0, 32
        s_nop 0
        v_writelane_b32 v{vTR}, s78, m0''')

def sch_load():
    C('schedule words of tiles 1.. into s68..')
    for t in range(1, 24):
        if t in (11, 14, 18): I(f's_cmp_lt_u32 s{sTW}, {t}\ns_cbranch_scc1 M_SCHD')
        I(f'v_readlane_b32 s{67+t}, v{vSCH}, {t}')
    I('M_SCHD:')

OUT = []
def gen_main():
    header(MAIN)
    if OPT['AMP']: I('s_memrealtime s[74:75]\ns_waitcnt lgkmcnt(0)\ns_mov_b32 s3, s74')
    stamp(0)
    C('workgroup g owns bucket (g&7)*32 + (g>>3): neighbouring buckets share a die when placement is round-robin (speed only)')
    I(f"""
    s_load_dwordx2 s[26:27], s[0:1], 72
    s_load_dwordx4 s[4:7], s[0:1], 0
    s_load_dwordx2 s[24:25], s[0:1], 56
    s_cmp_ge_u32 s2, {NB}
    s_cbranch_scc1 M_END
    v_lshrrev_b32 v1, 6, v0
    v_and_b32 v2, 63, v0
    v_readfirstlane_b32 s{sW}, v1
    s_and_b32 s{sB}, s2, 7
    s_lshl_b32 s{sB}, s{sB}, 5
    s_lshr_b32 s{sTMP}, s2, 3
    s_add_u32 s{sB}, s{sB}, s{sTMP}
    s_mul_i32 s{sNN}, s{sTMP}, {391*128}
    v_lshrrev_b32 v3, 1, v0
    v_lshlrev_b32 v{IDX}, 6, v3
    v_lshlrev_b32 v{IDX+1}, 4, v2
    s_lshr_b32 s{sD}, s{sB}, 4
    s_lshl_b32 s{sD}, s{sD}, 12
    s_and_b32 s{sTMP}, s{sB}, 15
    s_add_u32 s{sD}, s{sD}, s{sTMP}
    s_lshl_b32 s{sD}, s{sD}, 2
    s_add_u32 s{sD}, s{sD}, {OFFS}
    s_mov_b32 s{sWS+2}, {WS_BYTES}
    s_mov_b32 s{sWS+3}, 0x20000
    s_lshr_b32 s{sTMP}, s{sW}, 2
    s_lshl_b32 s{sTMP}, s{sTMP}, 13
    s_and_b32 s{sTMP2}, s{sW}, 3
    s_lshl_b32 s{sTMP2}, s{sTMP2}, 10
    s_add_u32 s{sNP}, s{sTMP}, s{sTMP2}
    s_lshl_b32 s{sNC}, s{sW}, 10
    s_add_u32 s{sNC}, s{sNC}, {WF}
    v_lshlrev_b32 v{T0}, 4, v0
    v_add_u32 v{T0}, {AGG}, v{T0}
    v_mov_b64 {r(AF+8,2)}, 0
    v_mov_b64 {r(AF+10,2)}, 0
    s_cmp_lg_u32 s{sW}, 0
    ds_write_b128 v{T0}, {r(AF+8,4)}
    ds_write_b128 v{T0}, {r(AF+8,4)} offset:8192
    ds_write_b128 v{T0}, {r(AF+8,4)} offset:16384
    s_cbranch_scc1 M_NOZ3
    ds_write_b128 v{T0}, {r(AF+8,4)} offset:24576
M_NOZ3:""")
    cnt_zero()
    C('two lanes per chunk fetch the segment (bucket, chunk); A / U fragments and the bucket rows go to LDS')
    I(f"""
    s_waitcnt lgkmcnt(0)
    s_mov_b32 s{sWS}, s26
    s_mov_b32 s{sWS+1}, s27
    s_add_u32 m0, s{sNP}, {XS}
    buffer_load_dword v{vC}, v{IDX}, {sr(sWS,4)}, s{sD} offen
    s_add_u32 s{sTMP}, s{sNC}, {18*1024}
    buffer_load_dwordx4 v{IDX+1}, {sr(sWS,4)}, s{sTMP} offen lds
    s_add_u32 m0, s{sNP}, {XS+16384}
    s_add_u32 s{sTMP}, s{sNC}, {26*1024}
    buffer_load_dwordx4 v{IDX+1}, {sr(sWS,4)}, s{sTMP} offen lds
    v_lshrrev_b32 v{IDX+2}, 4, v2
    s_lshl_b32 s{sTMP}, s{sW}, 2
    v_add_u32 v{IDX+2}, s{sTMP}, v{IDX+2}
    v_xor_b32 v{IDX+2}, v{IDX+2}, v2
    v_and_b32 v{IDX+2}, 7, v{IDX+2}
    v_lshlrev_b32 v{IDX+2}, 4, v{IDX+2}
    v_lshrrev_b32 v{IDX+3}, 3, v2
    v_lshl_or_b32 v{IDX+2}, v{IDX+3}, 7, v{IDX+2}
    """)
    srd(sX, 4, N * 128)
    I(f"""
    s_cmp_ge_u32 s{sW}, 7
    s_cbranch_scc1 M_NOROW
    s_lshl_b32 s{sTMP}, s{sW}, 10
    s_mul_i32 s{sTMP2}, s{sB}, {BN*128}
    s_add_u32 m0, s{sNP}, {XS+32768}
    s_add_u32 s{sTMP2}, s{sTMP2}, s{sTMP}
    buffer_load_dwordx4 v{IDX+2}, {sr(sX,4)}, s{sTMP2} offen lds
M_NOROW:
    s_add_u32 s{sOFP}, s26, s{sD}
    s_addc_u32 s{sOFP+1}, s27, 0
    v_cmp_gt_u32 vcc, {NCH}, v3
    v_mul_u32_u24 v{T1}, {CH}, v3
    v_and_b32 v{T2}, 1, v0
    v_lshlrev_b32 v{T2}, 2, v{T2}
    v_min_u32 v1, 390, v0
    v_lshlrev_b32 v1, 7, v1
    s_waitcnt vmcnt(2)
    v_cndmask_b32 v{vC}, 0, v{vC}, vcc
    v_and_b32 v{T0}, 0xffff, v{vC}
    v_lshrrev_b32 v{vC}, 16, v{vC}
    v_add3_u32 v{T0}, v{T0}, v{T1}, v{T2}
    v_cmp_lt_u32 {sr(sSAVE,2)}, 40, v{vC}
    v_sub_u32 v{vC}, v{vC}, v{T2}
    v_lshlrev_b32 v{vEB}, 5, v{T1}
    v_lshlrev_b32 v{T0}, 2, v{T0}
    v_cmp_lt_i32 vcc, 16, v{vC}
    v_cmp_lt_i32 {sr(52,2)}, 24, v{vC}
    v_cmp_lt_i32 {sr(54,2)}, 32, v{vC}
    buffer_load_dwordx4 {r(pREC,4)}, v{T0}, {sr(sWS,4)}, 0 offen
    buffer_load_dwordx4 {r(pREC+4,4)}, v{T0}, {sr(sWS,4)}, 0 offen offset:32
    s_cmp_lg_u64 {sr(54,2)}, 0
    s_cselect_b32 s{sXR}, 2, 0
    s_cmp_eq_u64 {sr(52,2)}, 0
    s_cbranch_scc1 M_RL3
    s_or_b32 s{sXR}, s{sXR}, 1
    buffer_load_dwordx4 {r(pREC+12,4)}, v{T0}, {sr(sWS,4)}, 0 offen offset:96
    buffer_load_dwordx4 {r(pREC+16,4)}, v{T0}, {sr(sWS,4)}, 0 offen offset:128
M_RL3:
    s_or_b64 vcc, vcc, 1
    s_mov_b64 exec, vcc
    buffer_load_dwordx4 {r(pREC+8,4)}, v{T0}, {sr(sWS,4)}, 0 offen offset:64
    s_mov_b64 exec, -1
    """)
    stamp(1)
    srd(sE, 6, E * 32)
    srd(sOUT, 24, N * 128)
    I(f"""
    s_lshr_b32 s{sTMP}, s{sW}, 2
    s_lshl_b32 s{sTMP}, s{sTMP}, 1
    s_and_b32 s{sTMP2}, s{sW}, 1
    s_add_u32 s{sTMP}, s{sTMP}, s{sTMP2}
    s_lshl_b32 s{sTMP}, s{sTMP}, 13
    s_add_u32 s{sTMP}, s{sTMP}, {XS}
    v_add_u32 v{IDX+2}, s{sTMP}, v{IDX+1}
    v_and_b32 v{T1}, 31, v2
    v_lshlrev_b32 v{vLT}, 2, v{T1}
    v_add_u32 v{vLT}, {XAT}, v{vLT}
    v_lshrrev_b32 v{T2}, 5, v2
    v_bfe_u32 v{IDX}, v2, 1, 3
    v_xor_b32 v{IDX}, v{IDX}, v{T2}
    s_bfe_u32 s{sG0}, s{sW}, 0x10001
    s_lshl_b32 s{sTMP2}, s{sG0}, 13
    s_add_u32 s{sTMP}, s{sTMP2}, {XS+32768}
    v_lshlrev_b32 v{T1}, 7, v{T1}
    v_add_u32 v{T1}, s{sTMP}, v{T1}
    s_and_b32 s{sD}, s{sW}, 1
    s_lshl_b32 s{sD}, s{sD}, 7
    s_add_u32 s{sTMP2}, s{sTMP2}, s{sD}
    v_lshlrev_b32 v{T2}, 10, v{T2}
    v_add3_u32 v{vTA}, v{T2}, v{vLT}, s{sTMP2}
    s_mov_b32 s{sD}, {NLOG2E}
    """)
    for s in range(4):
        I(f"""v_xor_b32 v{AF2+s}, {2*s}, v{IDX}
        v_lshl_add_u32 v{AF2+s}, v{AF2+s}, 4, v{T1}""")
    I(f'v_mov_b32 v{vONE}, 1\nv_mov_b32 v{vFC}, 0xfc')
    validate(0, 12)
    I('s_waitcnt vmcnt(3)\ns_barrier')
    C('x[bucket] @ A (waves 0-3) and x[bucket] @ U (waves 4-7), one 32x32 tile per wave')
    for s in range(4):
        I(f'ds_read_b128 {r(pW+4*s,4)}, v{IDX+2} offset:{s*1024}\nds_read_b128 {r(pA+4*s,4)}, v{AF2+s}')
    I(f"""
    s_cmp_eq_u64 {sr(sSAVE,2)}, 0
    s_cbranch_scc1 M_NOFLAG
    v_mov_b32 v{T1}, {FLAG}
    ds_write_b32 v{T1}, v{vONE}
M_NOFLAG:
    s_waitcnt lgkmcnt(0)""")
    I(mf(pD, pA, pW, '0'))
    for k in range(1, 4): I(mf(pD, pA+4*k, pW+4*k, r(pD, 16)))
    I(f"""
    s_mov_b32 s{sMASK}, {XSENT}
    s_mov_b32 s{sONE}, 1.0
    s_mov_b32 s{sONE+1}, 1.0
    s_mov_b32 s{sMODE}, 0
    s_lshl_b32 s{sM0X}, s{sW}, 13
    s_add_u32 s{sM0X}, s{sM0X}, {XS}
    s_lshl_b32 s{sM0E}, s{sW}, 11
    s_add_u32 s{sM0E}, s{sM0E}, {ES}
    s_nop 3
    s_cmp_ge_u32 s{sW}, 4
    s_cbranch_scc1 M_ADONE""")
    for k in range(16):
        if k == 12: I(f's_cmp_lg_u32 s{sG0}, 0\ns_cbranch_scc1 M_ADONE')
        I(f'v_mul_f32 v{pD+k}, s{sD}, v{pD+k}\nds_write_b32 v{vTA}, v{pD+k} offset:{(8*(k//4)+k%4)*256}')
    I('M_ADONE:\ns_waitcnt vmcnt(0)')
    stamp(2)
    fstamp(1)
    C('counting sort by node, first pass: rank of every record inside its node')
    def mid1():
        I(f"""s_add_u32 m0, s{sNP}, {WBASE+4096}
    s_add_u32 s{sTMP}, s{sNC}, 8192
    buffer_load_dwordx4 v{IDX+1}, {sr(sWS,4)}, s{sNC} offen lds
    s_add_u32 m0, s{sNP}, {WBASE+4096+16384}
    s_cmp_ge_u32 s{sW}, 2
    buffer_load_dwordx4 v{IDX+1}, {sr(sWS,4)}, s{sTMP} offen lds
    s_cbranch_scc1 M_NOW4
    s_add_u32 m0, s{sM0E}, {4*2048+1024}
    s_add_u32 s{sTMP}, s{sNC}, {16*1024}
    buffer_load_dwordx4 v{IDX+1}, {sr(sWS,4)}, s{sTMP} offen lds
M_NOW4:""")
        if OPT['XPF']:
            C("each workgroup touches 1/32 of x so that the table is in its die's L2 when the gathers start")
            I(f'buffer_load_dword v1, v1, {sr(sX,4)}, s{sNN} offen')
    pass_a(0, 12, mid1)
    fstamp(2)
    I(f's_cmp_eq_u32 s{sXR}, 0\ns_cbranch_scc1 M_RAR')
    validate(12, 16)
    pass_a(12, 16)
    I(f's_cmp_ge_u32 s{sXR}, 2\ns_cbranch_scc1 M_RA\nM_RAR:')
    I('s_waitcnt lgkmcnt(0)\ns_barrier')
    fstamp(3)
    C('node bases (every node padded to a multiple of 8 edges)')
    scan()
    fstamp(4)
    I(f'''
    s_cmp_gt_u32 s{sTMP}, {CAP}
    s_cbranch_scc1 M_SLOW
    s_cmp_lg_u32 s{sTMP2}, 0
    s_cbranch_scc1 M_SLOW
    s_cmp_eq_u32 s{sXR}, 0
    s_cbranch_scc1 M_BATCH
    s_cmp_ge_u32 s{sXR}, 2
    s_cbranch_scc1 M_RB
M_RBR:''')
    pass_b1(12, 16)
    I('s_waitcnt lgkmcnt(0)')
    pass_b2(12, 16)
    I('M_BATCH:')
    C('second pass: scatter the records into the node-sorted lists')
    pass_b1(0, 12)
    pad_write()
    I(f'''
    v_lshrrev_b32 v{vKE}, 4, v2
    v_xor_b32 v{vKE}, v{vKE}, v2''')
    if G4:
        I(f'''v_lshrrev_b32 v{vKX0}, 3, v2
        v_and_b32 v{vKX0}, 4, v{vKX0}
        v_and_b32 v{vKX1}, 7, v2
        v_xor_b32 v{vKX0}, v{vKX0}, v{vKX1}
        v_lshlrev_b32 v{vKX0}, 4, v{vKX0}
        v_xor_b32 v{vKX1}, 16, v{vKX0}
        v_xor_b32 v{vKX2}, 32, v{vKX0}
        v_xor_b32 v{vKX3}, 48, v{vKX0}''')
    else:
        I(f'''v_and_b32 v{vKX0}, 7, v{vKE}
        v_lshlrev_b32 v{vKX0}, 4, v{vKX0}
        v_xor_b32 v{vKX1}, 64, v{vKX0}''')
    I(f'''v_and_b32 v{vKE}, 1, v{vKE}
    v_lshlrev_b32 v{vKE}, 4, v{vKE}
    s_waitcnt lgkmcnt(0)''')
    pass_b2(0, 12)
    C('''tiles (32 edges = four 8-edge granules of four streams) are split over the four SIMD pairs (w, w+4).
    Waves 4-7 join after waves 0-3 have done K tiles; lighter buckets join later, and waves 0-3 get K+2 tiles more.''')
    I(f'''
    s_add_u32 s{sTMP}, s{sTMP}, 31
    s_lshr_b32 s52, s{sTMP}, 7
    s_bfe_u32 s53, s{sTMP}, 0x20005
    s_lshr_b32 s59, s{sTMP}, 5
    s_min_u32 s59, s59, {OPT['NREF']}
    s_sub_u32 s59, {OPT['NREF']}, s59
    s_mul_i32 s59, s59, {OPT['SLOPE']}
    s_lshr_b32 s59, s59, 2
    s_min_u32 s59, s59, {OPT['KMAX']}
    s_add_u32 s{sBAR}, s59, {OPT['STAG']+1}
    s_add_u32 s59, s59, {OPT['DELTA']}
    s_max_u32 s54, s52, s59
    s_sub_u32 s54, s54, s59
    s_lshr_b32 s54, s54, 1
    s_add_u32 s55, s52, 1
    s_max_u32 s56, s55, s59
    s_sub_u32 s56, s56, s59
    s_lshr_b32 s56, s56, 1
    s_sub_u32 s52, s52, s54
    s_sub_u32 s55, s55, s56
    s_mul_i32 s57, s55, s53
    s_sub_u32 s58, 4, s53
    s_mul_i32 s58, s58, s52
    s_add_u32 s57, s57, s58
    s_cmp_ge_u32 s{sW}, 4
    s_cselect_b32 s52, s54, s52
    s_cselect_b32 s55, s56, s55
    s_cselect_b32 s57, s57, 0
    s_cselect_b32 s{sBAR}, 0, s{sBAR}
    s_and_b32 s58, s{sW}, 3
    s_cmp_lt_u32 s58, s53
    s_cselect_b32 s{sTW}, s55, s52
    s_min_u32 s53, s53, s58
    s_sub_u32 s58, s58, s53
    s_mul_i32 s53, s53, s55
    s_mul_i32 s58, s58, s52
    s_add_u32 s{sG0}, s57, s53
    s_add_u32 s{sG0}, s{sG0}, s58
    s_lshl_b32 s{sG0}, s{sG0}, 7
    s_add_u32 s{sG0}, s{sG0}, {LX}
    ''')
    if G4:
        I(f"""
    s_lshl_b32 s{sTMP2}, s{sTW}, 4
    v_lshrrev_b32 v{T0}, 3, v2
    v_mul_u32_u24 v{T0}, s{sTMP2}, v{T0}
    v_add_u32 v{vLX}, s{sG0}, v{T0}
    v_bfe_u32 v{T0}, v2, 3, 2
    v_lshrrev_b32 v{T1}, 1, v{T0}
    v_xor_b32 v{T1}, v{T1}, v{T0}
    v_lshrrev_b32 v{T2}, 5, v2
    v_xor_b32 v{T1}, v{T1}, v{T2}
    v_and_b32 v{T1}, 1, v{T1}
    v_lshl_or_b32 v{T0}, v{T0}, 1, v{T1}
    v_mul_u32_u24 v{T0}, s{sTMP2}, v{T0}
    v_bfe_u32 v{T1}, v2, 1, 2
    v_lshl_add_u32 v{T0}, v{T1}, 2, v{T0}
    v_add_u32 v{vLE}, s{sG0}, v{T0}
    s_sub_u32 s{sTMP}, s{sTW}, 1
    v_and_b32 v{T0}, 31, v2
    v_min_u32 v{T0}, s{sTMP}, v{T0}
    v_lshlrev_b32 v{T0}, 4, v{T0}
    v_mad_u32_u24 v{T0}, v{T2}, s{sTMP2}, v{T0}
    s_lshl_b32 s{sTMP2}, s{sTMP2}, 1
    v_add_u32 v{T0}, s{sG0}, v{T0}
    v_add_u32 v{T1}, s{sTMP2}, v{T0}
    v_add_u32 v{T2}, s{sTMP2}, v{T1}
    v_add_u32 v{vSCH}, s{sTMP2}, v{T2}""")
    else:
        I(f"""
    s_lshl_b32 s{sTMP2}, s{sTW}, 5
    v_lshrrev_b32 v{T0}, 4, v2
    v_mul_u32_u24 v{T0}, s{sTMP2}, v{T0}
    v_bfe_u32 v{T1}, v2, 3, 1
    v_lshl_add_u32 v{T0}, v{T1}, 4, v{T0}
    v_add_u32 v{vLX}, s{sG0}, v{T0}
    v_bfe_u32 v{T0}, v2, 3, 2
    v_mul_u32_u24 v{T0}, s{sTMP2}, v{T0}
    v_bfe_u32 v{T1}, v2, 2, 1
    v_lshl_add_u32 v{T0}, v{T1}, 4, v{T0}
    v_lshrrev_b32 v{T1}, 5, v2
    v_lshl_add_u32 v{T0}, v{T1}, 3, v{T0}
    v_bfe_u32 v{T1}, v2, 1, 1
    v_lshl_add_u32 v{T0}, v{T1}, 2, v{T0}
    v_add_u32 v{vLE}, s{sG0}, v{T0}
    s_sub_u32 s{sTMP}, s{sTW}, 1
    v_min_u32 v{T0}, s{sTMP}, v2
    v_lshlrev_b32 v{T0}, 5, v{T0}
    v_add_u32 v{T0}, s{sG0}, v{T0}
    v_add_u32 v{T1}, s{sTMP2}, v{T0}
    v_add_u32 v{T2}, s{sTMP2}, v{T1}
    v_add_u32 v{vSCH}, s{sTMP2}, v{T2}""")
    fstamp(5)
    I(f's_waitcnt vmcnt({1 if OPT["XPF"] else 0}) lgkmcnt(0)\ns_barrier')
    stamp(3)
    if OPT['NOX']: I(f's_mov_b32 s{sX+2}, 0')
    if OPT['NOE']: I(f's_mov_b32 s{sE+2}, 0')
    g0 = dma_tile(Z, 0, 0)
    g1 = dma_tile(Z+16, 4096, 1024)
    C('pipeline start: list entries of tiles 0..2, node of every (tile, stream), gathers of tile 0')
    I(f'''
    ds_read_b128 {r(Z,4)}, v{vLX}
    ds_read_b32 v{Z+4}, v{vLE} offset:16384
    ds_read_b32 v{T0}, v{T0}
    ds_read_b32 v{T1}, v{T1}
    ds_read_b32 v{T2}, v{T2}
    ds_read_b32 v{vSCH}, v{vSCH}
    ds_read_b128 {r(Z+16,4)}, v{vLX} offset:{4*GR}
    ds_read_b32 v{Z+20}, v{vLE} offset:{16384+4*GR}
    ds_read_b128 {r(IDX,4)}, v{vLX} offset:{8*GR}
    ds_read_b32 v{IDX+4}, v{vLE} offset:{16384+8*GR}
    v_lshlrev_b32 v{vFC}, 4, v2
    v_add_u32 v{vFC}, {WBASE}, v{vFC}
    s_cmp_ge_u32 s{sW}, 4
    s_cbranch_scc1 M_NOT0
    s_setprio 1
    s_cmp_eq_u32 s{sTW}, 0
    s_waitcnt lgkmcnt(8)
    s_cbranch_scc1 M_NOT0
    ''')
    for g in (g0 if not OPT['EFIRST'] else g0[4:] + g0[:4]): I('\n'.join(g))
    C('lane t of the schedule register: byte j = node of stream j in tile t, bit 6 set when it differs from tile t-1')
    I(f'''
M_NOT0:
    s_waitcnt lgkmcnt(0)
    v_bfe_u32 v{T0}, v{T0}, 1, 6
    v_bfe_u32 v{T1}, v{T1}, 1, 6
    v_bfe_u32 v{T2}, v{T2}, 1, 6
    v_bfe_u32 v{vSCH}, v{vSCH}, 1, 6
    v_lshl_or_b32 v{T0}, v{T1}, 8, v{T0}
    v_lshl_or_b32 v{T0}, v{T2}, 16, v{T0}
    v_lshl_or_b32 v{vSCH}, v{vSCH}, 24, v{T0}
    v_add_u32 v{vLX}, {12*GR}, v{vLX}
    v_mov_b32 v{T0}, v{vSCH}
    v_readfirstlane_b32 s{sNC}, v{vSCH}
    v_readlane_b32 s{sNC+1}, v{vSCH}, 32
    v_add_u32 v{vLE}, {16384+12*GR}, v{vLE}
    v_mov_b32_dpp v{T0}, v{vSCH} wave_shr:1 row_mask:0xf bank_mask:0xf
    s_mov_b32 s{sT}, 1
    s_mov_b32 s{sT2}, 33
    v_xor_b32 v{T0}, v{T0}, v{vSCH}
    v_add_u32 v{T0}, 0x3f3f3f3f, v{T0}
    v_and_b32 v{T0}, 0x40404040, v{T0}
    {'s_mov_b32 exec_hi, -2' if G4 else ''}
    v_or_b32 v{vSCH}, v{vSCH}, v{T0}
    s_mov_b64 {sr(sNP,2)}, {sr(sNC,2)}
    ''')
    if G4:
        I(f"""s_mov_b32 exec_hi, 0
        v_mov_b32 v{T1}, s{sNC}
        s_not_b64 exec, exec
        v_mov_b32 v{T1}, s{sNC+1}
        s_mov_b64 exec, -1""")
    for j in range(4):
        if G4:
            I(f"""v_bfe_u32 v{T0}, v{T1}, {8*j}, 6
            v_lshl_add_u32 v{T0}, v{T0}, 8, v{vLT}""")
        else:
            I(f"""s_bfe_u32 s{sTMP}, s{sNC}, {(6 << 16) | (8*j)}
            s_lshl_b32 s{sTMP}, s{sTMP}, 8
            v_add_u32 v{T0}, s{sTMP}, v{vLT}""")
        I(f"""ds_read_b32 v{XA+4*j}, v{T0}
        ds_read_b32 v{XA+16+4*j}, v{T0} offset:128""")
    I(f's_cmp_eq_u32 s{sMODE}, 2\ns_cbranch_scc1 M_NOWT')
    C('first batch only: weights into registers, x@U into the aggregate, read-side LDS addresses')
    for f in (16, 0, 1, 2, 3, 8, 9, 10, 11, 17, 4, 5, 6, 7, 12, 13, 14, 15):
        I(f'ds_read_b128 {r(WB+4*f,4)}, v{vFC} offset:{frag_off(f)}')
    I(f'''s_cmp_lt_u32 s{sW}, 4
    s_cbranch_scc1 M_TDONE
    s_bfe_u32 s{sXR}, s{sW}, 0x10001
    v_subrev_u32 v{vTA}, {XAT}, v{vTA}
    v_lshlrev_b32 v{vTA}, 1, v{vTA}
    v_add_u32 v{vTA}, {AGG}, v{vTA}''')
    for k in range(16):
        if k == 12: I(f's_cmp_lg_u32 s{sXR}, 0\ns_cbranch_scc1 M_TDONE')
        I(f'v_cvt_f64_f32 {r(AF+2*(k%8),2)}, v{pD+k}\nds_add_f64 v{vTA}, {r(AF+2*(k%8),2)} offset:{(8*(k//4)+k%4)*512}')
    I('M_TDONE:')
    j_, i_, h_, g_, t_, u_ = AF2, AF2+1, AF2+2, AF2+3, AF2+4, AF2+5
    I(f'''
    s_lshl_b32 s{sMODE}, s{sMODE}, 1
    v_and_b32 v{vLA}, {31 if G4 else 63}, v2
    v_lshlrev_b32 v{vLA}, 3, v{vLA}
    v_add_u32 v{vLA}, {AGG}, v{vLA}
    v_bfe_u32 v{j_}, v2, 3, 2
    v_and_b32 v{i_}, 3, v2
    v_lshrrev_b32 v{h_}, 5, v2
    v_lshrrev_b32 v{t_}, 1, v{j_}
    v_xor_b32 v{g_}, v{t_}, v{j_}
    v_lshrrev_b32 v{u_}, 2, v2
    v_xor_b32 v{g_}, v{g_}, v{u_}
    v_and_b32 v{g_}, 1, v{g_}
    v_xor_b32 v{t_}, v{t_}, v{h_}
    v_lshlrev_b32 v{t_}, 4, v{t_}
    v_lshl_or_b32 v{u_}, v{j_}, 2, v{i_}
    v_lshl_or_b32 v{u_}, v{g_}, 4, v{u_}
    v_lshl_or_b32 v{t_}, v{u_}, 5, v{t_}
    v_add_u32 v{vRE}, s{sM0E}, v{t_}
    ''')
    if G4:
        I(f"""v_bfe_u32 v{u_}, v2, 2, 3
        v_lshl_or_b32 v{u_}, v{i_}, 3, v{u_}
        v_lshlrev_b32 v{u_}, 7, v{u_}
        v_add_u32 v{u_}, s{sM0X}, v{u_}
        v_lshrrev_b32 v{t_}, 1, v{j_}
        v_lshl_or_b32 v{t_}, v{t_}, 2, v{i_}
        v_xor_b32 v{t_}, v{t_}, v{h_}""")
    else:
        I(f"""v_and_b32 v{t_}, 1, v{i_}
        v_lshl_or_b32 v{u_}, v{g_}, 1, v{t_}
        v_lshlrev_b32 v{u_}, 3, v{u_}
        v_lshl_or_b32 v{u_}, v{j_}, 1, v{u_}
        v_lshrrev_b32 v{i_}, 1, v{i_}
        v_or_b32 v{u_}, v{u_}, v{i_}
        v_lshlrev_b32 v{u_}, 7, v{u_}
        v_add_u32 v{u_}, s{sM0X}, v{u_}
        v_lshl_or_b32 v{t_}, v{t_}, 2, v{j_}
        v_xor_b32 v{t_}, v{t_}, v{h_}""")
    for s in range(4):
        I(f'''v_xor_b32 v{g_}, {2*s}, v{t_}
        v_lshl_add_u32 v{vRA+s}, v{g_}, 4, v{u_}''')
    I('M_NOWT:')
    for k in range(8): I(f'v_mov_b64 {r(ACC+2*k,2)}, 0')
    for g in g1: I(g[1])
    for g in dma_tile(IDX, 0, 0): I(g[1])
    if OPT['SCH'] == 2: sch_load()
    I(f'''
    s_cmp_ge_u32 s{sW}, 4
    s_cbranch_scc1 M_YNG
    s_cmp_eq_u32 s{sTW}, 0
    s_cbranch_scc1 M_BDONE
    s_cmp_lt_u32 s{sTW}, 2
    s_cbranch_scc1 M_W0''')
    dma_issue(g1)
    I('s_waitcnt vmcnt(5) lgkmcnt(0)\nM_W1:')
    I(f'ds_read_b128 {r(AF+16,4)}, v{vRE}')
    for s in range(4): I(f'ds_read_b128 {r(AF+4*s,4)}, v{vRA+s}')
    for ft in range(2):
        for j in range(4):
            for i in range(1, 4): I(f'v_mov_b32 v{XA+16*ft+4*j+i}, v{XA+16*ft+4*j}')
    I('s_waitcnt lgkmcnt(0)')
    for m in zm(0, AF): I(m)
    if OPT['SCH'] == 1: sch_load()
    I(f'''s_cmp_eq_u32 s{sBAR}, 0
    s_cbranch_scc1 M_YNG2
    s_nop 3
M_GO:''')
    stamp(4)
    C('''main loop, one tile per pass (two copies: LDS buffer / fragment parity).  Per 32-feature half:
    exp -> +1 -> rcp -> acc += r * hv, with hv = x@V of this half and the gate z of the next half on the matrix pipe.
    The two waves of a SIMD take turns on these vector blocks (priorities); loads and node changes sit between them.''')
    I('.p2align 6')
    for p in range(2):
        nb = 1 - p
        afc, afn = (AF, AF2) if p == 0 else (AF2, AF)
        def eblk(ft, extra):
            hv = hm(ft, afc)
            ins = {1: [f's_setprio {OPT["PB"]}']}
            for k in range(4): ins.setdefault(OPT['EF'] + 3*k, []).append(hv[k])
            ins.setdefault(OPT['P2POS'], []).insert(0, f's_setprio {OPT["PB2"]}')
            for k, v in extra.items(): ins.setdefault(k, []).extend(v)
            I('\n'.join(weave(exps(ft), ins)))
        def rblk(ft, zz):
            I('\n'.join(pkadd(ft)))
            I('\n'.join(weave(rcps(ft), {3*k: [zz[k]] for k in range(5)})))
            I('\n'.join(pkf(ft)))
        I(f'M_LOOP{p}:')
        trace()
        evchk('F', p, sNC)
        I(f'''s_cmp_eq_u32 s{sT}, s{sBAR}
    s_cbranch_scc1 M_SB{p}
M_SBR{p}:
    s_setprio 0
    s_add_u32 s{sTMP}, s{sT}, 1
    s_cmp_lt_u32 s{sTMP}, s{sTW}
    s_cbranch_scc0 M_ND{p}''')
        g = dma_tile(IDX, p*4096, p*1024)
        dma_issue(g)
        I(f'M_ND{p}:')
        if OPT['SCH']: I(f's_mov_b32 m0, s{sT}\ns_nop 0\ns_movrels_b32 s{sNN}, s67')
        rl = {11: [f'v_readlane_b32 s{sNN}, v{vSCH}, s{sT}']} if not OPT['SCH'] else {}
        if G4: rl[13] = [f'v_readlane_b32 s{sNN+1}, v{vSCH}, s{sT2}']
        eblk(0, rl)
        rblk(0, zm(1, afc))
        evchk('X', p, sNN)
        I(f'''s_setprio 0
    s_add_u32 s{sTMP}, s{sT}, 1
    s_cmp_lt_u32 s{sTMP}, s{sTW}
    s_cbranch_scc0 M_WZ{p}
    s_waitcnt vmcnt(5)
M_WZR{p}:''')
        I(f'ds_read_b128 {r(AF+16,4)}, v{vRE} offset:{nb*1024}')
        for s_ in range(4): I(f'ds_read_b128 {r(afn+4*s_,4)}, v{vRA+s_} offset:{nb*4096}')
        I(f'ds_read_b128 {r(IDX,4)}, v{vLX} offset:{4*GR*p}\nds_read_b32 v{IDX+4}, v{vLE} offset:{4*GR*p}')
        I('s_waitcnt lgkmcnt(0)')
        eblk(1, {})
        rblk(1, zm(0, afn))
        for q in range(5): I(g[q][1])
        if p == 1: I(f'v_add_u32 v{vLX}, {8*GR}, v{vLX}\nv_add_u32 v{vLE}, {8*GR}, v{vLE}')
        if G4: I(f's_add_u32 s{sT2}, s{sT2}, 1')
        I(f'''s_mov_b64 {sr(sNP,2)}, {sr(sNC,2)}
    s_mov_b64 {sr(sNC,2)}, {sr(sNN,2)}
    s_add_u32 s{sT}, s{sT}, 1
    s_cmp_le_u32 s{sT}, s{sTW}''')
        I('s_cbranch_scc0 M_LEND' if p == 0 else 's_cbranch_scc1 M_LOOP0')
    I('M_LEND:')
    trace()
    C('last partial sums of all streams')
    if G4:
        I(f"""s_mov_b32 exec_hi, 0
        v_mov_b32 v{T1}, s{sNP}
        s_not_b64 exec, exec
        v_mov_b32 v{T1}, s{sNP+1}
        s_mov_b64 exec, -1""")
        for j in range(4):
            I(f"""v_add_f32 v{Z+j}, v{ACC+2*j}, v{ACC+2*j+1}
            v_add_f32 v{Z+4+j}, v{ACC+8+2*j}, v{ACC+8+2*j+1}
            v_bfe_u32 v{Z+8+j}, v{T1}, {8*j}, 6
            v_lshl_add_u32 v{Z+8+j}, v{Z+8+j}, 9, v{vLA}""")
        for j in range(8):
            I(f'v_cvt_f64_f32 {r(Z+16+2*j,2)}, v{Z+j}\nds_add_f64 v{Z+8+j%4}, {r(Z+16+2*j,2)} offset:{256*(j//4)}')
    else:
        for j in range(4):
            I(f"""v_add_f32 v{Z+j}, v{ACC+2*j}, v{ACC+2*j+1}
            v_add_f32 v{Z+4+j}, v{ACC+8+2*j}, v{ACC+8+2*j+1}
            s_bfe_u32 s{52+j}, s{sNP}, {(6 << 16) | (8*j)}
            s_lshl_b32 s{52+j}, s{52+j}, 9""")
        for j in range(4): I(f'v_permlane32_swap_b32 v{Z+j}, v{Z+4+j}\nv_add_u32 v{Z+8+j}, s{52+j}, v{vLA}')
        for j in range(4): I(f'v_add_f32 v{Z+j}, v{Z+j}, v{Z+4+j}')
        for j in range(4): I(f'v_cvt_f64_f32 {r(Z+16+2*j,2)}, v{Z+j}\nds_add_f64 v{Z+8+j}, {r(Z+16+2*j,2)}')
    I(f'''
M_BDONE:
    s_cmp_lt_u32 s{sTW}, s{sBAR}
    s_cbranch_scc0 M_BDONE2
    s_waitcnt lgkmcnt(0)
    s_barrier
M_BDONE2:
    s_setprio 0
    s_cmp_lg_u32 s{sMODE}, 0
    s_cbranch_scc1 M_SNEXT
M_EPI:''')
    stamp(5)
    if OPT['EPI']:
        C('out = silu(x@U + agg): feature pair tid + 512*k, k = 0..2 (and k = 3 for the first 32 threads)')
        I(f'''
    v_lshlrev_b32 v{T0}, 4, v0
    v_add_u32 v{T0}, {AGG}, v{T0}
    s_mov_b32 s{sTMP}, {NLOG2E}
    s_mul_i32 s{sTMP2}, s{sB}, {BN*128}
    s_add_u32 s{sD}, s{sTMP2}, 4096
    v_lshlrev_b32 v{T1}, 2, v0
    s_cmp_lg_u32 s{sW}, 0
    s_waitcnt lgkmcnt(0)
    s_barrier
    s_cbranch_scc1 M_EP3
    ds_read_b128 {r(Z+28,4)}, v{T0} offset:24576
M_EP3:
    ds_read_b128 {r(Z+16,4)}, v{T0}
    ds_read_b128 {r(Z+20,4)}, v{T0} offset:8192
    ds_read_b128 {r(Z+24,4)}, v{T0} offset:16384''')
        for k in range(6):
            if k % 2 == 0: I(f's_waitcnt lgkmcnt({2 - k//2})')
            I(f'v_cvt_f32_f64 v{Z+k}, {r(Z+16+2*k,2)}')
        def act(ks):
            for k in ks: I(f'v_mul_f32 v{Z+8+k}, s{sTMP}, v{Z+k}')
            for k in ks: I(f'v_exp_f32 v{Z+8+k}, v{Z+8+k}')
            for k in ks: I(f'v_add_f32 v{Z+8+k}, 1.0, v{Z+8+k}')
            for k in ks: I(f'v_rcp_f32 v{Z+8+k}, v{Z+8+k}')
            for k in ks: I(f'v_mul_f32 v{Z+k}, v{Z+k}, v{Z+8+k}')
            for k in ks[::2]: I(f'v_cvt_pk_bf16_f32 v{Z+16+k//2}, v{Z+k}, v{Z+k+1}')
        act(list(range(6)))
        I(f'''buffer_store_dword v{Z+16}, v{T1}, {sr(sOUT,4)}, s{sTMP2} offen sc1
        buffer_store_dword v{Z+17}, v{T1}, {sr(sOUT,4)}, s{sTMP2} offen offset:2048 sc1
        buffer_store_dword v{Z+18}, v{T1}, {sr(sOUT,4)}, s{sD} offen sc1
        s_cbranch_scc1 M_FIN
        s_mov_b32 exec_hi, 0
        v_cvt_f32_f64 v{Z+6}, {r(Z+28,2)}
        v_cvt_f32_f64 v{Z+7}, {r(Z+30,2)}''')
        act([6, 7])
        I(f'buffer_store_dword v{Z+19}, v{T1}, {sr(sOUT,4)}, s{sD} offen offset:2048 sc1')
    else:
        C('out = silu(x@U + agg), eight features per thread')
        I(f'''
    v_lshlrev_b32 v{T0}, 6, v0
    v_add_u32 v{T0}, {AGG}, v{T0}
    s_mov_b32 s{sTMP}, {NLOG2E}
    s_mul_i32 s{sTMP2}, s{sB}, {BN*128}
    v_lshlrev_b32 v{T1}, 4, v0
    v_cmp_gt_u32 vcc, {BN*8}, v0
    s_waitcnt lgkmcnt(0)
    s_barrier
    s_and_saveexec_b64 {sr(sSAVE,2)}, vcc
    s_cbranch_execz M_FIN
    ds_read_b128 {r(Z+16,4)}, v{T0}
    ds_read_b128 {r(Z+20,4)}, v{T0} offset:16
    ds_read_b128 {r(Z+24,4)}, v{T0} offset:32
    ds_read_b128 {r(Z+28,4)}, v{T0} offset:48
    ''')
        for k in range(8):
            if k % 2 == 0: I(f's_waitcnt lgkmcnt({3 - k//2})')
            I(f'v_cvt_f32_f64 v{Z+k}, {r(Z+16+2*k,2)}')
        for k in range(8): I(f'v_mul_f32 v{Z+8+k}, s{sTMP}, v{Z+k}')
        for k in range(8): I(f'v_exp_f32 v{Z+8+k}, v{Z+8+k}')
        for k in range(8): I(f'v_add_f32 v{Z+8+k}, 1.0, v{Z+8+k}')
        for k in range(8): I(f'v_rcp_f32 v{Z+8+k}, v{Z+8+k}')
        for k in range(8): I(f'v_mul_f32 v{Z+k}, v{Z+k}, v{Z+8+k}')
        for k in range(4): I(f'v_cvt_pk_bf16_f32 v{Z+16+k}, v{Z+2*k}, v{Z+2*k+1}')
        I(f'buffer_store_dwordx4 {r(Z+16,4)}, v{T1}, {sr(sOUT,4)}, s{sTMP2} offen sc1')
    I('M_FIN:')
    if OPT['AMP']:
        I(f'''s_cmp_lg_u32 s2, 0
        s_cbranch_scc1 M_END
        s_cmp_lg_u32 s{sW}, 0
        s_cbranch_scc1 M_END
        s_waitcnt vmcnt(0)
        s_memrealtime s[60:61]
        s_add_u32 s56, s26, {WF + 0x10000}
        s_addc_u32 s57, s27, 0
        s_load_dword s58, s[56:57], 0
        s_waitcnt lgkmcnt(0)''')
        if OPT['AMP'] == 2: I('s_mov_b32 s60, s3')
        if OPT['AMP'] == 3: I('s_mov_b32 s58, s3')
        if OPT['AMP'] >= 10: I('s_mov_b32 s58, s3\ns_mov_b32 s60, s100')
        I(f'''s_sub_u32 s59, s60, s58
        s_min_u32 s59, s59, 20000
        s_mul_i32 s59, s59, 10
        s_memrealtime s[60:61]
        s_waitcnt lgkmcnt(0)
        s_mov_b32 s58, s60
M_SPIN:
        s_memrealtime s[60:61]
        s_waitcnt lgkmcnt(0)
        s_sub_u32 s62, s60, s58
        s_cmp_lt_u32 s62, s59
        s_cbranch_scc1 M_SPIN''')
    if OPT['STAMP']:
        I('s_mov_b64 exec, -1\ns_waitcnt vmcnt(0)')
        putstamp(6)
        I(f'''v_writelane_b32 v{vST}, s{sTW}, 7
        s_add_u32 s52, s26, 0x8000000
        s_addc_u32 s53, s27, 0
        s_mov_b32 s54, 0x100000
        s_mov_b32 s55, 0x20000
        s_lshl_b32 s56, s2, 3
        s_add_u32 s56, s56, s{sW}
        s_lshl_b32 s56, s56, 5
        v_lshlrev_b32 v1, 2, v2
        s_mov_b64 exec, 0xff
        buffer_store_dword v{vST}, v1, s[52:55], s56 offen''')
        if OPT['TRACE']:
            I(f'''s_mov_b64 exec, -1
            s_lshl_b32 s56, s56, 3
            s_add_u32 s56, s56, 0x20000
            buffer_store_dword v{vTR}, v1, s[52:55], s56 offen''')
    I('M_END:\ns_endpgm')
    C('node changes: M_F adds a finished partial sum to the aggregate, M_X loads the next node\'s x@A row as accumulator seed')
    for p in range(2):
        for j in range(4):
            I(f'M_F{p}{j}:\ns_setprio {OPT["PE"]}')
            flush_j(j)
            I(f's_branch M_FR{p}{j}')
            I(f'M_X{p}{j}:\ns_setprio {OPT["PE"]}')
            xa_j(j)
            I(f's_branch M_XR{p}{j}')
        I(f'M_WZ{p}:\ns_waitcnt vmcnt(0)\ns_branch M_WZR{p}')
        I(f'M_SB{p}:\ns_barrier\ns_branch M_SBR{p}')
    I(f'''M_W0:
    s_waitcnt vmcnt(0) lgkmcnt(0)
    s_branch M_W1
M_YNG:
    s_cmp_eq_u32 s{sTW}, 0
    s_cbranch_scc1 M_YE''')
    if OPT['YT0']: I('s_waitcnt lgkmcnt(0)\ns_barrier')
    for g in g0: I('\n'.join(g))
    I(f'''s_branch M_W0
M_YE:
    s_waitcnt lgkmcnt(0)
    s_barrier
    s_branch M_BDONE2
M_YNG2:
    {'' if OPT['YT0'] else 's_barrier'}
    s_cmp_lt_u32 s{sTW}, 2
    s_cbranch_scc1 M_GO''')
    dma_issue(g1)
    I('s_branch M_GO')
    for f in OUT: f()
    I('M_RA:')
    validate(16, 20)
    pass_a(16, 20)
    I('s_branch M_RAR')
    I('M_RB:')
    pass_b1(16, 20)
    I('s_waitcnt lgkmcnt(0)')
    pass_b2(16, 20)
    validate(0, 4)
    I('s_branch M_RBR')
    C('general path (a segment or the list is too long for the registers / LDS): one batch per segment')
    I(f"""
M_SLOW:
    s_mov_b32 s{sMODE}, 1
    s_mov_b32 s{sSEG}, -1
M_SNEXT:
    s_add_u32 s{sSEG}, s{sSEG}, 1
    s_cmp_ge_u32 s{sSEG}, {NCH}
    s_cbranch_scc1 M_EPI
    s_lshl_b32 s{sTMP}, s{sSEG}, 6
    s_load_dword s{sD}, {sr(sOFP,2)}, s{sTMP}
    s_waitcnt lgkmcnt(0)
    s_lshr_b32 s{sTMP2}, s{sD}, 16
    s_cmp_eq_u32 s{sTMP2}, 0
    s_cbranch_scc1 M_SNEXT
    s_barrier""")
    cnt_zero()
    I(f"""
    s_and_b32 s{sD}, s{sD}, 0xffff
    s_mul_i32 s{sTMP}, s{sSEG}, {CH}
    s_add_u32 s{sD}, s{sD}, s{sTMP}
    v_add_u32 v{T0}, s{sD}, v0
    v_mov_b32 v{T1}, s{sTMP}
    v_lshlrev_b32 v{vEB}, 5, v{T1}
    v_lshlrev_b32 v{T0}, 2, v{T0}
    v_sub_u32 v{vC}, s{sTMP2}, v0
    v_add_u32 v{vC}, 511, v{vC}
    v_ashrrev_i32 v{vC}, 9, v{vC}
    v_cmp_lt_i32 vcc, 4, v{vC}
    v_add_u32 v{T1}, 4, v{vC}
    v_mov_b32 v{vFC}, 0xfc
    v_cndmask_b32 v{vC}, v{vC}, v{T1}, vcc""")
    for s in range(7):
        I(f'buffer_load_dword v{pREC+s}, v{T0}, {sr(sWS,4)}, 0 offen')
        if s < 6: I(f'v_add_u32 v{T0}, 2048, v{T0}')
    validate(0, 12)
    I('s_waitcnt vmcnt(0) lgkmcnt(0)\ns_barrier')
    pass_a(0, 7)
    I('s_waitcnt lgkmcnt(0)\ns_barrier')
    scan()
    I('s_branch M_BATCH\nM_CODE_END:')

def kd(name, vgpr, sgpr, acc=None):
    return f'''.amdhsa_kernel {name}
  .amdhsa_next_free_vgpr {vgpr}
  .amdhsa_next_free_sgpr {sgpr}
  .amdhsa_accum_offset {acc or (vgpr+3)//4*4}
  .amdhsa_group_segment_fixed_size 0
  .amdhsa_kernarg_size 80
  .amdhsa_user_sgpr_count 2
  .amdhsa_user_sgpr_kernarg_segment_ptr 1
  .amdhsa_system_sgpr_workgroup_id_x 1
.end_amdhsa_kernel
'''

HEAD = open('gather_scatter__edge_featured_mpnn_egc__graph.s.ref').read().split('; Override')[0]
gen_part()
n0 = len(L)
gen_main()
if OPT['AG']:
    import re
    lo, hi = (4, 75) if OPT['AG'] == 1 else (4, 107)
    cnt = hi - lo + 1
    def m1(m):
        n = int(m.group(1))
        return f'v{n}' if n < lo else (f'a{n-lo}' if n <= hi else f'v{n-cnt}')
    def m2(m):
        a, b = int(m.group(1)), int(m.group(2))
        return f'v[{a}:{b}]' if a < lo else (f'a[{a-lo}:{b-lo}]' if a <= hi else f'v[{a-cnt}:{b-cnt}]')
    for i in range(n0, len(L)):
        L[i] = re.sub(r'\bv\[(\d+):(\d+)\]', m2, re.sub(r'\bv(\d+)\b', m1, L[i]))
out = HEAD + f'''; Two launches: part_kernel bins the edges by destination bucket, the main kernel does the rest.
; @launch kernel=part_kernel grid=({NCH+5+NCPW},1,1) block=(512,1,1) lds={K1_LDS}
; @launch kernel={MAIN} grid=({NB},1,1) block=(512,1,1) lds={M_LDS}
.amdgcn_target "amdgcn-amd-amdhsa--gfx950"
.text
''' + '\n'.join(L) + '''
.section .rodata,"a"
.p2align 6
''' + kd('part_kernel', 88 if (OPT['AMP'] or OPT['STAMP']) else 76, 80) + '.p2align 6\n' + kd(MAIN, 248 if (OPT['TRACE'] or OPT['STAMP']) else NV, 102, 168 if OPT['AG'] == 1 else None)
open(sys.argv[1], 'w').write(out)
```

```python
import sys, struct

OPT = dict(STAMP=0, FINE=0, CYC=0, TRACE=0, AMP=0, NOX=0, NOE=0,
           STAG=0, DELTA=3, NREF=0, SLOPE=2, KMAX=8, G4=0, SCH=2, AG=0, EFIRST=0, YT0=1, EPI=1, RPF=0, CLMP=1, XR2=1, T1L=0, RPW=0,
           PB=1, PB2=2, PE=3, EF=3, P2POS=8, XPF=1)
for a in sys.argv[2:]:
    k, v = a.split('=')
    assert k in OPT, k
    OPT[k] = int(v) if v.lstrip('-').isdigit() else v.replace('_', ' ')

N, E = 12500, 800000
NB, BN = 256, 49
NCH, CH = 250, 3200
REC, OFFS, WF = 0, E * 4, 0x380000
WS_BYTES = 0x400000
NFRAG = 34
NCPW = 8
G4 = OPT['G4']
GR = 4 if G4 else 8
if not OPT['NREF']: OPT['NREF'] = 107 if G4 else 110
NLOG2E = struct.unpack('<I', struct.pack('<f', -1.4426950408889634))[0]
MAIN = 'gather_scatter__edge_featured_mpnn_egc__graph_kernel'

L = []
def I(s):
    for ln in s.strip('\n').split('\n'):
        ln = ln.strip()
        if ln:
            L.append(ln if ln.endswith(':') else '    ' + ln)
def C(s):
    for ln in s.strip('\n').split('\n'): L.append('    ; ' + ln.strip())
def r(a, n): return f'v[{a}:{a+n-1}]'
def sr(a, n): return f's[{a}:{a+n-1}]'
def srd(d, base, nbytes):
    I(f'''s_mov_b32 s{d}, s{base}
    s_mov_b32 s{d+1}, s{base+1}
    s_mov_b32 s{d+2}, {nbytes}
    s_mov_b32 s{d+3}, 0x20000''')
def dpp_scan(v):
    for ctl in ('row_shr:1', 'row_shr:2', 'row_shr:4', 'row_shr:8'):
        I(f's_nop 1\nv_add_u32_dpp v{v}, v{v}, v{v} {ctl} row_mask:0xf bank_mask:0xf bound_ctrl:1')
    I(f's_nop 1\nv_add_u32_dpp v{v}, v{v}, v{v} row_bcast:15 row_mask:0xa bank_mask:0xf')
    I(f's_nop 1\nv_add_u32_dpp v{v}, v{v}, v{v} row_bcast:31 row_mask:0xc bank_mask:0xf')
def header(name):
    I(f'.globl {name}\n.p2align 8\n.type {name},@function\n{name}:')

K1_BASE, K1_SORT = 1024, 2048
K1_LDS = K1_SORT + CH * 4

def kstamp(i):
    if OPT['STAMP']: I(f's_memrealtime s[{60+2*i}:{61+2*i}]\ns_waitcnt lgkmcnt(0)')
def kdump():
    if not OPT['STAMP']: return
    I(f'''; K1STAMP
    s_waitcnt vmcnt(0)
    s_memrealtime s[70:71]
    s_mov_b64 exec, 1
    s_waitcnt lgkmcnt(0)
    s_add_u32 s52, s24, 0x8100000
    s_addc_u32 s53, s25, 0
    s_mov_b32 s54, 0x100000
    s_mov_b32 s55, 0x20000
    s_lshl_b32 s56, s2, 3
    s_add_u32 s56, s56, s28
    s_lshl_b32 s56, s56, 5
    v_mov_b32 v1, 0''')
    for i in range(8): I(f'v_mov_b32 v{8+i}, s{60+2*min(i,5)}')
    I('''buffer_store_dwordx4 v[8:11], v1, s[52:55], s56 offen
    buffer_store_dwordx4 v[12:15], v1, s[52:55], s56 offen offset:16''')

def gen_part():
    header('part_kernel')
    if OPT['AMP']: I('s_memrealtime s[74:75]')
    kstamp(0)
    D, S, B4, RK, RC = 8, 16, 24, 32, 40
    C('workgroups 0..249: one chunk of 3200 edges each; 250..254: weight fragments; 255..262: code prefetch')
    I(f"""
    s_load_dwordx4 s[4:7], s[0:1], 16
    s_load_dwordx2 s[24:25], s[0:1], 72
    s_cmp_ge_u32 s2, {NCH+5}
    s_cbranch_scc1 P_CPW
    v_lshrrev_b32 v3, 6, v0
    v_lshlrev_b32 v1, 2, v0
    v_readfirstlane_b32 s28, v3
    s_cmp_ge_u32 s2, {NCH}
    s_cbranch_scc1 P_PREP
    v_mov_b32 v2, 0
    ds_write_b32 v1, v2
    v_lshlrev_b32 v4, 4, v0
    v_lshlrev_b32 v5, 3, v0
    v_add_u32 v5, 8192, v5
    v_add_u32 v6, 12288, v1
    s_mul_i32 s29, s2, {CH*4}
    s_waitcnt lgkmcnt(0)
    """)
    srd(12, 6, E * 4)
    C('edge slots per thread: 4*tid+{0..3}, 2048+2*tid+{0,1}, 3072+tid (waves 0,1 only)')
    I(f"""
    s_cmp_ge_u32 s28, 2
    s_cbranch_scc1 P_NO6A
    buffer_load_dword v{D+6}, v6, s[12:15], s29 offen
P_NO6A:
    buffer_load_dwordx4 {r(D,4)}, v4, s[12:15], s29 offen
    buffer_load_dwordx2 {r(D+4,2)}, v5, s[12:15], s29 offen
    """)
    srd(8, 4, E * 4); srd(16, 24, WS_BYTES)
    if OPT['AMP']:
        I(f"""s_cmp_lg_u32 s2, 0
        s_cbranch_scc1 P_NOAMP
        s_cmp_lg_u32 s28, 0
        s_cbranch_scc1 P_NOAMP
        v_mov_b32 v80, s74
        v_mov_b32 v81, {WF + 0x10000}
        buffer_store_dword v80, v81, s[16:19], 0 offen
        s_waitcnt vmcnt(0)
P_NOAMP:""")
    I(f"""
    v_lshlrev_b32 v56, 16, v0
    v_lshlrev_b32 v57, 15, v0
    v_add_u32 v57, {2048 << 14}, v57
    v_lshlrev_b32 v58, 14, v0
    v_add_u32 v58, {3072 << 14}, v58
    v_mov_b32 v59, 1
    s_mov_b32 s32, {-BN & 0xffffffff}
    s_mov_b32 s33, {1 << 14}
    s_mov_b32 s34, {2 << 14}
    s_mov_b32 s35, {3 << 14}
    s_barrier
    s_cmp_ge_u32 s28, 2
    s_cselect_b32 s37, 0x40000000, 0
    v_or_b32 v6, s37, v6
    buffer_load_dwordx4 {r(S,4)}, v4, s[8:11], s29 offen
    buffer_load_dwordx2 {r(S+4,2)}, v5, s[8:11], s29 offen
    buffer_load_dword v{S+6}, v6, s[8:11], s29 offen
    """)
    kstamp(1)
    I('s_waitcnt vmcnt(3)')
    kstamp(2)
    C('bucket = dst/49, rank inside (chunk, bucket) from an LDS counter')
    for k in range(7):
        if k == 6: I('s_cmp_ge_u32 s28, 2\ns_cbranch_scc1 P_NO6B')
        I(f"""v_mul_u32_u24 v{B4+k}, 21400, v{D+k}
        v_lshrrev_b32 v{B4+k}, 20, v{B4+k}
        v_mad_i32_i24 v{RC+k}, v{B4+k}, s32, v{D+k}
        v_lshlrev_b32 v{B4+k}, 2, v{B4+k}
        ds_add_rtn_u32 v{RK+k}, v{B4+k}, v59""")
    I(f"""
P_NO6B:
    v_and_b32 v60, 63, v0
    v_lshlrev_b32 v60, 4, v60
    s_waitcnt lgkmcnt(0)
    s_barrier""")
    C('bucket bases: every wave scans the 256 counters (four per lane)')
    I(f"""
    ds_read_b128 v[64:67], v60
    s_waitcnt lgkmcnt(0)
    v_add_u32 v69, v64, v65
    v_add_u32 v70, v69, v66
    v_add_u32 v71, v70, v67
    v_mov_b32 v72, v71""")
    dpp_scan(72)
    I(f"""
    v_sub_u32 v68, v72, v71
    v_add_u32 v71, v68, v70
    v_add_u32 v70, v68, v69
    v_add_u32 v69, v68, v64
    ds_write_b128 v60, v[68:71] offset:{K1_BASE}""")
    for k in range(6):
        I(f'ds_read_b32 v{D+k}, v{B4+k} offset:{K1_BASE}')
    C('segment table entry (bucket b, chunk w) = start | count<<16 at (b>>4)*16384 + w*64 + (b&15)*4')
    I(f"""s_waitcnt vmcnt(0)
    s_cmp_lg_u32 s28, 4
    s_cbranch_scc1 P_NOOFF
    v_lshl_or_b32 v64, v64, 16, v68
    v_lshl_or_b32 v65, v65, 16, v69
    v_lshl_or_b32 v66, v66, 16, v70
    v_lshl_or_b32 v67, v67, 16, v71
    v_lshrrev_b32 v61, 6, v60
    v_lshlrev_b32 v61, 14, v61
    v_and_b32 v62, 63, v60
    v_or_b32 v61, v61, v62
    s_lshl_b32 s36, s2, 6
    s_add_u32 s36, s36, {OFFS}
    buffer_store_dwordx4 v[64:67], v61, s[16:19], s36 offen sc1
P_NOOFF:""")
    C('record = dlocal<<26 | elocal<<14 | src, placed in bucket order')
    for k in range(7):
        eb = 56 if k < 4 else (57 if k < 6 else 58)
        kk = k if k < 4 else (k - 4 if k < 6 else 0)
        ks = '0' if kk == 0 else f's{32+kk}'
        I(f"""v_lshl_or_b32 v{RC+k}, v{RC+k}, 26, v{S+k}
        v_add3_u32 v{RC+k}, v{RC+k}, v{eb}, {ks}""")
    I(f"""
    s_cmp_ge_u32 s28, 2
    s_cbranch_scc1 P_NO6C
    ds_read_b32 v{D+6}, v{B4+6} offset:{K1_BASE}
    s_waitcnt lgkmcnt(0)
    v_add_lshl_u32 v{RK+6}, v{RK+6}, v{D+6}, 2
    ds_write_b32 v{RK+6}, v{RC+6} offset:{K1_SORT}
P_NO6C:
    s_waitcnt lgkmcnt(0)""")
    for k in range(6):
        I(f"""v_add_lshl_u32 v{RK+k}, v{RK+k}, v{D+k}, 2
        ds_write_b32 v{RK+k}, v{RC+k} offset:{K1_SORT}""")
    I('s_waitcnt lgkmcnt(0)')
    kstamp(3)
    I('s_barrier')
    kstamp(4)
    I(f"""
    ds_read_b128 v[8:11], v4 offset:{K1_SORT}
    v_cmp_gt_u32 vcc, 288, v0
    s_and_saveexec_b64 s[38:39], vcc
    ds_read_b128 v[12:15], v4 offset:{K1_SORT+8192}
    s_mov_b64 exec, s[38:39]
    s_waitcnt lgkmcnt(0)
    buffer_store_dwordx4 v[8:11], v4, s[16:19], s29 offen sc1
    s_add_u32 s36, s29, 8192
    s_and_saveexec_b64 s[38:39], vcc
    s_cbranch_execz P_FIN
    buffer_store_dwordx4 v[12:15], v4, s[16:19], s36 offen sc1
P_FIN:""")
    kdump()
    I('s_endpgm')
    C('''B-operand fragments (1 KiB each): 0-7 g_w[64:128], 8-15 v_w, 16-17 g_w[128:144], 18-25 g_w[0:64], 26-33 u_w.
    The two per-edge gate matrices carry the factor -log2(e) of the sigmoid's exponential.''')
    I(f'''
P_PREP:
    s_load_dwordx4 s[8:11], s[0:1], 32
    s_load_dwordx2 s[12:13], s[0:1], 48
    s_sub_u32 s30, s2, {NCH}
    s_lshl_b32 s30, s30, 3
    s_add_u32 s30, s30, s28
    s_waitcnt lgkmcnt(0)
    s_cmp_ge_u32 s30, {NFRAG}
    s_cbranch_scc1 P_END
    s_mov_b32 s20, s12
    s_mov_b32 s21, s13
    s_mov_b32 s22, {144*128}
    s_mov_b32 s23, 0x20000
    s_mov_b32 s33, {NLOG2E}
    s_mov_b32 s31, s30
    s_mov_b32 s32, 64
    s_cmp_lt_u32 s30, 8
    s_cbranch_scc1 P_GO
    s_cmp_lt_u32 s30, 16
    s_cbranch_scc0 P_C1
    s_sub_u32 s31, s30, 8
    s_mov_b32 s32, 0
    s_mov_b32 s33, 1.0
    s_mov_b32 s20, s10
    s_mov_b32 s21, s11
    s_mov_b32 s22, {64*128}
    s_branch P_GO
P_C1:
    s_cmp_lt_u32 s30, 18
    s_cbranch_scc0 P_C2
    s_sub_u32 s31, s30, 16
    s_lshl_b32 s31, s31, 2
    s_mov_b32 s32, 128
    s_branch P_GO
P_C2:
    s_mov_b32 s33, 1.0
    s_mov_b32 s32, 0
    s_sub_u32 s31, s30, 18
    s_cmp_lt_u32 s30, 26
    s_cbranch_scc1 P_GO
    s_sub_u32 s31, s30, 26
    s_mov_b32 s20, s8
    s_mov_b32 s21, s9
    s_mov_b32 s22, {64*128}
P_GO:
    s_and_b32 s34, s31, 3
    s_lshl_b32 s34, s34, 4
    s_add_u32 s34, s34, s32
    s_lshl_b32 s34, s34, 7
    s_lshr_b32 s35, s31, 2
    s_lshl_b32 s35, s35, 6
    s_add_u32 s34, s34, s35
    v_and_b32 v1, 31, v0
    v_lshlrev_b32 v1, 1, v1
    v_bfe_u32 v2, v0, 5, 1
    v_lshl_or_b32 v1, v2, 10, v1
    ''')
    for t in range(8):
        I(f'buffer_load_ushort v{8+t}, v1, s[20:23], s34 offen offset:{t*128}')
    srd(16, 24, WS_BYTES)
    I(f'''
    v_and_b32 v3, 63, v0
    v_lshlrev_b32 v3, 4, v3
    s_lshl_b32 s36, s30, 10
    s_add_u32 s36, s36, {WF}
    s_waitcnt vmcnt(0)
    ''')
    for t in range(8):
        I(f'v_lshlrev_b32 v{8+t}, 16, v{8+t}\nv_mul_f32 v{8+t}, s33, v{8+t}')
    for t in range(4):
        I(f'v_cvt_pk_bf16_f32 v{16+t}, v{8+2*t}, v{9+2*t}')
    I('''buffer_store_dwordx4 v[16:19], v3, s[16:19], s36 offen sc1
P_END:
    s_endpgm''')
    C("one workgroup per die reads the second kernel's code so that it is in the caches when that kernel starts")
    I(f'''P_CPW:
    s_cmp_ge_u32 s2, {NCH+5+NCPW}
    s_cbranch_scc1 P_END
    s_getpc_b64 s[40:41]
P_PC:
    s_add_u32 s40, s40, {MAIN}-P_PC
    s_addc_u32 s41, s41, 0
    v_lshlrev_b32 v2, 7, v0
    v_cmp_gt_u32 vcc, M_CODE_END-{MAIN}, v2
    s_and_saveexec_b64 s[42:43], vcc
    s_cbranch_execz P_END
    global_load_dword v3, v2, s[40:41]
    s_endpgm''')

CNT, FLAG, BASE = 0, 256, 512
XS = 1024
ES = XS + 65536
LX = ES + 16384
LE = LX + 16384
XAT = LE + 16384
AGG = XAT + 14336
M_LDS = AGG + 2*14336
WBASE = XS + 32768
XSENT, ESENT = 0x1FFF80, 0x7FFFFF00
CAP = 4096

WB, WV, WC = 4, 36, 68
XA = 76
Z = 108
H = 140
AF = 156
ACC = 176
IDX = 192
vLX, vLE, vKX0, vKX1, vKE = 197, 198, 199, 200, 201
vRA, vRE = 202, 206
vSCH, vLT = 207, 208
T0, T1, T2 = 209, 210, 211
vC, vEB = 212, 213
vONE, vLA = 214, 215
T4 = 216
vTA, vFC = 218, 219
AF2 = 220
NV = 240
vKX2, vKX3, vLC = 236, 237, 238
vTR, vST = 240, 244
pREC, pRK, pAD = 76, 96, 116
pD, pA, pW = 136, 152, 168
sX, sE, sWS, sOUT = 8, 12, 16, 20
sW, sT, sTW, sT2, sEV, _u, sD, sM0X, sM0E, sMASK, sTMP, sTMP2, sMODE, sSEG, sG0, sBAR = range(28, 44)
sNP, sNC, sNN = 60, 62, 64
sONE, sSAVE, sOFP = 44, 46, 48
sB, sXR = 50, 51

def mf(d, a, b, c): return f'v_mfma_f32_32x32x16_bf16 {r(d,16)}, {r(a,4)}, {r(b,4)}, {c}'
def zm(ft, af):
    return [mf(Z+16*ft, AF+16, WC+4*ft, r(XA+16*ft, 16))] + [mf(Z+16*ft, af+4*k, WB+16*ft+4*k, r(Z+16*ft, 16)) for k in range(4)]
def hm(ft, af):
    return [mf(H, af, WV+16*ft, '0')] + [mf(H, af+4*k, WV+16*ft+4*k, r(H, 16)) for k in range(1, 4)]
def exps(ft): return [f'v_exp_f32 v{Z+16*ft+i}, v{Z+16*ft+i}' for i in range(16)]
def rcps(ft): return [f'v_rcp_f32 v{Z+16*ft+i}, v{Z+16*ft+i}' for i in range(16)]
def pkadd(ft): return [f'v_pk_add_f32 {r(Z+16*ft+2*i,2)}, {r(Z+16*ft+2*i,2)}, {sr(sONE,2)}' for i in range(8)]
def pkf(ft): return [f'v_pk_fma_f32 {r(ACC+8*ft+2*(i//2),2)}, {r(Z+16*ft+2*i,2)}, {r(H+2*i,2)}, {r(ACC+8*ft+2*(i//2),2)}' for i in (0, 2, 4, 6, 1, 3, 5, 7)]
def weave(main, ins):
    out = []
    for i, m in enumerate(main):
        out += ins.get(i, [])
        out.append(m)
    return out

def pEO(s): return AF2 + s if s < 16 else 184 + s - 16
def sVM(s): return 68 + 2 * (s % 16)
def thr(s): return 8 * (s // 4) + s % 4
def validate(lo, hi):
    for s in range(lo, hi): I(f'v_cmp_lt_i32 {sr(sVM(s),2)}, {thr(s)}, v{vC}')
def pass_a(lo, hi, mid=None):
    for s in range(lo, hi):
        I(f'v_and_b32_sdwa v{pAD+s}, v{vFC}, v{pREC+s} dst_sel:DWORD dst_unused:UNUSED_PAD src0_sel:DWORD src1_sel:BYTE_3')
    for s in range(lo, hi):
        I(f'''s_mov_b64 exec, {sr(sVM(s),2)}
        ds_add_rtn_u32 v{pRK+s}, v{pAD+s}, v{vONE}''')
    I('s_mov_b64 exec, -1')
    if mid: mid()
    for s in range(lo, hi):
        I(f'''v_bfe_u32 v{pEO(s)}, v{pREC+s}, 14, 12
        v_lshl_add_u32 v{pEO(s)}, v{pEO(s)}, 5, v{vEB}
        v_alignbit_b32 v{pREC+s}, v{pREC+s}, v{pREC+s}, 25''')
def scan():
    I(f'''v_lshlrev_b32 v{T0}, 2, v2
    ds_read_b32 v{T1}, v{T0}
    v_mov_b32 v{T2}, {FLAG}
    ds_read_b32 v{IDX}, v{T2}
    s_waitcnt lgkmcnt(0)
    v_add_u32 v{IDX+2}, s{sW}, v{T1}
    v_add_u32 v{T1}, {GR-1}, v{T1}
    v_and_b32 v{T1}, {-GR}, v{T1}
    v_readfirstlane_b32 s{sTMP2}, v{IDX}
    v_mov_b32 v{T2}, v{T1}''')
    dpp_scan(T2)
    I(f'''v_sub_u32 v{T1}, v{T2}, v{T1}
    v_readlane_b32 s{sTMP}, v{T2}, 63
    v_add_u32 v{IDX+3}, {LX//4}, v{T1}
    ds_write_b32 v{T0}, v{IDX+3} offset:{BASE}''')
def pad_write():
    C('wave k < 7 fills pad slot k of every node, wave 7 the tail of the last tile (out-of-range offsets read as zero)')
    I(f'''v_add_u32 v{IDX+4}, v{T1}, v{IDX+2}
    v_add_u32 v{T0}, s{sTMP}, v2
    s_add_u32 s52, s{sTMP}, 31
    s_and_b32 s52, s52, -32
    s_cmp_eq_u32 s{sW}, 7
    s_cselect_b64 vcc, -1, 0
    v_mov_b32 v{IDX+2}, s52
    v_cndmask_b32 v{IDX+4}, v{IDX+4}, v{T0}, vcc
    v_cndmask_b32 v{T2}, v{T2}, v{IDX+2}, vcc
    v_mov_b32 v{T0}, {XSENT}
    v_cmp_lt_u32 vcc, v{IDX+4}, v{T2}
    v_mov_b32 v{T1}, {ESENT}
    v_lshlrev_b32 v{IDX+4}, 2, v{IDX+4}
    v_add_u32 v{IDX+4}, {LX}, v{IDX+4}
    s_mov_b64 exec, vcc
    ds_write2st64_b32 v{IDX+4}, v{T0}, v{T1} offset1:64
    s_mov_b64 exec, -1''')
def pass_b1(lo, hi):
    for s in range(lo, hi):
        I(f'''s_mov_b64 exec, {sr(sVM(s),2)}
        ds_read_b32 v{pAD+s}, v{pAD+s} offset:{BASE}''')
    I('s_mov_b64 exec, -1')
def pass_b2(lo, hi):
    for s in range(lo, hi): I(f'v_add_lshl_u32 v{pRK+s}, v{pRK+s}, v{pAD+s}, 2')
    for s in range(lo, hi):
        I(f'''s_mov_b64 exec, {sr(sVM(s),2)}
        ds_write2st64_b32 v{pRK+s}, v{pREC+s}, v{pEO(s)} offset1:64''')
    I('s_mov_b64 exec, -1')
def cnt_zero():
    I(f'''v_and_b32 v{T1}, 127, v0
    v_lshlrev_b32 v{T1}, 2, v{T1}
    v_mov_b32 v{T2}, 0
    ds_write_b32 v{T1}, v{T2}''')

def dma_tile(ix, xoff, eoff):
    g = []
    for q in range(4):
        g.append([f's_add_u32 m0, s{sM0X}, {xoff + q*1024}',
                  f'v_and_or_b32 v{ix+q}, v{ix+q}, s{sMASK}, v{(vKX0, vKX1, vKX2, vKX3)[q if G4 else q % 2]}',
                  f'buffer_load_dwordx4 v{ix+q}, {sr(sX,4)}, 0 offen lds'])
    g.append([f's_add_u32 m0, s{sM0E}, {eoff}',
              f'v_add_u32 v{ix+4}, v{ix+4}, v{vKE}',
              f'buffer_load_dwordx4 v{ix+4}, {sr(sE,4)}, 0 offen lds'])
    return g
def dma_issue(g):
    for x in g: I(x[0] + '\ns_nop 0\n' + x[2])

def half_addr(j, se, sn, sh, vbase):
    I(f'''s_bfe_u32 s{sTMP}, s{sn}, {(6 << 16) | (8*j)}
    s_bfe_u32 s{sTMP2}, s{sn+1}, {(6 << 16) | (8*j)}
    s_lshl_b32 s{sTMP}, s{sTMP}, {sh}
    s_lshl_b32 s{sTMP2}, s{sTMP2}, {sh}
    v_add_u32 v{T0}, s{sTMP}, v{vbase}
    s_mov_b32 exec_lo, 0
    v_add_u32 v{T0}, s{sTMP2}, v{vbase}
    s_bitcmp1_b32 s{se}, {8*j+6}
    s_cselect_b32 exec_lo, -1, 0
    s_bitcmp1_b32 s{se+1}, {8*j+6}
    s_cselect_b32 exec_hi, -1, 0''')
def flush_j(j):
    if G4:
        I(f'''v_add_f32 v{T1}, v{ACC+2*j}, v{ACC+2*j+1}
        v_add_f32 v{T2}, v{ACC+8+2*j}, v{ACC+8+2*j+1}''')
        half_addr(j, sNC, sNP, 9, vLA)
        I(f'''v_cvt_f64_f32 {r(T4,2)}, v{T1}
        v_mov_b64 {r(ACC+2*j,2)}, 0
        ds_add_f64 v{T0}, {r(T4,2)}
        v_cvt_f64_f32 {r(T1,2)}, v{T2}
        v_mov_b64 {r(ACC+8+2*j,2)}, 0
        ds_add_f64 v{T0}, {r(T1,2)} offset:256
        s_mov_b64 exec, -1''')
        return
    I(f'''v_add_f32 v{T1}, v{ACC+2*j}, v{ACC+2*j+1}
    v_add_f32 v{T2}, v{ACC+8+2*j}, v{ACC+8+2*j+1}
    s_bfe_u32 s{sTMP}, s{sNP}, {(6 << 16) | (8*j)}
    s_lshl_b32 s{sTMP}, s{sTMP}, 9
    v_permlane32_swap_b32 v{T1}, v{T2}
    v_add_u32 v{T0}, s{sTMP}, v{vLA}
    v_mov_b64 {r(ACC+2*j,2)}, 0
    v_add_f32 v{T1}, v{T1}, v{T2}
    v_mov_b64 {r(ACC+8+2*j,2)}, 0
    v_cvt_f64_f32 {r(T4,2)}, v{T1}
    ds_add_f64 v{T0}, {r(T4,2)}''')
def xa_j(j):
    if G4: half_addr(j, sNN, sNN, 8, vLT)
    else:
        I(f'''s_bfe_u32 s{sTMP}, s{sNN}, {(6 << 16) | (8*j)}
        s_lshl_b32 s{sTMP}, s{sTMP}, 8
        v_add_u32 v{T0}, s{sTMP}, v{vLT}''')
    I(f'''ds_read2_b32 {r(XA+4*j,2)}, v{T0}
    ds_read2_b32 {r(XA+4*j+2,2)}, v{T0}
    ds_read2_b32 {r(XA+16+4*j,2)}, v{T0} offset0:32 offset1:32
    ds_read2_b32 {r(XA+16+4*j+2,2)}, v{T0} offset0:32 offset1:32''')
    if G4: I('s_mov_b64 exec, -1')
def evchk(kind, p, sn):
    if G4:
        I(f's_or_b32 s{sEV}, s{sn}, s{sn+1}')
        sn = sEV
    for j in range(4): I(f's_bitcmp1_b32 s{sn}, {8*j+6}\ns_cbranch_scc1 M_{kind}{p}{j}\nM_{kind}R{p}{j}:')

def frag_off(f):
    if f < 16: return (f // 4) * 8192 + 4096 + (f % 4) * 1024
    return ES + (4 + f - 16) * 2048 + 1024 - WBASE

def putstamp(i, ins='s_memrealtime'):
    I(f'{ins} s[100:101]\ns_waitcnt lgkmcnt(0)\nv_writelane_b32 v{vST}, s100, {i}')
def fstamp(i):
    if OPT['STAMP'] and OPT['FINE']: putstamp(i)
def stamp(i):
    if OPT['AMP'] == 10 + i: I('s_memrealtime s[100:101]\ns_waitcnt lgkmcnt(0)')
    if not OPT['STAMP']: return
    if OPT['FINE'] and i not in (0,): return
    if OPT['CYC'] == 2:
        if i in (1, 2): return
        if i in (4, 5): putstamp(i - 3, 's_memtime')
    putstamp(i)
def trace():
    if OPT['TRACE']:
        I(f'''s_memtime s[76:77]
        s_memrealtime s[78:79]
        s_waitcnt lgkmcnt(0)
        s_mov_b32 m0, s{sT}
        s_nop 0
        v_writelane_b32 v{vTR}, s76, m0
        s_add_u32 m0, m0, 32
        s_nop 0
        v_writelane_b32 v{vTR}, s78, m0''')

def sch_load(tag='', cuts=(11, 14, 18)):
    C('schedule words of tiles 1.. into s68..')
    for t in range(1, 24):
        if t in cuts: I(f's_cmp_lt_u32 s{sTW}, {t}\ns_cbranch_scc1 M_SCHD{tag}')
        I(f'v_readlane_b32 s{67+t}, v{vSCH}, {t}')
    I(f'M_SCHD{tag}:')

OUT = []
def gen_main():
    header(MAIN)
    if OPT['AMP']: I('s_memrealtime s[74:75]\ns_waitcnt lgkmcnt(0)\ns_mov_b32 s3, s74')
    stamp(0)
    C('workgroup g owns bucket (g&7)*32 + (g>>3): neighbouring buckets share a die when placement is round-robin (speed only)')
    I(f"""
    s_load_dwordx2 s[26:27], s[0:1], 72
    s_load_dwordx4 s[4:7], s[0:1], 0
    s_load_dwordx2 s[24:25], s[0:1], 56
    s_cmp_ge_u32 s2, {NB}
    s_cbranch_scc1 M_END
    v_lshrrev_b32 v1, 6, v0
    v_and_b32 v2, 63, v0
    v_readfirstlane_b32 s{sW}, v1
    s_and_b32 s{sB}, s2, 7
    s_lshl_b32 s{sB}, s{sB}, 5
    s_lshr_b32 s{sTMP}, s2, 3
    s_add_u32 s{sB}, s{sB}, s{sTMP}
    s_mul_i32 s{sNN}, s{sTMP}, {391*128}
    v_lshrrev_b32 v3, 1, v0
    {f'v_min_u32 v3, {NCH-1}, v3' if OPT['CLMP'] else ''}
    v_lshlrev_b32 v{IDX}, 6, v3
    v_lshlrev_b32 v{IDX+1}, 4, v2
    s_lshr_b32 s{sD}, s{sB}, 4
    s_lshl_b32 s{sD}, s{sD}, 12
    s_and_b32 s{sTMP}, s{sB}, 15
    s_add_u32 s{sD}, s{sD}, s{sTMP}
    s_lshl_b32 s{sD}, s{sD}, 2
    s_add_u32 s{sD}, s{sD}, {OFFS}
    s_mov_b32 s{sWS+2}, {WS_BYTES}
    s_mov_b32 s{sWS+3}, 0x20000
    s_lshr_b32 s{sTMP}, s{sW}, 2
    s_lshl_b32 s{sTMP}, s{sTMP}, 13
    s_and_b32 s{sTMP2}, s{sW}, 3
    s_lshl_b32 s{sTMP2}, s{sTMP2}, 10
    s_add_u32 s{sNP}, s{sTMP}, s{sTMP2}
    s_lshl_b32 s{sNC}, s{sW}, 10
    s_add_u32 s{sNC}, s{sNC}, {WF}
    v_lshlrev_b32 v{T0}, 4, v0
    v_add_u32 v{T0}, {AGG}, v{T0}
    v_mov_b64 {r(AF+8,2)}, 0
    v_mov_b64 {r(AF+10,2)}, 0
    s_cmp_lg_u32 s{sW}, 0
    ds_write_b128 v{T0}, {r(AF+8,4)}
    ds_write_b128 v{T0}, {r(AF+8,4)} offset:8192
    ds_write_b128 v{T0}, {r(AF+8,4)} offset:16384
    s_cbranch_scc1 M_NOZ3
    ds_write_b128 v{T0}, {r(AF+8,4)} offset:24576
M_NOZ3:""")
    cnt_zero()
    if OPT['RPF']:
        I(f'''s_lshr_b32 s52, s2, 3
        s_lshl_b32 s52, s52, 1
        s_add_u32 s52, s52, s{sW}
        s_sub_u32 s52, s52, {OPT['RPW']}
        s_min_u32 s52, s52, 61
        s_mul_i32 s52, s52, {4*CH*4}
        s_and_b32 s53, s2, 7
        s_mul_i32 s53, s53, 1606
        s_max_u32 s53, s53, 224
        s_sub_u32 s53, s53, 224
        s_and_b32 s53, s53, -128
        s_add_u32 s52, s52, s53
        v_lshrrev_b32 v{vLX}, 4, v2
        v_mul_u32_u24 v{vLX}, {CH*4}, v{vLX}
        v_and_b32 v{vLE}, 15, v2
        v_lshl_add_u32 v{vLX}, v{vLE}, 7, v{vLX}''')
    C('two lanes per chunk fetch the segment (bucket, chunk); A / U fragments and the bucket rows go to LDS')
    I(f"""
    s_waitcnt lgkmcnt(0)
    s_mov_b32 s{sWS}, s26
    s_mov_b32 s{sWS+1}, s27
    s_add_u32 m0, s{sNP}, {XS}
    buffer_load_dword v{vC}, v{IDX}, {sr(sWS,4)}, s{sD} offen
    """)
    if OPT['RPF']:
        C("two waves touch this workgroup's share of the lines where the die's segments are expected (speed only)")
        I(f'''s_sub_u32 s53, s{sW}, {OPT['RPW']}
        s_cmp_ge_u32 s53, 2
        s_cbranch_scc1 M_NORP
        buffer_load_dword v{vLE}, v{vLX}, {sr(sWS,4)}, s52 offen
M_NORP:''')
    I(f"""
    s_add_u32 s{sTMP}, s{sNC}, {18*1024}
    buffer_load_dwordx4 v{IDX+1}, {sr(sWS,4)}, s{sTMP} offen lds
    s_add_u32 m0, s{sNP}, {XS+16384}
    s_add_u32 s{sTMP}, s{sNC}, {26*1024}
    buffer_load_dwordx4 v{IDX+1}, {sr(sWS,4)}, s{sTMP} offen lds
    v_lshrrev_b32 v{IDX+2}, 4, v2
    s_lshl_b32 s{sTMP}, s{sW}, 2
    v_add_u32 v{IDX+2}, s{sTMP}, v{IDX+2}
    v_xor_b32 v{IDX+2}, v{IDX+2}, v2
    v_and_b32 v{IDX+2}, 7, v{IDX+2}
    v_lshlrev_b32 v{IDX+2}, 4, v{IDX+2}
    v_lshrrev_b32 v{IDX+3}, 3, v2
    v_lshl_or_b32 v{IDX+2}, v{IDX+3}, 7, v{IDX+2}
    """)
    srd(sX, 4, N * 128)
    I(f"""
    s_cmp_ge_u32 s{sW}, 7
    s_cbranch_scc1 M_NOROW
    s_lshl_b32 s{sTMP}, s{sW}, 10
    s_mul_i32 s{sTMP2}, s{sB}, {BN*128}
    s_add_u32 m0, s{sNP}, {XS+32768}
    s_add_u32 s{sTMP2}, s{sTMP2}, s{sTMP}
    buffer_load_dwordx4 v{IDX+2}, {sr(sX,4)}, s{sTMP2} offen lds
M_NOROW:
    s_add_u32 s{sOFP}, s26, s{sD}
    s_addc_u32 s{sOFP+1}, s27, 0
    v_cmp_gt_u32 vcc, {2*NCH}, v0
    v_mul_u32_u24 v{T1}, {CH}, v3
    v_and_b32 v{T2}, 1, v0
    v_lshlrev_b32 v{T2}, 2, v{T2}
    v_min_u32 v1, 390, v0
    v_lshlrev_b32 v1, 7, v1
    """)
    if OPT['RPF']:
        I(f'''s_cmp_ge_u32 s53, 2
        s_cbranch_scc1 M_RW2
        s_waitcnt vmcnt({4 if OPT['RPW'] < 6 else 3})
        s_branch M_RW3
M_RW2:''')
    I(f"""
    s_waitcnt vmcnt(2)
M_RW3:
    v_cndmask_b32 v{vC}, 0, v{vC}, vcc
    v_and_b32 v{T0}, 0xffff, v{vC}
    v_lshrrev_b32 v{vC}, 16, v{vC}
    v_add3_u32 v{T0}, v{T0}, v{T1}, v{T2}
    v_cmp_lt_u32 {sr(sSAVE,2)}, 40, v{vC}
    v_sub_u32 v{vC}, v{vC}, v{T2}
    v_lshlrev_b32 v{vEB}, 5, v{T1}
    v_lshlrev_b32 v{T0}, 2, v{T0}
    v_cmp_lt_i32 vcc, 16, v{vC}
    v_cmp_lt_i32 {sr(52,2)}, 24, v{vC}
    v_cmp_lt_i32 {sr(54,2)}, 32, v{vC}
    buffer_load_dwordx4 {r(pREC,4)}, v{T0}, {sr(sWS,4)}, 0 offen
    buffer_load_dwordx4 {r(pREC+4,4)}, v{T0}, {sr(sWS,4)}, 0 offen offset:32
    """)
    if OPT['XR2']:
        I(f"""
    s_or_b64 vcc, vcc, 1
    s_mov_b64 exec, vcc
    buffer_load_dwordx4 {r(pREC+8,4)}, v{T0}, {sr(sWS,4)}, 0 offen offset:64
    s_mov_b32 s{sXR}, 0
    s_mov_b64 exec, {sr(52,2)}
    s_cbranch_execz M_RL3
    s_mov_b32 s{sXR}, 1
    buffer_load_dwordx4 {r(pREC+12,4)}, v{T0}, {sr(sWS,4)}, 0 offen offset:96
    s_mov_b64 exec, {sr(54,2)}
    s_cbranch_execz M_RL3
    s_mov_b32 s{sXR}, 3
    buffer_load_dwordx4 {r(pREC+16,4)}, v{T0}, {sr(sWS,4)}, 0 offen offset:128
M_RL3:
    s_mov_b64 exec, -1
    """)
    else:
        I(f"""
    s_cmp_lg_u64 {sr(54,2)}, 0
    s_cselect_b32 s{sXR}, 2, 0
    s_cmp_eq_u64 {sr(52,2)}, 0
    s_cbranch_scc1 M_RL3
    s_or_b32 s{sXR}, s{sXR}, 1
    buffer_load_dwordx4 {r(pREC+12,4)}, v{T0}, {sr(sWS,4)}, 0 offen offset:96
    buffer_load_dwordx4 {r(pREC+16,4)}, v{T0}, {sr(sWS,4)}, 0 offen offset:128
M_RL3:
    s_or_b64 vcc, vcc, 1
    s_mov_b64 exec, vcc
    buffer_load_dwordx4 {r(pREC+8,4)}, v{T0}, {sr(sWS,4)}, 0 offen offset:64
    s_mov_b64 exec, -1
    """)
    stamp(1)
    srd(sE, 6, E * 32)
    srd(sOUT, 24, N * 128)
    I(f"""
    s_lshr_b32 s{sTMP}, s{sW}, 2
    s_lshl_b32 s{sTMP}, s{sTMP}, 1
    s_and_b32 s{sTMP2}, s{sW}, 1
    s_add_u32 s{sTMP}, s{sTMP}, s{sTMP2}
    s_lshl_b32 s{sTMP}, s{sTMP}, 13
    s_add_u32 s{sTMP}, s{sTMP}, {XS}
    v_add_u32 v{IDX+2}, s{sTMP}, v{IDX+1}
    v_and_b32 v{T1}, 31, v2
    v_lshlrev_b32 v{vLT}, 2, v{T1}
    v_add_u32 v{vLT}, {XAT}, v{vLT}
    v_lshrrev_b32 v{T2}, 5, v2
    v_bfe_u32 v{IDX}, v2, 1, 3
    v_xor_b32 v{IDX}, v{IDX}, v{T2}
    s_bfe_u32 s{sG0}, s{sW}, 0x10001
    s_lshl_b32 s{sTMP2}, s{sG0}, 13
    s_add_u32 s{sTMP}, s{sTMP2}, {XS+32768}
    v_lshlrev_b32 v{T1}, 7, v{T1}
    v_add_u32 v{T1}, s{sTMP}, v{T1}
    s_and_b32 s{sD}, s{sW}, 1
    s_lshl_b32 s{sD}, s{sD}, 7
    s_add_u32 s{sTMP2}, s{sTMP2}, s{sD}
    v_lshlrev_b32 v{T2}, 10, v{T2}
    v_add3_u32 v{vTA}, v{T2}, v{vLT}, s{sTMP2}
    s_mov_b32 s{sD}, {NLOG2E}
    """)
    for s in range(4):
        I(f"""v_xor_b32 v{AF2+s}, {2*s}, v{IDX}
        v_lshl_add_u32 v{AF2+s}, v{AF2+s}, 4, v{T1}""")
    I(f'v_mov_b32 v{vONE}, 1\nv_mov_b32 v{vFC}, 0xfc')
    validate(0, 12)
    if OPT['XR2']:
        I(f'''s_cmp_eq_u32 s{sXR}, 0
        s_waitcnt vmcnt(4)
        s_cbranch_scc0 M_BA
        s_waitcnt vmcnt(3)
M_BA:
        s_barrier''')
    else: I('s_waitcnt vmcnt(3)\ns_barrier')
    C('x[bucket] @ A (waves 0-3) and x[bucket] @ U (waves 4-7), one 32x32 tile per wave')
    for s in range(4):
        I(f'ds_read_b128 {r(pW+4*s,4)}, v{IDX+2} offset:{s*1024}\nds_read_b128 {r(pA+4*s,4)}, v{AF2+s}')
    I(f"""
    s_cmp_eq_u64 {sr(sSAVE,2)}, 0
    s_cbranch_scc1 M_NOFLAG
    v_mov_b32 v{T1}, {FLAG}
    ds_write_b32 v{T1}, v{vONE}
M_NOFLAG:
    s_waitcnt lgkmcnt(0)""")
    I(mf(pD, pA, pW, '0'))
    for k in range(1, 4): I(mf(pD, pA+4*k, pW+4*k, r(pD, 16)))
    I(f"""
    s_mov_b32 s{sMASK}, {XSENT}
    s_mov_b32 s{sONE}, 1.0
    s_mov_b32 s{sONE+1}, 1.0
    s_mov_b32 s{sMODE}, 0
    s_lshl_b32 s{sM0X}, s{sW}, 13
    s_add_u32 s{sM0X}, s{sM0X}, {XS}
    s_lshl_b32 s{sM0E}, s{sW}, 11
    s_add_u32 s{sM0E}, s{sM0E}, {ES}
    s_nop 3
    s_cmp_ge_u32 s{sW}, 4
    s_cbranch_scc1 M_ADONE""")
    for k in range(16):
        if k == 12: I(f's_cmp_lg_u32 s{sG0}, 0\ns_cbranch_scc1 M_ADONE')
        I(f'v_mul_f32 v{pD+k}, s{sD}, v{pD+k}\nds_write_b32 v{vTA}, v{pD+k} offset:{(8*(k//4)+k%4)*256}')
    I('M_ADONE:\ns_waitcnt vmcnt(0)')
    stamp(2)
    fstamp(1)
    C('counting sort by node, first pass: rank of every record inside its node')
    def mid1():
        I(f"""s_add_u32 m0, s{sNP}, {WBASE+4096}
    s_add_u32 s{sTMP}, s{sNC}, 8192
    buffer_load_dwordx4 v{IDX+1}, {sr(sWS,4)}, s{sNC} offen lds
    s_add_u32 m0, s{sNP}, {WBASE+4096+16384}
    s_cmp_ge_u32 s{sW}, 2
    buffer_load_dwordx4 v{IDX+1}, {sr(sWS,4)}, s{sTMP} offen lds
    s_cbranch_scc1 M_NOW4
    s_add_u32 m0, s{sM0E}, {4*2048+1024}
    s_add_u32 s{sTMP}, s{sNC}, {16*1024}
    buffer_load_dwordx4 v{IDX+1}, {sr(sWS,4)}, s{sTMP} offen lds
M_NOW4:""")
        if OPT['XPF']:
            C("each workgroup touches 1/32 of x so that the table is in its die's L2 when the gathers start")
            I(f'buffer_load_dword v1, v1, {sr(sX,4)}, s{sNN} offen')
    pass_a(0, 12, mid1)
    fstamp(2)
    I(f's_cmp_eq_u32 s{sXR}, 0\ns_cbranch_scc1 M_RAR')
    validate(12, 16)
    pass_a(12, 16)
    I(f's_cmp_ge_u32 s{sXR}, 2\ns_cbranch_scc1 M_RA\nM_RAR:')
    I('s_waitcnt lgkmcnt(0)\ns_barrier')
    fstamp(3)
    C('node bases (every node padded to a multiple of 8 edges)')
    scan()
    fstamp(4)
    I(f'''
    s_cmp_gt_u32 s{sTMP}, {CAP}
    s_cbranch_scc1 M_SLOW
    s_cmp_lg_u32 s{sTMP2}, 0
    s_cbranch_scc1 M_SLOW
    ''')
    if OPT['XR2']:
        I(f'''s_cmp_eq_u32 s{sXR}, 0
    s_cbranch_scc1 M_BATCH
    s_cmp_ge_u32 s{sXR}, 2
    s_cbranch_scc1 M_RB
M_RBR:''')
        pass_b1(12, 16)
    else:
        I(f'''
    s_cmp_eq_u32 s{sXR}, 0
    s_cbranch_scc1 M_BATCH
    s_cmp_ge_u32 s{sXR}, 2
    s_cbranch_scc1 M_RB
M_RBR:''')
        pass_b1(12, 16)
        I('s_waitcnt lgkmcnt(0)')
        pass_b2(12, 16)
    I('M_BATCH:')
    C('second pass: scatter the records into the node-sorted lists')
    pass_b1(0, 12)
    pad_write()
    I(f'''
    v_lshrrev_b32 v{vKE}, 4, v2
    v_xor_b32 v{vKE}, v{vKE}, v2''')
    if G4:
        I(f'''v_lshrrev_b32 v{vKX0}, 3, v2
        v_and_b32 v{vKX0}, 4, v{vKX0}
        v_and_b32 v{vKX1}, 7, v2
        v_xor_b32 v{vKX0}, v{vKX0}, v{vKX1}
        v_lshlrev_b32 v{vKX0}, 4, v{vKX0}
        v_xor_b32 v{vKX1}, 16, v{vKX0}
        v_xor_b32 v{vKX2}, 32, v{vKX0}
        v_xor_b32 v{vKX3}, 48, v{vKX0}''')
    else:
        I(f'''v_and_b32 v{vKX0}, 7, v{vKE}
        v_lshlrev_b32 v{vKX0}, 4, v{vKX0}
        v_xor_b32 v{vKX1}, 64, v{vKX0}''')
    I(f'''v_and_b32 v{vKE}, 1, v{vKE}
    v_lshlrev_b32 v{vKE}, 4, v{vKE}
    s_waitcnt lgkmcnt(0)''')
    pass_b2(0, 12)
    if OPT['XR2']:
        I(f's_cmp_eq_u32 s{sXR}, 0\ns_cbranch_scc1 M_NOB3')
        pass_b2(12, 16)
        I('M_NOB3:')
    C('''tiles (32 edges = four 8-edge granules of four streams) are split over the four SIMD pairs (w, w+4).
    Waves 0-3 start first; waves 4-7 start their own pipeline once waves 0-3 have done K tiles (staggered start, one
    barrier).  Lighter buckets have more slack and use a larger K; waves 0-3 take correspondingly more tiles.''')
    I(f'''
    s_add_u32 s{sTMP}, s{sTMP}, 31
    s_lshr_b32 s52, s{sTMP}, 7
    s_bfe_u32 s53, s{sTMP}, 0x20005
    s_lshr_b32 s59, s{sTMP}, 5
    s_min_u32 s59, s59, {OPT['NREF']}
    s_sub_u32 s59, {OPT['NREF']}, s59
    s_mul_i32 s59, s59, {OPT['SLOPE']}
    s_lshr_b32 s59, s59, 2
    s_min_u32 s59, s59, {OPT['KMAX']}
    s_add_u32 s{sBAR}, s59, {OPT['STAG']+1}
    s_add_u32 s59, s59, {OPT['DELTA']}
    s_max_u32 s54, s52, s59
    s_sub_u32 s54, s54, s59
    s_lshr_b32 s54, s54, 1
    s_add_u32 s55, s52, 1
    s_max_u32 s56, s55, s59
    s_sub_u32 s56, s56, s59
    s_lshr_b32 s56, s56, 1
    s_sub_u32 s52, s52, s54
    s_sub_u32 s55, s55, s56
    s_mul_i32 s57, s55, s53
    s_sub_u32 s58, 4, s53
    s_mul_i32 s58, s58, s52
    s_add_u32 s57, s57, s58
    s_cmp_ge_u32 s{sW}, 4
    s_cselect_b32 s52, s54, s52
    s_cselect_b32 s55, s56, s55
    s_cselect_b32 s57, s57, 0
    s_cselect_b32 s{sBAR}, 0, s{sBAR}
    s_and_b32 s58, s{sW}, 3
    s_cmp_lt_u32 s58, s53
    s_cselect_b32 s{sTW}, s55, s52
    s_min_u32 s53, s53, s58
    s_sub_u32 s58, s58, s53
    s_mul_i32 s53, s53, s55
    s_mul_i32 s58, s58, s52
    s_add_u32 s{sG0}, s57, s53
    s_add_u32 s{sG0}, s{sG0}, s58
    s_lshl_b32 s{sG0}, s{sG0}, 7
    s_add_u32 s{sG0}, s{sG0}, {LX}
    ''')
    if G4:
        I(f"""
    s_lshl_b32 s{sTMP2}, s{sTW}, 4
    v_lshrrev_b32 v{T0}, 3, v2
    v_mul_u32_u24 v{T0}, s{sTMP2}, v{T0}
    v_add_u32 v{vLX}, s{sG0}, v{T0}
    v_bfe_u32 v{T0}, v2, 3, 2
    v_lshrrev_b32 v{T1}, 1, v{T0}
    v_xor_b32 v{T1}, v{T1}, v{T0}
    v_lshrrev_b32 v{T2}, 5, v2
    v_xor_b32 v{T1}, v{T1}, v{T2}
    v_and_b32 v{T1}, 1, v{T1}
    v_lshl_or_b32 v{T0}, v{T0}, 1, v{T1}
    v_mul_u32_u24 v{T0}, s{sTMP2}, v{T0}
    v_bfe_u32 v{T1}, v2, 1, 2
    v_lshl_add_u32 v{T0}, v{T1}, 2, v{T0}
    v_add_u32 v{vLE}, s{sG0}, v{T0}
    s_sub_u32 s{sTMP}, s{sTW}, 1
    v_and_b32 v{T0}, 31, v2
    v_min_u32 v{T0}, s{sTMP}, v{T0}
    v_lshlrev_b32 v{T0}, 4, v{T0}
    v_mad_u32_u24 v{T0}, v{T2}, s{sTMP2}, v{T0}
    s_lshl_b32 s{sTMP2}, s{sTMP2}, 1
    v_add_u32 v{T0}, s{sG0}, v{T0}
    v_add_u32 v{T1}, s{sTMP2}, v{T0}
    v_add_u32 v{T2}, s{sTMP2}, v{T1}
    v_add_u32 v{vSCH}, s{sTMP2}, v{T2}""")
    else:
        I(f"""
    s_lshl_b32 s{sTMP2}, s{sTW}, 5
    v_lshrrev_b32 v{T0}, 4, v2
    v_mul_u32_u24 v{T0}, s{sTMP2}, v{T0}
    v_bfe_u32 v{T1}, v2, 3, 1
    v_lshl_add_u32 v{T0}, v{T1}, 4, v{T0}
    v_add_u32 v{vLX}, s{sG0}, v{T0}
    v_bfe_u32 v{T0}, v2, 3, 2
    v_mul_u32_u24 v{T0}, s{sTMP2}, v{T0}
    v_bfe_u32 v{T1}, v2, 2, 1
    v_lshl_add_u32 v{T0}, v{T1}, 4, v{T0}
    v_lshrrev_b32 v{T1}, 5, v2
    v_lshl_add_u32 v{T0}, v{T1}, 3, v{T0}
    v_bfe_u32 v{T1}, v2, 1, 1
    v_lshl_add_u32 v{T0}, v{T1}, 2, v{T0}
    v_add_u32 v{vLE}, s{sG0}, v{T0}
    s_sub_u32 s{sTMP}, s{sTW}, 1
    v_min_u32 v{T0}, s{sTMP}, v2
    v_lshlrev_b32 v{T0}, 5, v{T0}
    v_add_u32 v{T0}, s{sG0}, v{T0}
    v_add_u32 v{T1}, s{sTMP2}, v{T0}
    v_add_u32 v{T2}, s{sTMP2}, v{T1}
    v_add_u32 v{vSCH}, s{sTMP2}, v{T2}""")
    fstamp(5)
    I(f's_waitcnt vmcnt({1 if OPT["XPF"] else 0}) lgkmcnt(0)\ns_barrier')
    stamp(3)
    if OPT['NOX']: I(f's_mov_b32 s{sX+2}, 0')
    if OPT['NOE']: I(f's_mov_b32 s{sE+2}, 0')
    g0 = dma_tile(Z, 0, 0)
    g1 = dma_tile(Z+16, 4096, 1024)
    C('pipeline start: list entries of tiles 0..2, node of every (tile, stream), gathers of tile 0')
    I(f'''
    ds_read_b128 {r(Z,4)}, v{vLX}
    ds_read_b32 v{Z+4}, v{vLE} offset:16384
    ds_read_b32 v{T0}, v{T0}
    ds_read_b32 v{T1}, v{T1}
    ds_read_b32 v{T2}, v{T2}
    ds_read_b32 v{vSCH}, v{vSCH}
    ds_read_b128 {r(Z+16,4)}, v{vLX} offset:{4*GR}
    ds_read_b32 v{Z+20}, v{vLE} offset:{16384+4*GR}
    ds_read_b128 {r(IDX,4)}, v{vLX} offset:{8*GR}
    ds_read_b32 v{IDX+4}, v{vLE} offset:{16384+8*GR}
    v_lshlrev_b32 v{vFC}, 4, v2
    v_add_u32 v{vFC}, {WBASE}, v{vFC}
    s_cmp_ge_u32 s{sW}, 4
    s_cbranch_scc1 M_NOT0
    s_setprio 1
    s_cmp_eq_u32 s{sTW}, 0
    s_waitcnt lgkmcnt(8)
    s_cbranch_scc1 M_NOT0
    ''')
    for g in (g0 if not OPT['EFIRST'] else g0[4:] + g0[:4]): I('\n'.join(g))
    C('lane t of the schedule register: byte j = node of stream j in tile t, bit 6 set when it differs from tile t-1')
    I(f'''
M_NOT0:
    s_waitcnt lgkmcnt(0)
    v_bfe_u32 v{T0}, v{T0}, 1, 6
    v_bfe_u32 v{T1}, v{T1}, 1, 6
    v_bfe_u32 v{T2}, v{T2}, 1, 6
    v_bfe_u32 v{vSCH}, v{vSCH}, 1, 6
    v_lshl_or_b32 v{T0}, v{T1}, 8, v{T0}
    v_lshl_or_b32 v{T0}, v{T2}, 16, v{T0}
    v_lshl_or_b32 v{vSCH}, v{vSCH}, 24, v{T0}
    v_add_u32 v{vLX}, {12*GR}, v{vLX}
    v_mov_b32 v{T0}, v{vSCH}
    v_readfirstlane_b32 s{sNC}, v{vSCH}
    v_readlane_b32 s{sNC+1}, v{vSCH}, 32
    v_add_u32 v{vLE}, {16384+12*GR}, v{vLE}
    v_mov_b32_dpp v{T0}, v{vSCH} wave_shr:1 row_mask:0xf bank_mask:0xf
    s_mov_b32 s{sT}, 1
    s_mov_b32 s{sT2}, 33
    v_xor_b32 v{T0}, v{T0}, v{vSCH}
    v_add_u32 v{T0}, 0x3f3f3f3f, v{T0}
    v_and_b32 v{T0}, 0x40404040, v{T0}
    {'s_mov_b32 exec_hi, -2' if G4 else ''}
    v_or_b32 v{vSCH}, v{vSCH}, v{T0}
    s_mov_b64 {sr(sNP,2)}, {sr(sNC,2)}
    ''')
    if G4:
        I(f"""s_mov_b32 exec_hi, 0
        v_mov_b32 v{T1}, s{sNC}
        s_not_b64 exec, exec
        v_mov_b32 v{T1}, s{sNC+1}
        s_mov_b64 exec, -1""")
    for j in range(4):
        if G4:
            I(f"""v_bfe_u32 v{T0}, v{T1}, {8*j}, 6
            v_lshl_add_u32 v{T0}, v{T0}, 8, v{vLT}""")
        else:
            I(f"""s_bfe_u32 s{sTMP}, s{sNC}, {(6 << 16) | (8*j)}
            s_lshl_b32 s{sTMP}, s{sTMP}, 8
            v_add_u32 v{T0}, s{sTMP}, v{vLT}""")
        I(f"""ds_read_b32 v{XA+4*j}, v{T0}
        ds_read_b32 v{XA+16+4*j}, v{T0} offset:128""")
    I(f's_cmp_eq_u32 s{sMODE}, 2\ns_cbranch_scc1 M_NOWT')
    C('first batch only: weights into registers, x@U into the aggregate, read-side LDS addresses')
    for f in (16, 0, 1, 2, 3, 8, 9, 10, 11, 17, 4, 5, 6, 7, 12, 13, 14, 15):
        I(f'ds_read_b128 {r(WB+4*f,4)}, v{vFC} offset:{frag_off(f)}')
    I(f'''s_cmp_lt_u32 s{sW}, 4
    s_cbranch_scc1 M_TDONE
    s_bfe_u32 s{sXR}, s{sW}, 0x10001
    v_subrev_u32 v{vTA}, {XAT}, v{vTA}
    v_lshlrev_b32 v{vTA}, 1, v{vTA}
    v_add_u32 v{vTA}, {AGG}, v{vTA}''')
    for k in range(16):
        if k == 12: I(f's_cmp_lg_u32 s{sXR}, 0\ns_cbranch_scc1 M_TDONE')
        I(f'v_cvt_f64_f32 {r(AF+2*(k%8),2)}, v{pD+k}\nds_add_f64 v{vTA}, {r(AF+2*(k%8),2)} offset:{(8*(k//4)+k%4)*512}')
    I('M_TDONE:')
    j_, i_, h_, g_, t_, u_ = AF2, AF2+1, AF2+2, AF2+3, AF2+4, AF2+5
    I(f'''
    s_lshl_b32 s{sMODE}, s{sMODE}, 1
    v_and_b32 v{vLA}, {31 if G4 else 63}, v2
    v_lshlrev_b32 v{vLA}, 3, v{vLA}
    v_add_u32 v{vLA}, {AGG}, v{vLA}
    v_bfe_u32 v{j_}, v2, 3, 2
    v_and_b32 v{i_}, 3, v2
    v_lshrrev_b32 v{h_}, 5, v2
    v_lshrrev_b32 v{t_}, 1, v{j_}
    v_xor_b32 v{g_}, v{t_}, v{j_}
    v_lshrrev_b32 v{u_}, 2, v2
    v_xor_b32 v{g_}, v{g_}, v{u_}
    v_and_b32 v{g_}, 1, v{g_}
    v_xor_b32 v{t_}, v{t_}, v{h_}
    v_lshlrev_b32 v{t_}, 4, v{t_}
    v_lshl_or_b32 v{u_}, v{j_}, 2, v{i_}
    v_lshl_or_b32 v{u_}, v{g_}, 4, v{u_}
    v_lshl_or_b32 v{t_}, v{u_}, 5, v{t_}
    v_add_u32 v{vRE}, s{sM0E}, v{t_}
    ''')
    if G4:
        I(f"""v_bfe_u32 v{u_}, v2, 2, 3
        v_lshl_or_b32 v{u_}, v{i_}, 3, v{u_}
        v_lshlrev_b32 v{u_}, 7, v{u_}
        v_add_u32 v{u_}, s{sM0X}, v{u_}
        v_lshrrev_b32 v{t_}, 1, v{j_}
        v_lshl_or_b32 v{t_}, v{t_}, 2, v{i_}
        v_xor_b32 v{t_}, v{t_}, v{h_}""")
    else:
        I(f"""v_and_b32 v{t_}, 1, v{i_}
        v_lshl_or_b32 v{u_}, v{g_}, 1, v{t_}
        v_lshlrev_b32 v{u_}, 3, v{u_}
        v_lshl_or_b32 v{u_}, v{j_}, 1, v{u_}
        v_lshrrev_b32 v{i_}, 1, v{i_}
        v_or_b32 v{u_}, v{u_}, v{i_}
        v_lshlrev_b32 v{u_}, 7, v{u_}
        v_add_u32 v{u_}, s{sM0X}, v{u_}
        v_lshl_or_b32 v{t_}, v{t_}, 2, v{j_}
        v_xor_b32 v{t_}, v{t_}, v{h_}""")
    for s in range(4):
        I(f'''v_xor_b32 v{g_}, {2*s}, v{t_}
        v_lshl_add_u32 v{vRA+s}, v{g_}, 4, v{u_}''')
    I('M_NOWT:')
    for k in range(8): I(f'v_mov_b64 {r(ACC+2*k,2)}, 0')
    for g in g1: I(g[1])
    for g in dma_tile(IDX, 0, 0): I(g[1])
    if OPT['SCH'] == 2: sch_load()
    I(f'''
    s_cmp_ge_u32 s{sW}, 4
    s_cbranch_scc1 M_YNG
    s_cmp_eq_u32 s{sTW}, 0
    s_cbranch_scc1 M_BDONE
    ''')
    if OPT['T1L']:
        I('s_waitcnt vmcnt(0) lgkmcnt(0)\nM_W1:')
    else:
        I(f's_cmp_lt_u32 s{sTW}, 2\ns_cbranch_scc1 M_W0')
        dma_issue(g1)
        I('s_waitcnt vmcnt(5) lgkmcnt(0)\nM_W1:')
    I(f'ds_read_b128 {r(AF+16,4)}, v{vRE}')
    for s in range(4): I(f'ds_read_b128 {r(AF+4*s,4)}, v{vRA+s}')
    for ft in range(2):
        for j in range(4):
            for i in range(1, 4): I(f'v_mov_b32 v{XA+16*ft+4*j+i}, v{XA+16*ft+4*j}')
    I('s_waitcnt lgkmcnt(0)')
    for m in zm(0, AF): I(m)
    if OPT['SCH'] == 1: sch_load()
    if OPT['T1L']:
        I(f's_cmp_lt_u32 s{sTW}, 2\ns_cbranch_scc1 M_GO')
        dma_issue(g1)
        I('M_GO:')
    else:
        I(f's_cmp_eq_u32 s{sBAR}, 0\ns_cbranch_scc1 M_YNG2')
        if OPT['SCH'] == 3: sch_load('', (16, 18))
        else: I('s_nop 3')
        I('M_GO:')
    stamp(4)
    C('''main loop, one tile per pass (two copies: LDS buffer / fragment parity).  Per 32-feature half:
    exp -> +1 -> rcp -> acc += r * hv, with hv = x@V of this half and the gate z of the next half on the matrix pipe.
    The two waves of a SIMD take turns on these vector blocks (priorities); loads and node changes sit between them.''')
    I('.p2align 6')
    for p in range(2):
        nb = 1 - p
        afc, afn = (AF, AF2) if p == 0 else (AF2, AF)
        def eblk(ft, extra):
            hv = hm(ft, afc)
            ins = {1: [f's_setprio {OPT["PB"]}']}
            for k in range(4): ins.setdefault(OPT['EF'] + 3*k, []).append(hv[k])
            ins.setdefault(OPT['P2POS'], []).insert(0, f's_setprio {OPT["PB2"]}')
            for k, v in extra.items(): ins.setdefault(k, []).extend(v)
            I('\n'.join(weave(exps(ft), ins)))
        def rblk(ft, zz):
            I('\n'.join(pkadd(ft)))
            I('\n'.join(weave(rcps(ft), {3*k: [zz[k]] for k in range(5)})))
            I('\n'.join(pkf(ft)))
        I(f'M_LOOP{p}:')
        trace()
        evchk('F', p, sNC)
        I(f'''s_cmp_eq_u32 s{sT}, s{sBAR}
    s_cbranch_scc1 M_SB{p}
M_SBR{p}:
    s_setprio 0
    s_add_u32 s{sTMP}, s{sT}, 1
    s_cmp_lt_u32 s{sTMP}, s{sTW}
    s_cbranch_scc0 M_ND{p}''')
        g = dma_tile(IDX, p*4096, p*1024)
        dma_issue(g)
        I(f'M_ND{p}:')
        if OPT['SCH']: I(f's_mov_b32 m0, s{sT}\ns_nop 0\ns_movrels_b32 s{sNN}, s67')
        rl = {11: [f'v_readlane_b32 s{sNN}, v{vSCH}, s{sT}']} if not OPT['SCH'] else {}
        if G4: rl[13] = [f'v_readlane_b32 s{sNN+1}, v{vSCH}, s{sT2}']
        eblk(0, rl)
        rblk(0, zm(1, afc))
        evchk('X', p, sNN)
        I(f'''s_setprio 0
    s_add_u32 s{sTMP}, s{sT}, 1
    s_cmp_lt_u32 s{sTMP}, s{sTW}
    s_cbranch_scc0 M_WZ{p}
    s_waitcnt vmcnt(5)
M_WZR{p}:''')
        I(f'ds_read_b128 {r(AF+16,4)}, v{vRE} offset:{nb*1024}')
        for s_ in range(4): I(f'ds_read_b128 {r(afn+4*s_,4)}, v{vRA+s_} offset:{nb*4096}')
        I(f'ds_read_b128 {r(IDX,4)}, v{vLX} offset:{4*GR*p}\nds_read_b32 v{IDX+4}, v{vLE} offset:{4*GR*p}')
        I('s_waitcnt lgkmcnt(0)')
        eblk(1, {})
        rblk(1, zm(0, afn))
        for q in range(5): I(g[q][1])
        if p == 1: I(f'v_add_u32 v{vLX}, {8*GR}, v{vLX}\nv_add_u32 v{vLE}, {8*GR}, v{vLE}')
        if G4: I(f's_add_u32 s{sT2}, s{sT2}, 1')
        I(f'''s_mov_b64 {sr(sNP,2)}, {sr(sNC,2)}
    s_mov_b64 {sr(sNC,2)}, {sr(sNN,2)}
    s_add_u32 s{sT}, s{sT}, 1
    s_cmp_le_u32 s{sT}, s{sTW}''')
        I('s_cbranch_scc0 M_LEND' if p == 0 else 's_cbranch_scc1 M_LOOP0')
    I('M_LEND:')
    trace()
    C('last partial sums of all streams')
    if G4:
        I(f"""s_mov_b32 exec_hi, 0
        v_mov_b32 v{T1}, s{sNP}
        s_not_b64 exec, exec
        v_mov_b32 v{T1}, s{sNP+1}
        s_mov_b64 exec, -1""")
        for j in range(4):
            I(f"""v_add_f32 v{Z+j}, v{ACC+2*j}, v{ACC+2*j+1}
            v_add_f32 v{Z+4+j}, v{ACC+8+2*j}, v{ACC+8+2*j+1}
            v_bfe_u32 v{Z+8+j}, v{T1}, {8*j}, 6
            v_lshl_add_u32 v{Z+8+j}, v{Z+8+j}, 9, v{vLA}""")
        for j in range(8):
            I(f'v_cvt_f64_f32 {r(Z+16+2*j,2)}, v{Z+j}\nds_add_f64 v{Z+8+j%4}, {r(Z+16+2*j,2)} offset:{256*(j//4)}')
    else:
        for j in range(4):
            I(f"""v_add_f32 v{Z+j}, v{ACC+2*j}, v{ACC+2*j+1}
            v_add_f32 v{Z+4+j}, v{ACC+8+2*j}, v{ACC+8+2*j+1}
            s_bfe_u32 s{52+j}, s{sNP}, {(6 << 16) | (8*j)}
            s_lshl_b32 s{52+j}, s{52+j}, 9""")
        for j in range(4): I(f'v_permlane32_swap_b32 v{Z+j}, v{Z+4+j}\nv_add_u32 v{Z+8+j}, s{52+j}, v{vLA}')
        for j in range(4): I(f'v_add_f32 v{Z+j}, v{Z+j}, v{Z+4+j}')
        for j in range(4): I(f'v_cvt_f64_f32 {r(Z+16+2*j,2)}, v{Z+j}\nds_add_f64 v{Z+8+j}, {r(Z+16+2*j,2)}')
    I(f'''
M_BDONE:
    s_cmp_lt_u32 s{sTW}, s{sBAR}
    s_cbranch_scc0 M_BDONE2
    s_waitcnt lgkmcnt(0)
    s_barrier
M_BDONE2:
    s_setprio 0
    s_cmp_lg_u32 s{sMODE}, 0
    s_cbranch_scc1 M_SNEXT
M_EPI:''')
    stamp(5)
    if OPT['EPI']:
        C('out = silu(x@U + agg): feature pair tid + 512*k, k = 0..2 (and k = 3 for the first 32 threads)')
        I(f'''
    v_lshlrev_b32 v{T0}, 4, v0
    v_add_u32 v{T0}, {AGG}, v{T0}
    s_mov_b32 s{sTMP}, {NLOG2E}
    s_mul_i32 s{sTMP2}, s{sB}, {BN*128}
    s_add_u32 s{sD}, s{sTMP2}, 4096
    v_lshlrev_b32 v{T1}, 2, v0
    s_cmp_lg_u32 s{sW}, 0
    s_waitcnt lgkmcnt(0)
    s_barrier
    s_cbranch_scc1 M_EP3
    ds_read_b128 {r(Z+28,4)}, v{T0} offset:24576
M_EP3:
    ds_read_b128 {r(Z+16,4)}, v{T0}
    ds_read_b128 {r(Z+20,4)}, v{T0} offset:8192
    ds_read_b128 {r(Z+24,4)}, v{T0} offset:16384''')
        for k in range(6):
            if k % 2 == 0: I(f's_waitcnt lgkmcnt({2 - k//2})')
            I(f'v_cvt_f32_f64 v{Z+k}, {r(Z+16+2*k,2)}')
        def act(ks):
            for k in ks: I(f'v_mul_f32 v{Z+8+k}, s{sTMP}, v{Z+k}')
            for k in ks: I(f'v_exp_f32 v{Z+8+k}, v{Z+8+k}')
            for k in ks: I(f'v_add_f32 v{Z+8+k}, 1.0, v{Z+8+k}')
            for k in ks: I(f'v_rcp_f32 v{Z+8+k}, v{Z+8+k}')
            for k in ks: I(f'v_mul_f32 v{Z+k}, v{Z+k}, v{Z+8+k}')
            for k in ks[::2]: I(f'v_cvt_pk_bf16_f32 v{Z+16+k//2}, v{Z+k}, v{Z+k+1}')
        act(list(range(6)))
        I(f'''buffer_store_dword v{Z+16}, v{T1}, {sr(sOUT,4)}, s{sTMP2} offen sc1
        buffer_store_dword v{Z+17}, v{T1}, {sr(sOUT,4)}, s{sTMP2} offen offset:2048 sc1
        buffer_store_dword v{Z+18}, v{T1}, {sr(sOUT,4)}, s{sD} offen sc1
        s_cbranch_scc1 M_FIN
        s_mov_b32 exec_hi, 0
        v_cvt_f32_f64 v{Z+6}, {r(Z+28,2)}
        v_cvt_f32_f64 v{Z+7}, {r(Z+30,2)}''')
        act([6, 7])
        I(f'buffer_store_dword v{Z+19}, v{T1}, {sr(sOUT,4)}, s{sD} offen offset:2048 sc1')
    else:
        C('out = silu(x@U + agg), eight features per thread')
        I(f'''
    v_lshlrev_b32 v{T0}, 6, v0
    v_add_u32 v{T0}, {AGG}, v{T0}
    s_mov_b32 s{sTMP}, {NLOG2E}
    s_mul_i32 s{sTMP2}, s{sB}, {BN*128}
    v_lshlrev_b32 v{T1}, 4, v0
    v_cmp_gt_u32 vcc, {BN*8}, v0
    s_waitcnt lgkmcnt(0)
    s_barrier
    s_and_saveexec_b64 {sr(sSAVE,2)}, vcc
    s_cbranch_execz M_FIN
    ds_read_b128 {r(Z+16,4)}, v{T0}
    ds_read_b128 {r(Z+20,4)}, v{T0} offset:16
    ds_read_b128 {r(Z+24,4)}, v{T0} offset:32
    ds_read_b128 {r(Z+28,4)}, v{T0} offset:48
    ''')
        for k in range(8):
            if k % 2 == 0: I(f's_waitcnt lgkmcnt({3 - k//2})')
            I(f'v_cvt_f32_f64 v{Z+k}, {r(Z+16+2*k,2)}')
        for k in range(8): I(f'v_mul_f32 v{Z+8+k}, s{sTMP}, v{Z+k}')
        for k in range(8): I(f'v_exp_f32 v{Z+8+k}, v{Z+8+k}')
        for k in range(8): I(f'v_add_f32 v{Z+8+k}, 1.0, v{Z+8+k}')
        for k in range(8): I(f'v_rcp_f32 v{Z+8+k}, v{Z+8+k}')
        for k in range(8): I(f'v_mul_f32 v{Z+k}, v{Z+k}, v{Z+8+k}')
        for k in range(4): I(f'v_cvt_pk_bf16_f32 v{Z+16+k}, v{Z+2*k}, v{Z+2*k+1}')
        I(f'buffer_store_dwordx4 {r(Z+16,4)}, v{T1}, {sr(sOUT,4)}, s{sTMP2} offen sc1')
    I('M_FIN:')
    if OPT['AMP']:
        I(f'''s_cmp_lg_u32 s2, 0
        s_cbranch_scc1 M_END
        s_cmp_lg_u32 s{sW}, 0
        s_cbranch_scc1 M_END
        s_waitcnt vmcnt(0)
        s_memrealtime s[60:61]
        s_add_u32 s56, s26, {WF + 0x10000}
        s_addc_u32 s57, s27, 0
        s_load_dword s58, s[56:57], 0
        s_waitcnt lgkmcnt(0)''')
        if OPT['AMP'] == 2: I('s_mov_b32 s60, s3')
        if OPT['AMP'] == 3: I('s_mov_b32 s58, s3')
        if OPT['AMP'] >= 10: I('s_mov_b32 s58, s3\ns_mov_b32 s60, s100')
        I(f'''s_sub_u32 s59, s60, s58
        s_min_u32 s59, s59, 20000
        s_mul_i32 s59, s59, 10
        s_memrealtime s[60:61]
        s_waitcnt lgkmcnt(0)
        s_mov_b32 s58, s60
M_SPIN:
        s_memrealtime s[60:61]
        s_waitcnt lgkmcnt(0)
        s_sub_u32 s62, s60, s58
        s_cmp_lt_u32 s62, s59
        s_cbranch_scc1 M_SPIN''')
    if OPT['STAMP']:
        I('s_mov_b64 exec, -1\ns_waitcnt vmcnt(0)')
        putstamp(6)
        I(f'''v_writelane_b32 v{vST}, s{sTW}, 7
        s_add_u32 s52, s26, 0x8000000
        s_addc_u32 s53, s27, 0
        s_mov_b32 s54, 0x100000
        s_mov_b32 s55, 0x20000
        s_lshl_b32 s56, s2, 3
        s_add_u32 s56, s56, s{sW}
        s_lshl_b32 s56, s56, 5
        v_lshlrev_b32 v1, 2, v2
        s_mov_b64 exec, 0xff
        buffer_store_dword v{vST}, v1, s[52:55], s56 offen''')
        if OPT['TRACE']:
            I(f'''s_mov_b64 exec, -1
            s_lshl_b32 s56, s56, 3
            s_add_u32 s56, s56, 0x20000
            buffer_store_dword v{vTR}, v1, s[52:55], s56 offen''')
    I('M_END:\ns_endpgm')
    C('node changes: M_F adds a finished partial sum to the aggregate, M_X loads the next node\'s x@A row as accumulator seed')
    for p in range(2):
        for j in range(4):
            I(f'M_F{p}{j}:\ns_setprio {OPT["PE"]}')
            flush_j(j)
            I(f's_branch M_FR{p}{j}')
            I(f'M_X{p}{j}:\ns_setprio {OPT["PE"]}')
            xa_j(j)
            I(f's_branch M_XR{p}{j}')
        I(f'M_WZ{p}:\ns_waitcnt vmcnt(0)\ns_branch M_WZR{p}')
        I(f'M_SB{p}:\ns_barrier\ns_branch M_SBR{p}')
    I(f'''M_W0:
    s_waitcnt vmcnt(0) lgkmcnt(0)
    s_branch M_W1
M_YNG:
    s_cmp_eq_u32 s{sTW}, 0
    s_cbranch_scc1 M_YE''')
    if OPT['SCH'] == 3: sch_load('Y', (12, 16))
    if OPT['YT0']: I('s_waitcnt lgkmcnt(0)\ns_barrier')
    for g in g0: I('\n'.join(g))
    I(f'''s_branch M_W0
M_YE:
    s_waitcnt lgkmcnt(0)
    s_barrier
    s_branch M_BDONE2
M_YNG2:
    {'' if OPT['YT0'] else 's_barrier'}
    s_cmp_lt_u32 s{sTW}, 2
    s_cbranch_scc1 M_GO''')
    dma_issue(g1)
    I('s_branch M_GO')
    for f in OUT: f()
    I('M_RA:')
    validate(16, 20)
    pass_a(16, 20)
    I('s_branch M_RAR')
    I('M_RB:')
    pass_b1(16, 20)
    I('s_waitcnt lgkmcnt(0)')
    pass_b2(16, 20)
    validate(0, 4)
    I('s_branch M_RBR')
    C('general path (a segment or the list is too long for the registers / LDS): one batch per segment')
    I(f"""
M_SLOW:
    s_mov_b32 s{sMODE}, 1
    s_mov_b32 s{sSEG}, -1
M_SNEXT:
    s_add_u32 s{sSEG}, s{sSEG}, 1
    s_cmp_ge_u32 s{sSEG}, {NCH}
    s_cbranch_scc1 M_EPI
    s_lshl_b32 s{sTMP}, s{sSEG}, 6
    s_load_dword s{sD}, {sr(sOFP,2)}, s{sTMP}
    s_waitcnt lgkmcnt(0)
    s_lshr_b32 s{sTMP2}, s{sD}, 16
    s_cmp_eq_u32 s{sTMP2}, 0
    s_cbranch_scc1 M_SNEXT
    s_barrier""")
    cnt_zero()
    I(f"""
    s_and_b32 s{sD}, s{sD}, 0xffff
    s_mul_i32 s{sTMP}, s{sSEG}, {CH}
    s_add_u32 s{sD}, s{sD}, s{sTMP}
    v_add_u32 v{T0}, s{sD}, v0
    v_mov_b32 v{T1}, s{sTMP}
    v_lshlrev_b32 v{vEB}, 5, v{T1}
    v_lshlrev_b32 v{T0}, 2, v{T0}
    v_sub_u32 v{vC}, s{sTMP2}, v0
    v_add_u32 v{vC}, 511, v{vC}
    v_ashrrev_i32 v{vC}, 9, v{vC}
    v_cmp_lt_i32 vcc, 4, v{vC}
    v_add_u32 v{T1}, 4, v{vC}
    v_mov_b32 v{vFC}, 0xfc
    v_cndmask_b32 v{vC}, v{vC}, v{T1}, vcc""")
    for s in range(7):
        I(f'buffer_load_dword v{pREC+s}, v{T0}, {sr(sWS,4)}, 0 offen')
        if s < 6: I(f'v_add_u32 v{T0}, 2048, v{T0}')
    validate(0, 12)
    I('s_waitcnt vmcnt(0) lgkmcnt(0)\ns_barrier')
    pass_a(0, 7)
    I('s_waitcnt lgkmcnt(0)\ns_barrier')
    scan()
    I(f's_mov_b32 s{sXR}, 0\ns_branch M_BATCH\nM_CODE_END:')

def kd(name, vgpr, sgpr, acc=None):
    return f'''.amdhsa_kernel {name}
  .amdhsa_next_free_vgpr {vgpr}
  .amdhsa_next_free_sgpr {sgpr}
  .amdhsa_accum_offset {acc or (vgpr+3)//4*4}
  .amdhsa_group_segment_fixed_size 0
  .amdhsa_kernarg_size 80
  .amdhsa_user_sgpr_count 2
  .amdhsa_user_sgpr_kernarg_segment_ptr 1
  .amdhsa_system_sgpr_workgroup_id_x 1
.end_amdhsa_kernel
'''

HEAD = open('gather_scatter__edge_featured_mpnn_egc__graph.s.ref').read().split('; Override')[0]
gen_part()
n0 = len(L)
gen_main()
if OPT['AG']:
    import re
    lo, hi = (4, 75) if OPT['AG'] == 1 else (4, 107)
    cnt = hi - lo + 1
    def m1(m):
        n = int(m.group(1))
        return f'v{n}' if n < lo else (f'a{n-lo}' if n <= hi else f'v{n-cnt}')
    def m2(m):
        a, b = int(m.group(1)), int(m.group(2))
        return f'v[{a}:{b}]' if a < lo else (f'a[{a-lo}:{b-lo}]' if a <= hi else f'v[{a-cnt}:{b-cnt}]')
    for i in range(n0, len(L)):
        L[i] = re.sub(r'\bv\[(\d+):(\d+)\]', m2, re.sub(r'\bv(\d+)\b', m1, L[i]))
out = HEAD + f'''; Two launches.  part_kernel: counting sort of every 3200-edge chunk by destination bucket (49 nodes) plus MFMA-ready
; weight fragments.  Main kernel: one workgroup per bucket sorts its edges by node in LDS, gathers x[src] / e_attr rows
; by LDS-DMA, computes gate and message with MFMA + exp/rcp, sums per node in registers and writes silu(x@U + agg).
; @launch kernel=part_kernel grid=({NCH+5+NCPW},1,1) block=(512,1,1) lds={K1_LDS}
; @launch kernel={MAIN} grid=({NB},1,1) block=(512,1,1) lds={M_LDS}
.amdgcn_target "amdgcn-amd-amdhsa--gfx950"
.text
''' + '\n'.join(L) + '''
.section .rodata,"a"
.p2align 6
''' + kd('part_kernel', 88 if (OPT['AMP'] or OPT['STAMP']) else 76, 80) + '.p2align 6\n' + kd(MAIN, 248 if (OPT['TRACE'] or OPT['STAMP']) else NV, 102, 168 if OPT['AG'] == 1 else None)
open(sys.argv[1], 'w').write(out)
```

```python
import sys, struct

OPT = dict(STAMP=0, FINE=0, CYC=0, TRACE=0, AMP=0, NOX=0, NOE=0,
           STAG=0, DELTA=3, NREF=0, SLOPE=2, KMAX=8, G4=0, SCH=2, AG=0, EFIRST=0, YT0=1, EPI=1, RPF=0, CLMP=1, XR2=1, T1L=0, WAITM=0, TLB=0, RPW=0,
           PB=1, PB2=2, PE=3, EF=3, P2POS=8, XPF=1)
for a in sys.argv[2:]:
    k, v = a.split('=')
    assert k in OPT, k
    OPT[k] = int(v) if v.lstrip('-').isdigit() else v.replace('_', ' ')

N, E = 12500, 800000
NB, BN = 256, 49
NCH, CH = 250, 3200
REC, OFFS, WF = 0, E * 4, 0x380000
WS_BYTES = 0x400000
NFRAG = 34
NCPW = 8
G4 = OPT['G4']
GR = 4 if G4 else 8
if not OPT['NREF']: OPT['NREF'] = 107 if G4 else 110
NLOG2E = struct.unpack('<I', struct.pack('<f', -1.4426950408889634))[0]
MAIN = 'gather_scatter__edge_featured_mpnn_egc__graph_kernel'

L = []
def I(s):
    for ln in s.strip('\n').split('\n'):
        ln = ln.strip()
        if ln:
            L.append(ln if ln.endswith(':') else '    ' + ln)
def C(s):
    for ln in s.strip('\n').split('\n'): L.append('    ; ' + ln.strip())
def r(a, n): return f'v[{a}:{a+n-1}]'
def sr(a, n): return f's[{a}:{a+n-1}]'
def srd(d, base, nbytes):
    I(f'''s_mov_b32 s{d}, s{base}
    s_mov_b32 s{d+1}, s{base+1}
    s_mov_b32 s{d+2}, {nbytes}
    s_mov_b32 s{d+3}, 0x20000''')
def dpp_scan(v):
    for ctl in ('row_shr:1', 'row_shr:2', 'row_shr:4', 'row_shr:8'):
        I(f's_nop 1\nv_add_u32_dpp v{v}, v{v}, v{v} {ctl} row_mask:0xf bank_mask:0xf bound_ctrl:1')
    I(f's_nop 1\nv_add_u32_dpp v{v}, v{v}, v{v} row_bcast:15 row_mask:0xa bank_mask:0xf')
    I(f's_nop 1\nv_add_u32_dpp v{v}, v{v}, v{v} row_bcast:31 row_mask:0xc bank_mask:0xf')
def header(name):
    I(f'.globl {name}\n.p2align 8\n.type {name},@function\n{name}:')

K1_BASE, K1_SORT = 1024, 2048
K1_LDS = K1_SORT + CH * 4

def kstamp(i):
    if OPT['STAMP']: I(f's_memrealtime s[{60+2*i}:{61+2*i}]\ns_waitcnt lgkmcnt(0)')
def kdump():
    if not OPT['STAMP']: return
    I(f'''; K1STAMP
    s_waitcnt vmcnt(0)
    s_memrealtime s[70:71]
    s_mov_b64 exec, 1
    s_waitcnt lgkmcnt(0)
    s_add_u32 s52, s24, 0x8100000
    s_addc_u32 s53, s25, 0
    s_mov_b32 s54, 0x100000
    s_mov_b32 s55, 0x20000
    s_lshl_b32 s56, s2, 3
    s_add_u32 s56, s56, s28
    s_lshl_b32 s56, s56, 5
    v_mov_b32 v1, 0''')
    for i in range(8): I(f'v_mov_b32 v{8+i}, s{60+2*min(i,5)}')
    I('''buffer_store_dwordx4 v[8:11], v1, s[52:55], s56 offen
    buffer_store_dwordx4 v[12:15], v1, s[52:55], s56 offen offset:16''')

def gen_part():
    header('part_kernel')
    if OPT['AMP']: I('s_memrealtime s[74:75]')
    kstamp(0)
    D, S, B4, RK, RC = 8, 16, 24, 32, 40
    C('workgroups 0..249: one chunk of 3200 edges each; 250..254: weight fragments; 255..262: code prefetch')
    I(f"""
    s_load_dwordx4 s[4:7], s[0:1], 16
    s_load_dwordx2 s[24:25], s[0:1], 72
    s_cmp_ge_u32 s2, {NCH+5}
    s_cbranch_scc1 P_CPW
    v_lshrrev_b32 v3, 6, v0
    v_lshlrev_b32 v1, 2, v0
    v_readfirstlane_b32 s28, v3
    s_cmp_ge_u32 s2, {NCH}
    s_cbranch_scc1 P_PREP
    v_mov_b32 v2, 0
    ds_write_b32 v1, v2
    v_lshlrev_b32 v4, 4, v0
    v_lshlrev_b32 v5, 3, v0
    v_add_u32 v5, 8192, v5
    v_add_u32 v6, 12288, v1
    s_mul_i32 s29, s2, {CH*4}
    s_waitcnt lgkmcnt(0)
    """)
    srd(12, 6, E * 4)
    C('edge slots per thread: 4*tid+{0..3}, 2048+2*tid+{0,1}, 3072+tid (waves 0,1 only)')
    I(f"""
    s_cmp_ge_u32 s28, 2
    s_cbranch_scc1 P_NO6A
    buffer_load_dword v{D+6}, v6, s[12:15], s29 offen
P_NO6A:
    buffer_load_dwordx4 {r(D,4)}, v4, s[12:15], s29 offen
    buffer_load_dwordx2 {r(D+4,2)}, v5, s[12:15], s29 offen
    """)
    srd(8, 4, E * 4); srd(16, 24, WS_BYTES)
    if OPT['AMP']:
        I(f"""s_cmp_lg_u32 s2, 0
        s_cbranch_scc1 P_NOAMP
        s_cmp_lg_u32 s28, 0
        s_cbranch_scc1 P_NOAMP
        v_mov_b32 v80, s74
        v_mov_b32 v81, {WF + 0x10000}
        buffer_store_dword v80, v81, s[16:19], 0 offen
        s_waitcnt vmcnt(0)
P_NOAMP:""")
    I(f"""
    v_lshlrev_b32 v56, 16, v0
    v_lshlrev_b32 v57, 15, v0
    v_add_u32 v57, {2048 << 14}, v57
    v_lshlrev_b32 v58, 14, v0
    v_add_u32 v58, {3072 << 14}, v58
    v_mov_b32 v59, 1
    s_mov_b32 s32, {-BN & 0xffffffff}
    s_mov_b32 s33, {1 << 14}
    s_mov_b32 s34, {2 << 14}
    s_mov_b32 s35, {3 << 14}
    s_barrier
    s_cmp_ge_u32 s28, 2
    s_cselect_b32 s37, 0x40000000, 0
    v_or_b32 v6, s37, v6
    buffer_load_dwordx4 {r(S,4)}, v4, s[8:11], s29 offen
    buffer_load_dwordx2 {r(S+4,2)}, v5, s[8:11], s29 offen
    buffer_load_dword v{S+6}, v6, s[8:11], s29 offen
    """)
    kstamp(1)
    I('s_waitcnt vmcnt(3)')
    kstamp(2)
    C('bucket = dst/49, rank inside (chunk, bucket) from an LDS counter')
    for k in range(7):
        if k == 6: I('s_cmp_ge_u32 s28, 2\ns_cbranch_scc1 P_NO6B')
        I(f"""v_mul_u32_u24 v{B4+k}, 21400, v{D+k}
        v_lshrrev_b32 v{B4+k}, 20, v{B4+k}
        v_mad_i32_i24 v{RC+k}, v{B4+k}, s32, v{D+k}
        v_lshlrev_b32 v{B4+k}, 2, v{B4+k}
        ds_add_rtn_u32 v{RK+k}, v{B4+k}, v59""")
    I(f"""
P_NO6B:
    v_and_b32 v60, 63, v0
    v_lshlrev_b32 v60, 4, v60
    s_waitcnt lgkmcnt(0)
    s_barrier""")
    C('bucket bases: every wave scans the 256 counters (four per lane)')
    I(f"""
    ds_read_b128 v[64:67], v60
    s_waitcnt lgkmcnt(0)
    v_add_u32 v69, v64, v65
    v_add_u32 v70, v69, v66
    v_add_u32 v71, v70, v67
    v_mov_b32 v72, v71""")
    dpp_scan(72)
    I(f"""
    v_sub_u32 v68, v72, v71
    v_add_u32 v71, v68, v70
    v_add_u32 v70, v68, v69
    v_add_u32 v69, v68, v64
    ds_write_b128 v60, v[68:71] offset:{K1_BASE}""")
    for k in range(6):
        I(f'ds_read_b32 v{D+k}, v{B4+k} offset:{K1_BASE}')
    C('segment table entry (bucket b, chunk w) = start | count<<16 at (b>>4)*16384 + w*64 + (b&15)*4')
    I(f"""s_waitcnt vmcnt(0)
    s_cmp_lg_u32 s28, 4
    s_cbranch_scc1 P_NOOFF
    v_lshl_or_b32 v64, v64, 16, v68
    v_lshl_or_b32 v65, v65, 16, v69
    v_lshl_or_b32 v66, v66, 16, v70
    v_lshl_or_b32 v67, v67, 16, v71
    v_lshrrev_b32 v61, 6, v60
    v_lshlrev_b32 v61, 14, v61
    v_and_b32 v62, 63, v60
    v_or_b32 v61, v61, v62
    s_lshl_b32 s36, s2, 6
    s_add_u32 s36, s36, {OFFS}
    buffer_store_dwordx4 v[64:67], v61, s[16:19], s36 offen sc1
P_NOOFF:""")
    C('record = dlocal<<26 | elocal<<14 | src, placed in bucket order')
    for k in range(7):
        eb = 56 if k < 4 else (57 if k < 6 else 58)
        kk = k if k < 4 else (k - 4 if k < 6 else 0)
        ks = '0' if kk == 0 else f's{32+kk}'
        I(f"""v_lshl_or_b32 v{RC+k}, v{RC+k}, 26, v{S+k}
        v_add3_u32 v{RC+k}, v{RC+k}, v{eb}, {ks}""")
    I(f"""
    s_cmp_ge_u32 s28, 2
    s_cbranch_scc1 P_NO6C
    ds_read_b32 v{D+6}, v{B4+6} offset:{K1_BASE}
    s_waitcnt lgkmcnt(0)
    v_add_lshl_u32 v{RK+6}, v{RK+6}, v{D+6}, 2
    ds_write_b32 v{RK+6}, v{RC+6} offset:{K1_SORT}
P_NO6C:
    s_waitcnt lgkmcnt(0)""")
    for k in range(6):
        I(f"""v_add_lshl_u32 v{RK+k}, v{RK+k}, v{D+k}, 2
        ds_write_b32 v{RK+k}, v{RC+k} offset:{K1_SORT}""")
    I('s_waitcnt lgkmcnt(0)')
    kstamp(3)
    I('s_barrier')
    kstamp(4)
    I(f"""
    ds_read_b128 v[8:11], v4 offset:{K1_SORT}
    v_cmp_gt_u32 vcc, 288, v0
    s_and_saveexec_b64 s[38:39], vcc
    ds_read_b128 v[12:15], v4 offset:{K1_SORT+8192}
    s_mov_b64 exec, s[38:39]
    s_waitcnt lgkmcnt(0)
    buffer_store_dwordx4 v[8:11], v4, s[16:19], s29 offen sc1
    s_add_u32 s36, s29, 8192
    s_and_saveexec_b64 s[38:39], vcc
    s_cbranch_execz P_FIN
    buffer_store_dwordx4 v[12:15], v4, s[16:19], s36 offen sc1
P_FIN:""")
    kdump()
    I('s_endpgm')
    C('''B-operand fragments (1 KiB each): 0-7 g_w[64:128], 8-15 v_w, 16-17 g_w[128:144], 18-25 g_w[0:64], 26-33 u_w.
    The two per-edge gate matrices carry the factor -log2(e) of the sigmoid's exponential.''')
    I(f'''
P_PREP:
    s_load_dwordx4 s[8:11], s[0:1], 32
    s_load_dwordx2 s[12:13], s[0:1], 48
    s_sub_u32 s30, s2, {NCH}
    s_lshl_b32 s30, s30, 3
    s_add_u32 s30, s30, s28
    s_waitcnt lgkmcnt(0)
    s_cmp_ge_u32 s30, {NFRAG}
    s_cbranch_scc1 P_END
    s_mov_b32 s20, s12
    s_mov_b32 s21, s13
    s_mov_b32 s22, {144*128}
    s_mov_b32 s23, 0x20000
    s_mov_b32 s33, {NLOG2E}
    s_mov_b32 s31, s30
    s_mov_b32 s32, 64
    s_cmp_lt_u32 s30, 8
    s_cbranch_scc1 P_GO
    s_cmp_lt_u32 s30, 16
    s_cbranch_scc0 P_C1
    s_sub_u32 s31, s30, 8
    s_mov_b32 s32, 0
    s_mov_b32 s33, 1.0
    s_mov_b32 s20, s10
    s_mov_b32 s21, s11
    s_mov_b32 s22, {64*128}
    s_branch P_GO
P_C1:
    s_cmp_lt_u32 s30, 18
    s_cbranch_scc0 P_C2
    s_sub_u32 s31, s30, 16
    s_lshl_b32 s31, s31, 2
    s_mov_b32 s32, 128
    s_branch P_GO
P_C2:
    s_mov_b32 s33, 1.0
    s_mov_b32 s32, 0
    s_sub_u32 s31, s30, 18
    s_cmp_lt_u32 s30, 26
    s_cbranch_scc1 P_GO
    s_sub_u32 s31, s30, 26
    s_mov_b32 s20, s8
    s_mov_b32 s21, s9
    s_mov_b32 s22, {64*128}
P_GO:
    s_and_b32 s34, s31, 3
    s_lshl_b32 s34, s34, 4
    s_add_u32 s34, s34, s32
    s_lshl_b32 s34, s34, 7
    s_lshr_b32 s35, s31, 2
    s_lshl_b32 s35, s35, 6
    s_add_u32 s34, s34, s35
    v_and_b32 v1, 31, v0
    v_lshlrev_b32 v1, 1, v1
    v_bfe_u32 v2, v0, 5, 1
    v_lshl_or_b32 v1, v2, 10, v1
    ''')
    for t in range(8):
        I(f'buffer_load_ushort v{8+t}, v1, s[20:23], s34 offen offset:{t*128}')
    srd(16, 24, WS_BYTES)
    I(f'''
    v_and_b32 v3, 63, v0
    v_lshlrev_b32 v3, 4, v3
    s_lshl_b32 s36, s30, 10
    s_add_u32 s36, s36, {WF}
    s_waitcnt vmcnt(0)
    ''')
    for t in range(8):
        I(f'v_lshlrev_b32 v{8+t}, 16, v{8+t}\nv_mul_f32 v{8+t}, s33, v{8+t}')
    for t in range(4):
        I(f'v_cvt_pk_bf16_f32 v{16+t}, v{8+2*t}, v{9+2*t}')
    I('''buffer_store_dwordx4 v[16:19], v3, s[16:19], s36 offen sc1
P_END:
    s_endpgm''')
    C("one workgroup per die reads the second kernel's code so that it is in the caches when that kernel starts")
    I(f'''P_CPW:
    s_cmp_ge_u32 s2, {NCH+5+NCPW}
    s_cbranch_scc1 P_END''')
    if OPT['TLB']:
        sh = OPT['TLB']
        I(f'''s_load_dwordx4 s[8:11], s[0:1], 0
        s_load_dwordx2 s[12:13], s[0:1], 56
        v_lshlrev_b32 v4, {sh}, v0
        s_waitcnt lgkmcnt(0)''')
        srd(16, 8, N * 128); srd(20, 10, E * 32); srd(28, 12, N * 128)
        I(f'''v_cmp_gt_u32 vcc, {E*32}, v4
        s_and_saveexec_b64 s[42:43], vcc
        s_cbranch_execz P_NOTLB
        buffer_load_dword v5, v4, s[20:23], 0 offen
        buffer_load_dword v6, v4, s[16:19], 0 offen
        buffer_load_dword v7, v4, s[28:31], 0 offen
P_NOTLB:
        s_mov_b64 exec, s[42:43]''')
    I(f'''
    s_getpc_b64 s[40:41]
P_PC:
    s_add_u32 s40, s40, {MAIN}-P_PC
    s_addc_u32 s41, s41, 0
    v_lshlrev_b32 v2, 7, v0
    v_cmp_gt_u32 vcc, M_CODE_END-{MAIN}, v2
    s_and_saveexec_b64 s[42:43], vcc
    s_cbranch_execz P_END
    global_load_dword v3, v2, s[40:41]
    s_endpgm''')

CNT, FLAG, BASE = 0, 256, 512
XS = 1024
ES = XS + 65536
LX = ES + 16384
LE = LX + 16384
XAT = LE + 16384
AGG = XAT + 14336
M_LDS = AGG + 2*14336
WBASE = XS + 32768
XSENT, ESENT = 0x1FFF80, 0x7FFFFF00
CAP = 4096

WB, WV, WC = 4, 36, 68
XA = 76
Z = 108
H = 140
AF = 156
ACC = 176
IDX = 192
vLX, vLE, vKX0, vKX1, vKE = 197, 198, 199, 200, 201
vRA, vRE = 202, 206
vSCH, vLT = 207, 208
T0, T1, T2 = 209, 210, 211
vC, vEB = 212, 213
vONE, vLA = 214, 215
T4 = 216
vTA, vFC = 218, 219
AF2 = 220
NV = 240
vKX2, vKX3, vLC = 236, 237, 238
vTR, vST = 240, 244
pREC, pRK, pAD = 76, 96, 116
pD, pA, pW = 136, 152, 168
sX, sE, sWS, sOUT = 8, 12, 16, 20
sW, sT, sTW, sT2, sEV, _u, sD, sM0X, sM0E, sMASK, sTMP, sTMP2, sMODE, sSEG, sG0, sBAR = range(28, 44)
sNP, sNC, sNN = 60, 62, 64
sONE, sSAVE, sOFP = 44, 46, 48
sB, sXR = 50, 51

def mf(d, a, b, c): return f'v_mfma_f32_32x32x16_bf16 {r(d,16)}, {r(a,4)}, {r(b,4)}, {c}'
def zm(ft, af):
    return [mf(Z+16*ft, AF+16, WC+4*ft, r(XA+16*ft, 16))] + [mf(Z+16*ft, af+4*k, WB+16*ft+4*k, r(Z+16*ft, 16)) for k in range(4)]
def hm(ft, af):
    return [mf(H, af, WV+16*ft, '0')] + [mf(H, af+4*k, WV+16*ft+4*k, r(H, 16)) for k in range(1, 4)]
def exps(ft): return [f'v_exp_f32 v{Z+16*ft+i}, v{Z+16*ft+i}' for i in range(16)]
def rcps(ft): return [f'v_rcp_f32 v{Z+16*ft+i}, v{Z+16*ft+i}' for i in range(16)]
def pkadd(ft): return [f'v_pk_add_f32 {r(Z+16*ft+2*i,2)}, {r(Z+16*ft+2*i,2)}, {sr(sONE,2)}' for i in range(8)]
def pkf(ft): return [f'v_pk_fma_f32 {r(ACC+8*ft+2*(i//2),2)}, {r(Z+16*ft+2*i,2)}, {r(H+2*i,2)}, {r(ACC+8*ft+2*(i//2),2)}' for i in (0, 2, 4, 6, 1, 3, 5, 7)]
def weave(main, ins):
    out = []
    for i, m in enumerate(main):
        out += ins.get(i, [])
        out.append(m)
    return out

def pEO(s): return AF2 + s if s < 16 else 184 + s - 16
def sVM(s): return 68 + 2 * (s % 16)
def thr(s): return 8 * (s // 4) + s % 4
def validate(lo, hi):
    for s in range(lo, hi): I(f'v_cmp_lt_i32 {sr(sVM(s),2)}, {thr(s)}, v{vC}')
def pass_a(lo, hi, mid=None):
    for s in range(lo, hi):
        I(f'v_and_b32_sdwa v{pAD+s}, v{vFC}, v{pREC+s} dst_sel:DWORD dst_unused:UNUSED_PAD src0_sel:DWORD src1_sel:BYTE_3')
    for s in range(lo, hi):
        I(f'''s_mov_b64 exec, {sr(sVM(s),2)}
        ds_add_rtn_u32 v{pRK+s}, v{pAD+s}, v{vONE}''')
    I('s_mov_b64 exec, -1')
    if mid: mid()
    for s in range(lo, hi):
        I(f'''v_bfe_u32 v{pEO(s)}, v{pREC+s}, 14, 12
        v_lshl_add_u32 v{pEO(s)}, v{pEO(s)}, 5, v{vEB}
        v_alignbit_b32 v{pREC+s}, v{pREC+s}, v{pREC+s}, 25''')
def scan():
    I(f'''v_lshlrev_b32 v{T0}, 2, v2
    ds_read_b32 v{T1}, v{T0}
    v_mov_b32 v{T2}, {FLAG}
    ds_read_b32 v{IDX}, v{T2}
    s_waitcnt lgkmcnt(0)
    v_add_u32 v{IDX+2}, s{sW}, v{T1}
    v_add_u32 v{T1}, {GR-1}, v{T1}
    v_and_b32 v{T1}, {-GR}, v{T1}
    v_readfirstlane_b32 s{sTMP2}, v{IDX}
    v_mov_b32 v{T2}, v{T1}''')
    dpp_scan(T2)
    I(f'''v_sub_u32 v{T1}, v{T2}, v{T1}
    v_readlane_b32 s{sTMP}, v{T2}, 63
    v_add_u32 v{IDX+3}, {LX//4}, v{T1}
    ds_write_b32 v{T0}, v{IDX+3} offset:{BASE}''')
def pad_write():
    C('wave k < 7 fills pad slot k of every node, wave 7 the tail of the last tile (out-of-range offsets read as zero)')
    I(f'''v_add_u32 v{IDX+4}, v{T1}, v{IDX+2}
    v_add_u32 v{T0}, s{sTMP}, v2
    s_add_u32 s52, s{sTMP}, 31
    s_and_b32 s52, s52, -32
    s_cmp_eq_u32 s{sW}, 7
    s_cselect_b64 vcc, -1, 0
    v_mov_b32 v{IDX+2}, s52
    v_cndmask_b32 v{IDX+4}, v{IDX+4}, v{T0}, vcc
    v_cndmask_b32 v{T2}, v{T2}, v{IDX+2}, vcc
    v_mov_b32 v{T0}, {XSENT}
    v_cmp_lt_u32 vcc, v{IDX+4}, v{T2}
    v_mov_b32 v{T1}, {ESENT}
    v_lshlrev_b32 v{IDX+4}, 2, v{IDX+4}
    v_add_u32 v{IDX+4}, {LX}, v{IDX+4}
    s_mov_b64 exec, vcc
    ds_write2st64_b32 v{IDX+4}, v{T0}, v{T1} offset1:64
    s_mov_b64 exec, -1''')
def pass_b1(lo, hi):
    for s in range(lo, hi):
        I(f'''s_mov_b64 exec, {sr(sVM(s),2)}
        ds_read_b32 v{pAD+s}, v{pAD+s} offset:{BASE}''')
    I('s_mov_b64 exec, -1')
def pass_b2(lo, hi):
    for s in range(lo, hi): I(f'v_add_lshl_u32 v{pRK+s}, v{pRK+s}, v{pAD+s}, 2')
    for s in range(lo, hi):
        I(f'''s_mov_b64 exec, {sr(sVM(s),2)}
        ds_write2st64_b32 v{pRK+s}, v{pREC+s}, v{pEO(s)} offset1:64''')
    I('s_mov_b64 exec, -1')
def cnt_zero():
    I(f'''v_and_b32 v{T1}, 127, v0
    v_lshlrev_b32 v{T1}, 2, v{T1}
    v_mov_b32 v{T2}, 0
    ds_write_b32 v{T1}, v{T2}''')

def dma_tile(ix, xoff, eoff):
    g = []
    for q in range(4):
        g.append([f's_add_u32 m0, s{sM0X}, {xoff + q*1024}',
                  f'v_and_or_b32 v{ix+q}, v{ix+q}, s{sMASK}, v{(vKX0, vKX1, vKX2, vKX3)[q if G4 else q % 2]}',
                  f'buffer_load_dwordx4 v{ix+q}, {sr(sX,4)}, 0 offen lds'])
    g.append([f's_add_u32 m0, s{sM0E}, {eoff}',
              f'v_add_u32 v{ix+4}, v{ix+4}, v{vKE}',
              f'buffer_load_dwordx4 v{ix+4}, {sr(sE,4)}, 0 offen lds'])
    return g
def dma_issue(g):
    for x in g: I(x[0] + '\ns_nop 0\n' + x[2])

def half_addr(j, se, sn, sh, vbase):
    I(f'''s_bfe_u32 s{sTMP}, s{sn}, {(6 << 16) | (8*j)}
    s_bfe_u32 s{sTMP2}, s{sn+1}, {(6 << 16) | (8*j)}
    s_lshl_b32 s{sTMP}, s{sTMP}, {sh}
    s_lshl_b32 s{sTMP2}, s{sTMP2}, {sh}
    v_add_u32 v{T0}, s{sTMP}, v{vbase}
    s_mov_b32 exec_lo, 0
    v_add_u32 v{T0}, s{sTMP2}, v{vbase}
    s_bitcmp1_b32 s{se}, {8*j+6}
    s_cselect_b32 exec_lo, -1, 0
    s_bitcmp1_b32 s{se+1}, {8*j+6}
    s_cselect_b32 exec_hi, -1, 0''')
def flush_j(j):
    if G4:
        I(f'''v_add_f32 v{T1}, v{ACC+2*j}, v{ACC+2*j+1}
        v_add_f32 v{T2}, v{ACC+8+2*j}, v{ACC+8+2*j+1}''')
        half_addr(j, sNC, sNP, 9, vLA)
        I(f'''v_cvt_f64_f32 {r(T4,2)}, v{T1}
        v_mov_b64 {r(ACC+2*j,2)}, 0
        ds_add_f64 v{T0}, {r(T4,2)}
        v_cvt_f64_f32 {r(T1,2)}, v{T2}
        v_mov_b64 {r(ACC+8+2*j,2)}, 0
        ds_add_f64 v{T0}, {r(T1,2)} offset:256
        s_mov_b64 exec, -1''')
        return
    I(f'''v_add_f32 v{T1}, v{ACC+2*j}, v{ACC+2*j+1}
    v_add_f32 v{T2}, v{ACC+8+2*j}, v{ACC+8+2*j+1}
    s_bfe_u32 s{sTMP}, s{sNP}, {(6 << 16) | (8*j)}
    s_lshl_b32 s{sTMP}, s{sTMP}, 9
    v_permlane32_swap_b32 v{T1}, v{T2}
    v_add_u32 v{T0}, s{sTMP}, v{vLA}
    v_mov_b64 {r(ACC+2*j,2)}, 0
    v_add_f32 v{T1}, v{T1}, v{T2}
    v_mov_b64 {r(ACC+8+2*j,2)}, 0
    v_cvt_f64_f32 {r(T4,2)}, v{T1}
    ds_add_f64 v{T0}, {r(T4,2)}''')
def xa_j(j):
    if G4: half_addr(j, sNN, sNN, 8, vLT)
    else:
        I(f'''s_bfe_u32 s{sTMP}, s{sNN}, {(6 << 16) | (8*j)}
        s_lshl_b32 s{sTMP}, s{sTMP}, 8
        v_add_u32 v{T0}, s{sTMP}, v{vLT}''')
    I(f'''ds_read2_b32 {r(XA+4*j,2)}, v{T0}
    ds_read2_b32 {r(XA+4*j+2,2)}, v{T0}
    ds_read2_b32 {r(XA+16+4*j,2)}, v{T0} offset0:32 offset1:32
    ds_read2_b32 {r(XA+16+4*j+2,2)}, v{T0} offset0:32 offset1:32''')
    if G4: I('s_mov_b64 exec, -1')
def evchk(kind, p, sn):
    if G4:
        I(f's_or_b32 s{sEV}, s{sn}, s{sn+1}')
        sn = sEV
    for j in range(4): I(f's_bitcmp1_b32 s{sn}, {8*j+6}\ns_cbranch_scc1 M_{kind}{p}{j}\nM_{kind}R{p}{j}:')

def frag_off(f):
    if f < 16: return (f // 4) * 8192 + 4096 + (f % 4) * 1024
    return ES + (4 + f - 16) * 2048 + 1024 - WBASE

def putstamp(i, ins='s_memrealtime'):
    I(f'{ins} s[100:101]\ns_waitcnt lgkmcnt(0)\nv_writelane_b32 v{vST}, s100, {i}')
def fstamp(i):
    if OPT['STAMP'] and OPT['FINE']: putstamp(i)
def stamp(i):
    if OPT['AMP'] == 10 + i: I('s_memrealtime s[100:101]\ns_waitcnt lgkmcnt(0)')
    if not OPT['STAMP']: return
    if OPT['FINE'] and i not in (0,): return
    if OPT['CYC'] == 2:
        if i in (1, 2): return
        if i in (4, 5): putstamp(i - 3, 's_memtime')
    putstamp(i)
def trace():
    if OPT['TRACE']:
        I(f'''s_memtime s[76:77]
        s_memrealtime s[78:79]
        s_waitcnt lgkmcnt(0)
        s_mov_b32 m0, s{sT}
        s_nop 0
        v_writelane_b32 v{vTR}, s76, m0
        s_add_u32 m0, m0, 32
        s_nop 0
        v_writelane_b32 v{vTR}, s78, m0''')

def sch_load(tag='', cuts=(11, 14, 18)):
    C('schedule words of tiles 1.. into s68..')
    for t in range(1, 24):
        if t in cuts: I(f's_cmp_lt_u32 s{sTW}, {t}\ns_cbranch_scc1 M_SCHD{tag}')
        I(f'v_readlane_b32 s{67+t}, v{vSCH}, {t}')
    I(f'M_SCHD{tag}:')

OUT = []
def gen_main():
    header(MAIN)
    if OPT['AMP']: I('s_memrealtime s[74:75]\ns_waitcnt lgkmcnt(0)\ns_mov_b32 s3, s74')
    stamp(0)
    C('workgroup g owns bucket (g&7)*32 + (g>>3): neighbouring buckets share a die when placement is round-robin (speed only)')
    I(f"""
    s_load_dwordx2 s[26:27], s[0:1], 72
    s_load_dwordx4 s[4:7], s[0:1], 0
    s_load_dwordx2 s[24:25], s[0:1], 56
    s_cmp_ge_u32 s2, {NB}
    s_cbranch_scc1 M_END
    v_lshrrev_b32 v1, 6, v0
    v_and_b32 v2, 63, v0
    v_readfirstlane_b32 s{sW}, v1
    s_and_b32 s{sB}, s2, 7
    s_lshl_b32 s{sB}, s{sB}, 5
    s_lshr_b32 s{sTMP}, s2, 3
    s_add_u32 s{sB}, s{sB}, s{sTMP}
    s_mul_i32 s{sNN}, s{sTMP}, {391*128}
    v_lshrrev_b32 v3, 1, v0
    {f'v_min_u32 v3, {NCH-1}, v3' if OPT['CLMP'] else ''}
    v_lshlrev_b32 v{IDX}, 6, v3
    v_lshlrev_b32 v{IDX+1}, 4, v2
    s_lshr_b32 s{sD}, s{sB}, 4
    s_lshl_b32 s{sD}, s{sD}, 12
    s_and_b32 s{sTMP}, s{sB}, 15
    s_add_u32 s{sD}, s{sD}, s{sTMP}
    s_lshl_b32 s{sD}, s{sD}, 2
    s_add_u32 s{sD}, s{sD}, {OFFS}
    s_mov_b32 s{sWS+2}, {WS_BYTES}
    s_mov_b32 s{sWS+3}, 0x20000
    s_lshr_b32 s{sTMP}, s{sW}, 2
    s_lshl_b32 s{sTMP}, s{sTMP}, 13
    s_and_b32 s{sTMP2}, s{sW}, 3
    s_lshl_b32 s{sTMP2}, s{sTMP2}, 10
    s_add_u32 s{sNP}, s{sTMP}, s{sTMP2}
    s_lshl_b32 s{sNC}, s{sW}, 10
    s_add_u32 s{sNC}, s{sNC}, {WF}
    v_lshlrev_b32 v{T0}, 4, v0
    v_add_u32 v{T0}, {AGG}, v{T0}
    v_mov_b64 {r(AF+8,2)}, 0
    v_mov_b64 {r(AF+10,2)}, 0
    s_cmp_lg_u32 s{sW}, 0
    ds_write_b128 v{T0}, {r(AF+8,4)}
    ds_write_b128 v{T0}, {r(AF+8,4)} offset:8192
    ds_write_b128 v{T0}, {r(AF+8,4)} offset:16384
    s_cbranch_scc1 M_NOZ3
    ds_write_b128 v{T0}, {r(AF+8,4)} offset:24576
M_NOZ3:""")
    cnt_zero()
    if OPT['RPF']:
        I(f'''s_lshr_b32 s52, s2, 3
        s_lshl_b32 s52, s52, 1
        s_add_u32 s52, s52, s{sW}
        s_sub_u32 s52, s52, {OPT['RPW']}
        s_min_u32 s52, s52, 61
        s_mul_i32 s52, s52, {4*CH*4}
        s_and_b32 s53, s2, 7
        s_mul_i32 s53, s53, 1606
        s_max_u32 s53, s53, 224
        s_sub_u32 s53, s53, 224
        s_and_b32 s53, s53, -128
        s_add_u32 s52, s52, s53
        v_lshrrev_b32 v{vLX}, 4, v2
        v_mul_u32_u24 v{vLX}, {CH*4}, v{vLX}
        v_and_b32 v{vLE}, 15, v2
        v_lshl_add_u32 v{vLX}, v{vLE}, 7, v{vLX}''')
    C('two lanes per chunk fetch the segment (bucket, chunk); A / U fragments and the bucket rows go to LDS')
    I(f"""
    s_waitcnt lgkmcnt(0)
    s_mov_b32 s{sWS}, s26
    s_mov_b32 s{sWS+1}, s27
    s_add_u32 m0, s{sNP}, {XS}
    buffer_load_dword v{vC}, v{IDX}, {sr(sWS,4)}, s{sD} offen
    """)
    if OPT['RPF']:
        C("two waves touch this workgroup's share of the lines where the die's segments are expected (speed only)")
        I(f'''s_sub_u32 s53, s{sW}, {OPT['RPW']}
        s_cmp_ge_u32 s53, 2
        s_cbranch_scc1 M_NORP
        buffer_load_dword v{vLE}, v{vLX}, {sr(sWS,4)}, s52 offen
M_NORP:''')
    I(f"""
    s_add_u32 s{sTMP}, s{sNC}, {18*1024}
    buffer_load_dwordx4 v{IDX+1}, {sr(sWS,4)}, s{sTMP} offen lds
    s_add_u32 m0, s{sNP}, {XS+16384}
    s_add_u32 s{sTMP}, s{sNC}, {26*1024}
    buffer_load_dwordx4 v{IDX+1}, {sr(sWS,4)}, s{sTMP} offen lds
    v_lshrrev_b32 v{IDX+2}, 4, v2
    s_lshl_b32 s{sTMP}, s{sW}, 2
    v_add_u32 v{IDX+2}, s{sTMP}, v{IDX+2}
    v_xor_b32 v{IDX+2}, v{IDX+2}, v2
    v_and_b32 v{IDX+2}, 7, v{IDX+2}
    v_lshlrev_b32 v{IDX+2}, 4, v{IDX+2}
    v_lshrrev_b32 v{IDX+3}, 3, v2
    v_lshl_or_b32 v{IDX+2}, v{IDX+3}, 7, v{IDX+2}
    """)
    srd(sX, 4, N * 128)
    I(f"""
    s_cmp_ge_u32 s{sW}, 7
    s_cbranch_scc1 M_NOROW
    s_lshl_b32 s{sTMP}, s{sW}, 10
    s_mul_i32 s{sTMP2}, s{sB}, {BN*128}
    s_add_u32 m0, s{sNP}, {XS+32768}
    s_add_u32 s{sTMP2}, s{sTMP2}, s{sTMP}
    buffer_load_dwordx4 v{IDX+2}, {sr(sX,4)}, s{sTMP2} offen lds
M_NOROW:
    s_add_u32 s{sOFP}, s26, s{sD}
    s_addc_u32 s{sOFP+1}, s27, 0
    v_cmp_gt_u32 vcc, {2*NCH}, v0
    v_mul_u32_u24 v{T1}, {CH}, v3
    v_and_b32 v{T2}, 1, v0
    v_lshlrev_b32 v{T2}, 2, v{T2}
    v_min_u32 v1, 390, v0
    v_lshlrev_b32 v1, 7, v1
    """)
    if OPT['RPF']:
        I(f'''s_cmp_ge_u32 s53, 2
        s_cbranch_scc1 M_RW2
        s_waitcnt vmcnt({4 if OPT['RPW'] < 6 else 3})
        s_branch M_RW3
M_RW2:''')
    I(f"""
    s_waitcnt vmcnt(2)
M_RW3:
    v_cndmask_b32 v{vC}, 0, v{vC}, vcc
    v_and_b32 v{T0}, 0xffff, v{vC}
    v_lshrrev_b32 v{vC}, 16, v{vC}
    v_add3_u32 v{T0}, v{T0}, v{T1}, v{T2}
    v_cmp_lt_u32 {sr(sSAVE,2)}, 40, v{vC}
    v_sub_u32 v{vC}, v{vC}, v{T2}
    v_lshlrev_b32 v{vEB}, 5, v{T1}
    v_lshlrev_b32 v{T0}, 2, v{T0}
    v_cmp_lt_i32 vcc, 16, v{vC}
    v_cmp_lt_i32 {sr(52,2)}, 24, v{vC}
    v_cmp_lt_i32 {sr(54,2)}, 32, v{vC}
    buffer_load_dwordx4 {r(pREC,4)}, v{T0}, {sr(sWS,4)}, 0 offen
    buffer_load_dwordx4 {r(pREC+4,4)}, v{T0}, {sr(sWS,4)}, 0 offen offset:32
    """)
    if OPT['XR2']:
        I(f"""
    s_or_b64 vcc, vcc, 1
    s_mov_b64 exec, vcc
    buffer_load_dwordx4 {r(pREC+8,4)}, v{T0}, {sr(sWS,4)}, 0 offen offset:64
    s_mov_b32 s{sXR}, 0
    s_mov_b64 exec, {sr(52,2)}
    s_cbranch_execz M_RL3
    s_mov_b32 s{sXR}, 1
    buffer_load_dwordx4 {r(pREC+12,4)}, v{T0}, {sr(sWS,4)}, 0 offen offset:96
    s_mov_b64 exec, {sr(54,2)}
    s_cbranch_execz M_RL3
    s_mov_b32 s{sXR}, 3
    buffer_load_dwordx4 {r(pREC+16,4)}, v{T0}, {sr(sWS,4)}, 0 offen offset:128
M_RL3:
    s_mov_b64 exec, -1
    """)
    else:
        I(f"""
    s_cmp_lg_u64 {sr(54,2)}, 0
    s_cselect_b32 s{sXR}, 2, 0
    s_cmp_eq_u64 {sr(52,2)}, 0
    s_cbranch_scc1 M_RL3
    s_or_b32 s{sXR}, s{sXR}, 1
    buffer_load_dwordx4 {r(pREC+12,4)}, v{T0}, {sr(sWS,4)}, 0 offen offset:96
    buffer_load_dwordx4 {r(pREC+16,4)}, v{T0}, {sr(sWS,4)}, 0 offen offset:128
M_RL3:
    s_or_b64 vcc, vcc, 1
    s_mov_b64 exec, vcc
    buffer_load_dwordx4 {r(pREC+8,4)}, v{T0}, {sr(sWS,4)}, 0 offen offset:64
    s_mov_b64 exec, -1
    """)
    stamp(1)
    srd(sE, 6, E * 32)
    srd(sOUT, 24, N * 128)
    I(f"""
    s_lshr_b32 s{sTMP}, s{sW}, 2
    s_lshl_b32 s{sTMP}, s{sTMP}, 1
    s_and_b32 s{sTMP2}, s{sW}, 1
    s_add_u32 s{sTMP}, s{sTMP}, s{sTMP2}
    s_lshl_b32 s{sTMP}, s{sTMP}, 13
    s_add_u32 s{sTMP}, s{sTMP}, {XS}
    v_add_u32 v{IDX+2}, s{sTMP}, v{IDX+1}
    v_and_b32 v{T1}, 31, v2
    v_lshlrev_b32 v{vLT}, 2, v{T1}
    v_add_u32 v{vLT}, {XAT}, v{vLT}
    v_lshrrev_b32 v{T2}, 5, v2
    v_bfe_u32 v{IDX}, v2, 1, 3
    v_xor_b32 v{IDX}, v{IDX}, v{T2}
    s_bfe_u32 s{sG0}, s{sW}, 0x10001
    s_lshl_b32 s{sTMP2}, s{sG0}, 13
    s_add_u32 s{sTMP}, s{sTMP2}, {XS+32768}
    v_lshlrev_b32 v{T1}, 7, v{T1}
    v_add_u32 v{T1}, s{sTMP}, v{T1}
    s_and_b32 s{sD}, s{sW}, 1
    s_lshl_b32 s{sD}, s{sD}, 7
    s_add_u32 s{sTMP2}, s{sTMP2}, s{sD}
    v_lshlrev_b32 v{T2}, 10, v{T2}
    v_add3_u32 v{vTA}, v{T2}, v{vLT}, s{sTMP2}
    s_mov_b32 s{sD}, {NLOG2E}
    """)
    for s in range(4):
        I(f"""v_xor_b32 v{AF2+s}, {2*s}, v{IDX}
        v_lshl_add_u32 v{AF2+s}, v{AF2+s}, 4, v{T1}""")
    I(f'v_mov_b32 v{vONE}, 1\nv_mov_b32 v{vFC}, 0xfc')
    validate(0, 12)
    if OPT['XR2']:
        I(f'''s_cmp_eq_u32 s{sXR}, 0
        s_waitcnt vmcnt(4)
        s_cbranch_scc0 M_BA
        s_waitcnt vmcnt(3)
M_BA:
        s_barrier''')
    else: I('s_waitcnt vmcnt(3)\ns_barrier')
    C('x[bucket] @ A (waves 0-3) and x[bucket] @ U (waves 4-7), one 32x32 tile per wave')
    for s in range(4):
        I(f'ds_read_b128 {r(pW+4*s,4)}, v{IDX+2} offset:{s*1024}\nds_read_b128 {r(pA+4*s,4)}, v{AF2+s}')
    I(f"""
    s_cmp_eq_u64 {sr(sSAVE,2)}, 0
    s_cbranch_scc1 M_NOFLAG
    v_mov_b32 v{T1}, {FLAG}
    ds_write_b32 v{T1}, v{vONE}
M_NOFLAG:
    s_waitcnt lgkmcnt(0)""")
    I(mf(pD, pA, pW, '0'))
    for k in range(1, 4): I(mf(pD, pA+4*k, pW+4*k, r(pD, 16)))
    I(f"""
    s_mov_b32 s{sMASK}, {XSENT}
    s_mov_b32 s{sONE}, 1.0
    s_mov_b32 s{sONE+1}, 1.0
    s_mov_b32 s{sMODE}, 0
    s_lshl_b32 s{sM0X}, s{sW}, 13
    s_add_u32 s{sM0X}, s{sM0X}, {XS}
    s_lshl_b32 s{sM0E}, s{sW}, 11
    s_add_u32 s{sM0E}, s{sM0E}, {ES}
    s_nop 3
    s_cmp_ge_u32 s{sW}, 4
    s_cbranch_scc1 M_ADONE""")
    for k in range(16):
        if k == 12: I(f's_cmp_lg_u32 s{sG0}, 0\ns_cbranch_scc1 M_ADONE')
        I(f'v_mul_f32 v{pD+k}, s{sD}, v{pD+k}\nds_write_b32 v{vTA}, v{pD+k} offset:{(8*(k//4)+k%4)*256}')
    I('M_ADONE:\ns_waitcnt vmcnt(0)')
    stamp(2)
    fstamp(1)
    C('counting sort by node, first pass: rank of every record inside its node')
    def mid1():
        I(f"""s_add_u32 m0, s{sNP}, {WBASE+4096}
    s_add_u32 s{sTMP}, s{sNC}, 8192
    buffer_load_dwordx4 v{IDX+1}, {sr(sWS,4)}, s{sNC} offen lds
    s_add_u32 m0, s{sNP}, {WBASE+4096+16384}
    s_cmp_ge_u32 s{sW}, 2
    buffer_load_dwordx4 v{IDX+1}, {sr(sWS,4)}, s{sTMP} offen lds
    s_cbranch_scc1 M_NOW4
    s_add_u32 m0, s{sM0E}, {4*2048+1024}
    s_add_u32 s{sTMP}, s{sNC}, {16*1024}
    buffer_load_dwordx4 v{IDX+1}, {sr(sWS,4)}, s{sTMP} offen lds
M_NOW4:""")
        if OPT['XPF']:
            C("each workgroup touches 1/32 of x so that the table is in its die's L2 when the gathers start")
            I(f'buffer_load_dword v1, v1, {sr(sX,4)}, s{sNN} offen')
    pass_a(0, 12, mid1)
    fstamp(2)
    I(f's_cmp_eq_u32 s{sXR}, 0\ns_cbranch_scc1 M_RAR')
    validate(12, 16)
    pass_a(12, 16)
    I(f's_cmp_ge_u32 s{sXR}, 2\ns_cbranch_scc1 M_RA\nM_RAR:')
    I('s_waitcnt lgkmcnt(0)\ns_barrier')
    fstamp(3)
    C('node bases (every node padded to a multiple of 8 edges)')
    scan()
    fstamp(4)
    I(f'''
    s_cmp_gt_u32 s{sTMP}, {CAP}
    s_cbranch_scc1 M_SLOW
    s_cmp_lg_u32 s{sTMP2}, 0
    s_cbranch_scc1 M_SLOW
    ''')
    if OPT['XR2']:
        I(f'''s_cmp_eq_u32 s{sXR}, 0
    s_cbranch_scc1 M_BATCH
    s_cmp_ge_u32 s{sXR}, 2
    s_cbranch_scc1 M_RB
M_RBR:''')
        pass_b1(12, 16)
    else:
        I(f'''
    s_cmp_eq_u32 s{sXR}, 0
    s_cbranch_scc1 M_BATCH
    s_cmp_ge_u32 s{sXR}, 2
    s_cbranch_scc1 M_RB
M_RBR:''')
        pass_b1(12, 16)
        I('s_waitcnt lgkmcnt(0)')
        pass_b2(12, 16)
    I('M_BATCH:')
    C('second pass: scatter the records into the node-sorted lists')
    pass_b1(0, 12)
    pad_write()
    I(f'''
    v_lshrrev_b32 v{vKE}, 4, v2
    v_xor_b32 v{vKE}, v{vKE}, v2''')
    if G4:
        I(f'''v_lshrrev_b32 v{vKX0}, 3, v2
        v_and_b32 v{vKX0}, 4, v{vKX0}
        v_and_b32 v{vKX1}, 7, v2
        v_xor_b32 v{vKX0}, v{vKX0}, v{vKX1}
        v_lshlrev_b32 v{vKX0}, 4, v{vKX0}
        v_xor_b32 v{vKX1}, 16, v{vKX0}
        v_xor_b32 v{vKX2}, 32, v{vKX0}
        v_xor_b32 v{vKX3}, 48, v{vKX0}''')
    else:
        I(f'''v_and_b32 v{vKX0}, 7, v{vKE}
        v_lshlrev_b32 v{vKX0}, 4, v{vKX0}
        v_xor_b32 v{vKX1}, 64, v{vKX0}''')
    I(f'''v_and_b32 v{vKE}, 1, v{vKE}
    v_lshlrev_b32 v{vKE}, 4, v{vKE}
    s_waitcnt lgkmcnt(0)''')
    pass_b2(0, 12)
    if OPT['XR2']:
        I(f's_cmp_eq_u32 s{sXR}, 0\ns_cbranch_scc1 M_NOB3')
        pass_b2(12, 16)
        I('M_NOB3:')
    C('''tiles (32 edges = four 8-edge granules of four streams) are split over the four SIMD pairs (w, w+4).
    Waves 0-3 start first; waves 4-7 start their own pipeline once waves 0-3 have done K tiles (staggered start, one
    barrier).  Lighter buckets have more slack and use a larger K; waves 0-3 take correspondingly more tiles.''')
    I(f'''
    s_add_u32 s{sTMP}, s{sTMP}, 31
    s_lshr_b32 s52, s{sTMP}, 7
    s_bfe_u32 s53, s{sTMP}, 0x20005
    s_lshr_b32 s59, s{sTMP}, 5
    s_min_u32 s59, s59, {OPT['NREF']}
    s_sub_u32 s59, {OPT['NREF']}, s59
    s_mul_i32 s59, s59, {OPT['SLOPE']}
    s_lshr_b32 s59, s59, 2
    s_min_u32 s59, s59, {OPT['KMAX']}
    s_add_u32 s{sBAR}, s59, {OPT['STAG']+1}
    s_add_u32 s59, s59, {OPT['DELTA']}
    s_max_u32 s54, s52, s59
    s_sub_u32 s54, s54, s59
    s_lshr_b32 s54, s54, 1
    s_add_u32 s55, s52, 1
    s_max_u32 s56, s55, s59
    s_sub_u32 s56, s56, s59
    s_lshr_b32 s56, s56, 1
    s_sub_u32 s52, s52, s54
    s_sub_u32 s55, s55, s56
    s_mul_i32 s57, s55, s53
    s_sub_u32 s58, 4, s53
    s_mul_i32 s58, s58, s52
    s_add_u32 s57, s57, s58
    s_cmp_ge_u32 s{sW}, 4
    s_cselect_b32 s52, s54, s52
    s_cselect_b32 s55, s56, s55
    s_cselect_b32 s57, s57, 0
    s_cselect_b32 s{sBAR}, 0, s{sBAR}
    s_and_b32 s58, s{sW}, 3
    s_cmp_lt_u32 s58, s53
    s_cselect_b32 s{sTW}, s55, s52
    s_min_u32 s53, s53, s58
    s_sub_u32 s58, s58, s53
    s_mul_i32 s53, s53, s55
    s_mul_i32 s58, s58, s52
    s_add_u32 s{sG0}, s57, s53
    s_add_u32 s{sG0}, s{sG0}, s58
    s_lshl_b32 s{sG0}, s{sG0}, 7
    s_add_u32 s{sG0}, s{sG0}, {LX}
    ''')
    if G4:
        I(f"""
    s_lshl_b32 s{sTMP2}, s{sTW}, 4
    v_lshrrev_b32 v{T0}, 3, v2
    v_mul_u32_u24 v{T0}, s{sTMP2}, v{T0}
    v_add_u32 v{vLX}, s{sG0}, v{T0}
    v_bfe_u32 v{T0}, v2, 3, 2
    v_lshrrev_b32 v{T1}, 1, v{T0}
    v_xor_b32 v{T1}, v{T1}, v{T0}
    v_lshrrev_b32 v{T2}, 5, v2
    v_xor_b32 v{T1}, v{T1}, v{T2}
    v_and_b32 v{T1}, 1, v{T1}
    v_lshl_or_b32 v{T0}, v{T0}, 1, v{T1}
    v_mul_u32_u24 v{T0}, s{sTMP2}, v{T0}
    v_bfe_u32 v{T1}, v2, 1, 2
    v_lshl_add_u32 v{T0}, v{T1}, 2, v{T0}
    v_add_u32 v{vLE}, s{sG0}, v{T0}
    s_sub_u32 s{sTMP}, s{sTW}, 1
    v_and_b32 v{T0}, 31, v2
    v_min_u32 v{T0}, s{sTMP}, v{T0}
    v_lshlrev_b32 v{T0}, 4, v{T0}
    v_mad_u32_u24 v{T0}, v{T2}, s{sTMP2}, v{T0}
    s_lshl_b32 s{sTMP2}, s{sTMP2}, 1
    v_add_u32 v{T0}, s{sG0}, v{T0}
    v_add_u32 v{T1}, s{sTMP2}, v{T0}
    v_add_u32 v{T2}, s{sTMP2}, v{T1}
    v_add_u32 v{vSCH}, s{sTMP2}, v{T2}""")
    else:
        I(f"""
    s_lshl_b32 s{sTMP2}, s{sTW}, 5
    v_lshrrev_b32 v{T0}, 4, v2
    v_mul_u32_u24 v{T0}, s{sTMP2}, v{T0}
    v_bfe_u32 v{T1}, v2, 3, 1
    v_lshl_add_u32 v{T0}, v{T1}, 4, v{T0}
    v_add_u32 v{vLX}, s{sG0}, v{T0}
    v_bfe_u32 v{T0}, v2, 3, 2
    v_mul_u32_u24 v{T0}, s{sTMP2}, v{T0}
    v_bfe_u32 v{T1}, v2, 2, 1
    v_lshl_add_u32 v{T0}, v{T1}, 4, v{T0}
    v_lshrrev_b32 v{T1}, 5, v2
    v_lshl_add_u32 v{T0}, v{T1}, 3, v{T0}
    v_bfe_u32 v{T1}, v2, 1, 1
    v_lshl_add_u32 v{T0}, v{T1}, 2, v{T0}
    v_add_u32 v{vLE}, s{sG0}, v{T0}
    s_sub_u32 s{sTMP}, s{sTW}, 1
    v_min_u32 v{T0}, s{sTMP}, v2
    v_lshlrev_b32 v{T0}, 5, v{T0}
    v_add_u32 v{T0}, s{sG0}, v{T0}
    v_add_u32 v{T1}, s{sTMP2}, v{T0}
    v_add_u32 v{T2}, s{sTMP2}, v{T1}
    v_add_u32 v{vSCH}, s{sTMP2}, v{T2}""")
    fstamp(5)
    I(f's_waitcnt vmcnt({1 if OPT["XPF"] else 0}) lgkmcnt(0)\ns_barrier')
    stamp(3)
    if OPT['NOX']: I(f's_mov_b32 s{sX+2}, 0')
    if OPT['NOE']: I(f's_mov_b32 s{sE+2}, 0')
    g0 = dma_tile(Z, 0, 0)
    g1 = dma_tile(Z+16, 4096, 1024)
    C('pipeline start: list entries of tiles 0..2, node of every (tile, stream), gathers of tile 0')
    I(f'''
    ds_read_b128 {r(Z,4)}, v{vLX}
    ds_read_b32 v{Z+4}, v{vLE} offset:16384
    ds_read_b32 v{T0}, v{T0}
    ds_read_b32 v{T1}, v{T1}
    ds_read_b32 v{T2}, v{T2}
    ds_read_b32 v{vSCH}, v{vSCH}
    ds_read_b128 {r(Z+16,4)}, v{vLX} offset:{4*GR}
    ds_read_b32 v{Z+20}, v{vLE} offset:{16384+4*GR}
    ds_read_b128 {r(IDX,4)}, v{vLX} offset:{8*GR}
    ds_read_b32 v{IDX+4}, v{vLE} offset:{16384+8*GR}
    v_lshlrev_b32 v{vFC}, 4, v2
    v_add_u32 v{vFC}, {WBASE}, v{vFC}
    s_cmp_ge_u32 s{sW}, 4
    s_cbranch_scc1 M_NOT0
    s_setprio 1
    s_cmp_eq_u32 s{sTW}, 0
    s_waitcnt lgkmcnt(8)
    s_cbranch_scc1 M_NOT0
    ''')
    for g in (g0 if not OPT['EFIRST'] else g0[4:] + g0[:4]): I('\n'.join(g))
    C('lane t of the schedule register: byte j = node of stream j in tile t, bit 6 set when it differs from tile t-1')
    I(f'''
M_NOT0:
    s_waitcnt lgkmcnt(0)
    v_bfe_u32 v{T0}, v{T0}, 1, 6
    v_bfe_u32 v{T1}, v{T1}, 1, 6
    v_bfe_u32 v{T2}, v{T2}, 1, 6
    v_bfe_u32 v{vSCH}, v{vSCH}, 1, 6
    v_lshl_or_b32 v{T0}, v{T1}, 8, v{T0}
    v_lshl_or_b32 v{T0}, v{T2}, 16, v{T0}
    v_lshl_or_b32 v{vSCH}, v{vSCH}, 24, v{T0}
    v_add_u32 v{vLX}, {12*GR}, v{vLX}
    v_mov_b32 v{T0}, v{vSCH}
    v_readfirstlane_b32 s{sNC}, v{vSCH}
    v_readlane_b32 s{sNC+1}, v{vSCH}, 32
    v_add_u32 v{vLE}, {16384+12*GR}, v{vLE}
    v_mov_b32_dpp v{T0}, v{vSCH} wave_shr:1 row_mask:0xf bank_mask:0xf
    s_mov_b32 s{sT}, 1
    s_mov_b32 s{sT2}, 33
    v_xor_b32 v{T0}, v{T0}, v{vSCH}
    v_add_u32 v{T0}, 0x3f3f3f3f, v{T0}
    v_and_b32 v{T0}, 0x40404040, v{T0}
    {'s_mov_b32 exec_hi, -2' if G4 else ''}
    v_or_b32 v{vSCH}, v{vSCH}, v{T0}
    s_mov_b64 {sr(sNP,2)}, {sr(sNC,2)}
    ''')
    if G4:
        I(f"""s_mov_b32 exec_hi, 0
        v_mov_b32 v{T1}, s{sNC}
        s_not_b64 exec, exec
        v_mov_b32 v{T1}, s{sNC+1}
        s_mov_b64 exec, -1""")
    for j in range(4):
        if G4:
            I(f"""v_bfe_u32 v{T0}, v{T1}, {8*j}, 6
            v_lshl_add_u32 v{T0}, v{T0}, 8, v{vLT}""")
        else:
            I(f"""s_bfe_u32 s{sTMP}, s{sNC}, {(6 << 16) | (8*j)}
            s_lshl_b32 s{sTMP}, s{sTMP}, 8
            v_add_u32 v{T0}, s{sTMP}, v{vLT}""")
        I(f"""ds_read_b32 v{XA+4*j}, v{T0}
        ds_read_b32 v{XA+16+4*j}, v{T0} offset:128""")
    I(f's_cmp_eq_u32 s{sMODE}, 2\ns_cbranch_scc1 M_NOWT')
    C('first batch only: weights into registers, x@U into the aggregate, read-side LDS addresses')
    for f in (16, 0, 1, 2, 3, 8, 9, 10, 11, 17, 4, 5, 6, 7, 12, 13, 14, 15):
        I(f'ds_read_b128 {r(WB+4*f,4)}, v{vFC} offset:{frag_off(f)}')
    I(f'''s_cmp_lt_u32 s{sW}, 4
    s_cbranch_scc1 M_TDONE
    s_bfe_u32 s{sXR}, s{sW}, 0x10001
    v_subrev_u32 v{vTA}, {XAT}, v{vTA}
    v_lshlrev_b32 v{vTA}, 1, v{vTA}
    v_add_u32 v{vTA}, {AGG}, v{vTA}''')
    for k in range(16):
        if k == 12: I(f's_cmp_lg_u32 s{sXR}, 0\ns_cbranch_scc1 M_TDONE')
        I(f'v_cvt_f64_f32 {r(AF+2*(k%8),2)}, v{pD+k}\nds_add_f64 v{vTA}, {r(AF+2*(k%8),2)} offset:{(8*(k//4)+k%4)*512}')
    I('M_TDONE:')
    j_, i_, h_, g_, t_, u_ = AF2, AF2+1, AF2+2, AF2+3, AF2+4, AF2+5
    I(f'''
    s_lshl_b32 s{sMODE}, s{sMODE}, 1
    v_and_b32 v{vLA}, {31 if G4 else 63}, v2
    v_lshlrev_b32 v{vLA}, 3, v{vLA}
    v_add_u32 v{vLA}, {AGG}, v{vLA}
    v_bfe_u32 v{j_}, v2, 3, 2
    v_and_b32 v{i_}, 3, v2
    v_lshrrev_b32 v{h_}, 5, v2
    v_lshrrev_b32 v{t_}, 1, v{j_}
    v_xor_b32 v{g_}, v{t_}, v{j_}
    v_lshrrev_b32 v{u_}, 2, v2
    v_xor_b32 v{g_}, v{g_}, v{u_}
    v_and_b32 v{g_}, 1, v{g_}
    v_xor_b32 v{t_}, v{t_}, v{h_}
    v_lshlrev_b32 v{t_}, 4, v{t_}
    v_lshl_or_b32 v{u_}, v{j_}, 2, v{i_}
    v_lshl_or_b32 v{u_}, v{g_}, 4, v{u_}
    v_lshl_or_b32 v{t_}, v{u_}, 5, v{t_}
    v_add_u32 v{vRE}, s{sM0E}, v{t_}
    ''')
    if G4:
        I(f"""v_bfe_u32 v{u_}, v2, 2, 3
        v_lshl_or_b32 v{u_}, v{i_}, 3, v{u_}
        v_lshlrev_b32 v{u_}, 7, v{u_}
        v_add_u32 v{u_}, s{sM0X}, v{u_}
        v_lshrrev_b32 v{t_}, 1, v{j_}
        v_lshl_or_b32 v{t_}, v{t_}, 2, v{i_}
        v_xor_b32 v{t_}, v{t_}, v{h_}""")
    else:
        I(f"""v_and_b32 v{t_}, 1, v{i_}
        v_lshl_or_b32 v{u_}, v{g_}, 1, v{t_}
        v_lshlrev_b32 v{u_}, 3, v{u_}
        v_lshl_or_b32 v{u_}, v{j_}, 1, v{u_}
        v_lshrrev_b32 v{i_}, 1, v{i_}
        v_or_b32 v{u_}, v{u_}, v{i_}
        v_lshlrev_b32 v{u_}, 7, v{u_}
        v_add_u32 v{u_}, s{sM0X}, v{u_}
        v_lshl_or_b32 v{t_}, v{t_}, 2, v{j_}
        v_xor_b32 v{t_}, v{t_}, v{h_}""")
    for s in range(4):
        I(f'''v_xor_b32 v{g_}, {2*s}, v{t_}
        v_lshl_add_u32 v{vRA+s}, v{g_}, 4, v{u_}''')
    I('M_NOWT:')
    for k in range(8): I(f'v_mov_b64 {r(ACC+2*k,2)}, 0')
    for g in g1: I(g[1])
    for g in dma_tile(IDX, 0, 0): I(g[1])
    if OPT['SCH'] == 2: sch_load()
    I(f'''
    s_cmp_ge_u32 s{sW}, 4
    s_cbranch_scc1 M_YNG
    s_cmp_eq_u32 s{sTW}, 0
    s_cbranch_scc1 M_BDONE
    ''')
    if OPT['T1L']:
        I('s_waitcnt vmcnt(0) lgkmcnt(0)\nM_W1:')
    else:
        I(f's_cmp_lt_u32 s{sTW}, 2\ns_cbranch_scc1 M_W0')
        dma_issue(g1)
        I('s_waitcnt vmcnt(5) lgkmcnt(0)\nM_W1:')
    I(f'ds_read_b128 {r(AF+16,4)}, v{vRE}')
    for s in range(4): I(f'ds_read_b128 {r(AF+4*s,4)}, v{vRA+s}')
    for ft in range(2):
        for j in range(4):
            for i in range(1, 4): I(f'v_mov_b32 v{XA+16*ft+4*j+i}, v{XA+16*ft+4*j}')
    I('s_waitcnt lgkmcnt(0)')
    for m in zm(0, AF): I(m)
    if OPT['SCH'] == 1: sch_load()
    if OPT['T1L']:
        I(f's_cmp_lt_u32 s{sTW}, 2\ns_cbranch_scc1 M_GO')
        dma_issue(g1)
        I('M_GO:')
    else:
        if OPT['YT0'] != 2: I(f's_cmp_eq_u32 s{sBAR}, 0\ns_cbranch_scc1 M_YNG2')
        if OPT['SCH'] == 3: sch_load('', (16, 18))
        else: I('s_nop 3')
        I('M_GO:')
    if OPT['WAITM']: I('s_mov_b32 s96, 0')
    stamp(4)
    C('''main loop, one tile per pass (two copies: LDS buffer / fragment parity).  Per 32-feature half:
    exp -> +1 -> rcp -> acc += r * hv, with hv = x@V of this half and the gate z of the next half on the matrix pipe.
    The two waves of a SIMD take turns on these vector blocks (priorities); loads and node changes sit between them.''')
    I('.p2align 6')
    for p in range(2):
        nb = 1 - p
        afc, afn = (AF, AF2) if p == 0 else (AF2, AF)
        def eblk(ft, extra):
            hv = hm(ft, afc)
            ins = {1: [f's_setprio {OPT["PB"]}']}
            for k in range(4): ins.setdefault(OPT['EF'] + 3*k, []).append(hv[k])
            ins.setdefault(OPT['P2POS'], []).insert(0, f's_setprio {OPT["PB2"]}')
            for k, v in extra.items(): ins.setdefault(k, []).extend(v)
            I('\n'.join(weave(exps(ft), ins)))
        def rblk(ft, zz):
            I('\n'.join(pkadd(ft)))
            I('\n'.join(weave(rcps(ft), {3*k: [zz[k]] for k in range(5)})))
            I('\n'.join(pkf(ft)))
        I(f'M_LOOP{p}:')
        trace()
        evchk('F', p, sNC)
        I(f'''s_cmp_eq_u32 s{sT}, s{sBAR}
    s_cbranch_scc1 M_SB{p}
M_SBR{p}:
    s_setprio 0
    s_add_u32 s{sTMP}, s{sT}, 1
    s_cmp_lt_u32 s{sTMP}, s{sTW}
    s_cbranch_scc0 M_ND{p}''')
        g = dma_tile(IDX, p*4096, p*1024)
        dma_issue(g)
        I(f'M_ND{p}:')
        if OPT['SCH']: I(f's_mov_b32 m0, s{sT}\ns_nop 0\ns_movrels_b32 s{sNN}, s67')
        rl = {11: [f'v_readlane_b32 s{sNN}, v{vSCH}, s{sT}']} if not OPT['SCH'] else {}
        if G4: rl[13] = [f'v_readlane_b32 s{sNN+1}, v{vSCH}, s{sT2}']
        eblk(0, rl)
        rblk(0, zm(1, afc))
        evchk('X', p, sNN)
        I(f'''s_setprio 0
    s_add_u32 s{sTMP}, s{sT}, 1
    s_cmp_lt_u32 s{sTMP}, s{sTW}
    {'s_memtime s[92:93]' if OPT['WAITM'] else ''}
    s_cbranch_scc0 M_WZ{p}
    s_waitcnt vmcnt(5)
M_WZR{p}:''')
        if OPT['WAITM']:
            I(f'''s_memtime s[94:95]
            s_waitcnt lgkmcnt(0)
            s_sub_u32 s94, s94, s92
            s_add_u32 s96, s96, s94
            v_writelane_b32 v{vST}, s96, 1''')
        I(f'ds_read_b128 {r(AF+16,4)}, v{vRE} offset:{nb*1024}')
        for s_ in range(4): I(f'ds_read_b128 {r(afn+4*s_,4)}, v{vRA+s_} offset:{nb*4096}')
        I(f'ds_read_b128 {r(IDX,4)}, v{vLX} offset:{4*GR*p}\nds_read_b32 v{IDX+4}, v{vLE} offset:{4*GR*p}')
        I('s_waitcnt lgkmcnt(0)')
        eblk(1, {})
        rblk(1, zm(0, afn))
        for q in range(5): I(g[q][1])
        if p == 1: I(f'v_add_u32 v{vLX}, {8*GR}, v{vLX}\nv_add_u32 v{vLE}, {8*GR}, v{vLE}')
        if G4: I(f's_add_u32 s{sT2}, s{sT2}, 1')
        I(f'''s_mov_b64 {sr(sNP,2)}, {sr(sNC,2)}
    s_mov_b64 {sr(sNC,2)}, {sr(sNN,2)}
    s_add_u32 s{sT}, s{sT}, 1
    s_cmp_le_u32 s{sT}, s{sTW}''')
        I('s_cbranch_scc0 M_LEND' if p == 0 else 's_cbranch_scc1 M_LOOP0')
    I('M_LEND:')
    trace()
    C('last partial sums of all streams')
    if G4:
        I(f"""s_mov_b32 exec_hi, 0
        v_mov_b32 v{T1}, s{sNP}
        s_not_b64 exec, exec
        v_mov_b32 v{T1}, s{sNP+1}
        s_mov_b64 exec, -1""")
        for j in range(4):
            I(f"""v_add_f32 v{Z+j}, v{ACC+2*j}, v{ACC+2*j+1}
            v_add_f32 v{Z+4+j}, v{ACC+8+2*j}, v{ACC+8+2*j+1}
            v_bfe_u32 v{Z+8+j}, v{T1}, {8*j}, 6
            v_lshl_add_u32 v{Z+8+j}, v{Z+8+j}, 9, v{vLA}""")
        for j in range(8):
            I(f'v_cvt_f64_f32 {r(Z+16+2*j,2)}, v{Z+j}\nds_add_f64 v{Z+8+j%4}, {r(Z+16+2*j,2)} offset:{256*(j//4)}')
    else:
        for j in range(4):
            I(f"""v_add_f32 v{Z+j}, v{ACC+2*j}, v{ACC+2*j+1}
            v_add_f32 v{Z+4+j}, v{ACC+8+2*j}, v{ACC+8+2*j+1}
            s_bfe_u32 s{52+j}, s{sNP}, {(6 << 16) | (8*j)}
            s_lshl_b32 s{52+j}, s{52+j}, 9""")
        for j in range(4): I(f'v_permlane32_swap_b32 v{Z+j}, v{Z+4+j}\nv_add_u32 v{Z+8+j}, s{52+j}, v{vLA}')
        for j in range(4): I(f'v_add_f32 v{Z+j}, v{Z+j}, v{Z+4+j}')
        for j in range(4): I(f'v_cvt_f64_f32 {r(Z+16+2*j,2)}, v{Z+j}\nds_add_f64 v{Z+8+j}, {r(Z+16+2*j,2)}')
    I(f'''
M_BDONE:
    s_cmp_lt_u32 s{sTW}, s{sBAR}
    s_cbranch_scc0 M_BDONE2
    s_waitcnt lgkmcnt(0)
    s_barrier
M_BDONE2:
    s_setprio 0
    s_cmp_lg_u32 s{sMODE}, 0
    s_cbranch_scc1 M_SNEXT
M_EPI:''')
    stamp(5)
    if OPT['EPI']:
        C('out = silu(x@U + agg): feature pair tid + 512*k, k = 0..2 (and k = 3 for the first 32 threads)')
        I(f'''
    v_lshlrev_b32 v{T0}, 4, v0
    v_add_u32 v{T0}, {AGG}, v{T0}
    s_mov_b32 s{sTMP}, {NLOG2E}
    s_mul_i32 s{sTMP2}, s{sB}, {BN*128}
    s_add_u32 s{sD}, s{sTMP2}, 4096
    v_lshlrev_b32 v{T1}, 2, v0
    s_cmp_lg_u32 s{sW}, 0
    s_waitcnt lgkmcnt(0)
    s_barrier
    s_cbranch_scc1 M_EP3
    ds_read_b128 {r(Z+28,4)}, v{T0} offset:24576
M_EP3:
    ds_read_b128 {r(Z+16,4)}, v{T0}
    ds_read_b128 {r(Z+20,4)}, v{T0} offset:8192
    ds_read_b128 {r(Z+24,4)}, v{T0} offset:16384''')
        for k in range(6):
            if k % 2 == 0: I(f's_waitcnt lgkmcnt({2 - k//2})')
            I(f'v_cvt_f32_f64 v{Z+k}, {r(Z+16+2*k,2)}')
        def act(ks):
            for k in ks: I(f'v_mul_f32 v{Z+8+k}, s{sTMP}, v{Z+k}')
            for k in ks: I(f'v_exp_f32 v{Z+8+k}, v{Z+8+k}')
            for k in ks: I(f'v_add_f32 v{Z+8+k}, 1.0, v{Z+8+k}')
            for k in ks: I(f'v_rcp_f32 v{Z+8+k}, v{Z+8+k}')
            for k in ks: I(f'v_mul_f32 v{Z+k}, v{Z+k}, v{Z+8+k}')
            for k in ks[::2]: I(f'v_cvt_pk_bf16_f32 v{Z+16+k//2}, v{Z+k}, v{Z+k+1}')
        act(list(range(6)))
        I(f'''buffer_store_dword v{Z+16}, v{T1}, {sr(sOUT,4)}, s{sTMP2} offen sc1
        buffer_store_dword v{Z+17}, v{T1}, {sr(sOUT,4)}, s{sTMP2} offen offset:2048 sc1
        buffer_store_dword v{Z+18}, v{T1}, {sr(sOUT,4)}, s{sD} offen sc1
        s_cbranch_scc1 M_FIN
        s_mov_b32 exec_hi, 0
        v_cvt_f32_f64 v{Z+6}, {r(Z+28,2)}
        v_cvt_f32_f64 v{Z+7}, {r(Z+30,2)}''')
        act([6, 7])
        I(f'buffer_store_dword v{Z+19}, v{T1}, {sr(sOUT,4)}, s{sD} offen offset:2048 sc1')
    else:
        C('out = silu(x@U + agg), eight features per thread')
        I(f'''
    v_lshlrev_b32 v{T0}, 6, v0
    v_add_u32 v{T0}, {AGG}, v{T0}
    s_mov_b32 s{sTMP}, {NLOG2E}
    s_mul_i32 s{sTMP2}, s{sB}, {BN*128}
    v_lshlrev_b32 v{T1}, 4, v0
    v_cmp_gt_u32 vcc, {BN*8}, v0
    s_waitcnt lgkmcnt(0)
    s_barrier
    s_and_saveexec_b64 {sr(sSAVE,2)}, vcc
    s_cbranch_execz M_FIN
    ds_read_b128 {r(Z+16,4)}, v{T0}
    ds_read_b128 {r(Z+20,4)}, v{T0} offset:16
    ds_read_b128 {r(Z+24,4)}, v{T0} offset:32
    ds_read_b128 {r(Z+28,4)}, v{T0} offset:48
    ''')
        for k in range(8):
            if k % 2 == 0: I(f's_waitcnt lgkmcnt({3 - k//2})')
            I(f'v_cvt_f32_f64 v{Z+k}, {r(Z+16+2*k,2)}')
        for k in range(8): I(f'v_mul_f32 v{Z+8+k}, s{sTMP}, v{Z+k}')
        for k in range(8): I(f'v_exp_f32 v{Z+8+k}, v{Z+8+k}')
        for k in range(8): I(f'v_add_f32 v{Z+8+k}, 1.0, v{Z+8+k}')
        for k in range(8): I(f'v_rcp_f32 v{Z+8+k}, v{Z+8+k}')
        for k in range(8): I(f'v_mul_f32 v{Z+k}, v{Z+k}, v{Z+8+k}')
        for k in range(4): I(f'v_cvt_pk_bf16_f32 v{Z+16+k}, v{Z+2*k}, v{Z+2*k+1}')
        I(f'buffer_store_dwordx4 {r(Z+16,4)}, v{T1}, {sr(sOUT,4)}, s{sTMP2} offen sc1')
    I('M_FIN:')
    if OPT['AMP']:
        I(f'''s_cmp_lg_u32 s2, 0
        s_cbranch_scc1 M_END
        s_cmp_lg_u32 s{sW}, 0
        s_cbranch_scc1 M_END
        s_waitcnt vmcnt(0)
        s_memrealtime s[60:61]
        s_add_u32 s56, s26, {WF + 0x10000}
        s_addc_u32 s57, s27, 0
        s_load_dword s58, s[56:57], 0
        s_waitcnt lgkmcnt(0)''')
        if OPT['AMP'] == 2: I('s_mov_b32 s60, s3')
        if OPT['AMP'] == 3: I('s_mov_b32 s58, s3')
        if OPT['AMP'] >= 10: I('s_mov_b32 s58, s3\ns_mov_b32 s60, s100')
        I(f'''s_sub_u32 s59, s60, s58
        s_min_u32 s59, s59, 20000
        s_mul_i32 s59, s59, 10
        s_memrealtime s[60:61]
        s_waitcnt lgkmcnt(0)
        s_mov_b32 s58, s60
M_SPIN:
        s_memrealtime s[60:61]
        s_waitcnt lgkmcnt(0)
        s_sub_u32 s62, s60, s58
        s_cmp_lt_u32 s62, s59
        s_cbranch_scc1 M_SPIN''')
    if OPT['STAMP']:
        I('s_mov_b64 exec, -1\ns_waitcnt vmcnt(0)')
        putstamp(6)
        I(f'''v_writelane_b32 v{vST}, s{sTW}, 7
        s_add_u32 s52, s26, 0x8000000
        s_addc_u32 s53, s27, 0
        s_mov_b32 s54, 0x100000
        s_mov_b32 s55, 0x20000
        s_lshl_b32 s56, s2, 3
        s_add_u32 s56, s56, s{sW}
        s_lshl_b32 s56, s56, 5
        v_lshlrev_b32 v1, 2, v2
        s_mov_b64 exec, 0xff
        buffer_store_dword v{vST}, v1, s[52:55], s56 offen''')
        if OPT['TRACE']:
            I(f'''s_mov_b64 exec, -1
            s_lshl_b32 s56, s56, 3
            s_add_u32 s56, s56, 0x20000
            buffer_store_dword v{vTR}, v1, s[52:55], s56 offen''')
    I('M_END:\ns_endpgm')
    C('node changes: M_F adds a finished partial sum to the aggregate, M_X loads the next node\'s x@A row as accumulator seed')
    for p in range(2):
        for j in range(4):
            I(f'M_F{p}{j}:\ns_setprio {OPT["PE"]}')
            flush_j(j)
            I(f's_branch M_FR{p}{j}')
            I(f'M_X{p}{j}:\ns_setprio {OPT["PE"]}')
            xa_j(j)
            I(f's_branch M_XR{p}{j}')
        I(f'M_WZ{p}:\ns_waitcnt vmcnt(0)\ns_branch M_WZR{p}')
        I(f'M_SB{p}:\ns_barrier\ns_branch M_SBR{p}')
    I(f'''M_W0:
    s_waitcnt vmcnt(0) lgkmcnt(0)
    s_branch M_W1
M_YNG:
    s_cmp_eq_u32 s{sTW}, 0
    s_cbranch_scc1 M_YE''')
    if OPT['SCH'] == 3: sch_load('Y', (12, 16))
    if OPT['YT0']: I('s_waitcnt lgkmcnt(0)\ns_barrier')
    for g in g0: I('\n'.join(g))
    if OPT['YT0'] == 2:
        I(f's_cmp_lt_u32 s{sTW}, 2\ns_cbranch_scc1 M_W0')
        dma_issue(g1)
        I('s_waitcnt vmcnt(5)\ns_branch M_W1')
    I(f'''s_branch M_W0
M_YE:
    s_waitcnt lgkmcnt(0)
    s_barrier
    s_branch M_BDONE2
''')
    if OPT['YT0'] != 2:
        I(f'''M_YNG2:
    {'' if OPT['YT0'] else 's_barrier'}
    s_cmp_lt_u32 s{sTW}, 2
    s_cbranch_scc1 M_GO''')
        dma_issue(g1)
        I('s_branch M_GO')
    for f in OUT: f()
    I('M_RA:')
    validate(16, 20)
    pass_a(16, 20)
    I('s_branch M_RAR')
    I('M_RB:')
    pass_b1(16, 20)
    I('s_waitcnt lgkmcnt(0)')
    pass_b2(16, 20)
    validate(0, 4)
    I('s_branch M_RBR')
    C('general path (a segment or the list is too long for the registers / LDS): one batch per segment')
    I(f"""
M_SLOW:
    s_mov_b32 s{sMODE}, 1
    s_mov_b32 s{sSEG}, -1
M_SNEXT:
    s_add_u32 s{sSEG}, s{sSEG}, 1
    s_cmp_ge_u32 s{sSEG}, {NCH}
    s_cbranch_scc1 M_EPI
    s_lshl_b32 s{sTMP}, s{sSEG}, 6
    s_load_dword s{sD}, {sr(sOFP,2)}, s{sTMP}
    s_waitcnt lgkmcnt(0)
    s_lshr_b32 s{sTMP2}, s{sD}, 16
    s_cmp_eq_u32 s{sTMP2}, 0
    s_cbranch_scc1 M_SNEXT
    s_barrier""")
    cnt_zero()
    I(f"""
    s_and_b32 s{sD}, s{sD}, 0xffff
    s_mul_i32 s{sTMP}, s{sSEG}, {CH}
    s_add_u32 s{sD}, s{sD}, s{sTMP}
    v_add_u32 v{T0}, s{sD}, v0
    v_mov_b32 v{T1}, s{sTMP}
    v_lshlrev_b32 v{vEB}, 5, v{T1}
    v_lshlrev_b32 v{T0}, 2, v{T0}
    v_sub_u32 v{vC}, s{sTMP2}, v0
    v_add_u32 v{vC}, 511, v{vC}
    v_ashrrev_i32 v{vC}, 9, v{vC}
    v_cmp_lt_i32 vcc, 4, v{vC}
    v_add_u32 v{T1}, 4, v{vC}
    v_mov_b32 v{vFC}, 0xfc
    v_cndmask_b32 v{vC}, v{vC}, v{T1}, vcc""")
    for s in range(7):
        I(f'buffer_load_dword v{pREC+s}, v{T0}, {sr(sWS,4)}, 0 offen')
        if s < 6: I(f'v_add_u32 v{T0}, 2048, v{T0}')
    validate(0, 12)
    I('s_waitcnt vmcnt(0) lgkmcnt(0)\ns_barrier')
    pass_a(0, 7)
    I('s_waitcnt lgkmcnt(0)\ns_barrier')
    scan()
    I(f's_mov_b32 s{sXR}, 0\ns_branch M_BATCH\nM_CODE_END:')

def kd(name, vgpr, sgpr, acc=None):
    return f'''.amdhsa_kernel {name}
  .amdhsa_next_free_vgpr {vgpr}
  .amdhsa_next_free_sgpr {sgpr}
  .amdhsa_accum_offset {acc or (vgpr+3)//4*4}
  .amdhsa_group_segment_fixed_size 0
  .amdhsa_kernarg_size 80
  .amdhsa_user_sgpr_count 2
  .amdhsa_user_sgpr_kernarg_segment_ptr 1
  .amdhsa_system_sgpr_workgroup_id_x 1
.end_amdhsa_kernel
'''

HEAD = open('gather_scatter__edge_featured_mpnn_egc__graph.s.ref').read().split('; Override')[0]
gen_part()
n0 = len(L)
gen_main()
if OPT['AG']:
    import re
    lo, hi = (4, 75) if OPT['AG'] == 1 else (4, 107)
    cnt = hi - lo + 1
    def m1(m):
        n = int(m.group(1))
        return f'v{n}' if n < lo else (f'a{n-lo}' if n <= hi else f'v{n-cnt}')
    def m2(m):
        a, b = int(m.group(1)), int(m.group(2))
        return f'v[{a}:{b}]' if a < lo else (f'a[{a-lo}:{b-lo}]' if a <= hi else f'v[{a-cnt}:{b-cnt}]')
    for i in range(n0, len(L)):
        L[i] = re.sub(r'\bv\[(\d+):(\d+)\]', m2, re.sub(r'\bv(\d+)\b', m1, L[i]))
out = HEAD + f'''; Two launches.  part_kernel: counting sort of every 3200-edge chunk by destination bucket (49 nodes) plus MFMA-ready
; weight fragments.  Main kernel: one workgroup per bucket sorts its edges by node in LDS, gathers x[src] / e_attr rows
; by LDS-DMA, computes gate and message with MFMA + exp/rcp, sums per node in registers and writes silu(x@U + agg).
; @launch kernel=part_kernel grid=({NCH+5+NCPW},1,1) block=(512,1,1) lds={K1_LDS}
; @launch kernel={MAIN} grid=({NB},1,1) block=(512,1,1) lds={M_LDS}
.amdgcn_target "amdgcn-amd-amdhsa--gfx950"
.text
''' + '\n'.join(L) + '''
.section .rodata,"a"
.p2align 6
''' + kd('part_kernel', 88 if (OPT['AMP'] or OPT['STAMP']) else 76, 80) + '.p2align 6\n' + kd(MAIN, 248 if (OPT['TRACE'] or OPT['STAMP']) else NV, 102, 168 if OPT['AG'] == 1 else None)
open(sys.argv[1], 'w').write(out)
```

```python
import sys, struct

OPT = dict(STAMP=0, FINE=0, CYC=0, TRACE=0, AMP=0, NOX=0, NOE=0,
           STAG=0, DELTA=3, NREF=0, SLOPE=2, KMAX=8, G4=0, SCH=2, AG=0, EFIRST=0, YT0=1, EPI=1, RPF=0, CLMP=1, XR2=1, T1L=0, WAITM=0, RPW=0,
           PB=1, PB2=2, PE=3, EF=3, P2POS=8, XPF=1)
for a in sys.argv[2:]:
    k, v = a.split('=')
    assert k in OPT, k
    OPT[k] = int(v) if v.lstrip('-').isdigit() else v.replace('_', ' ')

N, E = 12500, 800000
NB, BN = 256, 49
NCH, CH = 250, 3200
REC, OFFS, WF = 0, E * 4, 0x380000
WS_BYTES = 0x400000
NFRAG = 34
NCPW = 8
G4 = OPT['G4']
GR = 4 if G4 else 8
if not OPT['NREF']: OPT['NREF'] = 107 if G4 else 110
NLOG2E = struct.unpack('<I', struct.pack('<f', -1.4426950408889634))[0]
MAIN = 'gather_scatter__edge_featured_mpnn_egc__graph_kernel'

L = []
def I(s):
    for ln in s.strip('\n').split('\n'):
        ln = ln.strip()
        if ln:
            L.append(ln if ln.endswith(':') else '    ' + ln)
def C(s):
    for ln in s.strip('\n').split('\n'): L.append('    ; ' + ln.strip())
def r(a, n): return f'v[{a}:{a+n-1}]'
def sr(a, n): return f's[{a}:{a+n-1}]'
def srd(d, base, nbytes):
    I(f'''s_mov_b32 s{d}, s{base}
    s_mov_b32 s{d+1}, s{base+1}
    s_mov_b32 s{d+2}, {nbytes}
    s_mov_b32 s{d+3}, 0x20000''')
def dpp_scan(v):
    for ctl in ('row_shr:1', 'row_shr:2', 'row_shr:4', 'row_shr:8'):
        I(f's_nop 1\nv_add_u32_dpp v{v}, v{v}, v{v} {ctl} row_mask:0xf bank_mask:0xf bound_ctrl:1')
    I(f's_nop 1\nv_add_u32_dpp v{v}, v{v}, v{v} row_bcast:15 row_mask:0xa bank_mask:0xf')
    I(f's_nop 1\nv_add_u32_dpp v{v}, v{v}, v{v} row_bcast:31 row_mask:0xc bank_mask:0xf')
def header(name):
    I(f'.globl {name}\n.p2align 8\n.type {name},@function\n{name}:')

K1_BASE, K1_SORT = 1024, 2048
K1_LDS = K1_SORT + CH * 4

def kstamp(i):
    if OPT['STAMP']: I(f's_memrealtime s[{60+2*i}:{61+2*i}]\ns_waitcnt lgkmcnt(0)')
def kdump():
    if not OPT['STAMP']: return
    I(f'''; K1STAMP
    s_waitcnt vmcnt(0)
    s_memrealtime s[70:71]
    s_mov_b64 exec, 1
    s_waitcnt lgkmcnt(0)
    s_add_u32 s52, s24, 0x8100000
    s_addc_u32 s53, s25, 0
    s_mov_b32 s54, 0x100000
    s_mov_b32 s55, 0x20000
    s_lshl_b32 s56, s2, 3
    s_add_u32 s56, s56, s28
    s_lshl_b32 s56, s56, 5
    v_mov_b32 v1, 0''')
    for i in range(8): I(f'v_mov_b32 v{8+i}, s{60+2*min(i,5)}')
    I('''buffer_store_dwordx4 v[8:11], v1, s[52:55], s56 offen
    buffer_store_dwordx4 v[12:15], v1, s[52:55], s56 offen offset:16''')

def gen_part():
    header('part_kernel')
    if OPT['AMP']: I('s_memrealtime s[74:75]')
    kstamp(0)
    D, S, B4, RK, RC = 8, 16, 24, 32, 40
    C('workgroups 0..249: one chunk of 3200 edges each; 250..254: weight fragments; 255..262: code prefetch')
    I(f"""
    s_load_dwordx4 s[4:7], s[0:1], 16
    s_load_dwordx2 s[24:25], s[0:1], 72
    s_cmp_ge_u32 s2, {NCH+5}
    s_cbranch_scc1 P_CPW
    v_lshrrev_b32 v3, 6, v0
    v_lshlrev_b32 v1, 2, v0
    v_readfirstlane_b32 s28, v3
    s_cmp_ge_u32 s2, {NCH}
    s_cbranch_scc1 P_PREP
    v_mov_b32 v2, 0
    ds_write_b32 v1, v2
    v_lshlrev_b32 v4, 4, v0
    v_lshlrev_b32 v5, 3, v0
    v_add_u32 v5, 8192, v5
    v_add_u32 v6, 12288, v1
    s_mul_i32 s29, s2, {CH*4}
    s_waitcnt lgkmcnt(0)
    """)
    srd(12, 6, E * 4)
    C('edge slots per thread: 4*tid+{0..3}, 2048+2*tid+{0,1}, 3072+tid (waves 0,1 only)')
    I(f"""
    s_cmp_ge_u32 s28, 2
    s_cbranch_scc1 P_NO6A
    buffer_load_dword v{D+6}, v6, s[12:15], s29 offen
P_NO6A:
    buffer_load_dwordx4 {r(D,4)}, v4, s[12:15], s29 offen
    buffer_load_dwordx2 {r(D+4,2)}, v5, s[12:15], s29 offen
    """)
    srd(8, 4, E * 4); srd(16, 24, WS_BYTES)
    if OPT['AMP']:
        I(f"""s_cmp_lg_u32 s2, 0
        s_cbranch_scc1 P_NOAMP
        s_cmp_lg_u32 s28, 0
        s_cbranch_scc1 P_NOAMP
        v_mov_b32 v80, s74
        v_mov_b32 v81, {WF + 0x10000}
        buffer_store_dword v80, v81, s[16:19], 0 offen
        s_waitcnt vmcnt(0)
P_NOAMP:""")
    I(f"""
    v_lshlrev_b32 v56, 16, v0
    v_lshlrev_b32 v57, 15, v0
    v_add_u32 v57, {2048 << 14}, v57
    v_lshlrev_b32 v58, 14, v0
    v_add_u32 v58, {3072 << 14}, v58
    v_mov_b32 v59, 1
    s_mov_b32 s32, {-BN & 0xffffffff}
    s_mov_b32 s33, {1 << 14}
    s_mov_b32 s34, {2 << 14}
    s_mov_b32 s35, {3 << 14}
    s_barrier
    s_cmp_ge_u32 s28, 2
    s_cselect_b32 s37, 0x40000000, 0
    v_or_b32 v6, s37, v6
    buffer_load_dwordx4 {r(S,4)}, v4, s[8:11], s29 offen
    buffer_load_dwordx2 {r(S+4,2)}, v5, s[8:11], s29 offen
    buffer_load_dword v{S+6}, v6, s[8:11], s29 offen
    """)
    kstamp(1)
    I('s_waitcnt vmcnt(3)')
    kstamp(2)
    C('bucket = dst/49, rank inside (chunk, bucket) from an LDS counter')
    for k in range(7):
        if k == 6: I('s_cmp_ge_u32 s28, 2\ns_cbranch_scc1 P_NO6B')
        I(f"""v_mul_u32_u24 v{B4+k}, 21400, v{D+k}
        v_lshrrev_b32 v{B4+k}, 20, v{B4+k}
        v_mad_i32_i24 v{RC+k}, v{B4+k}, s32, v{D+k}
        v_lshlrev_b32 v{B4+k}, 2, v{B4+k}
        ds_add_rtn_u32 v{RK+k}, v{B4+k}, v59""")
    I(f"""
P_NO6B:
    v_and_b32 v60, 63, v0
    v_lshlrev_b32 v60, 4, v60
    s_waitcnt lgkmcnt(0)
    s_barrier""")
    C('bucket bases: every wave scans the 256 counters (four per lane)')
    I(f"""
    ds_read_b128 v[64:67], v60
    s_waitcnt lgkmcnt(0)
    v_add_u32 v69, v64, v65
    v_add_u32 v70, v69, v66
    v_add_u32 v71, v70, v67
    v_mov_b32 v72, v71""")
    dpp_scan(72)
    I(f"""
    v_sub_u32 v68, v72, v71
    v_add_u32 v71, v68, v70
    v_add_u32 v70, v68, v69
    v_add_u32 v69, v68, v64
    ds_write_b128 v60, v[68:71] offset:{K1_BASE}""")
    for k in range(6):
        I(f'ds_read_b32 v{D+k}, v{B4+k} offset:{K1_BASE}')
    C('segment table entry (bucket b, chunk w) = start | count<<16 at (b>>4)*16384 + w*64 + (b&15)*4')
    I(f"""s_waitcnt vmcnt(0)
    s_cmp_lg_u32 s28, 4
    s_cbranch_scc1 P_NOOFF
    v_lshl_or_b32 v64, v64, 16, v68
    v_lshl_or_b32 v65, v65, 16, v69
    v_lshl_or_b32 v66, v66, 16, v70
    v_lshl_or_b32 v67, v67, 16, v71
    v_lshrrev_b32 v61, 6, v60
    v_lshlrev_b32 v61, 14, v61
    v_and_b32 v62, 63, v60
    v_or_b32 v61, v61, v62
    s_lshl_b32 s36, s2, 6
    s_add_u32 s36, s36, {OFFS}
    buffer_store_dwordx4 v[64:67], v61, s[16:19], s36 offen sc1
P_NOOFF:""")
    C('record = dlocal<<26 | elocal<<14 | src, placed in bucket order')
    for k in range(7):
        eb = 56 if k < 4 else (57 if k < 6 else 58)
        kk = k if k < 4 else (k - 4 if k < 6 else 0)
        ks = '0' if kk == 0 else f's{32+kk}'
        I(f"""v_lshl_or_b32 v{RC+k}, v{RC+k}, 26, v{S+k}
        v_add3_u32 v{RC+k}, v{RC+k}, v{eb}, {ks}""")
    I(f"""
    s_cmp_ge_u32 s28, 2
    s_cbranch_scc1 P_NO6C
    ds_read_b32 v{D+6}, v{B4+6} offset:{K1_BASE}
    s_waitcnt lgkmcnt(0)
    v_add_lshl_u32 v{RK+6}, v{RK+6}, v{D+6}, 2
    ds_write_b32 v{RK+6}, v{RC+6} offset:{K1_SORT}
P_NO6C:
    s_waitcnt lgkmcnt(0)""")
    for k in range(6):
        I(f"""v_add_lshl_u32 v{RK+k}, v{RK+k}, v{D+k}, 2
        ds_write_b32 v{RK+k}, v{RC+k} offset:{K1_SORT}""")
    I('s_waitcnt lgkmcnt(0)')
    kstamp(3)
    I('s_barrier')
    kstamp(4)
    I(f"""
    ds_read_b128 v[8:11], v4 offset:{K1_SORT}
    v_cmp_gt_u32 vcc, 288, v0
    s_and_saveexec_b64 s[38:39], vcc
    ds_read_b128 v[12:15], v4 offset:{K1_SORT+8192}
    s_mov_b64 exec, s[38:39]
    s_waitcnt lgkmcnt(0)
    buffer_store_dwordx4 v[8:11], v4, s[16:19], s29 offen sc1
    s_add_u32 s36, s29, 8192
    s_and_saveexec_b64 s[38:39], vcc
    s_cbranch_execz P_FIN
    buffer_store_dwordx4 v[12:15], v4, s[16:19], s36 offen sc1
P_FIN:""")
    kdump()
    I('s_endpgm')
    C('''B-operand fragments (1 KiB each): 0-7 g_w[64:128], 8-15 v_w, 16-17 g_w[128:144], 18-25 g_w[0:64], 26-33 u_w.
    The two per-edge gate matrices carry the factor -log2(e) of the sigmoid's exponential.''')
    I(f'''
P_PREP:
    s_load_dwordx4 s[8:11], s[0:1], 32
    s_load_dwordx2 s[12:13], s[0:1], 48
    s_sub_u32 s30, s2, {NCH}
    s_lshl_b32 s30, s30, 3
    s_add_u32 s30, s30, s28
    s_waitcnt lgkmcnt(0)
    s_cmp_ge_u32 s30, {NFRAG}
    s_cbranch_scc1 P_END
    s_mov_b32 s20, s12
    s_mov_b32 s21, s13
    s_mov_b32 s22, {144*128}
    s_mov_b32 s23, 0x20000
    s_mov_b32 s33, {NLOG2E}
    s_mov_b32 s31, s30
    s_mov_b32 s32, 64
    s_cmp_lt_u32 s30, 8
    s_cbranch_scc1 P_GO
    s_cmp_lt_u32 s30, 16
    s_cbranch_scc0 P_C1
    s_sub_u32 s31, s30, 8
    s_mov_b32 s32, 0
    s_mov_b32 s33, 1.0
    s_mov_b32 s20, s10
    s_mov_b32 s21, s11
    s_mov_b32 s22, {64*128}
    s_branch P_GO
P_C1:
    s_cmp_lt_u32 s30, 18
    s_cbranch_scc0 P_C2
    s_sub_u32 s31, s30, 16
    s_lshl_b32 s31, s31, 2
    s_mov_b32 s32, 128
    s_branch P_GO
P_C2:
    s_mov_b32 s33, 1.0
    s_mov_b32 s32, 0
    s_sub_u32 s31, s30, 18
    s_cmp_lt_u32 s30, 26
    s_cbranch_scc1 P_GO
    s_sub_u32 s31, s30, 26
    s_mov_b32 s20, s8
    s_mov_b32 s21, s9
    s_mov_b32 s22, {64*128}
P_GO:
    s_and_b32 s34, s31, 3
    s_lshl_b32 s34, s34, 4
    s_add_u32 s34, s34, s32
    s_lshl_b32 s34, s34, 7
    s_lshr_b32 s35, s31, 2
    s_lshl_b32 s35, s35, 6
    s_add_u32 s34, s34, s35
    v_and_b32 v1, 31, v0
    v_lshlrev_b32 v1, 1, v1
    v_bfe_u32 v2, v0, 5, 1
    v_lshl_or_b32 v1, v2, 10, v1
    ''')
    for t in range(8):
        I(f'buffer_load_ushort v{8+t}, v1, s[20:23], s34 offen offset:{t*128}')
    srd(16, 24, WS_BYTES)
    I(f'''
    v_and_b32 v3, 63, v0
    v_lshlrev_b32 v3, 4, v3
    s_lshl_b32 s36, s30, 10
    s_add_u32 s36, s36, {WF}
    s_waitcnt vmcnt(0)
    ''')
    for t in range(8):
        I(f'v_lshlrev_b32 v{8+t}, 16, v{8+t}\nv_mul_f32 v{8+t}, s33, v{8+t}')
    for t in range(4):
        I(f'v_cvt_pk_bf16_f32 v{16+t}, v{8+2*t}, v{9+2*t}')
    I('''buffer_store_dwordx4 v[16:19], v3, s[16:19], s36 offen sc1
P_END:
    s_endpgm''')
    C("one workgroup per die reads the second kernel's code so that it is in the caches when that kernel starts")
    I(f'''P_CPW:
    s_cmp_ge_u32 s2, {NCH+5+NCPW}
    s_cbranch_scc1 P_END
    s_getpc_b64 s[40:41]
P_PC:
    s_add_u32 s40, s40, {MAIN}-P_PC
    s_addc_u32 s41, s41, 0
    v_lshlrev_b32 v2, 7, v0
    v_cmp_gt_u32 vcc, M_CODE_END-{MAIN}, v2
    s_and_saveexec_b64 s[42:43], vcc
    s_cbranch_execz P_END
    global_load_dword v3, v2, s[40:41]
    s_endpgm''')

CNT, FLAG, BASE = 0, 256, 512
XS = 1024
ES = XS + 65536
LX = ES + 16384
LE = LX + 16384
XAT = LE + 16384
AGG = XAT + 14336
M_LDS = AGG + 2*14336
WBASE = XS + 32768
XSENT, ESENT = 0x1FFF80, 0x7FFFFF00
CAP = 4096

WB, WV, WC = 4, 36, 68
XA = 76
Z = 108
H = 140
AF = 156
ACC = 176
IDX = 192
vLX, vLE, vKX0, vKX1, vKE = 197, 198, 199, 200, 201
vRA, vRE = 202, 206
vSCH, vLT = 207, 208
T0, T1, T2 = 209, 210, 211
vC, vEB = 212, 213
vONE, vLA = 214, 215
T4 = 216
vTA, vFC = 218, 219
AF2 = 220
NV = 240
vKX2, vKX3, vLC = 236, 237, 238
vTR, vST = 240, 244
pREC, pRK, pAD = 76, 96, 116
pD, pA, pW = 136, 152, 168
sX, sE, sWS, sOUT = 8, 12, 16, 20
sW, sT, sTW, sT2, sEV, _u, sD, sM0X, sM0E, sMASK, sTMP, sTMP2, sMODE, sSEG, sG0, sBAR = range(28, 44)
sNP, sNC, sNN = 60, 62, 64
sONE, sSAVE, sOFP = 44, 46, 48
sB, sXR = 50, 51

def mf(d, a, b, c): return f'v_mfma_f32_32x32x16_bf16 {r(d,16)}, {r(a,4)}, {r(b,4)}, {c}'
def zm(ft, af):
    return [mf(Z+16*ft, AF+16, WC+4*ft, r(XA+16*ft, 16))] + [mf(Z+16*ft, af+4*k, WB+16*ft+4*k, r(Z+16*ft, 16)) for k in range(4)]
def hm(ft, af):
    return [mf(H, af, WV+16*ft, '0')] + [mf(H, af+4*k, WV+16*ft+4*k, r(H, 16)) for k in range(1, 4)]
def exps(ft): return [f'v_exp_f32 v{Z+16*ft+i}, v{Z+16*ft+i}' for i in range(16)]
def rcps(ft): return [f'v_rcp_f32 v{Z+16*ft+i}, v{Z+16*ft+i}' for i in range(16)]
def pkadd(ft): return [f'v_pk_add_f32 {r(Z+16*ft+2*i,2)}, {r(Z+16*ft+2*i,2)}, {sr(sONE,2)}' for i in range(8)]
def pkf(ft): return [f'v_pk_fma_f32 {r(ACC+8*ft+2*(i//2),2)}, {r(Z+16*ft+2*i,2)}, {r(H+2*i,2)}, {r(ACC+8*ft+2*(i//2),2)}' for i in (0, 2, 4, 6, 1, 3, 5, 7)]
def weave(main, ins):
    out = []
    for i, m in enumerate(main):
        out += ins.get(i, [])
        out.append(m)
    return out

def pEO(s): return AF2 + s if s < 16 else 184 + s - 16
def sVM(s): return 68 + 2 * (s % 16)
def thr(s): return 8 * (s // 4) + s % 4
def validate(lo, hi):
    for s in range(lo, hi): I(f'v_cmp_lt_i32 {sr(sVM(s),2)}, {thr(s)}, v{vC}')
def pass_a(lo, hi, mid=None):
    for s in range(lo, hi):
        I(f'v_and_b32_sdwa v{pAD+s}, v{vFC}, v{pREC+s} dst_sel:DWORD dst_unused:UNUSED_PAD src0_sel:DWORD src1_sel:BYTE_3')
    for s in range(lo, hi):
        I(f'''s_mov_b64 exec, {sr(sVM(s),2)}
        ds_add_rtn_u32 v{pRK+s}, v{pAD+s}, v{vONE}''')
    I('s_mov_b64 exec, -1')
    if mid: mid()
    for s in range(lo, hi):
        I(f'''v_bfe_u32 v{pEO(s)}, v{pREC+s}, 14, 12
        v_lshl_add_u32 v{pEO(s)}, v{pEO(s)}, 5, v{vEB}
        v_alignbit_b32 v{pREC+s}, v{pREC+s}, v{pREC+s}, 25''')
def scan():
    I(f'''v_lshlrev_b32 v{T0}, 2, v2
    ds_read_b32 v{T1}, v{T0}
    v_mov_b32 v{T2}, {FLAG}
    ds_read_b32 v{IDX}, v{T2}
    s_waitcnt lgkmcnt(0)
    v_add_u32 v{IDX+2}, s{sW}, v{T1}
    v_add_u32 v{T1}, {GR-1}, v{T1}
    v_and_b32 v{T1}, {-GR}, v{T1}
    v_readfirstlane_b32 s{sTMP2}, v{IDX}
    v_mov_b32 v{T2}, v{T1}''')
    dpp_scan(T2)
    I(f'''v_sub_u32 v{T1}, v{T2}, v{T1}
    v_readlane_b32 s{sTMP}, v{T2}, 63
    v_add_u32 v{IDX+3}, {LX//4}, v{T1}
    ds_write_b32 v{T0}, v{IDX+3} offset:{BASE}''')
def pad_write():
    C('wave k < 7 fills pad slot k of every node, wave 7 the tail of the last tile (out-of-range offsets read as zero)')
    I(f'''v_add_u32 v{IDX+4}, v{T1}, v{IDX+2}
    v_add_u32 v{T0}, s{sTMP}, v2
    s_add_u32 s52, s{sTMP}, 31
    s_and_b32 s52, s52, -32
    s_cmp_eq_u32 s{sW}, 7
    s_cselect_b64 vcc, -1, 0
    v_mov_b32 v{IDX+2}, s52
    v_cndmask_b32 v{IDX+4}, v{IDX+4}, v{T0}, vcc
    v_cndmask_b32 v{T2}, v{T2}, v{IDX+2}, vcc
    v_mov_b32 v{T0}, {XSENT}
    v_cmp_lt_u32 vcc, v{IDX+4}, v{T2}
    v_mov_b32 v{T1}, {ESENT}
    v_lshlrev_b32 v{IDX+4}, 2, v{IDX+4}
    v_add_u32 v{IDX+4}, {LX}, v{IDX+4}
    s_mov_b64 exec, vcc
    ds_write2st64_b32 v{IDX+4}, v{T0}, v{T1} offset1:64
    s_mov_b64 exec, -1''')
def pass_b1(lo, hi):
    for s in range(lo, hi):
        I(f'''s_mov_b64 exec, {sr(sVM(s),2)}
        ds_read_b32 v{pAD+s}, v{pAD+s} offset:{BASE}''')
    I('s_mov_b64 exec, -1')
def pass_b2(lo, hi):
    for s in range(lo, hi): I(f'v_add_lshl_u32 v{pRK+s}, v{pRK+s}, v{pAD+s}, 2')
    for s in range(lo, hi):
        I(f'''s_mov_b64 exec, {sr(sVM(s),2)}
        ds_write2st64_b32 v{pRK+s}, v{pREC+s}, v{pEO(s)} offset1:64''')
    I('s_mov_b64 exec, -1')
def cnt_zero():
    I(f'''v_and_b32 v{T1}, 127, v0
    v_lshlrev_b32 v{T1}, 2, v{T1}
    v_mov_b32 v{T2}, 0
    ds_write_b32 v{T1}, v{T2}''')

def dma_tile(ix, xoff, eoff):
    g = []
    for q in range(4):
        g.append([f's_add_u32 m0, s{sM0X}, {xoff + q*1024}',
                  f'v_and_or_b32 v{ix+q}, v{ix+q}, s{sMASK}, v{(vKX0, vKX1, vKX2, vKX3)[q if G4 else q % 2]}',
                  f'buffer_load_dwordx4 v{ix+q}, {sr(sX,4)}, 0 offen lds'])
    g.append([f's_add_u32 m0, s{sM0E}, {eoff}',
              f'v_add_u32 v{ix+4}, v{ix+4}, v{vKE}',
              f'buffer_load_dwordx4 v{ix+4}, {sr(sE,4)}, 0 offen lds'])
    return g
def dma_issue(g):
    for x in g: I(x[0] + '\ns_nop 0\n' + x[2])

def half_addr(j, se, sn, sh, vbase):
    I(f'''s_bfe_u32 s{sTMP}, s{sn}, {(6 << 16) | (8*j)}
    s_bfe_u32 s{sTMP2}, s{sn+1}, {(6 << 16) | (8*j)}
    s_lshl_b32 s{sTMP}, s{sTMP}, {sh}
    s_lshl_b32 s{sTMP2}, s{sTMP2}, {sh}
    v_add_u32 v{T0}, s{sTMP}, v{vbase}
    s_mov_b32 exec_lo, 0
    v_add_u32 v{T0}, s{sTMP2}, v{vbase}
    s_bitcmp1_b32 s{se}, {8*j+6}
    s_cselect_b32 exec_lo, -1, 0
    s_bitcmp1_b32 s{se+1}, {8*j+6}
    s_cselect_b32 exec_hi, -1, 0''')
def flush_j(j):
    if G4:
        I(f'''v_add_f32 v{T1}, v{ACC+2*j}, v{ACC+2*j+1}
        v_add_f32 v{T2}, v{ACC+8+2*j}, v{ACC+8+2*j+1}''')
        half_addr(j, sNC, sNP, 9, vLA)
        I(f'''v_cvt_f64_f32 {r(T4,2)}, v{T1}
        v_mov_b64 {r(ACC+2*j,2)}, 0
        ds_add_f64 v{T0}, {r(T4,2)}
        v_cvt_f64_f32 {r(T1,2)}, v{T2}
        v_mov_b64 {r(ACC+8+2*j,2)}, 0
        ds_add_f64 v{T0}, {r(T1,2)} offset:256
        s_mov_b64 exec, -1''')
        return
    I(f'''v_add_f32 v{T1}, v{ACC+2*j}, v{ACC+2*j+1}
    v_add_f32 v{T2}, v{ACC+8+2*j}, v{ACC+8+2*j+1}
    s_bfe_u32 s{sTMP}, s{sNP}, {(6 << 16) | (8*j)}
    s_lshl_b32 s{sTMP}, s{sTMP}, 9
    v_permlane32_swap_b32 v{T1}, v{T2}
    v_add_u32 v{T0}, s{sTMP}, v{vLA}
    v_mov_b64 {r(ACC+2*j,2)}, 0
    v_add_f32 v{T1}, v{T1}, v{T2}
    v_mov_b64 {r(ACC+8+2*j,2)}, 0
    v_cvt_f64_f32 {r(T4,2)}, v{T1}
    ds_add_f64 v{T0}, {r(T4,2)}''')
def xa_j(j):
    if G4: half_addr(j, sNN, sNN, 8, vLT)
    else:
        I(f'''s_bfe_u32 s{sTMP}, s{sNN}, {(6 << 16) | (8*j)}
        s_lshl_b32 s{sTMP}, s{sTMP}, 8
        v_add_u32 v{T0}, s{sTMP}, v{vLT}''')
    I(f'''ds_read2_b32 {r(XA+4*j,2)}, v{T0}
    ds_read2_b32 {r(XA+4*j+2,2)}, v{T0}
    ds_read2_b32 {r(XA+16+4*j,2)}, v{T0} offset0:32 offset1:32
    ds_read2_b32 {r(XA+16+4*j+2,2)}, v{T0} offset0:32 offset1:32''')
    if G4: I('s_mov_b64 exec, -1')
def evchk(kind, p, sn):
    if G4:
        I(f's_or_b32 s{sEV}, s{sn}, s{sn+1}')
        sn = sEV
    for j in range(4): I(f's_bitcmp1_b32 s{sn}, {8*j+6}\ns_cbranch_scc1 M_{kind}{p}{j}\nM_{kind}R{p}{j}:')

def frag_off(f):
    if f < 16: return (f // 4) * 8192 + 4096 + (f % 4) * 1024
    return ES + (4 + f - 16) * 2048 + 1024 - WBASE

def putstamp(i, ins='s_memrealtime'):
    I(f'{ins} s[100:101]\ns_waitcnt lgkmcnt(0)\nv_writelane_b32 v{vST}, s100, {i}')
def fstamp(i):
    if OPT['STAMP'] and OPT['FINE']: putstamp(i)
def stamp(i):
    if OPT['AMP'] == 10 + i: I('s_memrealtime s[100:101]\ns_waitcnt lgkmcnt(0)')
    if not OPT['STAMP']: return
    if OPT['FINE'] and i not in (0,): return
    if OPT['CYC'] == 2:
        if i in (1, 2): return
        if i in (4, 5): putstamp(i - 3, 's_memtime')
    putstamp(i)
def trace():
    if OPT['TRACE']:
        I(f'''s_memtime s[76:77]
        s_memrealtime s[78:79]
        s_waitcnt lgkmcnt(0)
        s_mov_b32 m0, s{sT}
        s_nop 0
        v_writelane_b32 v{vTR}, s76, m0
        s_add_u32 m0, m0, 32
        s_nop 0
        v_writelane_b32 v{vTR}, s78, m0''')

def sch_load(tag='', cuts=(11, 14, 18)):
    C('schedule words of tiles 1.. into s68..')
    for t in range(1, 24):
        if t in cuts: I(f's_cmp_lt_u32 s{sTW}, {t}\ns_cbranch_scc1 M_SCHD{tag}')
        I(f'v_readlane_b32 s{67+t}, v{vSCH}, {t}')
    I(f'M_SCHD{tag}:')

OUT = []
def gen_main():
    header(MAIN)
    if OPT['AMP']: I('s_memrealtime s[74:75]\ns_waitcnt lgkmcnt(0)\ns_mov_b32 s3, s74')
    stamp(0)
    C('workgroup g owns bucket (g&7)*32 + (g>>3): neighbouring buckets share a die when placement is round-robin (speed only)')
    I(f"""
    s_load_dwordx2 s[26:27], s[0:1], 72
    s_load_dwordx4 s[4:7], s[0:1], 0
    s_load_dwordx2 s[24:25], s[0:1], 56
    s_cmp_ge_u32 s2, {NB}
    s_cbranch_scc1 M_END
    v_lshrrev_b32 v1, 6, v0
    v_and_b32 v2, 63, v0
    v_readfirstlane_b32 s{sW}, v1
    s_and_b32 s{sB}, s2, 7
    s_lshl_b32 s{sB}, s{sB}, 5
    s_lshr_b32 s{sTMP}, s2, 3
    s_add_u32 s{sB}, s{sB}, s{sTMP}
    s_mul_i32 s{sNN}, s{sTMP}, {391*128}
    v_lshrrev_b32 v3, 1, v0
    {f'v_min_u32 v3, {NCH-1}, v3' if OPT['CLMP'] else ''}
    v_lshlrev_b32 v{IDX}, 6, v3
    v_lshlrev_b32 v{IDX+1}, 4, v2
    s_lshr_b32 s{sD}, s{sB}, 4
    s_lshl_b32 s{sD}, s{sD}, 12
    s_and_b32 s{sTMP}, s{sB}, 15
    s_add_u32 s{sD}, s{sD}, s{sTMP}
    s_lshl_b32 s{sD}, s{sD}, 2
    s_add_u32 s{sD}, s{sD}, {OFFS}
    s_mov_b32 s{sWS+2}, {WS_BYTES}
    s_mov_b32 s{sWS+3}, 0x20000
    s_lshr_b32 s{sTMP}, s{sW}, 2
    s_lshl_b32 s{sTMP}, s{sTMP}, 13
    s_and_b32 s{sTMP2}, s{sW}, 3
    s_lshl_b32 s{sTMP2}, s{sTMP2}, 10
    s_add_u32 s{sNP}, s{sTMP}, s{sTMP2}
    s_lshl_b32 s{sNC}, s{sW}, 10
    s_add_u32 s{sNC}, s{sNC}, {WF}
    v_lshlrev_b32 v{T0}, 4, v0
    v_add_u32 v{T0}, {AGG}, v{T0}
    v_mov_b64 {r(AF+8,2)}, 0
    v_mov_b64 {r(AF+10,2)}, 0
    s_cmp_lg_u32 s{sW}, 0
    ds_write_b128 v{T0}, {r(AF+8,4)}
    ds_write_b128 v{T0}, {r(AF+8,4)} offset:8192
    ds_write_b128 v{T0}, {r(AF+8,4)} offset:16384
    s_cbranch_scc1 M_NOZ3
    ds_write_b128 v{T0}, {r(AF+8,4)} offset:24576
M_NOZ3:""")
    cnt_zero()
    if OPT['RPF']:
        I(f'''s_lshr_b32 s52, s2, 3
        s_lshl_b32 s52, s52, 1
        s_add_u32 s52, s52, s{sW}
        s_sub_u32 s52, s52, {OPT['RPW']}
        s_min_u32 s52, s52, 61
        s_mul_i32 s52, s52, {4*CH*4}
        s_and_b32 s53, s2, 7
        s_mul_i32 s53, s53, 1606
        s_max_u32 s53, s53, 224
        s_sub_u32 s53, s53, 224
        s_and_b32 s53, s53, -128
        s_add_u32 s52, s52, s53
        v_lshrrev_b32 v{vLX}, 4, v2
        v_mul_u32_u24 v{vLX}, {CH*4}, v{vLX}
        v_and_b32 v{vLE}, 15, v2
        v_lshl_add_u32 v{vLX}, v{vLE}, 7, v{vLX}''')
    C('two lanes per chunk fetch the segment (bucket, chunk); A / U fragments and the bucket rows go to LDS')
    I(f"""
    s_waitcnt lgkmcnt(0)
    s_mov_b32 s{sWS}, s26
    s_mov_b32 s{sWS+1}, s27
    s_add_u32 m0, s{sNP}, {XS}
    buffer_load_dword v{vC}, v{IDX}, {sr(sWS,4)}, s{sD} offen
    """)
    if OPT['RPF']:
        C("two waves touch this workgroup's share of the lines where the die's segments are expected (speed only)")
        I(f'''s_sub_u32 s53, s{sW}, {OPT['RPW']}
        s_cmp_ge_u32 s53, 2
        s_cbranch_scc1 M_NORP
        buffer_load_dword v{vLE}, v{vLX}, {sr(sWS,4)}, s52 offen
M_NORP:''')
    I(f"""
    s_add_u32 s{sTMP}, s{sNC}, {18*1024}
    buffer_load_dwordx4 v{IDX+1}, {sr(sWS,4)}, s{sTMP} offen lds
    s_add_u32 m0, s{sNP}, {XS+16384}
    s_add_u32 s{sTMP}, s{sNC}, {26*1024}
    buffer_load_dwordx4 v{IDX+1}, {sr(sWS,4)}, s{sTMP} offen lds
    v_lshrrev_b32 v{IDX+2}, 4, v2
    s_lshl_b32 s{sTMP}, s{sW}, 2
    v_add_u32 v{IDX+2}, s{sTMP}, v{IDX+2}
    v_xor_b32 v{IDX+2}, v{IDX+2}, v2
    v_and_b32 v{IDX+2}, 7, v{IDX+2}
    v_lshlrev_b32 v{IDX+2}, 4, v{IDX+2}
    v_lshrrev_b32 v{IDX+3}, 3, v2
    v_lshl_or_b32 v{IDX+2}, v{IDX+3}, 7, v{IDX+2}
    """)
    srd(sX, 4, N * 128)
    I(f"""
    s_cmp_ge_u32 s{sW}, 7
    s_cbranch_scc1 M_NOROW
    s_lshl_b32 s{sTMP}, s{sW}, 10
    s_mul_i32 s{sTMP2}, s{sB}, {BN*128}
    s_add_u32 m0, s{sNP}, {XS+32768}
    s_add_u32 s{sTMP2}, s{sTMP2}, s{sTMP}
    buffer_load_dwordx4 v{IDX+2}, {sr(sX,4)}, s{sTMP2} offen lds
M_NOROW:
    s_add_u32 s{sOFP}, s26, s{sD}
    s_addc_u32 s{sOFP+1}, s27, 0
    v_cmp_gt_u32 vcc, {2*NCH}, v0
    v_mul_u32_u24 v{T1}, {CH}, v3
    v_and_b32 v{T2}, 1, v0
    v_lshlrev_b32 v{T2}, 2, v{T2}
    v_min_u32 v1, 390, v0
    v_lshlrev_b32 v1, 7, v1
    """)
    if OPT['RPF']:
        I(f'''s_cmp_ge_u32 s53, 2
        s_cbranch_scc1 M_RW2
        s_waitcnt vmcnt({4 if OPT['RPW'] < 6 else 3})
        s_branch M_RW3
M_RW2:''')
    I(f"""
    s_waitcnt vmcnt(2)
M_RW3:
    v_cndmask_b32 v{vC}, 0, v{vC}, vcc
    v_and_b32 v{T0}, 0xffff, v{vC}
    v_lshrrev_b32 v{vC}, 16, v{vC}
    v_add3_u32 v{T0}, v{T0}, v{T1}, v{T2}
    v_cmp_lt_u32 {sr(sSAVE,2)}, 40, v{vC}
    v_sub_u32 v{vC}, v{vC}, v{T2}
    v_lshlrev_b32 v{vEB}, 5, v{T1}
    v_lshlrev_b32 v{T0}, 2, v{T0}
    v_cmp_lt_i32 vcc, 16, v{vC}
    v_cmp_lt_i32 {sr(52,2)}, 24, v{vC}
    v_cmp_lt_i32 {sr(54,2)}, 32, v{vC}
    buffer_load_dwordx4 {r(pREC,4)}, v{T0}, {sr(sWS,4)}, 0 offen
    buffer_load_dwordx4 {r(pREC+4,4)}, v{T0}, {sr(sWS,4)}, 0 offen offset:32
    """)
    if OPT['XR2']:
        I(f"""
    s_or_b64 vcc, vcc, 1
    s_mov_b64 exec, vcc
    buffer_load_dwordx4 {r(pREC+8,4)}, v{T0}, {sr(sWS,4)}, 0 offen offset:64
    s_mov_b32 s{sXR}, 0
    s_mov_b64 exec, {sr(52,2)}
    s_cbranch_execz M_RL3
    s_mov_b32 s{sXR}, 1
    buffer_load_dwordx4 {r(pREC+12,4)}, v{T0}, {sr(sWS,4)}, 0 offen offset:96
    s_mov_b64 exec, {sr(54,2)}
    s_cbranch_execz M_RL3
    s_mov_b32 s{sXR}, 3
    buffer_load_dwordx4 {r(pREC+16,4)}, v{T0}, {sr(sWS,4)}, 0 offen offset:128
M_RL3:
    s_mov_b64 exec, -1
    """)
    else:
        I(f"""
    s_cmp_lg_u64 {sr(54,2)}, 0
    s_cselect_b32 s{sXR}, 2, 0
    s_cmp_eq_u64 {sr(52,2)}, 0
    s_cbranch_scc1 M_RL3
    s_or_b32 s{sXR}, s{sXR}, 1
    buffer_load_dwordx4 {r(pREC+12,4)}, v{T0}, {sr(sWS,4)}, 0 offen offset:96
    buffer_load_dwordx4 {r(pREC+16,4)}, v{T0}, {sr(sWS,4)}, 0 offen offset:128
M_RL3:
    s_or_b64 vcc, vcc, 1
    s_mov_b64 exec, vcc
    buffer_load_dwordx4 {r(pREC+8,4)}, v{T0}, {sr(sWS,4)}, 0 offen offset:64
    s_mov_b64 exec, -1
    """)
    stamp(1)
    srd(sE, 6, E * 32)
    srd(sOUT, 24, N * 128)
    I(f"""
    s_lshr_b32 s{sTMP}, s{sW}, 2
    s_lshl_b32 s{sTMP}, s{sTMP}, 1
    s_and_b32 s{sTMP2}, s{sW}, 1
    s_add_u32 s{sTMP}, s{sTMP}, s{sTMP2}
    s_lshl_b32 s{sTMP}, s{sTMP}, 13
    s_add_u32 s{sTMP}, s{sTMP}, {XS}
    v_add_u32 v{IDX+2}, s{sTMP}, v{IDX+1}
    v_and_b32 v{T1}, 31, v2
    v_lshlrev_b32 v{vLT}, 2, v{T1}
    v_add_u32 v{vLT}, {XAT}, v{vLT}
    v_lshrrev_b32 v{T2}, 5, v2
    v_bfe_u32 v{IDX}, v2, 1, 3
    v_xor_b32 v{IDX}, v{IDX}, v{T2}
    s_bfe_u32 s{sG0}, s{sW}, 0x10001
    s_lshl_b32 s{sTMP2}, s{sG0}, 13
    s_add_u32 s{sTMP}, s{sTMP2}, {XS+32768}
    v_lshlrev_b32 v{T1}, 7, v{T1}
    v_add_u32 v{T1}, s{sTMP}, v{T1}
    s_and_b32 s{sD}, s{sW}, 1
    s_lshl_b32 s{sD}, s{sD}, 7
    s_add_u32 s{sTMP2}, s{sTMP2}, s{sD}
    v_lshlrev_b32 v{T2}, 10, v{T2}
    v_add3_u32 v{vTA}, v{T2}, v{vLT}, s{sTMP2}
    s_mov_b32 s{sD}, {NLOG2E}
    """)
    for s in range(4):
        I(f"""v_xor_b32 v{AF2+s}, {2*s}, v{IDX}
        v_lshl_add_u32 v{AF2+s}, v{AF2+s}, 4, v{T1}""")
    I(f'v_mov_b32 v{vONE}, 1\nv_mov_b32 v{vFC}, 0xfc')
    validate(0, 12)
    if OPT['XR2']:
        I(f'''s_cmp_eq_u32 s{sXR}, 0
        s_waitcnt vmcnt(4)
        s_cbranch_scc0 M_BA
        s_waitcnt vmcnt(3)
M_BA:
        s_barrier''')
    else: I('s_waitcnt vmcnt(3)\ns_barrier')
    C('x[bucket] @ A (waves 0-3) and x[bucket] @ U (waves 4-7), one 32x32 tile per wave')
    for s in range(4):
        I(f'ds_read_b128 {r(pW+4*s,4)}, v{IDX+2} offset:{s*1024}\nds_read_b128 {r(pA+4*s,4)}, v{AF2+s}')
    I(f"""
    s_cmp_eq_u64 {sr(sSAVE,2)}, 0
    s_cbranch_scc1 M_NOFLAG
    v_mov_b32 v{T1}, {FLAG}
    ds_write_b32 v{T1}, v{vONE}
M_NOFLAG:
    s_waitcnt lgkmcnt(0)""")
    I(mf(pD, pA, pW, '0'))
    for k in range(1, 4): I(mf(pD, pA+4*k, pW+4*k, r(pD, 16)))
    I(f"""
    s_mov_b32 s{sMASK}, {XSENT}
    s_mov_b32 s{sONE}, 1.0
    s_mov_b32 s{sONE+1}, 1.0
    s_mov_b32 s{sMODE}, 0
    s_lshl_b32 s{sM0X}, s{sW}, 13
    s_add_u32 s{sM0X}, s{sM0X}, {XS}
    s_lshl_b32 s{sM0E}, s{sW}, 11
    s_add_u32 s{sM0E}, s{sM0E}, {ES}
    s_nop 3
    s_cmp_ge_u32 s{sW}, 4
    s_cbranch_scc1 M_ADONE""")
    for k in range(16):
        if k == 12: I(f's_cmp_lg_u32 s{sG0}, 0\ns_cbranch_scc1 M_ADONE')
        I(f'v_mul_f32 v{pD+k}, s{sD}, v{pD+k}\nds_write_b32 v{vTA}, v{pD+k} offset:{(8*(k//4)+k%4)*256}')
    I('M_ADONE:\ns_waitcnt vmcnt(0)')
    stamp(2)
    fstamp(1)
    C('counting sort by node, first pass: rank of every record inside its node')
    def mid1():
        I(f"""s_add_u32 m0, s{sNP}, {WBASE+4096}
    s_add_u32 s{sTMP}, s{sNC}, 8192
    buffer_load_dwordx4 v{IDX+1}, {sr(sWS,4)}, s{sNC} offen lds
    s_add_u32 m0, s{sNP}, {WBASE+4096+16384}
    s_cmp_ge_u32 s{sW}, 2
    buffer_load_dwordx4 v{IDX+1}, {sr(sWS,4)}, s{sTMP} offen lds
    s_cbranch_scc1 M_NOW4
    s_add_u32 m0, s{sM0E}, {4*2048+1024}
    s_add_u32 s{sTMP}, s{sNC}, {16*1024}
    buffer_load_dwordx4 v{IDX+1}, {sr(sWS,4)}, s{sTMP} offen lds
M_NOW4:""")
        if OPT['XPF']:
            C("each workgroup touches 1/32 of x so that the table is in its die's L2 when the gathers start")
            I(f'buffer_load_dword v1, v1, {sr(sX,4)}, s{sNN} offen')
    pass_a(0, 12, mid1)
    fstamp(2)
    I(f's_cmp_eq_u32 s{sXR}, 0\ns_cbranch_scc1 M_RAR')
    validate(12, 16)
    pass_a(12, 16)
    I(f's_cmp_ge_u32 s{sXR}, 2\ns_cbranch_scc1 M_RA\nM_RAR:')
    I('s_waitcnt lgkmcnt(0)\ns_barrier')
    fstamp(3)
    C('node bases (every node padded to a multiple of 8 edges)')
    scan()
    fstamp(4)
    I(f'''
    s_cmp_gt_u32 s{sTMP}, {CAP}
    s_cbranch_scc1 M_SLOW
    s_cmp_lg_u32 s{sTMP2}, 0
    s_cbranch_scc1 M_SLOW
    ''')
    if OPT['XR2']:
        I(f'''s_cmp_eq_u32 s{sXR}, 0
    s_cbranch_scc1 M_BATCH
    s_cmp_ge_u32 s{sXR}, 2
    s_cbranch_scc1 M_RB
M_RBR:''')
        pass_b1(12, 16)
    else:
        I(f'''
    s_cmp_eq_u32 s{sXR}, 0
    s_cbranch_scc1 M_BATCH
    s_cmp_ge_u32 s{sXR}, 2
    s_cbranch_scc1 M_RB
M_RBR:''')
        pass_b1(12, 16)
        I('s_waitcnt lgkmcnt(0)')
        pass_b2(12, 16)
    I('M_BATCH:')
    C('second pass: scatter the records into the node-sorted lists')
    pass_b1(0, 12)
    pad_write()
    I(f'''
    v_lshrrev_b32 v{vKE}, 4, v2
    v_xor_b32 v{vKE}, v{vKE}, v2''')
    if G4:
        I(f'''v_lshrrev_b32 v{vKX0}, 3, v2
        v_and_b32 v{vKX0}, 4, v{vKX0}
        v_and_b32 v{vKX1}, 7, v2
        v_xor_b32 v{vKX0}, v{vKX0}, v{vKX1}
        v_lshlrev_b32 v{vKX0}, 4, v{vKX0}
        v_xor_b32 v{vKX1}, 16, v{vKX0}
        v_xor_b32 v{vKX2}, 32, v{vKX0}
        v_xor_b32 v{vKX3}, 48, v{vKX0}''')
    else:
        I(f'''v_and_b32 v{vKX0}, 7, v{vKE}
        v_lshlrev_b32 v{vKX0}, 4, v{vKX0}
        v_xor_b32 v{vKX1}, 64, v{vKX0}''')
    I(f'''v_and_b32 v{vKE}, 1, v{vKE}
    v_lshlrev_b32 v{vKE}, 4, v{vKE}
    s_waitcnt lgkmcnt(0)''')
    pass_b2(0, 12)
    if OPT['XR2']:
        I(f's_cmp_eq_u32 s{sXR}, 0\ns_cbranch_scc1 M_NOB3')
        pass_b2(12, 16)
        I('M_NOB3:')
    C('''tiles (32 edges = four 8-edge granules of four streams) are split over the four SIMD pairs (w, w+4).
    Waves 0-3 start first; waves 4-7 start their own pipeline once waves 0-3 have done K tiles (staggered start, one
    barrier).  Lighter buckets have more slack and use a larger K; waves 0-3 take correspondingly more tiles.''')
    I(f'''
    s_add_u32 s{sTMP}, s{sTMP}, 31
    s_lshr_b32 s52, s{sTMP}, 7
    s_bfe_u32 s53, s{sTMP}, 0x20005
    s_lshr_b32 s59, s{sTMP}, 5
    s_min_u32 s59, s59, {OPT['NREF']}
    s_sub_u32 s59, {OPT['NREF']}, s59
    s_mul_i32 s59, s59, {OPT['SLOPE']}
    s_lshr_b32 s59, s59, 2
    s_min_u32 s59, s59, {OPT['KMAX']}
    s_add_u32 s{sBAR}, s59, {OPT['STAG']+1}
    s_add_u32 s59, s59, {OPT['DELTA']}
    s_max_u32 s54, s52, s59
    s_sub_u32 s54, s54, s59
    s_lshr_b32 s54, s54, 1
    s_add_u32 s55, s52, 1
    s_max_u32 s56, s55, s59
    s_sub_u32 s56, s56, s59
    s_lshr_b32 s56, s56, 1
    s_sub_u32 s52, s52, s54
    s_sub_u32 s55, s55, s56
    s_mul_i32 s57, s55, s53
    s_sub_u32 s58, 4, s53
    s_mul_i32 s58, s58, s52
    s_add_u32 s57, s57, s58
    s_cmp_ge_u32 s{sW}, 4
    s_cselect_b32 s52, s54, s52
    s_cselect_b32 s55, s56, s55
    s_cselect_b32 s57, s57, 0
    s_cselect_b32 s{sBAR}, 0, s{sBAR}
    s_and_b32 s58, s{sW}, 3
    s_cmp_lt_u32 s58, s53
    s_cselect_b32 s{sTW}, s55, s52
    s_min_u32 s53, s53, s58
    s_sub_u32 s58, s58, s53
    s_mul_i32 s53, s53, s55
    s_mul_i32 s58, s58, s52
    s_add_u32 s{sG0}, s57, s53
    s_add_u32 s{sG0}, s{sG0}, s58
    s_lshl_b32 s{sG0}, s{sG0}, 7
    s_add_u32 s{sG0}, s{sG0}, {LX}
    ''')
    if G4:
        I(f"""
    s_lshl_b32 s{sTMP2}, s{sTW}, 4
    v_lshrrev_b32 v{T0}, 3, v2
    v_mul_u32_u24 v{T0}, s{sTMP2}, v{T0}
    v_add_u32 v{vLX}, s{sG0}, v{T0}
    v_bfe_u32 v{T0}, v2, 3, 2
    v_lshrrev_b32 v{T1}, 1, v{T0}
    v_xor_b32 v{T1}, v{T1}, v{T0}
    v_lshrrev_b32 v{T2}, 5, v2
    v_xor_b32 v{T1}, v{T1}, v{T2}
    v_and_b32 v{T1}, 1, v{T1}
    v_lshl_or_b32 v{T0}, v{T0}, 1, v{T1}
    v_mul_u32_u24 v{T0}, s{sTMP2}, v{T0}
    v_bfe_u32 v{T1}, v2, 1, 2
    v_lshl_add_u32 v{T0}, v{T1}, 2, v{T0}
    v_add_u32 v{vLE}, s{sG0}, v{T0}
    s_sub_u32 s{sTMP}, s{sTW}, 1
    v_and_b32 v{T0}, 31, v2
    v_min_u32 v{T0}, s{sTMP}, v{T0}
    v_lshlrev_b32 v{T0}, 4, v{T0}
    v_mad_u32_u24 v{T0}, v{T2}, s{sTMP2}, v{T0}
    s_lshl_b32 s{sTMP2}, s{sTMP2}, 1
    v_add_u32 v{T0}, s{sG0}, v{T0}
    v_add_u32 v{T1}, s{sTMP2}, v{T0}
    v_add_u32 v{T2}, s{sTMP2}, v{T1}
    v_add_u32 v{vSCH}, s{sTMP2}, v{T2}""")
    else:
        I(f"""
    s_lshl_b32 s{sTMP2}, s{sTW}, 5
    v_lshrrev_b32 v{T0}, 4, v2
    v_mul_u32_u24 v{T0}, s{sTMP2}, v{T0}
    v_bfe_u32 v{T1}, v2, 3, 1
    v_lshl_add_u32 v{T0}, v{T1}, 4, v{T0}
    v_add_u32 v{vLX}, s{sG0}, v{T0}
    v_bfe_u32 v{T0}, v2, 3, 2
    v_mul_u32_u24 v{T0}, s{sTMP2}, v{T0}
    v_bfe_u32 v{T1}, v2, 2, 1
    v_lshl_add_u32 v{T0}, v{T1}, 4, v{T0}
    v_lshrrev_b32 v{T1}, 5, v2
    v_lshl_add_u32 v{T0}, v{T1}, 3, v{T0}
    v_bfe_u32 v{T1}, v2, 1, 1
    v_lshl_add_u32 v{T0}, v{T1}, 2, v{T0}
    v_add_u32 v{vLE}, s{sG0}, v{T0}
    s_sub_u32 s{sTMP}, s{sTW}, 1
    v_min_u32 v{T0}, s{sTMP}, v2
    v_lshlrev_b32 v{T0}, 5, v{T0}
    v_add_u32 v{T0}, s{sG0}, v{T0}
    v_add_u32 v{T1}, s{sTMP2}, v{T0}
    v_add_u32 v{T2}, s{sTMP2}, v{T1}
    v_add_u32 v{vSCH}, s{sTMP2}, v{T2}""")
    fstamp(5)
    I(f's_waitcnt vmcnt({1 if OPT["XPF"] else 0}) lgkmcnt(0)\ns_barrier')
    stamp(3)
    if OPT['NOX']: I(f's_mov_b32 s{sX+2}, 0')
    if OPT['NOE']: I(f's_mov_b32 s{sE+2}, 0')
    g0 = dma_tile(Z, 0, 0)
    g1 = dma_tile(Z+16, 4096, 1024)
    C('pipeline start: list entries of tiles 0..2, node of every (tile, stream), gathers of tile 0')
    I(f'''
    ds_read_b128 {r(Z,4)}, v{vLX}
    ds_read_b32 v{Z+4}, v{vLE} offset:16384
    ds_read_b32 v{T0}, v{T0}
    ds_read_b32 v{T1}, v{T1}
    ds_read_b32 v{T2}, v{T2}
    ds_read_b32 v{vSCH}, v{vSCH}
    ds_read_b128 {r(Z+16,4)}, v{vLX} offset:{4*GR}
    ds_read_b32 v{Z+20}, v{vLE} offset:{16384+4*GR}
    ds_read_b128 {r(IDX,4)}, v{vLX} offset:{8*GR}
    ds_read_b32 v{IDX+4}, v{vLE} offset:{16384+8*GR}
    v_lshlrev_b32 v{vFC}, 4, v2
    v_add_u32 v{vFC}, {WBASE}, v{vFC}
    s_cmp_ge_u32 s{sW}, 4
    s_cbranch_scc1 M_NOT0
    s_setprio 1
    s_cmp_eq_u32 s{sTW}, 0
    s_waitcnt lgkmcnt(8)
    s_cbranch_scc1 M_NOT0
    ''')
    for g in (g0 if not OPT['EFIRST'] else g0[4:] + g0[:4]): I('\n'.join(g))
    C('lane t of the schedule register: byte j = node of stream j in tile t, bit 6 set when it differs from tile t-1')
    I(f'''
M_NOT0:
    s_waitcnt lgkmcnt(0)
    v_bfe_u32 v{T0}, v{T0}, 1, 6
    v_bfe_u32 v{T1}, v{T1}, 1, 6
    v_bfe_u32 v{T2}, v{T2}, 1, 6
    v_bfe_u32 v{vSCH}, v{vSCH}, 1, 6
    v_lshl_or_b32 v{T0}, v{T1}, 8, v{T0}
    v_lshl_or_b32 v{T0}, v{T2}, 16, v{T0}
    v_lshl_or_b32 v{vSCH}, v{vSCH}, 24, v{T0}
    v_add_u32 v{vLX}, {12*GR}, v{vLX}
    v_mov_b32 v{T0}, v{vSCH}
    v_readfirstlane_b32 s{sNC}, v{vSCH}
    v_readlane_b32 s{sNC+1}, v{vSCH}, 32
    v_add_u32 v{vLE}, {16384+12*GR}, v{vLE}
    v_mov_b32_dpp v{T0}, v{vSCH} wave_shr:1 row_mask:0xf bank_mask:0xf
    s_mov_b32 s{sT}, 1
    s_mov_b32 s{sT2}, 33
    v_xor_b32 v{T0}, v{T0}, v{vSCH}
    v_add_u32 v{T0}, 0x3f3f3f3f, v{T0}
    v_and_b32 v{T0}, 0x40404040, v{T0}
    {'s_mov_b32 exec_hi, -2' if G4 else ''}
    v_or_b32 v{vSCH}, v{vSCH}, v{T0}
    s_mov_b64 {sr(sNP,2)}, {sr(sNC,2)}
    ''')
    if G4:
        I(f"""s_mov_b32 exec_hi, 0
        v_mov_b32 v{T1}, s{sNC}
        s_not_b64 exec, exec
        v_mov_b32 v{T1}, s{sNC+1}
        s_mov_b64 exec, -1""")
    for j in range(4):
        if G4:
            I(f"""v_bfe_u32 v{T0}, v{T1}, {8*j}, 6
            v_lshl_add_u32 v{T0}, v{T0}, 8, v{vLT}""")
        else:
            I(f"""s_bfe_u32 s{sTMP}, s{sNC}, {(6 << 16) | (8*j)}
            s_lshl_b32 s{sTMP}, s{sTMP}, 8
            v_add_u32 v{T0}, s{sTMP}, v{vLT}""")
        I(f"""ds_read_b32 v{XA+4*j}, v{T0}
        ds_read_b32 v{XA+16+4*j}, v{T0} offset:128""")
    I(f's_cmp_eq_u32 s{sMODE}, 2\ns_cbranch_scc1 M_NOWT')
    C('first batch only: weights into registers, x@U into the aggregate, read-side LDS addresses')
    for f in (16, 0, 1, 2, 3, 8, 9, 10, 11, 17, 4, 5, 6, 7, 12, 13, 14, 15):
        I(f'ds_read_b128 {r(WB+4*f,4)}, v{vFC} offset:{frag_off(f)}')
    I(f'''s_cmp_lt_u32 s{sW}, 4
    s_cbranch_scc1 M_TDONE
    s_bfe_u32 s{sXR}, s{sW}, 0x10001
    v_subrev_u32 v{vTA}, {XAT}, v{vTA}
    v_lshlrev_b32 v{vTA}, 1, v{vTA}
    v_add_u32 v{vTA}, {AGG}, v{vTA}''')
    for k in range(16):
        if k == 12: I(f's_cmp_lg_u32 s{sXR}, 0\ns_cbranch_scc1 M_TDONE')
        I(f'v_cvt_f64_f32 {r(AF+2*(k%8),2)}, v{pD+k}\nds_add_f64 v{vTA}, {r(AF+2*(k%8),2)} offset:{(8*(k//4)+k%4)*512}')
    I('M_TDONE:')
    j_, i_, h_, g_, t_, u_ = AF2, AF2+1, AF2+2, AF2+3, AF2+4, AF2+5
    I(f'''
    s_lshl_b32 s{sMODE}, s{sMODE}, 1
    v_and_b32 v{vLA}, {31 if G4 else 63}, v2
    v_lshlrev_b32 v{vLA}, 3, v{vLA}
    v_add_u32 v{vLA}, {AGG}, v{vLA}
    v_bfe_u32 v{j_}, v2, 3, 2
    v_and_b32 v{i_}, 3, v2
    v_lshrrev_b32 v{h_}, 5, v2
    v_lshrrev_b32 v{t_}, 1, v{j_}
    v_xor_b32 v{g_}, v{t_}, v{j_}
    v_lshrrev_b32 v{u_}, 2, v2
    v_xor_b32 v{g_}, v{g_}, v{u_}
    v_and_b32 v{g_}, 1, v{g_}
    v_xor_b32 v{t_}, v{t_}, v{h_}
    v_lshlrev_b32 v{t_}, 4, v{t_}
    v_lshl_or_b32 v{u_}, v{j_}, 2, v{i_}
    v_lshl_or_b32 v{u_}, v{g_}, 4, v{u_}
    v_lshl_or_b32 v{t_}, v{u_}, 5, v{t_}
    v_add_u32 v{vRE}, s{sM0E}, v{t_}
    ''')
    if G4:
        I(f"""v_bfe_u32 v{u_}, v2, 2, 3
        v_lshl_or_b32 v{u_}, v{i_}, 3, v{u_}
        v_lshlrev_b32 v{u_}, 7, v{u_}
        v_add_u32 v{u_}, s{sM0X}, v{u_}
        v_lshrrev_b32 v{t_}, 1, v{j_}
        v_lshl_or_b32 v{t_}, v{t_}, 2, v{i_}
        v_xor_b32 v{t_}, v{t_}, v{h_}""")
    else:
        I(f"""v_and_b32 v{t_}, 1, v{i_}
        v_lshl_or_b32 v{u_}, v{g_}, 1, v{t_}
        v_lshlrev_b32 v{u_}, 3, v{u_}
        v_lshl_or_b32 v{u_}, v{j_}, 1, v{u_}
        v_lshrrev_b32 v{i_}, 1, v{i_}
        v_or_b32 v{u_}, v{u_}, v{i_}
        v_lshlrev_b32 v{u_}, 7, v{u_}
        v_add_u32 v{u_}, s{sM0X}, v{u_}
        v_lshl_or_b32 v{t_}, v{t_}, 2, v{j_}
        v_xor_b32 v{t_}, v{t_}, v{h_}""")
    for s in range(4):
        I(f'''v_xor_b32 v{g_}, {2*s}, v{t_}
        v_lshl_add_u32 v{vRA+s}, v{g_}, 4, v{u_}''')
    I('M_NOWT:')
    for k in range(8): I(f'v_mov_b64 {r(ACC+2*k,2)}, 0')
    for g in g1: I(g[1])
    for g in dma_tile(IDX, 0, 0): I(g[1])
    if OPT['SCH'] == 2: sch_load()
    I(f'''
    s_cmp_ge_u32 s{sW}, 4
    s_cbranch_scc1 M_YNG
    s_cmp_eq_u32 s{sTW}, 0
    s_cbranch_scc1 M_BDONE
    ''')
    if OPT['T1L']:
        I('s_waitcnt vmcnt(0) lgkmcnt(0)\nM_W1:')
    else:
        I(f's_cmp_lt_u32 s{sTW}, 2\ns_cbranch_scc1 M_W0')
        dma_issue(g1)
        I('s_waitcnt vmcnt(5) lgkmcnt(0)\nM_W1:')
    I(f'ds_read_b128 {r(AF+16,4)}, v{vRE}')
    for s in range(4): I(f'ds_read_b128 {r(AF+4*s,4)}, v{vRA+s}')
    for ft in range(2):
        for j in range(4):
            for i in range(1, 4): I(f'v_mov_b32 v{XA+16*ft+4*j+i}, v{XA+16*ft+4*j}')
    I('s_waitcnt lgkmcnt(0)')
    for m in zm(0, AF): I(m)
    if OPT['SCH'] == 1: sch_load()
    if OPT['T1L']:
        I(f's_cmp_lt_u32 s{sTW}, 2\ns_cbranch_scc1 M_GO')
        dma_issue(g1)
        I('M_GO:')
    else:
        if OPT['YT0'] != 2: I(f's_cmp_eq_u32 s{sBAR}, 0\ns_cbranch_scc1 M_YNG2')
        if OPT['SCH'] == 3: sch_load('', (16, 18))
        else: I('s_nop 3')
        I('M_GO:')
    if OPT['WAITM']: I('s_mov_b32 s96, 0')
    stamp(4)
    C('''main loop, one tile per pass (two copies: LDS buffer / fragment parity).  Per 32-feature half:
    exp -> +1 -> rcp -> acc += r * hv, with hv = x@V of this half and the gate z of the next half on the matrix pipe.
    The two waves of a SIMD take turns on these vector blocks (priorities); loads and node changes sit between them.''')
    I('.p2align 6')
    for p in range(2):
        nb = 1 - p
        afc, afn = (AF, AF2) if p == 0 else (AF2, AF)
        def eblk(ft, extra):
            hv = hm(ft, afc)
            ins = {1: [f's_setprio {OPT["PB"]}']}
            for k in range(4): ins.setdefault(OPT['EF'] + 3*k, []).append(hv[k])
            ins.setdefault(OPT['P2POS'], []).insert(0, f's_setprio {OPT["PB2"]}')
            for k, v in extra.items(): ins.setdefault(k, []).extend(v)
            I('\n'.join(weave(exps(ft), ins)))
        def rblk(ft, zz):
            I('\n'.join(pkadd(ft)))
            I('\n'.join(weave(rcps(ft), {3*k: [zz[k]] for k in range(5)})))
            I('\n'.join(pkf(ft)))
        I(f'M_LOOP{p}:')
        trace()
        evchk('F', p, sNC)
        I(f'''s_cmp_eq_u32 s{sT}, s{sBAR}
    s_cbranch_scc1 M_SB{p}
M_SBR{p}:
    s_setprio 0
    s_add_u32 s{sTMP}, s{sT}, 1
    s_cmp_lt_u32 s{sTMP}, s{sTW}
    s_cbranch_scc0 M_ND{p}''')
        g = dma_tile(IDX, p*4096, p*1024)
        dma_issue(g)
        I(f'M_ND{p}:')
        if OPT['SCH']: I(f's_mov_b32 m0, s{sT}\ns_nop 0\ns_movrels_b32 s{sNN}, s67')
        rl = {11: [f'v_readlane_b32 s{sNN}, v{vSCH}, s{sT}']} if not OPT['SCH'] else {}
        if G4: rl[13] = [f'v_readlane_b32 s{sNN+1}, v{vSCH}, s{sT2}']
        eblk(0, rl)
        rblk(0, zm(1, afc))
        evchk('X', p, sNN)
        I(f'''s_setprio 0
    s_add_u32 s{sTMP}, s{sT}, 1
    s_cmp_lt_u32 s{sTMP}, s{sTW}
    {'s_memtime s[92:93]' if OPT['WAITM'] else ''}
    s_cbranch_scc0 M_WZ{p}
    s_waitcnt vmcnt(5)
M_WZR{p}:''')
        if OPT['WAITM']:
            I(f'''s_memtime s[94:95]
            s_waitcnt lgkmcnt(0)
            s_sub_u32 s94, s94, s92
            s_add_u32 s96, s96, s94
            v_writelane_b32 v{vST}, s96, 1''')
        I(f'ds_read_b128 {r(AF+16,4)}, v{vRE} offset:{nb*1024}')
        for s_ in range(4): I(f'ds_read_b128 {r(afn+4*s_,4)}, v{vRA+s_} offset:{nb*4096}')
        I(f'ds_read_b128 {r(IDX,4)}, v{vLX} offset:{4*GR*p}\nds_read_b32 v{IDX+4}, v{vLE} offset:{4*GR*p}')
        I('s_waitcnt lgkmcnt(0)')
        eblk(1, {})
        rblk(1, zm(0, afn))
        for q in range(5): I(g[q][1])
        if p == 1: I(f'v_add_u32 v{vLX}, {8*GR}, v{vLX}\nv_add_u32 v{vLE}, {8*GR}, v{vLE}')
        if G4: I(f's_add_u32 s{sT2}, s{sT2}, 1')
        I(f'''s_mov_b64 {sr(sNP,2)}, {sr(sNC,2)}
    s_mov_b64 {sr(sNC,2)}, {sr(sNN,2)}
    s_add_u32 s{sT}, s{sT}, 1
    s_cmp_le_u32 s{sT}, s{sTW}''')
        I('s_cbranch_scc0 M_LEND' if p == 0 else 's_cbranch_scc1 M_LOOP0')
    I('M_LEND:')
    trace()
    C('last partial sums of all streams')
    if G4:
        I(f"""s_mov_b32 exec_hi, 0
        v_mov_b32 v{T1}, s{sNP}
        s_not_b64 exec, exec
        v_mov_b32 v{T1}, s{sNP+1}
        s_mov_b64 exec, -1""")
        for j in range(4):
            I(f"""v_add_f32 v{Z+j}, v{ACC+2*j}, v{ACC+2*j+1}
            v_add_f32 v{Z+4+j}, v{ACC+8+2*j}, v{ACC+8+2*j+1}
            v_bfe_u32 v{Z+8+j}, v{T1}, {8*j}, 6
            v_lshl_add_u32 v{Z+8+j}, v{Z+8+j}, 9, v{vLA}""")
        for j in range(8):
            I(f'v_cvt_f64_f32 {r(Z+16+2*j,2)}, v{Z+j}\nds_add_f64 v{Z+8+j%4}, {r(Z+16+2*j,2)} offset:{256*(j//4)}')
    else:
        for j in range(4):
            I(f"""v_add_f32 v{Z+j}, v{ACC+2*j}, v{ACC+2*j+1}
            v_add_f32 v{Z+4+j}, v{ACC+8+2*j}, v{ACC+8+2*j+1}
            s_bfe_u32 s{52+j}, s{sNP}, {(6 << 16) | (8*j)}
            s_lshl_b32 s{52+j}, s{52+j}, 9""")
        for j in range(4): I(f'v_permlane32_swap_b32 v{Z+j}, v{Z+4+j}\nv_add_u32 v{Z+8+j}, s{52+j}, v{vLA}')
        for j in range(4): I(f'v_add_f32 v{Z+j}, v{Z+j}, v{Z+4+j}')
        for j in range(4): I(f'v_cvt_f64_f32 {r(Z+16+2*j,2)}, v{Z+j}\nds_add_f64 v{Z+8+j}, {r(Z+16+2*j,2)}')
    I(f'''
M_BDONE:
    s_cmp_lt_u32 s{sTW}, s{sBAR}
    s_cbranch_scc0 M_BDONE2
    s_waitcnt lgkmcnt(0)
    s_barrier
M_BDONE2:
    s_setprio 0
    s_cmp_lg_u32 s{sMODE}, 0
    s_cbranch_scc1 M_SNEXT
M_EPI:''')
    stamp(5)
    if OPT['EPI']:
        C('out = silu(x@U + agg): feature pair tid + 512*k, k = 0..2 (and k = 3 for the first 32 threads)')
        I(f'''
    v_lshlrev_b32 v{T0}, 4, v0
    v_add_u32 v{T0}, {AGG}, v{T0}
    s_mov_b32 s{sTMP}, {NLOG2E}
    s_mul_i32 s{sTMP2}, s{sB}, {BN*128}
    s_add_u32 s{sD}, s{sTMP2}, 4096
    v_lshlrev_b32 v{T1}, 2, v0
    s_cmp_lg_u32 s{sW}, 0
    s_waitcnt lgkmcnt(0)
    s_barrier
    s_cbranch_scc1 M_EP3
    ds_read_b128 {r(Z+28,4)}, v{T0} offset:24576
M_EP3:
    ds_read_b128 {r(Z+16,4)}, v{T0}
    ds_read_b128 {r(Z+20,4)}, v{T0} offset:8192
    ds_read_b128 {r(Z+24,4)}, v{T0} offset:16384''')
        for k in range(6):
            if k % 2 == 0: I(f's_waitcnt lgkmcnt({2 - k//2})')
            I(f'v_cvt_f32_f64 v{Z+k}, {r(Z+16+2*k,2)}')
        def act(ks):
            for k in ks: I(f'v_mul_f32 v{Z+8+k}, s{sTMP}, v{Z+k}')
            for k in ks: I(f'v_exp_f32 v{Z+8+k}, v{Z+8+k}')
            for k in ks: I(f'v_add_f32 v{Z+8+k}, 1.0, v{Z+8+k}')
            for k in ks: I(f'v_rcp_f32 v{Z+8+k}, v{Z+8+k}')
            for k in ks: I(f'v_mul_f32 v{Z+k}, v{Z+k}, v{Z+8+k}')
            for k in ks[::2]: I(f'v_cvt_pk_bf16_f32 v{Z+16+k//2}, v{Z+k}, v{Z+k+1}')
        act(list(range(6)))
        I(f'''buffer_store_dword v{Z+16}, v{T1}, {sr(sOUT,4)}, s{sTMP2} offen sc1
        buffer_store_dword v{Z+17}, v{T1}, {sr(sOUT,4)}, s{sTMP2} offen offset:2048 sc1
        buffer_store_dword v{Z+18}, v{T1}, {sr(sOUT,4)}, s{sD} offen sc1
        s_cbranch_scc1 M_FIN
        s_mov_b32 exec_hi, 0
        v_cvt_f32_f64 v{Z+6}, {r(Z+28,2)}
        v_cvt_f32_f64 v{Z+7}, {r(Z+30,2)}''')
        act([6, 7])
        I(f'buffer_store_dword v{Z+19}, v{T1}, {sr(sOUT,4)}, s{sD} offen offset:2048 sc1')
    else:
        C('out = silu(x@U + agg), eight features per thread')
        I(f'''
    v_lshlrev_b32 v{T0}, 6, v0
    v_add_u32 v{T0}, {AGG}, v{T0}
    s_mov_b32 s{sTMP}, {NLOG2E}
    s_mul_i32 s{sTMP2}, s{sB}, {BN*128}
    v_lshlrev_b32 v{T1}, 4, v0
    v_cmp_gt_u32 vcc, {BN*8}, v0
    s_waitcnt lgkmcnt(0)
    s_barrier
    s_and_saveexec_b64 {sr(sSAVE,2)}, vcc
    s_cbranch_execz M_FIN
    ds_read_b128 {r(Z+16,4)}, v{T0}
    ds_read_b128 {r(Z+20,4)}, v{T0} offset:16
    ds_read_b128 {r(Z+24,4)}, v{T0} offset:32
    ds_read_b128 {r(Z+28,4)}, v{T0} offset:48
    ''')
        for k in range(8):
            if k % 2 == 0: I(f's_waitcnt lgkmcnt({3 - k//2})')
            I(f'v_cvt_f32_f64 v{Z+k}, {r(Z+16+2*k,2)}')
        for k in range(8): I(f'v_mul_f32 v{Z+8+k}, s{sTMP}, v{Z+k}')
        for k in range(8): I(f'v_exp_f32 v{Z+8+k}, v{Z+8+k}')
        for k in range(8): I(f'v_add_f32 v{Z+8+k}, 1.0, v{Z+8+k}')
        for k in range(8): I(f'v_rcp_f32 v{Z+8+k}, v{Z+8+k}')
        for k in range(8): I(f'v_mul_f32 v{Z+k}, v{Z+k}, v{Z+8+k}')
        for k in range(4): I(f'v_cvt_pk_bf16_f32 v{Z+16+k}, v{Z+2*k}, v{Z+2*k+1}')
        I(f'buffer_store_dwordx4 {r(Z+16,4)}, v{T1}, {sr(sOUT,4)}, s{sTMP2} offen sc1')
    I('M_FIN:')
    if OPT['AMP']:
        I(f'''s_cmp_lg_u32 s2, 0
        s_cbranch_scc1 M_END
        s_cmp_lg_u32 s{sW}, 0
        s_cbranch_scc1 M_END
        s_waitcnt vmcnt(0)
        s_memrealtime s[60:61]
        s_add_u32 s56, s26, {WF + 0x10000}
        s_addc_u32 s57, s27, 0
        s_load_dword s58, s[56:57], 0
        s_waitcnt lgkmcnt(0)''')
        if OPT['AMP'] == 2: I('s_mov_b32 s60, s3')
        if OPT['AMP'] == 3: I('s_mov_b32 s58, s3')
        if OPT['AMP'] >= 10: I('s_mov_b32 s58, s3\ns_mov_b32 s60, s100')
        I(f'''s_sub_u32 s59, s60, s58
        s_min_u32 s59, s59, 20000
        s_mul_i32 s59, s59, 10
        s_memrealtime s[60:61]
        s_waitcnt lgkmcnt(0)
        s_mov_b32 s58, s60
M_SPIN:
        s_memrealtime s[60:61]
        s_waitcnt lgkmcnt(0)
        s_sub_u32 s62, s60, s58
        s_cmp_lt_u32 s62, s59
        s_cbranch_scc1 M_SPIN''')
    if OPT['STAMP']:
        I('s_mov_b64 exec, -1\ns_waitcnt vmcnt(0)')
        putstamp(6)
        I(f'''v_writelane_b32 v{vST}, s{sTW}, 7
        s_add_u32 s52, s26, 0x8000000
        s_addc_u32 s53, s27, 0
        s_mov_b32 s54, 0x100000
        s_mov_b32 s55, 0x20000
        s_lshl_b32 s56, s2, 3
        s_add_u32 s56, s56, s{sW}
        s_lshl_b32 s56, s56, 5
        v_lshlrev_b32 v1, 2, v2
        s_mov_b64 exec, 0xff
        buffer_store_dword v{vST}, v1, s[52:55], s56 offen''')
        if OPT['TRACE']:
            I(f'''s_mov_b64 exec, -1
            s_lshl_b32 s56, s56, 3
            s_add_u32 s56, s56, 0x20000
            buffer_store_dword v{vTR}, v1, s[52:55], s56 offen''')
    I('M_END:\ns_endpgm')
    C('node changes: M_F adds a finished partial sum to the aggregate, M_X loads the next node\'s x@A row as accumulator seed')
    for p in range(2):
        for j in range(4):
            I(f'M_F{p}{j}:\ns_setprio {OPT["PE"]}')
            flush_j(j)
            I(f's_branch M_FR{p}{j}')
            I(f'M_X{p}{j}:\ns_setprio {OPT["PE"]}')
            xa_j(j)
            I(f's_branch M_XR{p}{j}')
        I(f'M_WZ{p}:\ns_waitcnt vmcnt(0)\ns_branch M_WZR{p}')
        I(f'M_SB{p}:\ns_barrier\ns_branch M_SBR{p}')
    I(f'''M_W0:
    s_waitcnt vmcnt(0) lgkmcnt(0)
    s_branch M_W1
M_YNG:
    s_cmp_eq_u32 s{sTW}, 0
    s_cbranch_scc1 M_YE''')
    if OPT['SCH'] == 3: sch_load('Y', (12, 16))
    if OPT['YT0']: I('s_waitcnt lgkmcnt(0)\ns_barrier')
    for g in g0: I('\n'.join(g))
    if OPT['YT0'] == 2:
        I(f's_cmp_lt_u32 s{sTW}, 2\ns_cbranch_scc1 M_W0')
        dma_issue(g1)
        I('s_waitcnt vmcnt(5)\ns_branch M_W1')
    I(f'''s_branch M_W0
M_YE:
    s_waitcnt lgkmcnt(0)
    s_barrier
    s_branch M_BDONE2
''')
    if OPT['YT0'] != 2:
        I(f'''M_YNG2:
    {'' if OPT['YT0'] else 's_barrier'}
    s_cmp_lt_u32 s{sTW}, 2
    s_cbranch_scc1 M_GO''')
        dma_issue(g1)
        I('s_branch M_GO')
    for f in OUT: f()
    I('M_RA:')
    validate(16, 20)
    pass_a(16, 20)
    I('s_branch M_RAR')
    I('M_RB:')
    pass_b1(16, 20)
    I('s_waitcnt lgkmcnt(0)')
    pass_b2(16, 20)
    validate(0, 4)
    I('s_branch M_RBR')
    C('general path (a segment or the list is too long for the registers / LDS): one batch per segment')
    I(f"""
M_SLOW:
    s_mov_b32 s{sMODE}, 1
    s_mov_b32 s{sSEG}, -1
M_SNEXT:
    s_add_u32 s{sSEG}, s{sSEG}, 1
    s_cmp_ge_u32 s{sSEG}, {NCH}
    s_cbranch_scc1 M_EPI
    s_lshl_b32 s{sTMP}, s{sSEG}, 6
    s_load_dword s{sD}, {sr(sOFP,2)}, s{sTMP}
    s_waitcnt lgkmcnt(0)
    s_lshr_b32 s{sTMP2}, s{sD}, 16
    s_cmp_eq_u32 s{sTMP2}, 0
    s_cbranch_scc1 M_SNEXT
    s_barrier""")
    cnt_zero()
    I(f"""
    s_and_b32 s{sD}, s{sD}, 0xffff
    s_mul_i32 s{sTMP}, s{sSEG}, {CH}
    s_add_u32 s{sD}, s{sD}, s{sTMP}
    v_add_u32 v{T0}, s{sD}, v0
    v_mov_b32 v{T1}, s{sTMP}
    v_lshlrev_b32 v{vEB}, 5, v{T1}
    v_lshlrev_b32 v{T0}, 2, v{T0}
    v_sub_u32 v{vC}, s{sTMP2}, v0
    v_add_u32 v{vC}, 511, v{vC}
    v_ashrrev_i32 v{vC}, 9, v{vC}
    v_cmp_lt_i32 vcc, 4, v{vC}
    v_add_u32 v{T1}, 4, v{vC}
    v_mov_b32 v{vFC}, 0xfc
    v_cndmask_b32 v{vC}, v{vC}, v{T1}, vcc""")
    for s in range(7):
        I(f'buffer_load_dword v{pREC+s}, v{T0}, {sr(sWS,4)}, 0 offen')
        if s < 6: I(f'v_add_u32 v{T0}, 2048, v{T0}')
    validate(0, 12)
    I('s_waitcnt vmcnt(0) lgkmcnt(0)\ns_barrier')
    pass_a(0, 7)
    I('s_waitcnt lgkmcnt(0)\ns_barrier')
    scan()
    I(f's_mov_b32 s{sXR}, 0\ns_branch M_BATCH\nM_CODE_END:')

def kd(name, vgpr, sgpr, acc=None):
    return f'''.amdhsa_kernel {name}
  .amdhsa_next_free_vgpr {vgpr}
  .amdhsa_next_free_sgpr {sgpr}
  .amdhsa_accum_offset {acc or (vgpr+3)//4*4}
  .amdhsa_group_segment_fixed_size 0
  .amdhsa_kernarg_size 80
  .amdhsa_user_sgpr_count 2
  .amdhsa_user_sgpr_kernarg_segment_ptr 1
  .amdhsa_system_sgpr_workgroup_id_x 1
.end_amdhsa_kernel
'''

HEAD = open('gather_scatter__edge_featured_mpnn_egc__graph.s.ref').read().split('; Override')[0]
gen_part()
n0 = len(L)
gen_main()
if OPT['AG']:
    import re
    lo, hi = (4, 75) if OPT['AG'] == 1 else (4, 107)
    cnt = hi - lo + 1
    def m1(m):
        n = int(m.group(1))
        return f'v{n}' if n < lo else (f'a{n-lo}' if n <= hi else f'v{n-cnt}')
    def m2(m):
        a, b = int(m.group(1)), int(m.group(2))
        return f'v[{a}:{b}]' if a < lo else (f'a[{a-lo}:{b-lo}]' if a <= hi else f'v[{a-cnt}:{b-cnt}]')
    for i in range(n0, len(L)):
        L[i] = re.sub(r'\bv\[(\d+):(\d+)\]', m2, re.sub(r'\bv(\d+)\b', m1, L[i]))
out = HEAD + f'''; Two launches.  part_kernel: counting sort of every 3200-edge chunk by destination bucket (49 nodes) plus MFMA-ready
; weight fragments.  Main kernel: one workgroup per bucket sorts its edges by node in LDS, gathers x[src] / e_attr rows
; by LDS-DMA, computes gate and message with MFMA + exp/rcp, sums per node in registers and writes silu(x@U + agg).
; @launch kernel=part_kernel grid=({NCH+5+NCPW},1,1) block=(512,1,1) lds={K1_LDS}
; @launch kernel={MAIN} grid=({NB},1,1) block=(512,1,1) lds={M_LDS}
.amdgcn_target "amdgcn-amd-amdhsa--gfx950"
.text
''' + '\n'.join(L) + '''
.section .rodata,"a"
.p2align 6
''' + kd('part_kernel', 88 if (OPT['AMP'] or OPT['STAMP']) else 76, 80) + '.p2align 6\n' + kd(MAIN, 248 if (OPT['TRACE'] or OPT['STAMP']) else NV, 102, 168 if OPT['AG'] == 1 else None)
open(sys.argv[1], 'w').write(out)
```

```python
import sys, struct

OPT = dict(STAMP=0, FINE=0, CYC=0, TRACE=0, AMP=0, NOX=0, NOE=0,
           STAG=0, DELTA=3, NREF=0, SLOPE=2, KMAX=8, G4=0, SCH=2, AG=0, EFIRST=0, YT0=1, EPI=1, RPF=0, CLMP=1, XR2=1, T1L=0, WAITM=0, TLB=0, FUSE=0, O0=0, O1=1, IDX0=0, WOUT=1, TRIM=0, ALN=3, SHF=0, ALL8=0, SPIN=200000, RPW=0,
           PB=1, PB2=2, PE=3, EF=3, P2POS=8, XPF=1)
for a in sys.argv[2:]:
    k, v = a.split('=')
    assert k in OPT, k
    OPT[k] = int(v) if v.lstrip('-').isdigit() else v.replace('_', ' ')

N, E = 12500, 800000
NB, BN = 256, 49
NCH, CH = 250, 3200
REC, OFFS, WF = 0, E * 4, 0x380000
WS_BYTES = 0x400000
NFRAG = 34
NCPW = 8
G4 = OPT['G4']
GR = 4 if G4 else 8
if not OPT['NREF']: OPT['NREF'] = 106 if G4 else 109
NLOG2E = struct.unpack('<I', struct.pack('<f', -1.4426950408889634))[0]
MAIN = 'gather_scatter__edge_featured_mpnn_egc__graph_kernel'

L = []
def I(s):
    for ln in s.strip('\n').split('\n'):
        ln = ln.strip()
        if ln:
            L.append(ln if ln.endswith(':') else '    ' + ln)
def C(s):
    for ln in s.strip('\n').split('\n'): L.append('    ; ' + ln.strip())
def r(a, n): return f'v[{a}:{a+n-1}]'
def sr(a, n): return f's[{a}:{a+n-1}]'
def srd(d, base, nbytes):
    I(f'''s_mov_b32 s{d}, s{base}
    s_mov_b32 s{d+1}, s{base+1}
    s_mov_b32 s{d+2}, {nbytes}
    s_mov_b32 s{d+3}, 0x20000''')
def dpp_scan(v):
    for ctl in ('row_shr:1', 'row_shr:2', 'row_shr:4', 'row_shr:8'):
        I(f's_nop 1\nv_add_u32_dpp v{v}, v{v}, v{v} {ctl} row_mask:0xf bank_mask:0xf bound_ctrl:1')
    I(f's_nop 1\nv_add_u32_dpp v{v}, v{v}, v{v} row_bcast:15 row_mask:0xa bank_mask:0xf')
    I(f's_nop 1\nv_add_u32_dpp v{v}, v{v}, v{v} row_bcast:31 row_mask:0xc bank_mask:0xf')
def header(name):
    I(f'.globl {name}\n.p2align 8\n.type {name},@function\n{name}:')

K1_BASE, K1_SORT = 1024, 2048
K1_LDS = K1_SORT + CH * 4

def kstamp(i):
    if OPT['STAMP']: I(f's_memrealtime s[{60+2*i}:{61+2*i}]\ns_waitcnt lgkmcnt(0)')
def kdump():
    if not OPT['STAMP']: return
    I(f'''; K1STAMP
    s_waitcnt vmcnt(0)
    s_memrealtime s[70:71]
    s_mov_b64 exec, 1
    s_waitcnt lgkmcnt(0)
    s_add_u32 s52, s24, 0x8100000
    s_addc_u32 s53, s25, 0
    s_mov_b32 s54, 0x100000
    s_mov_b32 s55, 0x20000
    s_lshl_b32 s56, s2, 3
    s_add_u32 s56, s56, s28
    s_lshl_b32 s56, s56, 5
    v_mov_b32 v1, 0''')
    for i in range(8): I(f'v_mov_b32 v{8+i}, s{60+2*min(i,5)}')
    I('''buffer_store_dwordx4 v[8:11], v1, s[52:55], s56 offen
    buffer_store_dwordx4 v[12:15], v1, s[52:55], s56 offen offset:16''')

def gen_part():
    FUSE = OPT['FUSE']
    header('part_kernel' if not FUSE else MAIN)
    if OPT['AMP']: I('s_memrealtime s[74:75]')
    kstamp(0)
    D, S, B4, RK, RC = 8, 16, 24, 32, 40
    C('workgroups 0..249: one chunk of 3200 edges each; 250..254: weight fragments; 255..262: code prefetch')
    I(f"""
    s_load_dwordx4 s[4:7], s[0:1], 16
    s_load_dwordx2 s[24:25], s[0:1], 72
    s_cmp_ge_u32 s2, {NB if FUSE else NCH+5}
    s_cbranch_scc1 {'P_END' if FUSE else 'P_CPW'}
    v_lshrrev_b32 v3, 6, v0
    v_lshlrev_b32 v1, 2, v0
    v_readfirstlane_b32 s28, v3
    s_cmp_ge_u32 s2, {NCH}
    s_cbranch_scc1 P_PREP
    v_mov_b32 v2, 0
    ds_write_b32 v1, v2
    v_lshlrev_b32 v4, 4, v0
    v_lshlrev_b32 v5, 3, v0
    v_add_u32 v5, 8192, v5
    v_add_u32 v6, 12288, v1
    s_mul_i32 s29, s2, {CH*4}
    s_waitcnt lgkmcnt(0)
    """)
    srd(12, 6, E * 4)
    C('edge slots per thread: 4*tid+{0..3}, 2048+2*tid+{0,1}, 3072+tid (waves 0,1 only)')
    I(f"""
    s_cmp_ge_u32 s28, 2
    s_cbranch_scc1 P_NO6A
    buffer_load_dword v{D+6}, v6, s[12:15], s29 offen
P_NO6A:
    buffer_load_dwordx4 {r(D,4)}, v4, s[12:15], s29 offen
    buffer_load_dwordx2 {r(D+4,2)}, v5, s[12:15], s29 offen
    """)
    srd(8, 4, E * 4); srd(16, 24, WS_BYTES)
    if OPT['AMP']:
        I(f"""s_cmp_lg_u32 s2, 0
        s_cbranch_scc1 P_NOAMP
        s_cmp_lg_u32 s28, 0
        s_cbranch_scc1 P_NOAMP
        v_mov_b32 v80, s74
        v_mov_b32 v81, {WF + 0x10000}
        buffer_store_dword v80, v81, s[16:19], 0 offen
        s_waitcnt vmcnt(0)
P_NOAMP:""")
    I(f"""
    v_lshlrev_b32 v56, 16, v0
    v_lshlrev_b32 v57, 15, v0
    v_add_u32 v57, {2048 << 14}, v57
    v_lshlrev_b32 v58, 14, v0
    v_add_u32 v58, {3072 << 14}, v58
    v_mov_b32 v59, 1
    s_mov_b32 s32, {-BN & 0xffffffff}
    s_mov_b32 s33, {1 << 14}
    s_mov_b32 s34, {2 << 14}
    s_mov_b32 s35, {3 << 14}
    s_barrier
    s_cmp_ge_u32 s28, 2
    s_cselect_b32 s37, 0x40000000, 0
    v_or_b32 v6, s37, v6
    buffer_load_dwordx4 {r(S,4)}, v4, s[8:11], s29 offen
    buffer_load_dwordx2 {r(S+4,2)}, v5, s[8:11], s29 offen
    buffer_load_dword v{S+6}, v6, s[8:11], s29 offen
    """)
    kstamp(1)
    I('s_waitcnt vmcnt(3)')
    kstamp(2)
    C('bucket = dst/49, rank inside (chunk, bucket) from an LDS counter')
    for k in range(7):
        if k == 6: I('s_cmp_ge_u32 s28, 2\ns_cbranch_scc1 P_NO6B')
        I(f"""v_mul_u32_u24 v{B4+k}, 21400, v{D+k}
        v_lshrrev_b32 v{B4+k}, 20, v{B4+k}
        v_mad_i32_i24 v{RC+k}, v{B4+k}, s32, v{D+k}
        v_lshlrev_b32 v{B4+k}, 2, v{B4+k}
        ds_add_rtn_u32 v{RK+k}, v{B4+k}, v59""")
    I(f"""
P_NO6B:
    v_and_b32 v60, 63, v0
    v_lshlrev_b32 v60, 4, v60
    s_waitcnt lgkmcnt(0)
    s_barrier""")
    C('bucket bases: every wave scans the 256 counters (four per lane)')
    I(f"""
    ds_read_b128 v[64:67], v60
    s_waitcnt lgkmcnt(0)
    v_add_u32 v69, v64, v65
    v_add_u32 v70, v69, v66
    v_add_u32 v71, v70, v67
    v_mov_b32 v72, v71""")
    dpp_scan(72)
    I(f"""
    v_sub_u32 v68, v72, v71
    v_add_u32 v71, v68, v70
    v_add_u32 v70, v68, v69
    v_add_u32 v69, v68, v64
    ds_write_b128 v60, v[68:71] offset:{K1_BASE}""")
    for k in range(6):
        I(f'ds_read_b32 v{D+k}, v{B4+k} offset:{K1_BASE}')
    C('segment table entry (bucket b, chunk w) = start | count<<16 at (b>>4)*16384 + w*64 + (b&15)*4')
    I(f"""s_waitcnt vmcnt(0)
    s_cmp_lg_u32 s28, 4
    s_cbranch_scc1 P_NOOFF
    v_lshl_or_b32 v64, v64, 16, v68
    v_lshl_or_b32 v65, v65, 16, v69
    v_lshl_or_b32 v66, v66, 16, v70
    v_lshl_or_b32 v67, v67, 16, v71
    v_lshrrev_b32 v61, 6, v60
    v_lshlrev_b32 v61, 14, v61
    v_and_b32 v62, 63, v60
    v_or_b32 v61, v61, v62
    s_lshl_b32 s36, s2, 6
    s_add_u32 s36, s36, {OFFS}
    buffer_store_dwordx4 v[64:67], v61, s[16:19], s36 offen sc1
P_NOOFF:""")
    C('record = dlocal<<26 | elocal<<14 | src, placed in bucket order')
    for k in range(7):
        eb = 56 if k < 4 else (57 if k < 6 else 58)
        kk = k if k < 4 else (k - 4 if k < 6 else 0)
        ks = '0' if kk == 0 else f's{32+kk}'
        I(f"""v_lshl_or_b32 v{RC+k}, v{RC+k}, 26, v{S+k}
        v_add3_u32 v{RC+k}, v{RC+k}, v{eb}, {ks}""")
    I(f"""
    s_cmp_ge_u32 s28, 2
    s_cbranch_scc1 P_NO6C
    ds_read_b32 v{D+6}, v{B4+6} offset:{K1_BASE}
    s_waitcnt lgkmcnt(0)
    v_add_lshl_u32 v{RK+6}, v{RK+6}, v{D+6}, 2
    ds_write_b32 v{RK+6}, v{RC+6} offset:{K1_SORT}
P_NO6C:
    s_waitcnt lgkmcnt(0)""")
    for k in range(6):
        I(f"""v_add_lshl_u32 v{RK+k}, v{RK+k}, v{D+k}, 2
        ds_write_b32 v{RK+k}, v{RC+k} offset:{K1_SORT}""")
    I('s_waitcnt lgkmcnt(0)')
    kstamp(3)
    I('s_barrier')
    kstamp(4)
    I(f"""
    ds_read_b128 v[8:11], v4 offset:{K1_SORT}
    v_cmp_gt_u32 vcc, 288, v0
    s_and_saveexec_b64 s[38:39], vcc
    ds_read_b128 v[12:15], v4 offset:{K1_SORT+8192}
    s_mov_b64 exec, s[38:39]
    s_waitcnt lgkmcnt(0)
    buffer_store_dwordx4 v[8:11], v4, s[16:19], s29 offen sc1
    s_add_u32 s36, s29, 8192
    s_and_saveexec_b64 s[38:39], vcc
    s_cbranch_execz P_FIN
    buffer_store_dwordx4 v[12:15], v4, s[16:19], s36 offen sc1
P_FIN:""")
    kdump()
    I('s_endpgm' if not FUSE else 's_mov_b64 exec, -1\ns_branch F_SYNC')
    C('''B-operand fragments (1 KiB each): 0-7 g_w[64:128], 8-15 v_w, 16-17 g_w[128:144], 18-25 g_w[0:64], 26-33 u_w.
    The two per-edge gate matrices carry the factor -log2(e) of the sigmoid's exponential.''')
    I(f'''
P_PREP:
    s_load_dwordx4 s[8:11], s[0:1], 32
    s_load_dwordx2 s[12:13], s[0:1], 48
    s_sub_u32 s30, s2, {NCH}
    s_lshl_b32 s30, s30, 3
    s_add_u32 s30, s30, s28
    s_waitcnt lgkmcnt(0)
    s_cmp_ge_u32 s30, {NFRAG}
    s_cbranch_scc1 {'F_SYNC' if FUSE else 'P_END'}
    s_mov_b32 s20, s12
    s_mov_b32 s21, s13
    s_mov_b32 s22, {144*128}
    s_mov_b32 s23, 0x20000
    s_mov_b32 s33, {NLOG2E}
    s_mov_b32 s31, s30
    s_mov_b32 s32, 64
    s_cmp_lt_u32 s30, 8
    s_cbranch_scc1 P_GO
    s_cmp_lt_u32 s30, 16
    s_cbranch_scc0 P_C1
    s_sub_u32 s31, s30, 8
    s_mov_b32 s32, 0
    s_mov_b32 s33, 1.0
    s_mov_b32 s20, s10
    s_mov_b32 s21, s11
    s_mov_b32 s22, {64*128}
    s_branch P_GO
P_C1:
    s_cmp_lt_u32 s30, 18
    s_cbranch_scc0 P_C2
    s_sub_u32 s31, s30, 16
    s_lshl_b32 s31, s31, 2
    s_mov_b32 s32, 128
    s_branch P_GO
P_C2:
    s_mov_b32 s33, 1.0
    s_mov_b32 s32, 0
    s_sub_u32 s31, s30, 18
    s_cmp_lt_u32 s30, 26
    s_cbranch_scc1 P_GO
    s_sub_u32 s31, s30, 26
    s_mov_b32 s20, s8
    s_mov_b32 s21, s9
    s_mov_b32 s22, {64*128}
P_GO:
    s_and_b32 s34, s31, 3
    s_lshl_b32 s34, s34, 4
    s_add_u32 s34, s34, s32
    s_lshl_b32 s34, s34, 7
    s_lshr_b32 s35, s31, 2
    s_lshl_b32 s35, s35, 6
    s_add_u32 s34, s34, s35
    v_and_b32 v1, 31, v0
    v_lshlrev_b32 v1, 1, v1
    v_bfe_u32 v2, v0, 5, 1
    v_lshl_or_b32 v1, v2, 10, v1
    ''')
    for t in range(8):
        I(f'buffer_load_ushort v{8+t}, v1, s[20:23], s34 offen offset:{t*128}')
    srd(16, 24, WS_BYTES)
    I(f'''
    v_and_b32 v3, 63, v0
    v_lshlrev_b32 v3, 4, v3
    s_lshl_b32 s36, s30, 10
    s_add_u32 s36, s36, {WF}
    s_waitcnt vmcnt(0)
    ''')
    for t in range(8):
        I(f'v_lshlrev_b32 v{8+t}, 16, v{8+t}\nv_mul_f32 v{8+t}, s33, v{8+t}')
    for t in range(4):
        I(f'v_cvt_pk_bf16_f32 v{16+t}, v{8+2*t}, v{9+2*t}')
    if FUSE:
        I(f'''buffer_store_dwordx4 v[16:19], v3, s[16:19], s36 offen sc1
F_SYNC:
    s_load_dwordx2 s[40:41], s[0:1], 64
    s_waitcnt vmcnt(0) lgkmcnt(0)
    s_barrier
    s_cmp_lg_u32 s28, 0
    s_cbranch_scc1 F_GO
    s_mov_b32 s42, 256
    s_mov_b32 s43, 0x20000
    s_and_b32 s30, s2, 3
    s_lshl_b32 s30, s30, 6
    v_mov_b32 v2, 0
    v_mov_b32 v3, 1
    v_and_b32 v4, 3, v0
    v_lshlrev_b32 v4, 6, v4
    s_mov_b64 exec, 1
    buffer_atomic_add v3, v2, s[40:43], s30 offen
    s_mov_b64 exec, 15
    s_mov_b32 s31, 0
F_POLL:
    s_add_u32 s31, s31, 1
    s_cmp_gt_u32 s31, {OPT['SPIN']}
    s_cbranch_scc1 F_OUT
    buffer_load_dword v5, v4, s[40:43], 0 offen sc1
    s_waitcnt vmcnt(0)
    v_cmp_ne_u32 vcc, 64, v5
    s_cbranch_vccnz F_POLL
F_OUT:
    s_mov_b64 exec, -1
    buffer_inv sc1
    s_waitcnt vmcnt(0)
F_GO:
    s_barrier
    s_branch M_START
P_END:
    s_endpgm''')
        return
    I('''buffer_store_dwordx4 v[16:19], v3, s[16:19], s36 offen sc1
P_END:
    s_endpgm''')
    C("one workgroup per die reads the second kernel's code so that it is in the caches when that kernel starts")
    I(f'''P_CPW:
    s_cmp_ge_u32 s2, {NCH+5+NCPW}
    s_cbranch_scc1 P_END''')
    if OPT['TLB']:
        sh = OPT['TLB']
        I(f'''s_load_dwordx4 s[8:11], s[0:1], 0
        s_load_dwordx2 s[12:13], s[0:1], 56
        v_lshlrev_b32 v4, {sh}, v0
        s_waitcnt lgkmcnt(0)''')
        srd(16, 8, N * 128); srd(20, 10, E * 32); srd(28, 12, N * 128)
        I(f'''v_cmp_gt_u32 vcc, {E*32}, v4
        s_and_saveexec_b64 s[42:43], vcc
        s_cbranch_execz P_NOTLB
        buffer_load_dword v5, v4, s[20:23], 0 offen
        buffer_load_dword v6, v4, s[16:19], 0 offen
        buffer_load_dword v7, v4, s[28:31], 0 offen
P_NOTLB:
        s_mov_b64 exec, s[42:43]''')
    I(f'''
    s_getpc_b64 s[40:41]
P_PC:
    s_add_u32 s40, s40, {MAIN}-P_PC
    s_addc_u32 s41, s41, 0
    v_lshlrev_b32 v2, 7, v0
    v_cmp_gt_u32 vcc, M_CODE_END-{MAIN}, v2
    s_and_saveexec_b64 s[42:43], vcc
    s_cbranch_execz P_END
    global_load_dword v3, v2, s[40:41]
    s_endpgm''')

CNT, FLAG, BASE = 0, 256, 512
XS = 1024
ES = XS + 65536
LX = ES + 16384
LE = LX + 16384
XAT = LE + 16384
AGG = XAT + 14336
M_LDS = AGG + 2*14336
WBASE = XS + 32768
XSENT, ESENT = 0x1FFF80, 0x7FFFFF00
CAP = 3584 if G4 else 4096

WB, WV, WC = 4, 36, 68
XA = 76
Z = 108
H = 140
AF = 156
ACC = 176
IDX = 192
vLX, vLE, vKX0, vKX1, vKE = 197, 198, 199, 200, 201
vRA, vRE = 202, 206
vSCH, vLT = 207, 208
T0, T1, T2 = 209, 210, 211
vC, vEB = 212, 213
vONE, vLA = 214, 215
T4 = 216
vTA, vFC = 218, 219
AF2 = 220
NV = 240
vKX2, vKX3, vLC = 236, 237, 238
vTR, vST = 240, 244
pREC, pRK, pAD = 76, 96, 116
pD, pA, pW = 136, 152, 168
sX, sE, sWS, sOUT = 8, 12, 16, 20
sW, sT, sTW, sT2, sEV, _u, sD, sM0X, sM0E, sMASK, sTMP, sTMP2, sMODE, sSEG, sG0, sBAR = range(28, 44)
sNP, sNC, sNN = 60, 62, 64
sONE, sSAVE, sOFP = 44, 46, 48
sB, sXR = 50, 51

def mf(d, a, b, c): return f'v_mfma_f32_32x32x16_bf16 {r(d,16)}, {r(a,4)}, {r(b,4)}, {c}'
def zm(ft, af):
    return [mf(Z+16*ft, AF+16, WC+4*ft, r(XA+16*ft, 16))] + [mf(Z+16*ft, af+4*k, WB+16*ft+4*k, r(Z+16*ft, 16)) for k in range(4)]
def hm(ft, af):
    return [mf(H, af, WV+16*ft, '0')] + [mf(H, af+4*k, WV+16*ft+4*k, r(H, 16)) for k in range(1, 4)]
def exps(ft): return [f'v_exp_f32 v{Z+16*ft+i}, v{Z+16*ft+i}' for i in range(16)]
def rcps(ft): return [f'v_rcp_f32 v{Z+16*ft+i}, v{Z+16*ft+i}' for i in range(16)]
def pkadd(ft): return [f'v_pk_add_f32 {r(Z+16*ft+2*i,2)}, {r(Z+16*ft+2*i,2)}, {sr(sONE,2)}' for i in range(8)]
def pkf(ft): return [f'v_pk_fma_f32 {r(ACC+8*ft+2*(i//2),2)}, {r(Z+16*ft+2*i,2)}, {r(H+2*i,2)}, {r(ACC+8*ft+2*(i//2),2)}' for i in (0, 2, 4, 6, 1, 3, 5, 7)]
def weave(main, ins):
    out = []
    for i, m in enumerate(main):
        out += ins.get(i, [])
        out.append(m)
    return out

def pEO(s): return AF2 + s if s < 16 else 184 + s - 16
def sVM(s): return 68 + 2 * (s % 16)
def thr(s): return 8 * (s // 4) + s % 4
def validate(lo, hi):
    for s in range(lo, hi): I(f'v_cmp_lt_i32 {sr(sVM(s),2)}, {thr(s)}, v{vC}')
def pass_a(lo, hi, mid=None):
    for s in range(lo, hi):
        I(f'v_and_b32_sdwa v{pAD+s}, v{vFC}, v{pREC+s} dst_sel:DWORD dst_unused:UNUSED_PAD src0_sel:DWORD src1_sel:BYTE_3')
    for s in range(lo, hi):
        I(f'''s_mov_b64 exec, {sr(sVM(s),2)}
        ds_add_rtn_u32 v{pRK+s}, v{pAD+s}, v{vONE}''')
    I('s_mov_b64 exec, -1')
    if mid: mid()
    for s in range(lo, hi):
        I(f'''v_bfe_u32 v{pEO(s)}, v{pREC+s}, 14, 12
        v_lshl_add_u32 v{pEO(s)}, v{pEO(s)}, 5, v{vEB}
        v_alignbit_b32 v{pREC+s}, v{pREC+s}, v{pREC+s}, 25''')
def scan():
    I(f'''v_lshlrev_b32 v{T0}, 2, v2
    ds_read_b32 v{T1}, v{T0}
    v_mov_b32 v{T2}, {FLAG}
    ds_read_b32 v{IDX}, v{T2}
    s_waitcnt lgkmcnt(0)
    v_add_u32 v{IDX+2}, s{sW}, v{T1}
    v_add_u32 v{T1}, {GR-1}, v{T1}
    v_and_b32 v{T1}, {-GR}, v{T1}
    v_readfirstlane_b32 s{sTMP2}, v{IDX}
    v_mov_b32 v{T2}, v{T1}''')
    dpp_scan(T2)
    I(f'''v_sub_u32 v{T1}, v{T2}, v{T1}
    v_readlane_b32 s{sTMP}, v{T2}, 63
    v_add_u32 v{IDX+3}, {LX//4}, v{T1}
    ds_write_b32 v{T0}, v{IDX+3} offset:{BASE}''')
def pad_write():
    C('wave k < 7 fills pad slot k of every node, wave 7 the tail of the last tile (out-of-range offsets read as zero)')
    I(f'''v_add_u32 v{IDX+4}, v{T1}, v{IDX+2}
    v_add_u32 v{T0}, s{sTMP}, v2
    s_add_u32 s52, s{sTMP}, 31
    s_and_b32 s52, s52, -32
    s_cmp_eq_u32 s{sW}, 7
    s_cselect_b64 vcc, -1, 0
    v_mov_b32 v{IDX+2}, s52
    v_cndmask_b32 v{IDX+4}, v{IDX+4}, v{T0}, vcc
    v_cndmask_b32 v{T2}, v{T2}, v{IDX+2}, vcc
    v_mov_b32 v{T0}, {XSENT}
    v_cmp_lt_u32 vcc, v{IDX+4}, v{T2}
    v_mov_b32 v{T1}, {ESENT}
    v_lshlrev_b32 v{IDX+4}, 2, v{IDX+4}
    v_add_u32 v{IDX+4}, {LX}, v{IDX+4}
    s_mov_b64 exec, vcc
    ds_write2st64_b32 v{IDX+4}, v{T0}, v{T1} offset1:64
    s_mov_b64 exec, -1''')
def pass_b1(lo, hi):
    for s in range(lo, hi):
        I(f'''s_mov_b64 exec, {sr(sVM(s),2)}
        ds_read_b32 v{pAD+s}, v{pAD+s} offset:{BASE}''')
    I('s_mov_b64 exec, -1')
def pass_b2(lo, hi):
    for s in range(lo, hi): I(f'v_add_lshl_u32 v{pRK+s}, v{pRK+s}, v{pAD+s}, 2')
    for s in range(lo, hi):
        I(f'''s_mov_b64 exec, {sr(sVM(s),2)}
        ds_write2st64_b32 v{pRK+s}, v{pREC+s}, v{pEO(s)} offset1:64''')
    I('s_mov_b64 exec, -1')
def cnt_zero():
    I(f'''v_and_b32 v{T1}, 127, v0
    v_lshlrev_b32 v{T1}, 2, v{T1}
    v_mov_b32 v{T2}, 0
    ds_write_b32 v{T1}, v{T2}''')

def dma_tile(ix, xoff, eoff):
    g = []
    for q in range(4):
        g.append([f's_add_u32 m0, s{sM0X}, {xoff + q*1024}',
                  f'v_and_or_b32 v{ix+q}, v{ix+q}, s{sMASK}, v{(vKX0, vKX1, vKX2, vKX3)[q if G4 else q % 2]}',
                  f'buffer_load_dwordx4 v{ix+q}, {sr(sX,4)}, 0 offen lds'])
    g.append([f's_add_u32 m0, s{sM0E}, {eoff}',
              f'v_add_u32 v{ix+4}, v{ix+4}, v{vKE}',
              f'buffer_load_dwordx4 v{ix+4}, {sr(sE,4)}, 0 offen lds'])
    return g
def dma_issue(g):
    for x in g: I(x[0] + '\ns_nop 0\n' + x[2])

def half_addr(j, se, sn, sh, vbase):
    I(f'''s_bfe_u32 s{sTMP}, s{sn}, {(6 << 16) | (8*j)}
    s_bfe_u32 s{sTMP2}, s{sn+1}, {(6 << 16) | (8*j)}
    s_lshl_b32 s{sTMP}, s{sTMP}, {sh}
    s_lshl_b32 s{sTMP2}, s{sTMP2}, {sh}
    v_add_u32 v{T0}, s{sTMP}, v{vbase}
    s_mov_b32 exec_lo, 0
    v_add_u32 v{T0}, s{sTMP2}, v{vbase}
    s_bitcmp1_b32 s{se}, {8*j+6}
    s_cselect_b32 exec_lo, -1, 0
    s_bitcmp1_b32 s{se+1}, {8*j+6}
    s_cselect_b32 exec_hi, -1, 0''')
def flush_j(j):
    if G4:
        I(f'''v_add_f32 v{T1}, v{ACC+2*j}, v{ACC+2*j+1}
        v_add_f32 v{T2}, v{ACC+8+2*j}, v{ACC+8+2*j+1}''')
        half_addr(j, sNC, sNP, 9, vLA)
        I(f'''v_cvt_f64_f32 {r(T4,2)}, v{T1}
        v_mov_b64 {r(ACC+2*j,2)}, 0
        ds_add_f64 v{T0}, {r(T4,2)}
        v_cvt_f64_f32 {r(T1,2)}, v{T2}
        v_mov_b64 {r(ACC+8+2*j,2)}, 0
        ds_add_f64 v{T0}, {r(T1,2)} offset:256
        s_mov_b64 exec, -1''')
        return
    I(f'''v_add_f32 v{T1}, v{ACC+2*j}, v{ACC+2*j+1}
    v_add_f32 v{T2}, v{ACC+8+2*j}, v{ACC+8+2*j+1}
    s_bfe_u32 s{sTMP}, s{sNP}, {(6 << 16) | (8*j)}
    s_lshl_b32 s{sTMP}, s{sTMP}, 9
    v_permlane32_swap_b32 v{T1}, v{T2}
    v_add_u32 v{T0}, s{sTMP}, v{vLA}
    v_mov_b64 {r(ACC+2*j,2)}, 0
    v_add_f32 v{T1}, v{T1}, v{T2}
    v_mov_b64 {r(ACC+8+2*j,2)}, 0
    v_cvt_f64_f32 {r(T4,2)}, v{T1}
    ds_add_f64 v{T0}, {r(T4,2)}''')
def xa_j(j):
    if G4: half_addr(j, sNN, sNN, 8, vLT)
    else:
        I(f'''s_bfe_u32 s{sTMP}, s{sNN}, {(6 << 16) | (8*j)}
        s_lshl_b32 s{sTMP}, s{sTMP}, 8
        v_add_u32 v{T0}, s{sTMP}, v{vLT}''')
    I(f'''ds_read2_b32 {r(XA+4*j,2)}, v{T0}
    ds_read2_b32 {r(XA+4*j+2,2)}, v{T0}
    ds_read2_b32 {r(XA+16+4*j,2)}, v{T0} offset0:32 offset1:32
    ds_read2_b32 {r(XA+16+4*j+2,2)}, v{T0} offset0:32 offset1:32''')
    if G4: I('s_mov_b64 exec, -1')
def evchk(kind, p, sn):
    if G4:
        I(f's_or_b32 s{sEV}, s{sn}, s{sn+1}')
        sn = sEV
    for j in range(4): I(f's_bitcmp1_b32 s{sn}, {8*j+6}\ns_cbranch_scc1 M_{kind}{p}{j}\nM_{kind}R{p}{j}:')

def frag_off(f):
    if f < 16: return (f // 4) * 8192 + 4096 + (f % 4) * 1024
    return ES + (4 + f - 16) * 2048 + 1024 - WBASE

def putstamp(i, ins='s_memrealtime'):
    I(f'{ins} s[100:101]\ns_waitcnt lgkmcnt(0)\nv_writelane_b32 v{vST}, s100, {i}')
def fstamp(i):
    if OPT['STAMP'] and OPT['FINE']: putstamp(i)
def stamp(i):
    if OPT['AMP'] == 10 + i: I('s_memrealtime s[100:101]\ns_waitcnt lgkmcnt(0)')
    if not OPT['STAMP']: return
    if OPT['FINE'] and i not in (0,): return
    if OPT['CYC'] == 2:
        if i in (1, 2): return
        if i in (4, 5): putstamp(i - 3, 's_memtime')
    putstamp(i)
def trace():
    if OPT['TRACE']:
        I(f'''s_memtime s[76:77]
        s_memrealtime s[78:79]
        s_waitcnt lgkmcnt(0)
        s_mov_b32 m0, s{sT}
        s_nop 0
        v_writelane_b32 v{vTR}, s76, m0
        s_add_u32 m0, m0, 32
        s_nop 0
        v_writelane_b32 v{vTR}, s78, m0''')

sXQ = 52
def cmpnext():
    if OPT['TRIM']: return f's_cmp_lt_u32 s{sT}, s{sT2}'
    return f's_add_u32 s{sTMP}, s{sT}, 1\ns_cmp_lt_u32 s{sTMP}, s{sTW}'
BLK = []
def align8(seq):
    if not OPT['ALL8']: return seq
    out = []; par = 0
    for x in seq:
        big = x.startswith(('v_mfma', 'v_pk_', 'v_readlane'))
        if big and par:
            mfma = x.startswith('v_mfma')
            if OPT['ALL8'] == 1 or (OPT['ALL8'] == 2 and not mfma):
                k = max(i for i, y in enumerate(out) if y.startswith(('v_exp_f32 ', 'v_rcp_f32 ')))
                out[k] = out[k].replace('_f32 ', '_f32_e64 ', 1); par = 0
        out.append(x)
        if not big: par ^= 1
    return out
def sch_load(tag='', cuts=(11, 14, 18)):
    C('schedule words of tiles 1.. into s68..')
    for t in range(1, 19 if G4 else 24):
        if t in cuts or (G4 and t == 16): I(f's_cmp_lt_u32 s{sTW}, {t}\ns_cbranch_scc1 M_SCHD{tag}')
        if G4: I(f'v_readlane_b32 s{64+2*t}, v{vSCH}, {t}\nv_readlane_b32 s{65+2*t}, v{vSCH}, {32+t}')
        else: I(f'v_readlane_b32 s{67+t}, v{vSCH}, {t}')
    I(f'M_SCHD{tag}:')

OUT = []
def gen_main():
    if OPT['FUSE']: I('M_START:')
    else: header(MAIN)
    if OPT['AMP']: I('s_memrealtime s[74:75]\ns_waitcnt lgkmcnt(0)\ns_mov_b32 s3, s74')
    stamp(0)
    C('workgroup g owns bucket (g&7)*32 + (g>>3): neighbouring buckets share a die when placement is round-robin (speed only)')
    I(f"""
    s_load_dwordx2 s[26:27], s[0:1], 72
    s_load_dwordx4 s[4:7], s[0:1], 0
    s_load_dwordx2 s[24:25], s[0:1], 56
    s_cmp_ge_u32 s2, {NB}
    s_cbranch_scc1 M_END
    v_lshrrev_b32 v1, 6, v0
    v_and_b32 v2, 63, v0
    v_readfirstlane_b32 s{sW}, v1
    s_and_b32 s{sB}, s2, 7
    s_lshl_b32 s{sB}, s{sB}, 5
    s_lshr_b32 s{sTMP}, s2, 3
    s_add_u32 s{sB}, s{sB}, s{sTMP}
    s_mul_i32 s{sNN}, s{sTMP}, {391*128}
    v_lshrrev_b32 v3, 1, v0
    {f'v_min_u32 v3, {NCH-1}, v3' if OPT['CLMP'] else ''}
    v_lshlrev_b32 v{IDX}, 6, v3
    v_lshlrev_b32 v{IDX+1}, 4, v2
    s_lshr_b32 s{sD}, s{sB}, 4
    s_lshl_b32 s{sD}, s{sD}, 12
    s_and_b32 s{sTMP}, s{sB}, 15
    s_add_u32 s{sD}, s{sD}, s{sTMP}
    s_lshl_b32 s{sD}, s{sD}, 2
    s_add_u32 s{sD}, s{sD}, {OFFS}
    s_mov_b32 s{sWS+2}, {WS_BYTES}
    s_mov_b32 s{sWS+3}, 0x20000
    s_lshr_b32 s{sTMP}, s{sW}, 2
    s_lshl_b32 s{sTMP}, s{sTMP}, 13
    s_and_b32 s{sTMP2}, s{sW}, 3
    s_lshl_b32 s{sTMP2}, s{sTMP2}, 10
    s_add_u32 s{sNP}, s{sTMP}, s{sTMP2}
    s_lshl_b32 s{sNC}, s{sW}, 10
    s_add_u32 s{sNC}, s{sNC}, {WF}
    v_lshlrev_b32 v{T0}, 4, v0
    v_add_u32 v{T0}, {AGG}, v{T0}
    v_mov_b64 {r(AF+8,2)}, 0
    v_mov_b64 {r(AF+10,2)}, 0
    s_cmp_lg_u32 s{sW}, 0
    ds_write_b128 v{T0}, {r(AF+8,4)}
    ds_write_b128 v{T0}, {r(AF+8,4)} offset:8192
    ds_write_b128 v{T0}, {r(AF+8,4)} offset:16384
    s_cbranch_scc1 M_NOZ3
    ds_write_b128 v{T0}, {r(AF+8,4)} offset:24576
M_NOZ3:""")
    cnt_zero()
    if OPT['RPF']:
        I(f'''s_lshr_b32 s52, s2, 3
        s_lshl_b32 s52, s52, 1
        s_add_u32 s52, s52, s{sW}
        s_sub_u32 s52, s52, {OPT['RPW']}
        s_min_u32 s52, s52, 61
        s_mul_i32 s52, s52, {4*CH*4}
        s_and_b32 s53, s2, 7
        s_mul_i32 s53, s53, 1606
        s_max_u32 s53, s53, 224
        s_sub_u32 s53, s53, 224
        s_and_b32 s53, s53, -128
        s_add_u32 s52, s52, s53
        v_lshrrev_b32 v{vLX}, 4, v2
        v_mul_u32_u24 v{vLX}, {CH*4}, v{vLX}
        v_and_b32 v{vLE}, 15, v2
        v_lshl_add_u32 v{vLX}, v{vLE}, 7, v{vLX}''')
    C('two lanes per chunk fetch the segment (bucket, chunk); A / U fragments and the bucket rows go to LDS')
    I(f"""
    s_waitcnt lgkmcnt(0)
    s_mov_b32 s{sWS}, s26
    s_mov_b32 s{sWS+1}, s27
    s_add_u32 m0, s{sNP}, {XS}
    buffer_load_dword v{vC}, v{IDX}, {sr(sWS,4)}, s{sD} offen
    """)
    if OPT['RPF']:
        C("two waves touch this workgroup's share of the lines where the die's segments are expected (speed only)")
        I(f'''s_sub_u32 s53, s{sW}, {OPT['RPW']}
        s_cmp_ge_u32 s53, 2
        s_cbranch_scc1 M_NORP
        buffer_load_dword v{vLE}, v{vLX}, {sr(sWS,4)}, s52 offen
M_NORP:''')
    I(f"""
    s_add_u32 s{sTMP}, s{sNC}, {18*1024}
    buffer_load_dwordx4 v{IDX+1}, {sr(sWS,4)}, s{sTMP} offen lds
    s_add_u32 m0, s{sNP}, {XS+16384}
    s_add_u32 s{sTMP}, s{sNC}, {26*1024}
    buffer_load_dwordx4 v{IDX+1}, {sr(sWS,4)}, s{sTMP} offen lds
    v_lshrrev_b32 v{IDX+2}, 4, v2
    s_lshl_b32 s{sTMP}, s{sW}, 2
    v_add_u32 v{IDX+2}, s{sTMP}, v{IDX+2}
    v_xor_b32 v{IDX+2}, v{IDX+2}, v2
    v_and_b32 v{IDX+2}, 7, v{IDX+2}
    v_lshlrev_b32 v{IDX+2}, 4, v{IDX+2}
    v_lshrrev_b32 v{IDX+3}, 3, v2
    v_lshl_or_b32 v{IDX+2}, v{IDX+3}, 7, v{IDX+2}
    """)
    srd(sX, 4, N * 128)
    I(f"""
    s_cmp_ge_u32 s{sW}, 7
    s_cbranch_scc1 M_NOROW
    s_lshl_b32 s{sTMP}, s{sW}, 10
    s_mul_i32 s{sTMP2}, s{sB}, {BN*128}
    s_add_u32 m0, s{sNP}, {XS+32768}
    s_add_u32 s{sTMP2}, s{sTMP2}, s{sTMP}
    buffer_load_dwordx4 v{IDX+2}, {sr(sX,4)}, s{sTMP2} offen lds
M_NOROW:
    s_add_u32 s{sOFP}, s26, s{sD}
    s_addc_u32 s{sOFP+1}, s27, 0
    v_cmp_gt_u32 vcc, {2*NCH}, v0
    v_mul_u32_u24 v{T1}, {CH}, v3
    v_and_b32 v{T2}, 1, v0
    v_lshlrev_b32 v{T2}, 2, v{T2}
    v_min_u32 v1, 390, v0
    v_lshlrev_b32 v1, 7, v1
    """)
    if OPT['RPF']:
        I(f'''s_cmp_ge_u32 s53, 2
        s_cbranch_scc1 M_RW2
        s_waitcnt vmcnt({4 if OPT['RPW'] < 6 else 3})
        s_branch M_RW3
M_RW2:''')
    I(f"""
    s_waitcnt vmcnt(2)
M_RW3:
    v_cndmask_b32 v{vC}, 0, v{vC}, vcc
    v_and_b32 v{T0}, 0xffff, v{vC}
    v_lshrrev_b32 v{vC}, 16, v{vC}
    v_add3_u32 v{T0}, v{T0}, v{T1}, v{T2}
    v_cmp_lt_u32 {sr(sSAVE,2)}, 40, v{vC}
    v_sub_u32 v{vC}, v{vC}, v{T2}
    v_lshlrev_b32 v{vEB}, 5, v{T1}
    v_lshlrev_b32 v{T0}, 2, v{T0}
    v_cmp_lt_i32 vcc, 16, v{vC}
    v_cmp_lt_i32 {sr(52,2)}, 24, v{vC}
    v_cmp_lt_i32 {sr(54,2)}, 32, v{vC}
    buffer_load_dwordx4 {r(pREC,4)}, v{T0}, {sr(sWS,4)}, 0 offen
    buffer_load_dwordx4 {r(pREC+4,4)}, v{T0}, {sr(sWS,4)}, 0 offen offset:32
    """)
    if OPT['XR2']:
        I(f"""
    s_or_b64 vcc, vcc, 1
    s_mov_b64 exec, vcc
    buffer_load_dwordx4 {r(pREC+8,4)}, v{T0}, {sr(sWS,4)}, 0 offen offset:64
    s_mov_b32 s{sXR}, 0
    s_mov_b64 exec, {sr(52,2)}
    s_cbranch_execz M_RL3
    s_mov_b32 s{sXR}, 1
    buffer_load_dwordx4 {r(pREC+12,4)}, v{T0}, {sr(sWS,4)}, 0 offen offset:96
    s_mov_b64 exec, {sr(54,2)}
    s_cbranch_execz M_RL3
    s_mov_b32 s{sXR}, 3
    buffer_load_dwordx4 {r(pREC+16,4)}, v{T0}, {sr(sWS,4)}, 0 offen offset:128
M_RL3:
    s_mov_b64 exec, -1
    """)
    else:
        I(f"""
    s_cmp_lg_u64 {sr(54,2)}, 0
    s_cselect_b32 s{sXR}, 2, 0
    s_cmp_eq_u64 {sr(52,2)}, 0
    s_cbranch_scc1 M_RL3
    s_or_b32 s{sXR}, s{sXR}, 1
    buffer_load_dwordx4 {r(pREC+12,4)}, v{T0}, {sr(sWS,4)}, 0 offen offset:96
    buffer_load_dwordx4 {r(pREC+16,4)}, v{T0}, {sr(sWS,4)}, 0 offen offset:128
M_RL3:
    s_or_b64 vcc, vcc, 1
    s_mov_b64 exec, vcc
    buffer_load_dwordx4 {r(pREC+8,4)}, v{T0}, {sr(sWS,4)}, 0 offen offset:64
    s_mov_b64 exec, -1
    """)
    stamp(1)
    srd(sE, 6, E * 32)
    srd(sOUT, 24, N * 128)
    I(f"""
    s_lshr_b32 s{sTMP}, s{sW}, 2
    s_lshl_b32 s{sTMP}, s{sTMP}, 1
    s_and_b32 s{sTMP2}, s{sW}, 1
    s_add_u32 s{sTMP}, s{sTMP}, s{sTMP2}
    s_lshl_b32 s{sTMP}, s{sTMP}, 13
    s_add_u32 s{sTMP}, s{sTMP}, {XS}
    v_add_u32 v{IDX+2}, s{sTMP}, v{IDX+1}
    v_and_b32 v{T1}, 31, v2
    v_lshlrev_b32 v{vLT}, 2, v{T1}
    v_add_u32 v{vLT}, {XAT}, v{vLT}
    v_lshrrev_b32 v{T2}, 5, v2
    v_bfe_u32 v{IDX}, v2, 1, 3
    v_xor_b32 v{IDX}, v{IDX}, v{T2}
    s_bfe_u32 s{sG0}, s{sW}, 0x10001
    s_lshl_b32 s{sTMP2}, s{sG0}, 13
    s_add_u32 s{sTMP}, s{sTMP2}, {XS+32768}
    v_lshlrev_b32 v{T1}, 7, v{T1}
    v_add_u32 v{T1}, s{sTMP}, v{T1}
    s_and_b32 s{sD}, s{sW}, 1
    s_lshl_b32 s{sD}, s{sD}, 7
    s_add_u32 s{sTMP2}, s{sTMP2}, s{sD}
    v_lshlrev_b32 v{T2}, 10, v{T2}
    v_add3_u32 v{vTA}, v{T2}, v{vLT}, s{sTMP2}
    s_mov_b32 s{sD}, {NLOG2E}
    """)
    for s in range(4):
        I(f"""v_xor_b32 v{AF2+s}, {2*s}, v{IDX}
        v_lshl_add_u32 v{AF2+s}, v{AF2+s}, 4, v{T1}""")
    I(f'v_mov_b32 v{vONE}, 1\nv_mov_b32 v{vFC}, 0xfc')
    validate(0, 12)
    if OPT['XR2']:
        I(f'''s_cmp_eq_u32 s{sXR}, 0
        s_waitcnt vmcnt(4)
        s_cbranch_scc0 M_BA
        s_waitcnt vmcnt(3)
M_BA:
        s_barrier''')
    else: I('s_waitcnt vmcnt(3)\ns_barrier')
    C('x[bucket] @ A (waves 0-3) and x[bucket] @ U (waves 4-7), one 32x32 tile per wave')
    for s in range(4):
        I(f'ds_read_b128 {r(pW+4*s,4)}, v{IDX+2} offset:{s*1024}\nds_read_b128 {r(pA+4*s,4)}, v{AF2+s}')
    I(f"""
    s_cmp_eq_u64 {sr(sSAVE,2)}, 0
    s_cbranch_scc1 M_NOFLAG
    v_mov_b32 v{T1}, {FLAG}
    ds_write_b32 v{T1}, v{vONE}
M_NOFLAG:
    s_waitcnt lgkmcnt(0)""")
    I(mf(pD, pA, pW, '0'))
    for k in range(1, 4): I(mf(pD, pA+4*k, pW+4*k, r(pD, 16)))
    I(f"""
    s_mov_b32 s{sMASK}, {XSENT}
    s_mov_b32 s{sONE}, 1.0
    s_mov_b32 s{sONE+1}, 1.0
    s_mov_b32 s{sMODE}, 0
    s_lshl_b32 s{sM0X}, s{sW}, 13
    s_add_u32 s{sM0X}, s{sM0X}, {XS}
    s_lshl_b32 s{sM0E}, s{sW}, 11
    s_add_u32 s{sM0E}, s{sM0E}, {ES}
    s_nop 3
    s_cmp_ge_u32 s{sW}, 4
    s_cbranch_scc1 M_ADONE""")
    for k in range(16):
        if k == 12: I(f's_cmp_lg_u32 s{sG0}, 0\ns_cbranch_scc1 M_ADONE')
        I(f'v_mul_f32 v{pD+k}, s{sD}, v{pD+k}\nds_write_b32 v{vTA}, v{pD+k} offset:{(8*(k//4)+k%4)*256}')
    I('M_ADONE:\ns_waitcnt vmcnt(0)')
    stamp(2)
    fstamp(1)
    C('counting sort by node, first pass: rank of every record inside its node')
    def mid1():
        I(f"""s_add_u32 m0, s{sNP}, {WBASE+4096}
    s_add_u32 s{sTMP}, s{sNC}, 8192
    buffer_load_dwordx4 v{IDX+1}, {sr(sWS,4)}, s{sNC} offen lds
    s_add_u32 m0, s{sNP}, {WBASE+4096+16384}
    s_cmp_ge_u32 s{sW}, 2
    buffer_load_dwordx4 v{IDX+1}, {sr(sWS,4)}, s{sTMP} offen lds
    s_cbranch_scc1 M_NOW4
    s_add_u32 m0, s{sM0E}, {4*2048+1024}
    s_add_u32 s{sTMP}, s{sNC}, {16*1024}
    buffer_load_dwordx4 v{IDX+1}, {sr(sWS,4)}, s{sTMP} offen lds
M_NOW4:""")
        if OPT['XPF']:
            C("each workgroup touches 1/32 of x so that the table is in its die's L2 when the gathers start")
            I(f'buffer_load_dword v1, v1, {sr(sX,4)}, s{sNN} offen')
    pass_a(0, 12, mid1)
    fstamp(2)
    I(f's_cmp_eq_u32 s{sXR}, 0\ns_cbranch_scc1 M_RAR')
    validate(12, 16)
    pass_a(12, 16)
    I(f's_cmp_ge_u32 s{sXR}, 2\ns_cbranch_scc1 M_RA\nM_RAR:')
    I('s_waitcnt lgkmcnt(0)\ns_barrier')
    fstamp(3)
    C('node bases (every node padded to a multiple of 8 edges)')
    scan()
    fstamp(4)
    I(f'''
    s_cmp_gt_u32 s{sTMP}, {CAP}
    s_cbranch_scc1 M_SLOW
    s_cmp_lg_u32 s{sTMP2}, 0
    s_cbranch_scc1 M_SLOW
    ''')
    if OPT['XR2']:
        I(f'''s_cmp_eq_u32 s{sXR}, 0
    s_cbranch_scc1 M_BATCH
    s_cmp_ge_u32 s{sXR}, 2
    s_cbranch_scc1 M_RB
M_RBR:''')
        pass_b1(12, 16)
    else:
        I(f'''
    s_cmp_eq_u32 s{sXR}, 0
    s_cbranch_scc1 M_BATCH
    s_cmp_ge_u32 s{sXR}, 2
    s_cbranch_scc1 M_RB
M_RBR:''')
        pass_b1(12, 16)
        I('s_waitcnt lgkmcnt(0)')
        pass_b2(12, 16)
    I('M_BATCH:')
    C('second pass: scatter the records into the node-sorted lists')
    pass_b1(0, 12)
    pad_write()
    I(f'''
    v_lshrrev_b32 v{vKE}, 4, v2
    v_xor_b32 v{vKE}, v{vKE}, v2''')
    if G4:
        I(f'''v_lshrrev_b32 v{vKX0}, 3, v2
        v_and_b32 v{vKX0}, 4, v{vKX0}
        v_and_b32 v{vKX1}, 7, v2
        v_xor_b32 v{vKX0}, v{vKX0}, v{vKX1}
        v_lshlrev_b32 v{vKX0}, 4, v{vKX0}
        v_xor_b32 v{vKX1}, 16, v{vKX0}
        v_xor_b32 v{vKX2}, 32, v{vKX0}
        v_xor_b32 v{vKX3}, 48, v{vKX0}''')
    else:
        I(f'''v_and_b32 v{vKX0}, 7, v{vKE}
        v_lshlrev_b32 v{vKX0}, 4, v{vKX0}
        v_xor_b32 v{vKX1}, 64, v{vKX0}''')
    I(f'''v_and_b32 v{vKE}, 1, v{vKE}
    v_lshlrev_b32 v{vKE}, 4, v{vKE}
    s_waitcnt lgkmcnt(0)''')
    pass_b2(0, 12)
    if OPT['XR2']:
        I(f's_cmp_eq_u32 s{sXR}, 0\ns_cbranch_scc1 M_NOB3')
        pass_b2(12, 16)
        I('M_NOB3:')
    C('''tiles (32 edges = four 8-edge granules of four streams) are split over the four SIMD pairs (w, w+4).
    Waves 0-3 start first; waves 4-7 start their own pipeline once waves 0-3 have done K tiles (staggered start, one
    barrier).  Lighter buckets have more slack and use a larger K; waves 0-3 take correspondingly more tiles.''')
    I(f'''
    s_add_u32 s{sTMP}, s{sTMP}, 31
    s_lshr_b32 s52, s{sTMP}, 7
    s_bfe_u32 s53, s{sTMP}, 0x20005
    s_lshr_b32 s59, s{sTMP}, 5
    s_min_u32 s59, s59, {OPT['NREF']}
    s_sub_u32 s59, {OPT['NREF']}, s59
    s_mul_i32 s59, s59, {OPT['SLOPE']}
    s_lshr_b32 s59, s59, 2
    s_min_u32 s59, s59, {OPT['KMAX']}
    s_add_u32 s{sBAR}, s59, {OPT['STAG']+1}
    s_add_u32 s59, s59, {OPT['DELTA']}
    s_max_u32 s54, s52, s59
    s_sub_u32 s54, s54, s59
    s_lshr_b32 s54, s54, 1
    s_add_u32 s55, s52, 1
    s_max_u32 s56, s55, s59
    s_sub_u32 s56, s56, s59
    s_lshr_b32 s56, s56, 1
    s_sub_u32 s52, s52, s54
    s_sub_u32 s55, s55, s56
    s_mul_i32 s57, s55, s53
    s_sub_u32 s58, 4, s53
    s_mul_i32 s58, s58, s52
    s_add_u32 s57, s57, s58
    s_cmp_ge_u32 s{sW}, 4
    s_cselect_b32 s52, s54, s52
    s_cselect_b32 s55, s56, s55
    s_cselect_b32 s57, s57, 0
    s_cselect_b32 s{sBAR}, 0, s{sBAR}
    s_and_b32 s58, s{sW}, 3
    s_cmp_lt_u32 s58, s53
    s_cselect_b32 s{sTW}, s55, s52
    s_min_u32 s53, s53, s58
    s_sub_u32 s58, s58, s53
    s_mul_i32 s53, s53, s55
    s_mul_i32 s58, s58, s52
    s_add_u32 s{sG0}, s57, s53
    s_add_u32 s{sG0}, s{sG0}, s58
    s_lshl_b32 s{sG0}, s{sG0}, 7
    s_add_u32 s{sG0}, s{sG0}, {LX}
    ''')
    if G4:
        I(f"""
    s_lshl_b32 s{sTMP2}, s{sTW}, 4
    v_lshrrev_b32 v{T0}, 3, v2
    v_mul_u32_u24 v{T0}, s{sTMP2}, v{T0}
    v_add_u32 v{vLX}, s{sG0}, v{T0}
    v_bfe_u32 v{T0}, v2, 3, 2
    v_lshrrev_b32 v{T1}, 1, v{T0}
    v_xor_b32 v{T1}, v{T1}, v{T0}
    v_lshrrev_b32 v{T2}, 5, v2
    v_xor_b32 v{T1}, v{T1}, v{T2}
    v_and_b32 v{T1}, 1, v{T1}
    v_lshl_or_b32 v{T0}, v{T0}, 1, v{T1}
    v_mul_u32_u24 v{T0}, s{sTMP2}, v{T0}
    v_bfe_u32 v{T1}, v2, 1, 2
    v_lshl_add_u32 v{T0}, v{T1}, 2, v{T0}
    v_add_u32 v{vLE}, s{sG0}, v{T0}
    s_sub_u32 s{sTMP}, s{sTW}, 1
    v_and_b32 v{T0}, 31, v2
    v_min_u32 v{T0}, s{sTMP}, v{T0}
    v_lshlrev_b32 v{T0}, 4, v{T0}
    v_mad_u32_u24 v{T0}, v{T2}, s{sTMP2}, v{T0}
    s_lshl_b32 s{sTMP2}, s{sTMP2}, 1
    v_add_u32 v{T0}, s{sG0}, v{T0}
    v_add_u32 v{T1}, s{sTMP2}, v{T0}
    v_add_u32 v{T2}, s{sTMP2}, v{T1}
    v_add_u32 v{vSCH}, s{sTMP2}, v{T2}""")
    else:
        I(f"""
    s_lshl_b32 s{sTMP2}, s{sTW}, 5
    v_lshrrev_b32 v{T0}, 4, v2
    v_mul_u32_u24 v{T0}, s{sTMP2}, v{T0}
    v_bfe_u32 v{T1}, v2, 3, 1
    v_lshl_add_u32 v{T0}, v{T1}, 4, v{T0}
    v_add_u32 v{vLX}, s{sG0}, v{T0}
    v_bfe_u32 v{T0}, v2, 3, 2
    v_mul_u32_u24 v{T0}, s{sTMP2}, v{T0}
    v_bfe_u32 v{T1}, v2, 2, 1
    v_lshl_add_u32 v{T0}, v{T1}, 4, v{T0}
    v_lshrrev_b32 v{T1}, 5, v2
    v_lshl_add_u32 v{T0}, v{T1}, 3, v{T0}
    v_bfe_u32 v{T1}, v2, 1, 1
    v_lshl_add_u32 v{T0}, v{T1}, 2, v{T0}
    v_add_u32 v{vLE}, s{sG0}, v{T0}
    s_sub_u32 s{sTMP}, s{sTW}, 1
    v_min_u32 v{T0}, s{sTMP}, v2
    v_lshlrev_b32 v{T0}, 5, v{T0}
    v_add_u32 v{T0}, s{sG0}, v{T0}
    v_add_u32 v{T1}, s{sTMP2}, v{T0}
    v_add_u32 v{T2}, s{sTMP2}, v{T1}
    v_add_u32 v{vSCH}, s{sTMP2}, v{T2}""")
    fstamp(5)
    I(f's_waitcnt vmcnt({1 if OPT["XPF"] else 0}) lgkmcnt(0)\ns_barrier')
    stamp(3)
    if OPT['NOX']: I(f's_mov_b32 s{sX+2}, 0')
    if OPT['NOE']: I(f's_mov_b32 s{sE+2}, 0')
    g0 = dma_tile(Z, 0, 0)
    g1 = dma_tile(Z+16, 4096, 1024)
    C('pipeline start: list entries of tiles 0..2, node of every (tile, stream), gathers of tile 0')
    I(f'''
    ds_read_b128 {r(Z,4)}, v{vLX}
    ds_read_b32 v{Z+4}, v{vLE} offset:16384
    ds_read_b32 v{T0}, v{T0}
    ds_read_b32 v{T1}, v{T1}
    ds_read_b32 v{T2}, v{T2}
    ds_read_b32 v{vSCH}, v{vSCH}
    ds_read_b128 {r(Z+16,4)}, v{vLX} offset:{4*GR}
    ds_read_b32 v{Z+20}, v{vLE} offset:{16384+4*GR}
    ds_read_b128 {r(IDX,4)}, v{vLX} offset:{8*GR}
    ds_read_b32 v{IDX+4}, v{vLE} offset:{16384+8*GR}
    v_lshlrev_b32 v{vFC}, 4, v2
    v_add_u32 v{vFC}, {WBASE}, v{vFC}
    s_cmp_ge_u32 s{sW}, 4
    s_cbranch_scc1 M_NOT0
    s_setprio 1
    s_cmp_eq_u32 s{sTW}, 0
    s_waitcnt lgkmcnt(8)
    s_cbranch_scc1 M_NOT0
    ''')
    for g in (g0 if not OPT['EFIRST'] else g0[4:] + g0[:4]): I('\n'.join(g))
    C('lane t of the schedule register: byte j = node of stream j in tile t, bit 6 set when it differs from tile t-1')
    I(f'''
M_NOT0:
    s_waitcnt lgkmcnt(0)
    v_bfe_u32 v{T0}, v{T0}, 1, 6
    v_bfe_u32 v{T1}, v{T1}, 1, 6
    v_bfe_u32 v{T2}, v{T2}, 1, 6
    v_bfe_u32 v{vSCH}, v{vSCH}, 1, 6
    v_lshl_or_b32 v{T0}, v{T1}, 8, v{T0}
    v_lshl_or_b32 v{T0}, v{T2}, 16, v{T0}
    v_lshl_or_b32 v{vSCH}, v{vSCH}, 24, v{T0}
    v_add_u32 v{vLX}, {12*GR}, v{vLX}
    v_mov_b32 v{T0}, v{vSCH}
    v_readfirstlane_b32 s{sNC}, v{vSCH}
    v_readlane_b32 s{sNC+1}, v{vSCH}, 32
    v_add_u32 v{vLE}, {16384+12*GR}, v{vLE}
    v_mov_b32_dpp v{T0}, v{vSCH} wave_shr:1 row_mask:0xf bank_mask:0xf
    s_mov_b32 s{sT}, 1
    s_mov_b32 s{sT2}, 33
    v_xor_b32 v{T0}, v{T0}, v{vSCH}
    v_add_u32 v{T0}, 0x3f3f3f3f, v{T0}
    v_and_b32 v{T0}, 0x40404040, v{T0}
    {'s_mov_b32 exec_hi, -2' if G4 else ''}
    v_or_b32 v{vSCH}, v{vSCH}, v{T0}
    s_mov_b64 {sr(sNP,2)}, {sr(sNC,2)}
    ''')
    if G4:
        I(f"""s_mov_b32 exec_hi, 0
        v_mov_b32 v{T1}, s{sNC}
        s_not_b64 exec, exec
        v_mov_b32 v{T1}, s{sNC+1}
        s_mov_b64 exec, -1""")
    for j in range(4):
        if G4:
            I(f"""v_bfe_u32 v{T0}, v{T1}, {8*j}, 6
            v_lshl_add_u32 v{T0}, v{T0}, 8, v{vLT}""")
        else:
            I(f"""s_bfe_u32 s{sTMP}, s{sNC}, {(6 << 16) | (8*j)}
            s_lshl_b32 s{sTMP}, s{sTMP}, 8
            v_add_u32 v{T0}, s{sTMP}, v{vLT}""")
        I(f"""ds_read_b32 v{XA+4*j}, v{T0}
        ds_read_b32 v{XA+16+4*j}, v{T0} offset:128""")
    I(f's_cmp_eq_u32 s{sMODE}, 2\ns_cbranch_scc1 M_NOWT')
    C('first batch only: weights into registers, x@U into the aggregate, read-side LDS addresses')
    for f in (16, 0, 1, 2, 3, 8, 9, 10, 11, 17, 4, 5, 6, 7, 12, 13, 14, 15):
        I(f'ds_read_b128 {r(WB+4*f,4)}, v{vFC} offset:{frag_off(f)}')
    I(f'''s_cmp_lt_u32 s{sW}, 4
    s_cbranch_scc1 M_TDONE
    s_bfe_u32 s{sXR}, s{sW}, 0x10001
    v_subrev_u32 v{vTA}, {XAT}, v{vTA}
    v_lshlrev_b32 v{vTA}, 1, v{vTA}
    v_add_u32 v{vTA}, {AGG}, v{vTA}''')
    for k in range(16):
        if k == 12: I(f's_cmp_lg_u32 s{sXR}, 0\ns_cbranch_scc1 M_TDONE')
        I(f'v_cvt_f64_f32 {r(AF+2*(k%8),2)}, v{pD+k}\nds_add_f64 v{vTA}, {r(AF+2*(k%8),2)} offset:{(8*(k//4)+k%4)*512}')
    I('M_TDONE:')
    j_, i_, h_, g_, t_, u_ = AF2, AF2+1, AF2+2, AF2+3, AF2+4, AF2+5
    I(f'''
    s_lshl_b32 s{sMODE}, s{sMODE}, 1
    v_and_b32 v{vLA}, {31 if G4 else 63}, v2
    v_lshlrev_b32 v{vLA}, 3, v{vLA}
    v_add_u32 v{vLA}, {AGG}, v{vLA}
    v_bfe_u32 v{j_}, v2, 3, 2
    v_and_b32 v{i_}, 3, v2
    v_lshrrev_b32 v{h_}, 5, v2
    v_lshrrev_b32 v{t_}, 1, v{j_}
    v_xor_b32 v{g_}, v{t_}, v{j_}
    v_lshrrev_b32 v{u_}, 2, v2
    v_xor_b32 v{g_}, v{g_}, v{u_}
    v_and_b32 v{g_}, 1, v{g_}
    v_xor_b32 v{t_}, v{t_}, v{h_}
    v_lshlrev_b32 v{t_}, 4, v{t_}
    v_lshl_or_b32 v{u_}, v{j_}, 2, v{i_}
    v_lshl_or_b32 v{u_}, v{g_}, 4, v{u_}
    v_lshl_or_b32 v{t_}, v{u_}, 5, v{t_}
    v_add_u32 v{vRE}, s{sM0E}, v{t_}
    ''')
    if G4:
        I(f"""v_bfe_u32 v{u_}, v2, 2, 3
        v_lshl_or_b32 v{u_}, v{i_}, 3, v{u_}
        v_lshlrev_b32 v{u_}, 7, v{u_}
        v_add_u32 v{u_}, s{sM0X}, v{u_}
        v_lshrrev_b32 v{t_}, 1, v{j_}
        v_lshl_or_b32 v{t_}, v{t_}, 2, v{i_}
        v_xor_b32 v{t_}, v{t_}, v{h_}""")
    else:
        I(f"""v_and_b32 v{t_}, 1, v{i_}
        v_lshl_or_b32 v{u_}, v{g_}, 1, v{t_}
        v_lshlrev_b32 v{u_}, 3, v{u_}
        v_lshl_or_b32 v{u_}, v{j_}, 1, v{u_}
        v_lshrrev_b32 v{i_}, 1, v{i_}
        v_or_b32 v{u_}, v{u_}, v{i_}
        v_lshlrev_b32 v{u_}, 7, v{u_}
        v_add_u32 v{u_}, s{sM0X}, v{u_}
        v_lshl_or_b32 v{t_}, v{t_}, 2, v{j_}
        v_xor_b32 v{t_}, v{t_}, v{h_}""")
    for s in range(4):
        I(f'''v_xor_b32 v{g_}, {2*s}, v{t_}
        v_lshl_add_u32 v{vRA+s}, v{g_}, 4, v{u_}''')
    I('M_NOWT:')
    for k in range(8): I(f'v_mov_b64 {r(ACC+2*k,2)}, 0')
    for g in g1: I(g[1])
    for g in dma_tile(IDX, 0, 0): I(g[1])
    if OPT['SCH'] == 2: sch_load()
    if OPT['TRIM']:
        I(f's_max_u32 s{sT2}, s{sTW}, 1\ns_sub_u32 s{sT2}, s{sT2}, 1')
        for q in range(1, 4):
            d = sXQ + 4*(q-1) if q < 3 else 92
            I(f'''s_sub_u32 s{d}, s{sX}, {q*1024}
            s_subb_u32 s{d+1}, s{sX+1}, 0
            s_mov_b32 s{d+2}, {N*128 + q*1024}
            s_mov_b32 s{d+3}, 0x20000''')
    I(f'''
    s_cmp_ge_u32 s{sW}, 4
    s_cbranch_scc1 M_YNG
    s_cmp_eq_u32 s{sTW}, 0
    s_cbranch_scc1 M_BDONE
    ''')
    if OPT['T1L']:
        I('s_waitcnt vmcnt(0) lgkmcnt(0)\nM_W1:')
    else:
        I(f's_cmp_lt_u32 s{sTW}, 2\ns_cbranch_scc1 M_W0')
        dma_issue(g1)
        I('s_waitcnt vmcnt(5) lgkmcnt(0)\nM_W1:')
    I(f'ds_read_b128 {r(AF+16,4)}, v{vRE}')
    for s in range(4): I(f'ds_read_b128 {r(AF+4*s,4)}, v{vRA+s}')
    for ft in range(2):
        for j in range(4):
            for i in range(1, 4): I(f'v_mov_b32 v{XA+16*ft+4*j+i}, v{XA+16*ft+4*j}')
    I('s_waitcnt lgkmcnt(0)')
    for m in zm(0, AF): I(m)
    if OPT['SCH'] == 1: sch_load()
    if OPT['T1L']:
        I(f's_cmp_lt_u32 s{sTW}, 2\ns_cbranch_scc1 M_GO')
        dma_issue(g1)
        I('M_GO:')
    else:
        if OPT['YT0'] != 2: I(f's_cmp_eq_u32 s{sBAR}, 0\ns_cbranch_scc1 M_YNG2')
        if OPT['SCH'] == 3: sch_load('', (16, 18))
        else: I('s_nop 3')
        I('M_GO:')
    if OPT['WAITM']: I('s_mov_b32 s96, 0')
    stamp(4)
    C('''main loop, one tile per pass (two copies: LDS buffer / fragment parity).  Per 32-feature half:
    exp -> +1 -> rcp -> acc += r * hv, with hv = x@V of this half and the gate z of the next half on the matrix pipe.
    The two waves of a SIMD take turns on these vector blocks (priorities); loads and node changes sit between them.''')
    I('.p2align 6')
    for p in range(2):
        nb = 1 - p
        afc, afn = (AF, AF2) if p == 0 else (AF2, AF)
        def eblk(ft, extra):
            if OPT['ALN']: I(f'.p2align {OPT["ALN"]}')
            if OPT['SHF']: I('s_nop 0')
            hv = hm(ft, afc)
            ins = {1: [f's_setprio {OPT["PB"]}']}
            for k in range(4): ins.setdefault(OPT['EF'] + 3*k, []).append(hv[k])
            ins.setdefault(OPT['P2POS'], []).insert(0, f's_setprio {OPT["PB2"]}')
            for k, v in extra.items(): ins.setdefault(k, []).extend(v)
            BLK[:] = weave(exps(ft), ins)
        def rblk(ft, zz, wait=False):
            seq = BLK + pkadd(ft) + (['s_waitcnt lgkmcnt(0)'] if wait else []) + weave(rcps(ft), {3*k: [zz[k]] for k in range(5)}) + pkf(ft)
            I('\n'.join(align8(seq)))
        I(f'M_LOOP{p}:')
        trace()
        if not OPT['O0']: evchk('F', p, sNC)
        I(f'''s_cmp_eq_u32 s{sT}, s{sBAR}
    s_cbranch_scc1 M_SB{p}
M_SBR{p}:
    {'' if OPT['O0'] else 's_setprio 0'}
    {cmpnext()}
    s_cbranch_scc0 M_ND{p}''')
        g = dma_tile(IDX, p*4096, p*1024)
        if OPT['TRIM']:
            I(g[0][0] + '\ns_nop 0\n' + f'buffer_load_dwordx4 v{IDX}, {sr(sX,4)}, 0 offen lds')
            for q in range(1, 4): I(f'buffer_load_dwordx4 v{IDX+q}, {sr(sXQ+4*(q-1) if q < 3 else 92,4)}, 0 offen offset:{q*1024} lds')
            I(g[4][0] + '\ns_nop 0\n' + g[4][2])
        else: dma_issue(g)
        I(f'M_ND{p}:')
        if OPT['IDX0']: I(f'ds_read_b128 {r(IDX,4)}, v{vLX} offset:{4*GR*p}\nds_read_b32 v{IDX+4}, v{vLE} offset:{4*GR*p}')
        if OPT['O0']:
            evchk('F', p, sNC)
            I('s_setprio 0')
        if OPT['SCH'] and G4: I(f's_lshl_b32 m0, s{sT}, 1\ns_nop 0\ns_movrels_b64 {sr(sNN,2)}, s[64:65]')
        elif OPT['SCH']: I(f's_mov_b32 m0, s{sT}\ns_nop 0\ns_movrels_b32 s{sNN}, s67')
        rl = {11: [f'v_readlane_b32 s{sNN}, v{vSCH}, s{sT}']} if not OPT['SCH'] else {}
        if G4 and not OPT['SCH']: rl[13] = [f'v_readlane_b32 s{sNN+1}, v{vSCH}, s{sT2}']
        eblk(0, rl)
        rblk(0, zm(1, afc))
        if not OPT['O1']: evchk('X', p, sNN)
        I(f'''{'' if OPT['O1'] else 's_setprio 0'}
    {cmpnext()}
    {'s_memtime s[92:93]' if OPT['WAITM'] else ''}
    s_cbranch_scc0 M_WZ{p}
    s_waitcnt vmcnt(5)
M_WZR{p}:''')
        if OPT['WAITM']:
            I(f'''s_memtime s[94:95]
            s_waitcnt lgkmcnt(0)
            s_sub_u32 s94, s94, s92
            s_add_u32 s96, s96, s94
            v_writelane_b32 v{vST}, s96, 1''')
        I(f'ds_read_b128 {r(AF+16,4)}, v{vRE} offset:{nb*1024}')
        for s_ in range(4): I(f'ds_read_b128 {r(afn+4*s_,4)}, v{vRA+s_} offset:{nb*4096}')
        if not OPT['IDX0']: I(f'ds_read_b128 {r(IDX,4)}, v{vLX} offset:{4*GR*p}\nds_read_b32 v{IDX+4}, v{vLE} offset:{4*GR*p}')
        if OPT['O1']:
            evchk('X', p, sNN)
            I('s_setprio 0')
        if OPT['WOUT']: I('s_waitcnt lgkmcnt(0)')
        eblk(1, {})
        rblk(1, zm(0, afn), not OPT['WOUT'])
        for q in range(5): I(g[q][1])
        if p == 1: I(f'v_add_u32 v{vLX}, {8*GR}, v{vLX}\nv_add_u32 v{vLE}, {8*GR}, v{vLE}')
        if G4 and not OPT['SCH']: I(f's_add_u32 s{sT2}, s{sT2}, 1')
        I(f'''s_mov_b64 {sr(sNP,2)}, {sr(sNC,2)}
    s_mov_b64 {sr(sNC,2)}, {sr(sNN,2)}
    s_add_u32 s{sT}, s{sT}, 1
    s_cmp_le_u32 s{sT}, s{sTW}''')
        I('s_cbranch_scc0 M_LEND' if p == 0 else 's_cbranch_scc1 M_LOOP0')
    I('M_LEND:')
    trace()
    C('last partial sums of all streams')
    if G4:
        I(f"""s_mov_b32 exec_hi, 0
        v_mov_b32 v{T1}, s{sNP}
        s_not_b64 exec, exec
        v_mov_b32 v{T1}, s{sNP+1}
        s_mov_b64 exec, -1""")
        for j in range(4):
            I(f"""v_add_f32 v{Z+j}, v{ACC+2*j}, v{ACC+2*j+1}
            v_add_f32 v{Z+4+j}, v{ACC+8+2*j}, v{ACC+8+2*j+1}
            v_bfe_u32 v{Z+8+j}, v{T1}, {8*j}, 6
            v_lshl_add_u32 v{Z+8+j}, v{Z+8+j}, 9, v{vLA}""")
        for j in range(8):
            I(f'v_cvt_f64_f32 {r(Z+16+2*j,2)}, v{Z+j}\nds_add_f64 v{Z+8+j%4}, {r(Z+16+2*j,2)} offset:{256*(j//4)}')
    else:
        for j in range(4):
            I(f"""v_add_f32 v{Z+j}, v{ACC+2*j}, v{ACC+2*j+1}
            v_add_f32 v{Z+4+j}, v{ACC+8+2*j}, v{ACC+8+2*j+1}
            s_bfe_u32 s{96+j}, s{sNP}, {(6 << 16) | (8*j)}
            s_lshl_b32 s{96+j}, s{96+j}, 9""")
        for j in range(4): I(f'v_permlane32_swap_b32 v{Z+j}, v{Z+4+j}\nv_add_u32 v{Z+8+j}, s{96+j}, v{vLA}')
        for j in range(4): I(f'v_add_f32 v{Z+j}, v{Z+j}, v{Z+4+j}')
        for j in range(4): I(f'v_cvt_f64_f32 {r(Z+16+2*j,2)}, v{Z+j}\nds_add_f64 v{Z+8+j}, {r(Z+16+2*j,2)}')
    I(f'''
M_BDONE:
    s_cmp_lt_u32 s{sTW}, s{sBAR}
    s_cbranch_scc0 M_BDONE2
    s_waitcnt lgkmcnt(0)
    s_barrier
M_BDONE2:
    s_setprio 0
    s_cmp_lg_u32 s{sMODE}, 0
    s_cbranch_scc1 M_SNEXT
M_EPI:''')
    stamp(5)
    if OPT['EPI']:
        C('out = silu(x@U + agg): feature pair tid + 512*k, k = 0..2 (and k = 3 for the first 32 threads)')
        I(f'''
    v_lshlrev_b32 v{T0}, 4, v0
    v_add_u32 v{T0}, {AGG}, v{T0}
    s_mov_b32 s{sTMP}, {NLOG2E}
    s_mul_i32 s{sTMP2}, s{sB}, {BN*128}
    s_add_u32 s{sD}, s{sTMP2}, 4096
    v_lshlrev_b32 v{T1}, 2, v0
    s_cmp_lg_u32 s{sW}, 0
    s_waitcnt lgkmcnt(0)
    s_barrier
    s_cbranch_scc1 M_EP3
    ds_read_b128 {r(Z+28,4)}, v{T0} offset:24576
M_EP3:
    ds_read_b128 {r(Z+16,4)}, v{T0}
    ds_read_b128 {r(Z+20,4)}, v{T0} offset:8192
    ds_read_b128 {r(Z+24,4)}, v{T0} offset:16384''')
        for k in range(6):
            if k % 2 == 0: I(f's_waitcnt lgkmcnt({2 - k//2})')
            I(f'v_cvt_f32_f64 v{Z+k}, {r(Z+16+2*k,2)}')
        def act(ks):
            for k in ks: I(f'v_mul_f32 v{Z+8+k}, s{sTMP}, v{Z+k}')
            for k in ks: I(f'v_exp_f32 v{Z+8+k}, v{Z+8+k}')
            for k in ks: I(f'v_add_f32 v{Z+8+k}, 1.0, v{Z+8+k}')
            for k in ks: I(f'v_rcp_f32 v{Z+8+k}, v{Z+8+k}')
            for k in ks: I(f'v_mul_f32 v{Z+k}, v{Z+k}, v{Z+8+k}')
            for k in ks[::2]: I(f'v_cvt_pk_bf16_f32 v{Z+16+k//2}, v{Z+k}, v{Z+k+1}')
        act(list(range(6)))
        I(f'''buffer_store_dword v{Z+16}, v{T1}, {sr(sOUT,4)}, s{sTMP2} offen sc1
        buffer_store_dword v{Z+17}, v{T1}, {sr(sOUT,4)}, s{sTMP2} offen offset:2048 sc1
        buffer_store_dword v{Z+18}, v{T1}, {sr(sOUT,4)}, s{sD} offen sc1
        s_cbranch_scc1 M_FIN
        s_mov_b32 exec_hi, 0
        v_cvt_f32_f64 v{Z+6}, {r(Z+28,2)}
        v_cvt_f32_f64 v{Z+7}, {r(Z+30,2)}''')
        act([6, 7])
        I(f'buffer_store_dword v{Z+19}, v{T1}, {sr(sOUT,4)}, s{sD} offen offset:2048 sc1')
    else:
        C('out = silu(x@U + agg), eight features per thread')
        I(f'''
    v_lshlrev_b32 v{T0}, 6, v0
    v_add_u32 v{T0}, {AGG}, v{T0}
    s_mov_b32 s{sTMP}, {NLOG2E}
    s_mul_i32 s{sTMP2}, s{sB}, {BN*128}
    v_lshlrev_b32 v{T1}, 4, v0
    v_cmp_gt_u32 vcc, {BN*8}, v0
    s_waitcnt lgkmcnt(0)
    s_barrier
    s_and_saveexec_b64 {sr(sSAVE,2)}, vcc
    s_cbranch_execz M_FIN
    ds_read_b128 {r(Z+16,4)}, v{T0}
    ds_read_b128 {r(Z+20,4)}, v{T0} offset:16
    ds_read_b128 {r(Z+24,4)}, v{T0} offset:32
    ds_read_b128 {r(Z+28,4)}, v{T0} offset:48
    ''')
        for k in range(8):
            if k % 2 == 0: I(f's_waitcnt lgkmcnt({3 - k//2})')
            I(f'v_cvt_f32_f64 v{Z+k}, {r(Z+16+2*k,2)}')
        for k in range(8): I(f'v_mul_f32 v{Z+8+k}, s{sTMP}, v{Z+k}')
        for k in range(8): I(f'v_exp_f32 v{Z+8+k}, v{Z+8+k}')
        for k in range(8): I(f'v_add_f32 v{Z+8+k}, 1.0, v{Z+8+k}')
        for k in range(8): I(f'v_rcp_f32 v{Z+8+k}, v{Z+8+k}')
        for k in range(8): I(f'v_mul_f32 v{Z+k}, v{Z+k}, v{Z+8+k}')
        for k in range(4): I(f'v_cvt_pk_bf16_f32 v{Z+16+k}, v{Z+2*k}, v{Z+2*k+1}')
        I(f'buffer_store_dwordx4 {r(Z+16,4)}, v{T1}, {sr(sOUT,4)}, s{sTMP2} offen sc1')
    I('M_FIN:')
    if OPT['AMP']:
        I(f'''s_cmp_lg_u32 s2, 0
        s_cbranch_scc1 M_END
        s_cmp_lg_u32 s{sW}, 0
        s_cbranch_scc1 M_END
        s_waitcnt vmcnt(0)
        s_memrealtime s[60:61]
        s_add_u32 s56, s26, {WF + 0x10000}
        s_addc_u32 s57, s27, 0
        s_load_dword s58, s[56:57], 0
        s_waitcnt lgkmcnt(0)''')
        if OPT['AMP'] == 2: I('s_mov_b32 s60, s3')
        if OPT['AMP'] == 3: I('s_mov_b32 s58, s3')
        if OPT['AMP'] >= 10: I('s_mov_b32 s58, s3\ns_mov_b32 s60, s100')
        I(f'''s_sub_u32 s59, s60, s58
        s_min_u32 s59, s59, 20000
        s_mul_i32 s59, s59, 10
        s_memrealtime s[60:61]
        s_waitcnt lgkmcnt(0)
        s_mov_b32 s58, s60
M_SPIN:
        s_memrealtime s[60:61]
        s_waitcnt lgkmcnt(0)
        s_sub_u32 s62, s60, s58
        s_cmp_lt_u32 s62, s59
        s_cbranch_scc1 M_SPIN''')
    if OPT['STAMP']:
        I('s_mov_b64 exec, -1\ns_waitcnt vmcnt(0)')
        putstamp(6)
        I(f'''v_writelane_b32 v{vST}, s{sTW}, 7
        s_add_u32 s52, s26, 0x8000000
        s_addc_u32 s53, s27, 0
        s_mov_b32 s54, 0x100000
        s_mov_b32 s55, 0x20000
        s_lshl_b32 s56, s2, 3
        s_add_u32 s56, s56, s{sW}
        s_lshl_b32 s56, s56, 5
        v_lshlrev_b32 v1, 2, v2
        s_mov_b64 exec, 0xff
        buffer_store_dword v{vST}, v1, s[52:55], s56 offen''')
        if OPT['TRACE']:
            I(f'''s_mov_b64 exec, -1
            s_lshl_b32 s56, s56, 3
            s_add_u32 s56, s56, 0x20000
            buffer_store_dword v{vTR}, v1, s[52:55], s56 offen''')
    I('M_END:\ns_endpgm')
    C('node changes: M_F adds a finished partial sum to the aggregate, M_X loads the next node\'s x@A row as accumulator seed')
    for p in range(2):
        for j in range(4):
            I(f'M_F{p}{j}:\ns_setprio {OPT["PE"]}')
            flush_j(j)
            I(f's_branch M_FR{p}{j}')
            I(f'M_X{p}{j}:\ns_setprio {OPT["PE"]}')
            xa_j(j)
            I(f's_branch M_XR{p}{j}')
        I(f'M_WZ{p}:\ns_waitcnt vmcnt(0)\ns_branch M_WZR{p}')
        I(f'M_SB{p}:\ns_barrier\ns_branch M_SBR{p}')
    I(f'''M_W0:
    s_waitcnt vmcnt(0) lgkmcnt(0)
    s_branch M_W1
M_YNG:
    s_cmp_eq_u32 s{sTW}, 0
    s_cbranch_scc1 M_YE''')
    if OPT['SCH'] == 3: sch_load('Y', (12, 16))
    if OPT['YT0']: I('s_waitcnt lgkmcnt(0)\ns_barrier')
    for g in g0: I('\n'.join(g))
    if OPT['YT0'] == 2:
        I(f's_cmp_lt_u32 s{sTW}, 2\ns_cbranch_scc1 M_W0')
        dma_issue(g1)
        I('s_waitcnt vmcnt(5)\ns_branch M_W1')
    I(f'''s_branch M_W0
M_YE:
    s_waitcnt lgkmcnt(0)
    s_barrier
    s_branch M_BDONE2
''')
    if OPT['YT0'] != 2:
        I(f'''M_YNG2:
    {'' if OPT['YT0'] else 's_barrier'}
    s_cmp_lt_u32 s{sTW}, 2
    s_cbranch_scc1 M_GO''')
        dma_issue(g1)
        I('s_branch M_GO')
    for f in OUT: f()
    I('M_RA:')
    validate(16, 20)
    pass_a(16, 20)
    I('s_branch M_RAR')
    I('M_RB:')
    pass_b1(16, 20)
    I('s_waitcnt lgkmcnt(0)')
    pass_b2(16, 20)
    validate(0, 4)
    I('s_branch M_RBR')
    C('general path (a segment or the list is too long for the registers / LDS): one batch per segment')
    I(f"""
M_SLOW:
    s_mov_b32 s{sMODE}, 1
    s_mov_b32 s{sSEG}, -1
M_SNEXT:
    s_add_u32 s{sSEG}, s{sSEG}, 1
    s_cmp_ge_u32 s{sSEG}, {NCH}
    s_cbranch_scc1 M_EPI
    s_lshl_b32 s{sTMP}, s{sSEG}, 6
    s_load_dword s{sD}, {sr(sOFP,2)}, s{sTMP}
    s_waitcnt lgkmcnt(0)
    s_lshr_b32 s{sTMP2}, s{sD}, 16
    s_cmp_eq_u32 s{sTMP2}, 0
    s_cbranch_scc1 M_SNEXT
    s_barrier""")
    cnt_zero()
    I(f"""
    s_and_b32 s{sD}, s{sD}, 0xffff
    s_mul_i32 s{sTMP}, s{sSEG}, {CH}
    s_add_u32 s{sD}, s{sD}, s{sTMP}
    v_add_u32 v{T0}, s{sD}, v0
    v_mov_b32 v{T1}, s{sTMP}
    v_lshlrev_b32 v{vEB}, 5, v{T1}
    v_lshlrev_b32 v{T0}, 2, v{T0}
    v_sub_u32 v{vC}, s{sTMP2}, v0
    v_add_u32 v{vC}, 511, v{vC}
    v_ashrrev_i32 v{vC}, 9, v{vC}
    v_cmp_lt_i32 vcc, 4, v{vC}
    v_add_u32 v{T1}, 4, v{vC}
    v_mov_b32 v{vFC}, 0xfc
    v_cndmask_b32 v{vC}, v{vC}, v{T1}, vcc""")
    for s in range(7):
        I(f'buffer_load_dword v{pREC+s}, v{T0}, {sr(sWS,4)}, 0 offen')
        if s < 6: I(f'v_add_u32 v{T0}, 2048, v{T0}')
    validate(0, 12)
    I('s_waitcnt vmcnt(0) lgkmcnt(0)\ns_barrier')
    pass_a(0, 7)
    I('s_waitcnt lgkmcnt(0)\ns_barrier')
    scan()
    I(f's_mov_b32 s{sXR}, 0\ns_branch M_BATCH\nM_CODE_END:')

def kd(name, vgpr, sgpr, acc=None):
    return f'''.amdhsa_kernel {name}
  .amdhsa_next_free_vgpr {vgpr}
  .amdhsa_next_free_sgpr {sgpr}
  .amdhsa_accum_offset {acc or (vgpr+3)//4*4}
  .amdhsa_group_segment_fixed_size 0
  .amdhsa_kernarg_size 80
  .amdhsa_user_sgpr_count 2
  .amdhsa_user_sgpr_kernarg_segment_ptr 1
  .amdhsa_system_sgpr_workgroup_id_x 1
.end_amdhsa_kernel
'''

HEAD = open('gather_scatter__edge_featured_mpnn_egc__graph.s.ref').read().split('; Override')[0]
gen_part()
n0 = len(L)
gen_main()
if OPT['AG']:
    import re
    lo, hi = (4, 75) if OPT['AG'] == 1 else (4, 107)
    cnt = hi - lo + 1
    def m1(m):
        n = int(m.group(1))
        return f'v{n}' if n < lo else (f'a{n-lo}' if n <= hi else f'v{n-cnt}')
    def m2(m):
        a, b = int(m.group(1)), int(m.group(2))
        return f'v[{a}:{b}]' if a < lo else (f'a[{a-lo}:{b-lo}]' if a <= hi else f'v[{a-cnt}:{b-cnt}]')
    for i in range(n0, len(L)):
        L[i] = re.sub(r'\bv\[(\d+):(\d+)\]', m2, re.sub(r'\bv(\d+)\b', m1, L[i]))
LAUNCH = f'''; @launch kernel=part_kernel grid=({NCH+5+NCPW},1,1) block=(512,1,1) lds={K1_LDS}
; @launch kernel={MAIN} grid=({NB},1,1) block=(512,1,1) lds={M_LDS}''' if not OPT['FUSE'] else f'; @launch grid=({NB},1,1) block=(512,1,1) lds={M_LDS}'
out = HEAD + f'''; Two launches.  part_kernel: counting sort of every 3200-edge chunk by destination bucket (49 nodes) plus MFMA-ready
; weight fragments.  Main kernel: one workgroup per bucket sorts its edges by node in LDS, gathers x[src] / e_attr rows
; by LDS-DMA, computes gate and message with MFMA + exp/rcp, sums per node in registers and writes silu(x@U + agg).
{LAUNCH}
.amdgcn_target "amdgcn-amd-amdhsa--gfx950"
.text
''' + '\n'.join(L) + '''
.section .rodata,"a"
.p2align 6
''' + ('' if OPT['FUSE'] else kd('part_kernel', 88 if (OPT['AMP'] or OPT['STAMP']) else 76, 80) + '.p2align 6\n') + kd(MAIN, 248 if (OPT['TRACE'] or OPT['STAMP']) else NV, 102, 168 if OPT['AG'] == 1 else None)
open(sys.argv[1], 'w').write(out)
```
